```python
import torch

def _softmax(x, axis=-1):
    return torch.softmax(x, dim=axis)
def _gelu(x):
    return torch.nn.functional.gelu(x, approximate="tanh")
def _silu(x):
    return torch.nn.functional.silu(x)
def _sigmoid(x):
    return torch.sigmoid(x)
def _layernorm(x, axis=-1, eps=1e-5):
    m = x.mean(dim=axis, keepdim=True)
    v = x.var(dim=axis, keepdim=True, unbiased=False)
    return (x - m) / torch.sqrt(v + eps)
def _scatter_add(tgt, idx, src, axis=0):
    return tgt.clone().index_add_(axis, idx, src)
def _segment_sum(src, seg, n):
    out = torch.zeros((n,) + src.shape[1:], dtype=src.dtype)
    return out.index_add_(0, seg, src)
def _pad(x, pw):
    flat = tuple(v for pair in reversed(pw) for v in pair)
    return torch.nn.functional.pad(x, flat)

kernel_name = 'interleave_layers__linear_attn_block__glu_gated_reglu__prompt'

def setup_inputs():

    _w = (lambda a: (lambda t: t.to(torch.bfloat16) if t.is_floating_point() else t)(torch.as_tensor(a)))
    def _A_setup():
        B, S, D = 1, 2048, 512
        return {
            "x": _w((lambda *s: torch.randn(*s, dtype=torch.bfloat16) * 0.05)(B, S, D)),
            "wqkv": _w((lambda *s: torch.randn(*s, dtype=torch.bfloat16) * 0.05)(D, 3 * D)),
            "wo": _w((lambda *s: torch.randn(*s, dtype=torch.bfloat16) * 0.05)(D, D)),
        }
    _A_in = _A_setup()

    def _B_setup():
        B, S, D, F = 1, 2048, 512, 1376
        return {
            "x": _w((lambda *s: torch.randn(*s, dtype=torch.bfloat16) * 0.05)(B, S, D)),
            "W_gate": _w((lambda *s: torch.randn(*s, dtype=torch.bfloat16) * 0.4)(D, F) * (2.0 / D) ** 0.5),
            "W_up": _w((lambda *s: torch.randn(*s, dtype=torch.bfloat16) * 0.4)(D, F) * (2.0 / D) ** 0.5),
            "W_down": _w((lambda *s: torch.randn(*s, dtype=torch.bfloat16) * 0.4)(F, D) * (1.0 / F) ** 0.5),
        }
    _B_in = _B_setup()

    return {
        "A_x": _A_in["x"],
        "A_wqkv": _A_in["wqkv"],
        "A_wo": _A_in["wo"],
        "B_x": _B_in["x"],
        "B_W_gate": _B_in["W_gate"],
        "B_W_up": _B_in["W_up"],
        "B_W_down": _B_in["W_down"],
    }

def reference(A_x, A_wqkv, A_wo, B_x, B_W_gate, B_W_up, B_W_down):
    def _A_ref(x, wqkv, wo):
        B, S, D = x.shape
        H = 32; Dh = D // H
        qkv = (lambda x, *d: x.permute(*d))((x @ wqkv).reshape(B, S, 3, H, Dh), 2, 0, 3, 1, 4)
        q, k, v = qkv[0], qkv[1], qkv[2]
        phi = lambda t: torch.where(t > 0, t + 1, torch.exp(t)) + 1e-6
        pq, pk = phi(q), phi(k)
        kv = torch.einsum("bhsd,bhse->bhde", pk, v)
        z = torch.einsum("bhsd->bhd", pk)
        num = torch.einsum("bhqd,bhde->bhqe", pq, kv)
        den = torch.einsum("bhqd,bhd->bhq", pq, z)[..., None] + 1e-6
        o = num / den
        return (lambda x, *d: x.permute(*d))(o, 0, 2, 1, 3).reshape(B, S, D) @ wo

    def _B_ref(x, W_gate, W_up, W_down):
        gate = torch.einsum("bsd,df->bsf", x, W_gate)
        up = torch.einsum("bsd,df->bsf", x, W_up)
        gate = gate * (lambda x, dt: x.to(dt))(gate > 0, gate.dtype)
        h = gate * up
        return torch.einsum("bsf,fd->bsd", h, W_down)

    x = A_x
    x = x + _A_ref(_layernorm(x, axis=-1), A_wqkv, A_wo)
    x = x + _B_ref(_layernorm(x, axis=-1), B_W_gate, B_W_up, B_W_down)
    x = x + _A_ref(_layernorm(x, axis=-1), A_wqkv, A_wo)
    x = x + _B_ref(_layernorm(x, axis=-1), B_W_gate, B_W_up, B_W_down)
    return x
```

```python
import re

TRANS = ('v_exp_', 'v_log_', 'v_rcp_', 'v_rsq_', 'v_sqrt_', 'v_sin_', 'v_cos_')


def regs_of(tok):
    tok = tok.strip()
    neg = tok.lstrip('-|').rstrip('|')
    m = re.fullmatch(r'([vsa])(\d+)', neg)
    if m:
        return [(m.group(1), int(m.group(2)))]
    m = re.fullmatch(r'([vsa])\[(\d+):(\d+)\]', neg)
    if m:
        return [(m.group(1), i) for i in range(int(m.group(2)), int(m.group(3)) + 1)]
    if neg in ('vcc',):
        return [('s', 'vcc_lo'), ('s', 'vcc_hi')]
    if neg in ('vcc_lo', 'vcc_hi'):
        return [('s', neg)]
    if neg == 'exec':
        return [('s', 'exec_lo'), ('s', 'exec_hi')]
    if neg in ('exec_lo', 'exec_hi'):
        return [('s', neg)]
    if neg == 'm0':
        return [('s', 'm0')]
    return []


class Ins:
    __slots__ = ('text', 'kind', 'w', 'r', 'ab', 'c', 'states', 'wide', 'sr')

    def __init__(self):
        self.w = set(); self.r = set(); self.ab = set(); self.c = set(); self.states = 1
        self.wide = set(); self.sr = set()


def parse(text):
    t = text.split(';')[0].strip()
    parts = t.split(None, 1)
    op = parts[0]
    rest = parts[1] if len(parts) > 1 else ''
    ops = []
    depth = 0; cur = ''
    for ch in rest:
        if ch == '[': depth += 1
        if ch == ']': depth -= 1
        if ch == ',' and depth == 0:
            ops.append(cur.strip()); cur = ''
        else:
            cur += ch
    if cur.strip():
        ops.append(cur.strip())
    mods = ''
    if ops:
        last = ops[-1].split(None, 1)
        ops[-1] = last[0]
        mods = last[1] if len(last) > 1 else ''
    return op, ops, mods


def classify(text):
    op, ops, mods = parse(text)
    I = Ins(); I.text = text
    R = [regs_of(o) for o in ops]
    allr = set(x for l in R for x in l)
    if op == 's_nop':
        I.kind = 'nop'; I.states = int(ops[0], 0) + 1
    elif op.startswith('v_mfma'):
        I.kind = 'mfma'
        I.w = set(R[0]); I.ab = set(R[1]) | set(R[2]); I.c = set(R[3]); I.r = I.ab | I.c
    elif op.startswith('v_cmp'):
        I.kind = 'valu'; I.w = set(R[0]); I.r = allr - I.w if len(R) > 1 else set()
        I.r = set(x for l in R[1:] for x in l)
    elif op.startswith('v_permlane') and 'swap' in op:
        I.kind = 'perm'; I.w = set(allr); I.r = set(allr)
    elif op.startswith('v_readfirstlane') or op.startswith('v_readlane'):
        I.kind = 'rdlane'; I.w = set(R[0]); I.r = set(x for l in R[1:] for x in l)
    elif op.startswith('v_'):
        I.kind = 'trans' if op.startswith(TRANS) else 'valu'
        I.w = set(R[0]); I.r = set(x for l in R[1:] for x in l)
        if op.startswith(('v_fmac', 'v_dot2c', 'v_pk_fmac', 'v_writelane', 'v_mac')):
            I.r |= I.w
        if op.startswith(('v_add_co', 'v_sub_co', 'v_addc_co', 'v_subb_co', 'v_subrev_co', 'v_mad_u64', 'v_div_scale')):
            I.w |= set(R[1]); I.r = set(x for l in R[2:] for x in l)
        if op.startswith('v_cndmask') and len(ops) == 3:
            I.r |= {('s', 'vcc_lo'), ('s', 'vcc_hi')}
        if 'dpp' in op or 'row_' in mods or 'quad_perm' in mods:
            I.kind = 'dpp'
    elif op.startswith('ds_read') or op.startswith('ds_bpermute') or op.startswith('ds_permute') or op.startswith('ds_swizzle'):
        I.kind = 'dsr'; I.w = set(R[0]); I.r = set(x for l in R[1:] for x in l)
    elif op.startswith('ds_'):
        I.kind = 'dsw'; I.r = allr
    elif op.startswith('buffer_load') or op.startswith('global_load'):
        if re.search(r'\blds\b', mods) or 'lds' in op:
            I.kind = 'dma'; I.r = allr | {('s', 'm0')}
        else:
            I.kind = 'vld'; I.w = set(R[0]); I.r = set(x for l in R[1:] for x in l)
    elif op.startswith('buffer_store') or op.startswith('global_store'):
        I.kind = 'vst'; I.r = allr
        if 'x4' in op or 'x3' in op:
            I.wide = set(R[0]) if op.startswith('buffer') else set(R[1])
    elif op.startswith('buffer_atomic') or op.startswith('global_atomic'):
        I.kind = 'vst'; I.r = allr
        if re.search(r'\bsc0\b', mods):
            I.kind = 'vld'; I.w = set(R[0])
    elif op.startswith('s_load') or op.startswith('s_buffer_load') or op.startswith('s_memtime'):
        I.kind = 'smem'; I.w = set(R[0]); I.r = set(x for l in R[1:] for x in l)
    elif op.startswith(('s_cmp', 's_cbranch', 's_branch', 's_barrier', 's_waitcnt', 's_endpgm', 's_setprio', 's_sleep', 's_bitcmp')):
        I.kind = 'sctl'; I.r = allr
    elif op.startswith('s_'):
        I.kind = 'salu'; I.w = set(R[0]) if R else set(); I.r = set(x for l in R[1:] for x in l)
        if 'saveexec' in op:
            I.w |= {('s', 'exec_lo'), ('s', 'exec_hi')}
    else:
        raise ValueError('unknown instruction: ' + text)
    return I


VALU_K = ('valu', 'trans', 'perm', 'rdlane', 'dpp')
VMEM_K = ('vld', 'vst', 'dma')
DS_K = ('dsr', 'dsw')


def need(P, Q):
    n = 0
    pv = set(x for x in P.w if x[0] in 'va')
    ps = set(x for x in P.w if x[0] == 's')
    if P.kind in VALU_K:
        if Q.kind == 'mfma' and pv & Q.r: n = max(n, 2)
        if P.kind == 'trans' and Q.kind in VALU_K and Q.kind != 'trans' and pv & (Q.r | Q.w): n = max(n, 1)
        if P.kind == 'trans' and Q.kind in VMEM_K + DS_K and pv & Q.r: n = max(n, 1)
        if Q.kind == 'rdlane' and pv & Q.r: n = max(n, 1)
        if Q.kind in ('perm', 'dpp') and pv & Q.r: n = max(n, 2)
        if ps:
            if Q.kind in VALU_K + ('mfma',) and ps & Q.r: n = max(n, 4 if Q.kind == 'rdlane' else 2)
            if Q.kind in VMEM_K and ps & Q.r: n = max(n, 5)
            if ('s', 'exec_lo') in ps: n = max(n, 5)
    if P.kind == 'mfma':
        if Q.kind == 'mfma':
            if P.w & Q.ab: n = max(n, 8)
            if P.w & Q.c and P.w != Q.c: n = max(n, 6)
            if P.w & Q.w and P.w != Q.c: n = max(n, 8)
        elif Q.kind in VALU_K + VMEM_K + DS_K:
            if P.w & (Q.r | Q.w): n = max(n, 8)
            if Q.kind in VALU_K and P.c & Q.w: n = max(n, 3)
            if Q.kind in ('vld', 'dsr') and P.c & Q.w: n = max(n, 3)
    if P.kind == 'salu' and ('s', 'm0') in P.w and Q.kind == 'dma': n = max(n, 1)
    if P.wide and P.wide & Q.w: n = max(n, 2)
    return n


class Asm:
    def __init__(self):
        self.out = []
        self.hist = []
        self.lds = []
        self.vm = []
        self.nins = 0
        self.opt = None

    def raw(self, text):
        self.out.append(text)

    def label(self, name, pad=True):
        self.out.append(name + ':')

    def _push(self, I):
        self.out.append('    ' + I.text)
        self.hist.append(I)
        if len(self.hist) > 40:
            self.hist = self.hist[-30:]
        self.nins += 1

    def _autowait(self, I):
        touched = I.r | I.w
        idx = -1
        for i, d in enumerate(self.lds):
            if d & touched: idx = i
        vidx = -1
        for i, d in enumerate(self.vm):
            if d & touched: vidx = i
        w = []
        if vidx >= 0:
            n = len(self.vm) - 1 - vidx
            n = min(n, 63)
            w.append(f'vmcnt({n})')
            self.vm = self.vm[len(self.vm) - n:] if n else []
        if idx >= 0:
            n = len(self.lds) - 1 - idx
            n = min(n, 15)
            w.append(f'lgkmcnt({n})')
            self.lds = self.lds[len(self.lds) - n:] if n else []
        if w:
            self._push(classify('s_waitcnt ' + ' '.join(w)))

    def __call__(self, text):
        for line in text.strip().split('\n'):
            line = line.strip()
            if not line or line.startswith(';'):
                continue
            I = classify(line)
            self._autowait(I)
            d = 0; pad = 0
            for P in reversed(self.hist):
                n = need(P, I)
                if n > d: pad = max(pad, n - d)
                d += P.states
                if d >= 12: break
            while pad > 0:
                k = min(pad, 8)
                self._push(classify(f's_nop {k-1}'))
                pad -= k
            self._push(I)
            if I.kind == 'sctl' and line.startswith('s_waitcnt'):
                m = re.search(r'lgkmcnt\((\d+)\)', line)
                if m:
                    n = int(m.group(1)); self.lds = self.lds[len(self.lds) - n:] if n else []
                m = re.search(r'vmcnt\((\d+)\)', line)
                if m:
                    n = int(m.group(1)); self.vm = self.vm[len(self.vm) - n:] if n else []
            if I.kind in DS_K: self.lds.append(set(I.w))
            if I.kind in VMEM_K: self.vm.append(set(I.w))
            if I.kind == 'smem': self.lds.append(set())

    def wait_lds_all(self):
        if self.lds:
            self('s_waitcnt lgkmcnt(0)')

    def wait_vm_all(self):
        if self.vm:
            self('s_waitcnt vmcnt(0)')

    def vm_out(self):
        return len(self.vm)

    def flush_hazards(self, n=9):
        need_pad = 0
        d = 0
        for P in reversed(self.hist):
            if P.kind == 'mfma': need_pad = max(need_pad, 8 - d)
            elif P.kind in VALU_K: need_pad = max(need_pad, 5 - d)
            elif P.wide: need_pad = max(need_pad, 2 - d)
            elif P.kind == 'salu' and ('s', 'm0') in P.w: need_pad = max(need_pad, 1 - d)
            d += P.states
            if d >= 12: break
        if need_pad > 0:
            self(f's_nop {need_pad-1}')

    def begin_opt(self):
        assert self.opt is None
        self.opt = (list(self.hist), len(self.lds), len(self.vm))

    def end_opt(self):
        pre, nl, nv = self.opt
        assert len(self.lds) <= nl or True
        blk = self.hist[len(pre):] if len(self.hist) >= len(pre) and self.hist[:len(pre)] == pre else None
        newh = list(pre)
        if blk is None:
            blk = self.hist[-12:]
        for I in blk:
            J = Ins(); J.text = I.text; J.kind = I.kind; J.w = I.w; J.r = I.r; J.ab = I.ab; J.c = I.c
            J.wide = I.wide; J.states = 0
            newh.append(J)
        self.hist = newh
        self.opt = None

    def fresh(self):
        self.hist = []; self.lds = []; self.vm = []

    def text(self):
        return '\n'.join(self.out) + '\n'


def kernel_text(name, body, vgpr, sgpr=102, accum=None):
    accum = accum or ((vgpr + 3) // 4 * 4)
    return f"""
.text
.globl {name}
.p2align 8
.type {name},@function
{name}:
{body}
.section .rodata,"a"
.p2align 6
.amdhsa_kernel {name}
  .amdhsa_next_free_vgpr {vgpr}
  .amdhsa_next_free_sgpr {sgpr}
  .amdhsa_accum_offset {accum}
  .amdhsa_group_segment_fixed_size 0
  .amdhsa_kernarg_size 80
  .amdhsa_user_sgpr_count 2
  .amdhsa_user_sgpr_kernarg_segment_ptr 1
  .amdhsa_system_sgpr_workgroup_id_x 1
.end_amdhsa_kernel
"""
```

```python
import sys
from asmlib import Asm, kernel_text

KB = 1024
WS_PQ = 0
WS_X1 = 2 << 20
WS_H = 4 << 20
WS_X2 = 10 << 20
WS_KV = 12 << 20
WS_ST1 = (12 << 20) + (256 << 10)
WS_ST2 = (12 << 20) + (512 << 10)
WS_CS = (12 << 20) + (768 << 10)
WS_BYTES = 268435456

S_PTR = 16
S_DBG = 32
S_WS = 34
SRD_A, SRD_B, SRD_W, SRD_M = 36, 40, 44, 48
S_WAVE = 3
LOG2E = 1.4426950408889634


def f2u(x):
    import struct
    return struct.unpack('<I', struct.pack('<f', x))[0]


def srd(a, dst, ptr, size):
    a(f's_mov_b32 s{dst}, s{ptr}')
    a(f's_mov_b32 s{dst+1}, s{ptr+1}')
    a(f's_mov_b32 s{dst+2}, {size}')
    a(f's_mov_b32 s{dst+3}, 0x00020000')


def R(b, n=4):
    return f'v[{b}:{b+n-1}]' if n > 1 else f'v{b}'


class Cfg:
    pass


def prologue(a, name, nwg):
    a(f's_cmp_ge_u32 s2, {nwg}')
    a(f's_cbranch_scc1 L_end_{name}')
    a(f's_load_dwordx16 s[16:31], s[0:1], 0')
    a(f's_load_dwordx4 s[32:35], s[0:1], 64')
    a('v_and_b32 v1, 63, v0')
    a('v_lshrrev_b32 v2, 6, v0')
    a('v_readfirstlane_b32 s3, v2')
    a('v_lshrrev_b32 v2, 4, v1')
    a('v_and_b32 v3, 15, v1')


def chunk_bounds(chunks):
    st = []; s = 0
    for c in chunks:
        st.append(s); s += c
    return st, s


def loader(a, C):
    st, nk = chunk_bounds(C.chunks)
    assert nk == C.NK
    slot = (C.RT + 2 * C.P) * KB
    nA = C.RT // 4
    events = []
    per = nA + C.nB
    issued = 0

    def issue(j):
        base = C.ring0 + (j % C.NS) * slot
        for i in range(nA):
            a(f's_add_u32 m0, s5, {base + i*4*KB}')
            a(f'buffer_load_dwordx4 v{8+i}, s[{SRD_A}:{SRD_A+3}], s6 offen lds')
        for i in range(C.nB):
            a(f's_add_u32 m0, s5, {base + C.RT*KB + i*4*KB}')
            a(f'buffer_load_dwordx4 v{12+i}, s[{SRD_B}:{SRD_B+3}], s7 offen lds')
        if j + 1 < C.NK:
            a(f's_add_u32 s7, s7, {C.strideB}')
            a(f's_add_u32 s6, s6, {C.strideA}')
            a(f's_cmp_eq_u32 s6, {C.NK*C.strideA}')
            a('s_cselect_b32 s6, 0, s6')
            a('s_cselect_b32 s7, 0, s7')

    nc = len(C.chunks)
    for c in range(nc):
        end_c = st[c] + C.chunks[c] - 1
        free_front = (st[c - 1] - 1 if c >= 1 else -1) + C.NS
        want = min(C.NK - 1, free_front, (st[c] - 1) + C.D)
        want = max(want, end_c)
        assert want <= free_front, (c, want, free_front)
        while issued <= want:
            issue(issued); issued += 1
        out = (issued - 1 - end_c) * per
        assert out <= 63
        a(f's_waitcnt vmcnt({out})')
        a('s_barrier')
    assert issued == C.NK
    a('s_endpgm')
    a.fresh()


def setup_loader_common(a, C, amode, bmap, rowbytesB):
    a('s_lshl_b32 s5, s4, 10')
    if amode == 'F':
        a(f's_mul_i32 s10, s4, {C.KSA*KB}')
        a('s_add_u32 s10, s10, s8')
        a('v_lshlrev_b32 v8, 4, v1')
        a('v_add_u32 v8, s10, v8')
        for i in range(1, C.RT // 4):
            a(f'v_add_u32 v{8+i}, {i*4*C.KSA*KB}, v8')
    else:
        a('v_lshrrev_b32 v4, 2, v1')
        a('v_and_b32 v5, 3, v1')
        a('v_sub_u32 v6, 4, v2')
        a('v_and_b32 v6, 3, v6')
        a('v_xor_b32 v5, v5, v6')
        a('v_lshlrev_b32 v4, 10, v4')
        a('v_lshl_add_u32 v8, v5, 4, v4')
        a(f's_lshl_b32 s10, s4, 14')
        a('s_add_u32 s10, s10, s8')
        a('v_add_u32 v8, s10, v8')
        for i in range(1, C.RT // 4):
            a(f'v_add_u32 v{8+i}, {i*4*16*KB}, v8')
    a('v_bfe_u32 v4, v1, 2, 2')
    a('v_bfe_u32 v5, v1, 1, 1')
    a('v_and_b32 v6, 1, v2')
    a('v_xor_b32 v5, v5, v6')
    a('v_and_b32 v6, 1, v1')
    a('v_lshlrev_b32 v5, 5, v5')
    a('v_lshl_add_u32 v5, v6, 4, v5')
    if bmap == 'F':
        a('v_lshl_add_u32 v4, v2, 2, v4')
        hstep = 16
    else:
        a('v_lshl_add_u32 v4, v2, 3, v4')
        hstep = 4
    a(f'v_mul_u32_u24 v4, {rowbytesB}, v4')
    a('v_add_u32 v12, v4, v5')
    a('s_and_b32 s10, s4, 1')
    a(f's_mul_i32 s10, s10, {hstep*rowbytesB}')
    a('s_add_u32 s10, s10, s9')
    a('v_add_u32 v12, s10, v12')
    for i in range(1, 3):
        a(f'v_add_u32 v{12+i}, {i*C.pstep}, v12')


def lds_bases(a, C, vX, xoff_sgpr, amode, vW, nwin):
    if amode == 'F':
        a(f'v_lshlrev_b32 v{vX}, 4, v1')
    else:
        a('v_lshrrev_b32 v4, 2, v3')
        a('v_sub_u32 v4, 4, v4')
        a('v_and_b32 v4, 3, v4')
        a('v_xor_b32 v4, v4, v2')
        a('v_lshlrev_b32 v4, 4, v4')
        a(f'v_lshl_add_u32 v{vX}, v3, 6, v4')
    if xoff_sgpr is not None:
        a(f'v_add_u32 v{vX}, s{xoff_sgpr}, v{vX}')
    for w in range(1, nwin):
        a(f'v_add_u32 v{vX+w}, {w*65536}, v{vX}')


def wpat(a, dst, u_is_reg, u):
    a('v_and_b32 v4, 1, v2')
    if u_is_reg:
        a(f'v_xor_b32 v4, s{u}, v4')
    elif u:
        a('v_xor_b32 v4, 1, v4')
    a('v_lshlrev_b32 v4, 5, v4')
    a('v_lshl_add_u32 v4, v2, 8, v4')
    a('v_bfe_u32 v5, v1, 2, 2')
    a('v_lshl_add_u32 v4, v5, 6, v4')
    a('v_and_b32 v5, 3, v1')
    a(f'v_lshl_add_u32 v{dst}, v5, 3, v4')


def ldsrd(kind, dst, basereg, off):
    w = off // 65536
    o = off % 65536
    if kind == 'b128':
        return f'ds_read_b128 {R(dst)}, v{basereg+w} offset:{o}'
    if kind == 'tr':
        return f'ds_read_b64_tr_b16 {R(dst,2)}, v{basereg+w} offset:{o}'
    raise ValueError


def interleave(a, mf, rd, per=1, first=0):
    ri = 0
    for i, m in enumerate(mf):
        if callable(m): m()
        else: a(m)
        if i >= first:
            for _ in range(per):
                if ri < len(rd):
                    a(rd[ri]); ri += 1
    while ri < len(rd):
        a(rd[ri]); ri += 1


def main_loop(a, C, reads, mfmas, hook=None, per=1):
    st, nk = chunk_bounds(C.chunks)
    starts = set(st)
    a('s_barrier')
    for t in reads(0): a(t)
    for j in range(C.NK):
        rd = []
        if j + 1 < C.NK:
            if (j + 1) in starts:
                a.wait_lds_all()
                a('s_barrier')
            rd = reads(j + 1)
        interleave(a, mfmas(j), rd, per=per)
        if hook: hook(j)


def stats_load(a, vdst, nrt, s_off):
    a('v_lshlrev_b32 v4, 4, v1')
    for t in range(nrt):
        a(f'buffer_load_dwordx4 {R(vdst+4*t)}, v4, s[{SRD_W}:{SRD_W+3}], s{s_off} offen offset:{t*KB}')


def stats_finish(a, vsum, vsq, vmean, vrstd, tmp):
    a(f'v_mul_f32 v{vmean}, {hex(f2u(1/512))}, v{vsum}')
    a(f'v_mul_f32 v{tmp}, {hex(f2u(1/512))}, v{vsq}')
    a(f'v_fma_f32 v{tmp}, -v{vmean}, v{vmean}, v{tmp}')
    a(f'v_max_f32 v{tmp}, 0, v{tmp}')
    a(f'v_add_f32 v{tmp}, {hex(f2u(1e-5))}, v{tmp}')
    a(f'v_rsq_f32 v{vrstd}, v{tmp}')


def stats_reduce(a, vsrc, vmean, vrstd, t0, t1):
    s, q = vsrc, vsrc + 1
    a(f'v_add_f32 v{s}, v{vsrc}, v{vsrc+2}')
    a(f'v_add_f32 v{q}, v{vsrc+1}, v{vsrc+3}')
    for sw in ('v_permlane32_swap_b32', 'v_permlane16_swap_b32'):
        a(f'v_mov_b32 v{t0}, v{s}')
        a(f'v_mov_b32 v{t1}, v{q}')
        a(f'{sw} v{s}, v{t0}')
        a(f'{sw} v{q}, v{t1}')
        a(f'v_add_f32 v{s}, v{s}, v{t0}')
        a(f'v_add_f32 v{q}, v{q}, v{t1}')
    stats_finish(a, s, q, vmean, vrstd, t0)


def pk(op, d, s0, s1, s2=None, b0=None, b1=None, b2=None, neg0=False, neg1=False):
    def opnd(s, b):
        if b is None:
            assert s % 2 == 0, s
            return f'v[{s}:{s+1}]', 0, 1
        base = s & ~1
        h = s & 1
        return f'v[{base}:{base+1}]', h, h
    srcs = [opnd(s0, b0), opnd(s1, b1)]
    if s2 is not None: srcs.append(opnd(s2, b2))
    assert d % 2 == 0
    t = f'{op} v[{d}:{d+1}], ' + ', '.join(s[0] for s in srcs)
    t += ' op_sel:[' + ','.join(str(s[1]) for s in srcs) + ']'
    t += ' op_sel_hi:[' + ','.join(str(s[2]) for s in srcs) + ']'
    if neg0 or neg1:
        n = [1 if neg0 else 0, 1 if neg1 else 0] + ([0] if s2 is not None else [])
        t += ' neg_lo:[' + ','.join(map(str, n)) + '] neg_hi:[' + ','.join(map(str, n)) + ']'
    return t


MF = 'v_mfma_f32_16x16x32_bf16'
MF16 = 'v_mfma_f32_16x16x16_bf16'


def gen_s1(name, L, opt):
    a = Asm()
    C = Cfg()
    C.RT, C.P, C.NK = 8, 3, 16
    C.NS, C.D = opt.get('s1_ns', 9), opt.get('s1_d', 5)
    C.chunks = opt.get('s1_chunks', [1, 1, 2, 2, 2, 2, 2, 2, 1, 1])
    C.ring0 = 0
    slot = 14 * KB
    SCR = C.NS * slot
    lds_bytes = SCR + 12 * KB
    amode = 'R' if L == 0 else 'F'
    bmap = 'S' if L == 0 else 'F'
    C.KSA = 16
    C.strideA = 64 if L == 0 else KB
    C.strideB = 32 * 3072
    C.pstep = 2 * 1024
    nwin = (lds_bytes + 65535) // 65536
    prologue(a, name, 256)
    opt['map_s1'](a)
    a('s_waitcnt lgkmcnt(0)')
    if L == 0: srd(a, SRD_A, S_PTR + 0, 2048 * 1024)
    else: srd(a, SRD_A, S_WS, WS_BYTES)
    srd(a, SRD_B, S_PTR + 2, 512 * 3072)
    srd(a, SRD_W, S_WS, WS_BYTES)
    srd(a, SRD_M, S_DBG, 256)
    a('s_cmp_lt_u32 s3, 4')
    a(f's_cbranch_scc1 L_comp_{name}')
    a('s_sub_u32 s4, s3, 4')
    if L == 0:
        a('s_lshl_b32 s8, s12, 17')
    else:
        a('s_lshl_b32 s8, s12, 17')
        a(f's_add_u32 s8, s8, {WS_X2}')
    a('s_lshr_b32 s9, s4, 1')
    a('s_lshl_b32 s9, s9, 10')
    a('s_lshl_b32 s10, s13, 6')
    a('s_add_u32 s9, s9, s10')
    a(f's_mul_i32 s6, s14, {C.strideA}')
    a(f's_mul_i32 s7, s14, {C.strideB}')
    setup_loader_common(a, C, amode, bmap, 3072)
    a('s_cmp_ge_u32 s4, 2')
    a(f's_cbranch_scc1 L_ld1_{name}')
    sv = (list(a.hist))
    C.nB = 2
    loader(a, C)
    a.label(f'L_ld1_{name}')
    a.hist = sv
    C.nB = 1
    loader(a, C)
    a.label(f'L_comp_{name}')
    a('s_nop 4')
    ACQ, ACK, ACV = 64, 80, 96
    SS, SG, CS = 112, 120, 128
    FR = 152
    ONES = 216
    vX, vW0, vW1 = 8, 11, 14
    vT, vDb, vZero, vKVa = 20, 21, 22, 17
    inloop_stats = (L == 0)
    inloop_cs = True
    a('s_lshl_b32 s4, s13, 2')
    a('s_add_u32 s4, s4, s3')
    a('s_lshl_b32 s4, s4, 2')
    a(f'v_mov_b32 v{vDb}, s4')
    a(f'v_mov_b32 v{vT}, 1')
    a(f'v_mov_b32 v{vZero}, 0')
    a('s_mov_b64 exec, 1')
    a(f'buffer_atomic_add v{vT}, v{vDb}, s[{SRD_M}:{SRD_M+3}], 0 offen sc0')
    a('s_mov_b64 exec, -1')
    KVB = WS_KV + L * 65536
    a('s_lshl_b32 s5, s13, 11')
    a('s_lshl_b32 s6, s3, 9')
    a('s_add_u32 s5, s5, s6')
    a(f's_add_u32 s5, s5, {KVB}')
    a(f'v_lshl_add_u32 v{vKVa}, v1, 2, s5')
    a('s_lshl_b32 s5, s13, 7')
    a(f's_add_u32 s5, s5, {KVB + 32768}')
    a(f'v_lshl_add_u32 v{vKVa+1}, v1, 2, s5')
    STL = 24
    if not inloop_stats:
        a('s_lshl_b32 s5, s12, 3')
        a('s_lshl_b32 s6, s3, 1')
        a('s_add_u32 s5, s5, s6')
        a('s_lshl_b32 s5, s5, 10')
        a(f's_add_u32 s5, s5, {WS_ST2}')
        stats_load(a, STL, 2, 5)
    a('s_lshl_b32 s4, s3, 11')
    lds_bases(a, C, vX, 4, amode, None, nwin)
    wpat(a, vW0, False, 0)
    wpat(a, vW1, False, 1)
    for w in range(1, nwin):
        a(f'v_add_u32 v{vW0+w}, {w*65536}, v{vW0}')
        a(f'v_add_u32 v{vW1+w}, {w*65536}, v{vW1}')
    for i in range(4): a(f'v_mov_b32 v{ONES+i}, 0x3f803f80')
    for r in range(64, 152): a(f'v_mov_b32 v{r}, 0')
    MEAN, RSTD = 32, 34
    if not inloop_stats:
        for t in range(2):
            stats_reduce(a, STL + 4 * t, MEAN + t, RSTD + t, 4, 5)

    def fx(s, t): return FR + 32 * s + 4 * t
    def fw(s, p, u): return FR + 32 * s + 8 + 4 * (2 * p + u)

    def reads(j):
        s = j & 1
        base = C.ring0 + (j % C.NS) * slot
        l = [ldsrd('b128', fx(s, 0), vX, base), ldsrd('b128', fx(s, 1), vX, base + KB)]
        for p in range(3):
            for u in range(2):
                for h in range(2):
                    l.append(ldsrd('tr', fw(s, p, u) + 2 * h, vW1 if u else vW0, base + (8 + 2 * p + h) * KB))
        return l

    def mfmas(j):
        s = j & 1
        l = []
        if inloop_stats:
            for t in range(2):
                l.append(f'{MF} {R(SS+4*t)}, {R(ONES)}, {R(fx(s,t))}, {R(SS+4*t)}')
                l.append(f'{MF} {R(SG+4*t)}, {R(fx(s,t))}, {R(fx(s,t))}, {R(SG+4*t)}')
        for u in range(2):
            for t in range(2):
                d = ACQ + 8 * t + 4 * u
                l.append(f'{MF} {R(d)}, {R(fw(s,0,u))}, {R(fx(s,t))}, {R(d)}')
            if inloop_cs:
                l.append(f'{MF} {R(CS+4*u)}, {R(fw(s,0,u))}, {R(ONES)}, {R(CS+4*u)}')
        for p, AC in ((1, ACK), (2, ACV)):
            for u in range(2):
                for t in range(2):
                    d = AC + 8 * u + 4 * t
                    l.append(f'{MF} {R(d)}, {R(fx(s,t))}, {R(fw(s,p,u))}, {R(d)}')
                if inloop_cs:
                    l.append(f'{MF} {R(CS+8*p+4*u)}, {R(ONES)}, {R(fw(s,p,u))}, {R(CS+8*p+4*u)}')
        return l

    def hook(j):
        if j == 3:
            a('s_waitcnt vmcnt(0)')
            a(f'v_readfirstlane_b32 s8, v{vT}')
            a('s_cmp_eq_u32 s8, 0')
            a(f's_cbranch_scc0 L_z1_{name}')
            a.begin_opt()
            a(f'buffer_atomic_swap v{vZero}, v{vKVa}, s[{SRD_W}:{SRD_W+3}], 0 offen')
            a(f'buffer_atomic_swap v{vZero}, v{vKVa}, s[{SRD_W}:{SRD_W+3}], 0 offen offset:256')
            a('s_cmp_eq_u32 s3, 0')
            a(f's_cbranch_scc0 L_z1_{name}')
            a('s_mov_b32 exec_hi, 0')
            a(f'buffer_atomic_swap v{vZero}, v{vKVa+1}, s[{SRD_W}:{SRD_W+3}], 0 offen')
            a('s_mov_b64 exec, -1')
            a.end_opt()
            a.label(f'L_z1_{name}')
        if j == 9:
            a('s_waitcnt vmcnt(0)')
            a(f'v_mov_b32 v{vT}, 0x10000')
            a('s_cmp_eq_u32 s8, 0')
            a(f's_cbranch_scc0 L_z2_{name}')
            a.begin_opt()
            a('s_mov_b64 exec, 1')
            a(f'buffer_atomic_add v{vT}, v{vDb}, s[{SRD_M}:{SRD_M+3}], 0 offen')
            a('s_mov_b64 exec, -1')
            a.end_opt()
            a.label(f'L_z2_{name}')
        if j == 13:
            a('s_waitcnt vmcnt(0)')
            a(f'v_mov_b32 v{vT}, 0')
            a('s_mov_b64 exec, 1')
            a(f'buffer_atomic_or v{vT}, v{vDb}, s[{SRD_M}:{SRD_M+3}], 0 offen sc0')
            a('s_mov_b64 exec, -1')

    main_loop(a, C, reads, mfmas, hook, per=1)

    STB = SCR + 8 * KB
    a('s_lshl_b32 s4, s3, 8')
    a(f's_add_u32 s4, s4, {STB}')
    a(f'v_lshl_add_u32 v6, v3, 2, s4')
    a(f'v_lshl_add_u32 v7, v2, 4, s4')
    if inloop_stats:
        a('v_and_b32 v4, 3, v3')
        for t in range(2):
            a('v_cmp_eq_u32 vcc, 1, v4')
            a(f'v_cndmask_b32 v{SG+4*t}, v{SG+4*t}, v{SG+4*t+1}, vcc')
            a('v_cmp_eq_u32 vcc, 2, v4')
            a(f'v_cndmask_b32 v{SG+4*t}, v{SG+4*t}, v{SG+4*t+2}, vcc')
            a('v_cmp_eq_u32 vcc, 3, v4')
            a(f'v_cndmask_b32 v{SG+4*t}, v{SG+4*t}, v{SG+4*t+3}, vcc')
            stats_finish(a, SS + 4 * t, SG + 4 * t, MEAN + t, RSTD + t, 5)
        a('v_lshrrev_b32 v4, 2, v3')
        a('v_cmp_eq_u32 vcc, v4, v2')
        a('s_mov_b64 exec, vcc')
    for t in range(2):
        a(f'ds_write_b32 v6, v{MEAN+t} offset:{64*t}')
        a(f'ds_write_b32 v6, v{RSTD+t} offset:{128+64*t}')
    a('s_mov_b64 exec, -1')
    a('s_waitcnt lgkmcnt(0)')
    MT, RT_, RTL = 36, 44, 52
    if inloop_stats:
        for t in range(2):
            a(f'ds_read_b32 v{RSTD+t}, v6 offset:{128+64*t}')
    for t in range(2):
        a(f'ds_read_b128 {R(MT+4*t)}, v7 offset:{64*t}')
        a(f'ds_read_b128 {R(RT_+4*t)}, v7 offset:{128+64*t}')
    CONE, CEPS, CL2E = 60, 61, 62
    a(f'v_mov_b32 v{CONE}, 1.0')
    a(f'v_mov_b32 v{CEPS}, {hex(f2u(1e-6))}')
    a(f'v_mov_b32 v{CL2E}, {hex(f2u(LOG2E))}')
    RFL = 24
    for t in range(2):
        a(f'v_mul_f32 v{RFL+t}, v{CL2E}, v{RSTD+t}')
    for i in range(0, 8, 2):
        a(pk('v_pk_mul_f32', RTL + i, RT_ + i, CL2E, b1=0))
    T = FR

    def phi_pairs(items):
        n = len(items)
        for i, (ac, m, cs, r, rl, dst) in enumerate(items):
            a(pk('v_pk_fma_f32', ac, m[0], cs[0], ac, b0=m[1], b1=cs[1], neg0=True))
        for i, (ac, m, cs, r, rl, dst) in enumerate(items):
            a(pk('v_pk_mul_f32', T + 2 * i, ac, rl[0], b1=rl[1]))
            a(pk('v_pk_fma_f32', ac, ac, r[0], CONE, b1=r[1], b2=0))
        for i in range(2 * n):
            a(f'v_exp_f32 v{T+i}, v{T+i} clamp')
        for i, (ac, m, cs, r, rl, dst) in enumerate(items):
            a(f'v_max_f32 v{ac}, v{ac}, v{T+2*i}')
            a(f'v_max_f32 v{ac+1}, v{ac+1}, v{T+2*i+1}')
        for i, (ac, m, cs, r, rl, dst) in enumerate(items):
            a(pk('v_pk_add_f32', ac, ac, CEPS, b1=0))
        for i, (ac, m, cs, r, rl, dst) in enumerate(items):
            a(f'v_cvt_pk_bf16_f32 v{dst}, v{ac}, v{ac+1}')

    PK_, PV, PQ = FR + 16, FR + 24, FR + 32
    items = []
    for u in range(2):
        for t in range(2):
            for hh in range(2):
                items.append((ACK + 8 * u + 4 * t + 2 * hh, (MT + 4 * t + 2 * hh, None), (CS + 8 + 4 * u, 0),
                              (RT_ + 4 * t + 2 * hh, None), (RTL + 4 * t + 2 * hh, None), PK_ + 4 * u + 2 * t + hh))
    phi_pairs(items)
    for u in range(2):
        for t in range(2):
            for hh in range(2):
                ac = ACV + 8 * u + 4 * t + 2 * hh
                a(pk('v_pk_fma_f32', ac, MT + 4 * t + 2 * hh, CS + 16 + 4 * u, ac, b1=0, neg0=True))
    for u in range(2):
        for t in range(2):
            for hh in range(2):
                ac = ACV + 8 * u + 4 * t + 2 * hh
                a(pk('v_pk_mul_f32', ac, ac, RT_ + 4 * t + 2 * hh))
    for u in range(2):
        for t in range(2):
            for hh in range(2):
                ac = ACV + 8 * u + 4 * t + 2 * hh
                a(f'v_cvt_pk_bf16_f32 v{PV+4*u+2*t+hh}, v{ac}, v{ac+1}')
    KD, ZD = FR + 40, FR + 48
    for u in range(2):
        a(f'{MF} {R(KD+4*u)}, {R(PK_+4*u)}, {R(PV+4*u)}, 0')
        a(f'{MF} {R(ZD+4*u)}, {R(PK_+4*u)}, {R(ONES)}, 0')
    items = []
    for t in range(2):
        for u in range(2):
            for hh in range(2):
                items.append((ACQ + 8 * t + 4 * u + 2 * hh, (MEAN + t, 0), (CS + 4 * u + 2 * hh, None),
                              (RSTD + t, 0), (RFL + t, 0), PQ + 4 * t + 2 * u + hh))
    a('s_lshl_b32 s4, s3, 11')
    a(f's_add_u32 s4, s4, {SCR}')
    a(f'v_lshl_add_u32 v6, v1, 4, s4')
    a('s_lshl_b32 s4, s3, 7')
    a(f's_add_u32 s4, s4, {SCR + 9*KB}')
    a(f'v_lshl_add_u32 v7, v2, 4, s4')
    for u in range(2):
        a(f'ds_write_b128 v6, {R(KD+4*u)} offset:{u*KB}')
    a('s_mov_b32 exec_lo, 0x00010001')
    a('s_mov_b32 exec_hi, 0x00010001')
    for u in range(2):
        a(f'ds_write_b128 v7, {R(ZD+4*u)} offset:{u*64}')
    a('s_mov_b64 exec, -1')
    a('s_waitcnt lgkmcnt(0)')
    a('s_barrier')
    a('s_lshl_b32 s4, s3, 9')
    a(f's_add_u32 s4, s4, {SCR}')
    a(f'v_lshl_add_u32 v6, v1, 2, s4')
    RD = FR + 40
    for i in range(2):
        for w in range(4):
            a(f'ds_read_b32 v{RD+4*i+w}, v6 offset:{w*2048+i*256}')
    a(f'v_and_b32 v7, 31, v1')
    a(f'v_lshlrev_b32 v7, 2, v7')
    a(f'v_add_u32 v7, {SCR + 9*KB}, v7')
    for w in range(4):
        a(f'ds_read_b32 v{RD+8+w}, v7 offset:{w*128}')
    for i in range(3):
        a(f'v_add_f32 v{RD+4*i}, v{RD+4*i}, v{RD+4*i+1}')
        a(f'v_add_f32 v{RD+4*i+2}, v{RD+4*i+2}, v{RD+4*i+3}')
        a(f'v_add_f32 v{RD+4*i}, v{RD+4*i}, v{RD+4*i+2}')
    a.label(f'L_poll_{name}')
    a('s_waitcnt vmcnt(0)')
    a(f'v_readfirstlane_b32 s9, v{vT}')
    a('s_cmp_ge_u32 s9, 0x10000')
    a(f's_cbranch_scc1 L_go_{name}')
    a(f'v_mov_b32 v{vT}, 0')
    a('s_mov_b64 exec, 1')
    a(f'buffer_atomic_or v{vT}, v{vDb}, s[{SRD_M}:{SRD_M+3}], 0 offen sc0')
    a('s_mov_b64 exec, -1')
    a(f's_branch L_poll_{name}')
    a.label(f'L_go_{name}')
    a.vm = []
    for i in range(2):
        a(f'buffer_atomic_add_f32 v{RD+4*i}, v{vKVa}, s[{SRD_W}:{SRD_W+3}], 0 offen offset:{i*256}')
    a('s_cmp_eq_u32 s3, 0')
    a(f's_cbranch_scc0 L_nz_{name}')
    a('s_mov_b32 exec_hi, 0')
    a(f'buffer_atomic_add_f32 v{RD+8}, v{vKVa+1}, s[{SRD_W}:{SRD_W+3}], 0 offen')
    a('s_mov_b64 exec, -1')
    a.label(f'L_nz_{name}')
    a.vm = []
    phi_pairs(items)
    a('s_lshl_b32 s4, s12, 3')
    a('s_lshl_b32 s5, s3, 1')
    a('s_add_u32 s4, s4, s5')
    a('s_lshl_b32 s4, s4, 4')
    a('s_add_u32 s4, s4, s13')
    a('s_lshl_b32 s4, s4, 10')
    a(f's_add_u32 s4, s4, {WS_PQ}')
    a(f's_add_u32 s5, s4, {16*KB}')
    a('v_lshlrev_b32 v6, 4, v1')
    a(f'buffer_store_dwordx4 {R(PQ)}, v6, s[{SRD_W}:{SRD_W+3}], s4 offen')
    a(f'buffer_store_dwordx4 {R(PQ+4)}, v6, s[{SRD_W}:{SRD_W+3}], s5 offen')
    a.label(f'L_end_{name}')
    a('s_endpgm')
    return kernel_text(name, a.text(), 224), lds_bytes, 256


def gen_s24(name, which, L, opt):
    a = Asm()
    C = Cfg()
    C.RT, C.P = 4, 2
    att = (which == 2)
    C.NK = 16 if att else 43
    if att:
        C.NS, C.D = opt.get('s2_ns', 12), opt.get('s2_d', 8)
        C.chunks = opt.get('s2_chunks', [1, 1, 2, 2, 2, 2, 2, 2, 1, 1])
    else:
        C.NS, C.D = opt.get('s4_ns', 14), opt.get('s4_d', 8)
        C.chunks = opt.get('s4_chunks', [1, 2] + [3] * 12 + [2, 1, 1])
    C.ring0 = 0
    slot = 8 * KB
    SCR = C.NS * slot
    KVL = SCR
    ZL = SCR + 16 * KB
    OUTL = SCR + 18 * KB
    lds_bytes = SCR + 28 * KB
    nwin = (lds_bytes + 65535) // 65536
    C.KSA = C.NK
    C.strideA = KB
    C.strideB = 32 * 1024
    C.pstep = 0
    C.nB = 1
    final = (which == 4 and L == 1)
    res_rowmajor = (which == 2 and L == 0)
    a_off = WS_PQ if att else WS_H
    res_off = (WS_X2 if att else WS_X1)
    out_off = (WS_X1 if att else WS_X2)
    st_off = WS_ST1 if att else WS_ST2
    prologue(a, name, 256)
    opt['map_s24'](a, C.NK)
    a('s_waitcnt lgkmcnt(0)')
    srd(a, SRD_A, S_WS, WS_BYTES)
    if att: srd(a, SRD_B, S_PTR + 4, 512 * 1024)
    else: srd(a, SRD_B, S_PTR + 12, 1376 * 1024)
    srd(a, SRD_W, S_WS, WS_BYTES)
    if final: srd(a, SRD_M, S_PTR + 14, 2048 * 1024)
    elif res_rowmajor: srd(a, SRD_M, S_PTR + 0, 2048 * 1024)
    a('s_cmp_lt_u32 s3, 4')
    a(f's_cbranch_scc1 L_comp_{name}')
    a('s_sub_u32 s4, s3, 4')
    a(f's_mul_i32 s8, s12, {4*C.KSA*KB}')
    a(f's_add_u32 s8, s8, {a_off}')
    a('s_lshr_b32 s9, s4, 1')
    a('s_lshl_b32 s9, s9, 6')
    a('s_lshl_b32 s10, s13, 7')
    a('s_add_u32 s9, s9, s10')
    a(f's_mul_i32 s6, s14, {C.strideA}')
    a(f's_mul_i32 s7, s14, {C.strideB}')
    setup_loader_common(a, C, 'F', 'F', 1024)
    loader(a, C)
    a.label(f'L_comp_{name}')
    a('s_nop 4')
    ACC = 64
    FX = 80
    FKV = 88
    FZ = 96
    FW = 104
    N0, N1, DN, OF = 152, 156, 160, 164
    EPS4 = 172
    ONES = 176
    RES = 24
    KVT = 180
    vX, vW0, vW1, vKV, vZ = 8, 11, 14, 17, 18
    a('s_lshl_b32 s15, s12, 2')
    a('s_add_u32 s15, s15, s3')
    if res_rowmajor:
        a('s_lshl_b32 s4, s15, 14')
        a('s_lshl_b32 s5, s13, 7')
        a('s_add_u32 s4, s4, s5')
        a('v_lshlrev_b32 v4, 10, v3')
        a('v_lshl_add_u32 v4, v2, 3, v4')
        for T in range(4):
            a(f'buffer_load_dwordx2 {R(RES+2*T,2)}, v4, s[{SRD_M}:{SRD_M+3}], s4 offen offset:{32*T}')
    else:
        a('s_lshl_b32 s4, s15, 4')
        a('s_lshl_b32 s5, s13, 1')
        a('s_add_u32 s4, s4, s5')
        a('s_lshl_b32 s4, s4, 10')
        a(f's_add_u32 s4, s4, {res_off}')
        a('v_lshlrev_b32 v4, 4, v1')
        for i in range(2):
            a(f'buffer_load_dwordx4 {R(RES+4*i)}, v4, s[{SRD_W}:{SRD_W+3}], s4 offen offset:{i*KB}')
    if att:
        KVB = WS_KV + L * 65536
        a('s_lshl_b32 s4, s3, 13')
        a(f's_add_u32 s4, s4, {KVB}')
        a(f's_add_u32 s5, s4, 4096')
        a('v_lshlrev_b32 v4, 4, v1')
        for i in range(8):
            a(f'buffer_load_dwordx4 {R(KVT+4*i)}, v4, s[{SRD_W}:{SRD_W+3}], s{4+i//4} offen offset:{(i%4)*KB}')
        a('v_and_b32 v5, 31, v1')
        a('s_lshl_b32 s4, s3, 9')
        a(f's_add_u32 s4, s4, {KVB + 32768}')
        a('v_lshlrev_b32 v6, 4, v5')
        a(f'buffer_load_dwordx4 {R(N0)}, v6, s[{SRD_W}:{SRD_W+3}], s4 offen')
    a('s_lshl_b32 s4, s3, 10')
    lds_bases(a, C, vX, 4, 'F', None, nwin)
    wpat(a, vW0, False, 0)
    wpat(a, vW1, False, 1)
    for w in range(1, nwin):
        a(f'v_add_u32 v{vW0+w}, {w*65536}, v{vW0}')
        a(f'v_add_u32 v{vW1+w}, {w*65536}, v{vW1}')
    for i in range(4): a(f'v_mov_b32 v{ONES+i}, 0x3f803f80')
    if att:
        for i in range(4): a(f'v_mov_b32 v{EPS4+i}, {hex(f2u(1e-6))}')
        a(f'v_lshlrev_b32 v{vKV}, 4, v1')
        a(f'v_add_u32 v{vKV}, {KVL}, v{vKV}')
        a(f'v_and_b32 v4, 1, v1')
        a(f'v_lshl_add_u32 v4, v2, 1, v4')
        a(f'v_lshlrev_b32 v4, 4, v4')
        a(f'v_add_u32 v{vZ}, {ZL}, v4')
    for T in range(4):
        for hh in range(2):
            a(f'v_lshlrev_b32 v{ACC+4*T+2*hh}, 16, v{RES+2*T+hh}')
            a(f'v_and_b32 v{ACC+4*T+2*hh+1}, 0xffff0000, v{RES+2*T+hh}')
    if att:
        for i in range(4):
            for hh in range(2):
                src = KVT + 8 * i + 4 * hh
                a(f'v_cvt_pk_bf16_f32 v{KVT+8*i+2*hh}, v{src}, v{src+1}')
                a(f'v_cvt_pk_bf16_f32 v{KVT+8*i+2*hh+1}, v{src+2}, v{src+3}')
            a('s_lshl_b32 s4, s3, 2')
            a(f's_add_u32 s4, s4, {i+16}')
            a('s_sub_u32 s4, s4, s14')
            a('s_and_b32 s4, s4, 15')
            a('s_lshl_b32 s4, s4, 10')
            a(f'v_add_u32 v4, s4, v{vKV}')
            a(f'ds_write_b128 v4, {R(KVT+8*i)}')
        a(f'v_cvt_pk_bf16_f32 v{N1}, v{N0}, v{N0+1}')
        a(f'v_cvt_pk_bf16_f32 v{N1+1}, v{N0+2}, v{N0+3}')
        a('v_bfe_u32 v5, v1, 2, 1')
        a('v_cmp_eq_u32 vcc, 1, v5')
        a(f'v_cndmask_b32 v{DN}, v{N1}, 0, vcc')
        a(f'v_cndmask_b32 v{DN+1}, v{N1+1}, 0, vcc')
        a(f'v_cndmask_b32 v{DN+2}, 0, v{N1}, vcc')
        a(f'v_cndmask_b32 v{DN+3}, 0, v{N1+1}, vcc')
        a('v_bfe_u32 v6, v1, 3, 2')
        a('s_lshl_b32 s4, s3, 2')
        a('s_add_u32 s4, s4, 16')
        a('s_sub_u32 s4, s4, s14')
        a('v_add_u32 v6, s4, v6')
        a('v_and_b32 v6, 15, v6')
        a('v_lshlrev_b32 v6, 7, v6')
        a('v_and_b32 v7, 3, v1')
        a('v_lshl_add_u32 v7, v7, 1, v5')
        a('v_lshl_add_u32 v6, v7, 4, v6')
        a(f'v_add_u32 v6, {ZL}, v6')
        a(f'ds_write_b128 v6, {R(DN)}')
        a('s_waitcnt lgkmcnt(0)')

    def fw(s, T): return FW + 16 * s + 4 * T
    NWS = 3 if att else 2

    def reads(j):
        base = C.ring0 + (j % C.NS) * slot
        l = [ldsrd('b128', FX + 4 * (j & 1), vX, base)]
        if att:
            l.append(f'ds_read_b128 {R(FKV+4*(j&1))}, v{vKV} offset:{j*KB}')
            l.append(f'ds_read_b128 {R(FZ+4*(j&1))}, v{vZ} offset:{j*128}')
        for T in range(4):
            p, u = T >> 1, T & 1
            for h in range(2):
                l.append(ldsrd('tr', fw(j % NWS, T) + 2 * h, vW1 if u else vW0, base + (4 + 2 * p + h) * KB))
        return l

    def mainm(j, xf):
        return [f'{MF} {R(ACC+4*T)}, {R(fw(j % NWS, T))}, {R(xf)}, {R(ACC+4*T)}' for T in range(4)]

    def mfmas(j):
        if not att:
            return mainm(j, FX + 4 * (j & 1))
        s = j & 1
        x, kv, z = FX + 4 * s, FKV + 4 * s, FZ + 4 * s
        l = [f'{MF} {R(DN)}, {R(z)}, {R(x)}, {R(EPS4)}',
             f'{MF16} {R(N0)}, {R(kv,2)}, {R(x,2)}, 0',
             f'{MF16} {R(N1)}, {R(kv+2,2)}, {R(x+2,2)}, 0']
        if j >= 1:
            l += mainm(j - 1, OF + 4 * ((j - 1) & 1))
        return l

    def hook(j):
        if not att: return
        o = OF + 4 * (j & 1)
        a(f'v_rcp_f32 v{DN}, v{DN}')
        a(f'v_rcp_f32 v{DN+1}, v{DN+1}')
        a(pk('v_pk_mul_f32', N0, N0, DN, b1=0))
        a(pk('v_pk_mul_f32', N0 + 2, N0 + 2, DN, b1=0))
        a(pk('v_pk_mul_f32', N1, N1, DN + 1, b1=0))
        a(pk('v_pk_mul_f32', N1 + 2, N1 + 2, DN + 1, b1=0))
        a(f'v_cvt_pk_bf16_f32 v{o}, v{N0}, v{N0+1}')
        a(f'v_cvt_pk_bf16_f32 v{o+1}, v{N0+2}, v{N0+3}')
        a(f'v_cvt_pk_bf16_f32 v{o+2}, v{N1}, v{N1+1}')
        a(f'v_cvt_pk_bf16_f32 v{o+3}, v{N1+2}, v{N1+3}')

    main_loop(a, C, reads, mfmas, hook, per=2)
    if att:
        for m in mainm(C.NK - 1, OF + 4 * ((C.NK - 1) & 1)): a(m)
    OUT = 24
    for T in range(4):
        for hh in range(2):
            a(f'v_cvt_pk_bf16_f32 v{OUT+2*T+hh}, v{ACC+4*T+2*hh}, v{ACC+4*T+2*hh+1}')
    if not final:
        a('s_lshl_b32 s4, s15, 4')
        a('s_lshl_b32 s5, s13, 1')
        a('s_add_u32 s4, s4, s5')
        a('s_lshl_b32 s4, s4, 10')
        a(f's_add_u32 s4, s4, {out_off}')
        a('v_lshlrev_b32 v4, 4, v1')
        SS, SG = N0, N1
        a(f'{MF} {R(SS)}, {R(ONES)}, {R(OUT)}, 0')
        a(f'{MF} {R(SG)}, {R(OUT)}, {R(OUT)}, 0')
        a(f'{MF} {R(SS)}, {R(ONES)}, {R(OUT+4)}, {R(SS)}')
        a(f'{MF} {R(SG)}, {R(OUT+4)}, {R(OUT+4)}, {R(SG)}')
        for i in range(2):
            a(f'buffer_store_dwordx4 {R(OUT+4*i)}, v4, s[{SRD_W}:{SRD_W+3}], s4 offen offset:{i*KB}')
        a('s_lshl_b32 s4, s15, 10')
        a('s_lshr_b32 s5, s13, 1')
        a('s_lshl_b32 s5, s5, 8')
        a('s_add_u32 s4, s4, s5')
        a('s_and_b32 s5, s13, 1')
        a('s_lshl_b32 s5, s5, 3')
        a('s_add_u32 s4, s4, s5')
        a(f's_add_u32 s4, s4, {st_off}')
        a('v_lshlrev_b32 v5, 4, v3')
        a('v_and_b32 v6, 3, v3')
        a('v_cmp_eq_u32 s[52:53], 1, v6')
        a('v_cmp_eq_u32 s[54:55], 2, v6')
        a('v_cmp_eq_u32 s[56:57], 3, v6')
        a('v_lshrrev_b32 v6, 2, v3')
        a('v_cmp_eq_u32 vcc, v6, v2')
        a(f'v_cndmask_b32 v{SS+1}, v{SG}, v{SG+1}, s[52:53]')
        a(f'v_cndmask_b32 v{SS+1}, v{SS+1}, v{SG+2}, s[54:55]')
        a(f'v_cndmask_b32 v{SS+1}, v{SS+1}, v{SG+3}, s[56:57]')
        a('s_mov_b64 exec, vcc')
        a(f'buffer_store_dwordx2 {R(SS,2)}, v5, s[{SRD_W}:{SRD_W+3}], s4 offen')
    else:
        a(f's_mul_i32 s4, s3, {16*144}')
        a(f's_add_u32 s4, s4, {OUTL}')
        a(f'v_mul_u32_u24 v4, 144, v3')
        a('v_lshl_add_u32 v4, v2, 3, v4')
        a('v_add_u32 v4, s4, v4')
        for T in range(4):
            a(f'ds_write_b64 v4, {R(OUT+2*T,2)} offset:{32*T}')
        a('v_lshrrev_b32 v5, 3, v1')
        a('v_and_b32 v6, 7, v1')
        a('v_mul_u32_u24 v7, 144, v5')
        a('v_lshl_add_u32 v7, v6, 4, v7')
        a('v_add_u32 v7, s4, v7')
        a('s_waitcnt lgkmcnt(0)')
        for i in range(2):
            a(f'ds_read_b128 {R(ACC+4*i)}, v7 offset:{i*8*144}')
        a('v_lshlrev_b32 v5, 10, v5')
        a('v_lshl_add_u32 v5, v6, 4, v5')
        a('s_lshl_b32 s4, s15, 14')
        a('s_lshl_b32 s5, s13, 7')
        a('s_add_u32 s4, s4, s5')
        a(f's_add_u32 s5, s4, {8*KB}')
        for i in range(2):
            a(f'buffer_store_dwordx4 {R(ACC+4*i)}, v5, s[{SRD_M}:{SRD_M+3}], s{4+i} offen')
    a.label(f'L_end_{name}')
    a('s_endpgm')
    return kernel_text(name, a.text(), 224), lds_bytes, 256


def gen_s3(name, L, opt):
    a = Asm()
    C = Cfg()
    C.RT, C.P, C.NK = 8, 6, 16
    C.NS, C.D = opt.get('s3_ns', 7), opt.get('s3_d', 4)
    C.chunks = opt.get('s3_chunks', [1, 1, 2, 2, 2, 2, 2, 2, 1, 1])
    C.ring0 = 0
    slot = 20 * KB
    SCR = C.NS * slot
    lds_bytes = SCR + 4 * KB
    nwin = (lds_bytes + 65535) // 65536
    C.KSA = 16
    C.strideA = KB
    C.strideB = 32 * 2752
    C.pstep = 64
    C.nB = 3
    prologue(a, name, 240)
    opt['map_s3'](a)
    a('s_waitcnt lgkmcnt(0)')
    srd(a, SRD_A, S_WS, WS_BYTES)
    srd(a, SRD_W, S_WS, WS_BYTES)
    a('s_cmp_lt_u32 s3, 4')
    a(f's_cbranch_scc1 L_comp_{name}')
    a('s_sub_u32 s4, s3, 4')
    a('s_lshl_b32 s8, s12, 17')
    a(f's_add_u32 s8, s8, {WS_X1}')
    a(f's_mul_i32 s9, s13, 192')
    a(f's_mul_i32 s6, s14, {C.strideA}')
    a(f's_mul_i32 s7, s14, {C.strideB}')
    setup_loader_common(a, C, 'F', 'F', 2752)
    a('s_cmp_ge_u32 s4, 2')
    a(f's_cbranch_scc1 L_ld1_{name}')
    sv = list(a.hist)
    srd(a, SRD_B, S_PTR + 8, 512 * 2752)
    loader(a, C)
    a.label(f'L_ld1_{name}')
    a.hist = sv
    srd(a, SRD_B, S_PTR + 10, 512 * 2752)
    loader(a, C)
    a.label(f'L_comp_{name}')
    a('s_nop 4')
    ACG, ACU = 40, 88
    CS = 136
    FR = 160
    ONES = 240
    vX, vW = 8, 11
    STL = 160
    MEAN, RSTD = 24, 28
    a('s_lshr_b32 s10, s3, 1')
    a('s_and_b32 s11, s3, 1')
    a('s_lshl_b32 s15, s12, 3')
    a('s_lshl_b32 s5, s10, 2')
    a('s_add_u32 s15, s15, s5')
    a('s_lshl_b32 s5, s15, 10')
    a(f's_add_u32 s5, s5, {WS_ST1}')
    stats_load(a, STL, 4, 5)
    a('s_lshl_b32 s4, s10, 12')
    lds_bases(a, C, vX, 4, 'F', None, nwin)
    wpat(a, vW, False, 0)
    wpat(a, vW + nwin, False, 1)
    wpat(a, vW + 2 * nwin, True, 11)
    a('s_lshl_b32 s4, s11, 13')
    a(f'v_add_u32 v{vW}, s4, v{vW}')
    a(f'v_add_u32 v{vW+nwin}, s4, v{vW+nwin}')
    a(f'v_add_u32 v{vW+2*nwin}, 4096, v{vW+2*nwin}')
    for i in range(3):
        for w in range(1, nwin):
            a(f'v_add_u32 v{vW+i*nwin+w}, {w*65536}, v{vW+i*nwin}')
    for i in range(4): a(f'v_mov_b32 v{ONES+i}, 0x3f803f80')
    for r in range(40, 160): a(f'v_mov_b32 v{r}, 0')
    for t in range(4):
        stats_reduce(a, STL + 4 * t, MEAN + t, RSTD + t, 4, 5)

    def fx(s, t): return FR + 40 * s + 4 * t
    def fw(s, gs, i): return FR + 40 * s + 16 + 4 * (2 * i + gs)

    def reads(j):
        s = j & 1
        base = C.ring0 + (j % C.NS) * slot
        l = []
        wl = []
        for i in range(3):
            for gs in range(2):
                for h in range(2):
                    wl.append(ldsrd('tr', fw(s, gs, i) + 2 * h, vW + i * nwin, base + (8 + 2 * gs + h) * KB))
        xl = [ldsrd('b128', fx(s, t), vX, base + t * KB) for t in range(4)]
        l = wl[:2] + xl + wl[2:]
        return l

    def mfmas(j):
        s = j & 1
        l = []
        for i in range(3):
            for gs, AC in ((0, ACG), (1, ACU)):
                for t in range(4):
                    d = AC + 12 * t + 4 * i
                    l.append(f'{MF} {R(d)}, {R(fw(s,gs,i))}, {R(fx(s,t))}, {R(d)}')
                d = CS + 12 * gs + 4 * i
                l.append(f'{MF} {R(d)}, {R(fw(s,gs,i))}, {R(ONES)}, {R(d)}')
        return l

    main_loop(a, C, reads, mfmas, None, per=1)
    R2 = 32
    for t in range(4):
        a(f'v_mul_f32 v{R2+t}, v{RSTD+t}, v{RSTD+t}')
    OUT = FR
    for t in range(4):
        for i in range(3):
            for hh in range(2):
                g = ACG + 12 * t + 4 * i + 2 * hh
                u = ACU + 12 * t + 4 * i + 2 * hh
                a(pk('v_pk_fma_f32', g, MEAN + t, CS + 4 * i + 2 * hh, g, b0=0, neg0=True))
                a(pk('v_pk_fma_f32', u, MEAN + t, CS + 12 + 4 * i + 2 * hh, u, b0=0, neg0=True))
        for i in range(3):
            for hh in range(2):
                g = ACG + 12 * t + 4 * i + 2 * hh
                u = ACU + 12 * t + 4 * i + 2 * hh
                a(f'v_max_f32 v{g}, 0, v{g}')
                a(f'v_max_f32 v{g+1}, 0, v{g+1}')
                a(pk('v_pk_mul_f32', u, u, R2 + t, b1=0))
        for i in range(3):
            for hh in range(2):
                g = ACG + 12 * t + 4 * i + 2 * hh
                u = ACU + 12 * t + 4 * i + 2 * hh
                a(pk('v_pk_mul_f32', g, g, u))
        for i in range(3):
            for hh in range(2):
                g = ACG + 12 * t + 4 * i + 2 * hh
                a(f'v_cvt_pk_bf16_f32 v{OUT+8*t+2*i+hh}, v{g}, v{g+1}')
    a(f's_mul_i32 s4, s15, 43')
    a(f's_mul_i32 s5, s13, 3')
    a('s_add_u32 s4, s4, s5')
    a('s_lshl_b32 s4, s4, 10')
    a(f's_add_u32 s4, s4, {WS_H}')
    a('s_lshl_b32 s5, s11, 11')
    a('s_add_u32 s5, s5, s4')
    a('s_lshl_b32 s6, s11, 3')
    a('s_add_u32 s6, s6, s4')
    a('s_add_u32 s6, s6, 1024')
    a('v_lshlrev_b32 v4, 4, v1')
    a('s_cmp_eq_u32 s13, 14')
    a('s_cselect_b32 s7, 1, 0')
    a('s_and_b32 s8, s7, s11')
    a('s_cmp_lg_u32 s8, 0')
    a(f's_cbranch_scc1 L_end_{name}')
    for t in range(4):
        a(f'buffer_store_dwordx4 {R(OUT+8*t)}, v4, s[{SRD_W}:{SRD_W+3}], s5 offen')
        if t < 3: a(f's_add_u32 s5, s5, {43*KB}')
    a('s_cmp_lg_u32 s7, 0')
    a(f's_cbranch_scc1 L_end_{name}')
    for t in range(4):
        a(f'buffer_store_dwordx2 {R(OUT+8*t+4,2)}, v4, s[{SRD_W}:{SRD_W+3}], s6 offen')
        if t < 3: a(f's_add_u32 s6, s6, {43*KB}')
    a.label(f'L_end_{name}')
    a('s_endpgm')
    return kernel_text(name, a.text(), 248), lds_bytes, 240


def map_s1_default(a):
    a('s_and_b32 s4, s2, 7')
    a('s_lshr_b32 s5, s2, 3')
    a('s_lshr_b32 s12, s4, 1')
    a('s_lshl_b32 s12, s12, 2')
    a('s_lshr_b32 s6, s5, 3')
    a('s_add_u32 s12, s12, s6')
    a('s_and_b32 s13, s4, 1')
    a('s_lshl_b32 s13, s13, 3')
    a('s_and_b32 s6, s5, 7')
    a('s_add_u32 s13, s13, s6')
    a('s_add_u32 s14, s12, s13')
    a('s_and_b32 s14, s14, 15')


def map_s24_default(a, nk):
    a('s_and_b32 s4, s2, 7')
    a('s_lshr_b32 s5, s2, 3')
    a('s_lshl_b32 s12, s4, 2')
    a('s_lshr_b32 s6, s5, 3')
    a('s_add_u32 s12, s12, s6')
    a('s_and_b32 s13, s5, 7')
    if nk == 16:
        a('s_lshl_b32 s14, s13, 1')
        a('s_add_u32 s14, s14, s12')
        a('s_and_b32 s14, s14, 15')
    else:
        a('s_mul_i32 s14, s13, 5')
        a('s_and_b32 s6, s12, 3')
        a('s_add_u32 s14, s14, s6')


def map_s3_default(a):
    a('s_and_b32 s4, s2, 7')
    a('s_lshr_b32 s5, s2, 3')
    a('s_and_b32 s6, s4, 1')
    a('s_mul_i32 s6, s6, 30')
    a('s_add_u32 s6, s6, s5')
    a('s_lshr_b32 s13, s6, 2')
    a('s_and_b32 s6, s6, 3')
    a('s_lshr_b32 s12, s4, 1')
    a('s_lshl_b32 s12, s12, 2')
    a('s_add_u32 s12, s12, s6')
    a('s_add_u32 s14, s12, s13')
    a('s_and_b32 s14, s14, 15')


def build(opt=None, fn=None):
    o = dict(map_s1=map_s1_default, map_s24=map_s24_default, map_s3=map_s3_default)
    o.update(opt or {})
    ks = []
    for L in range(2):
        ks.append((f's1l{L}_kernel',) + gen_s1(f's1l{L}_kernel', L, o))
        ks.append((f's2l{L}_kernel',) + gen_s24(f's2l{L}_kernel', 2, L, o))
        ks.append((f's3l{L}_kernel',) + gen_s3(f's3l{L}_kernel', L, o))
        ks.append((f's4l{L}_kernel',) + gen_s24(f's4l{L}_kernel', 4, L, o))
    s = '; interleaved linear-attention / ReGLU layers: 8-kernel launch list (generated)\n'
    for n, t, lds, g in ks:
        s += f'; @launch kernel={n} grid=({g},1,1) block=(512,1,1) lds={lds}\n'
    s += '.amdgcn_target "amdgcn-amd-amdhsa--gfx950"\n'
    for n, t, lds, g in ks:
        s += t
    if fn:
        open(fn, 'w').write(s)
    return s


if __name__ == '__main__':
    fn = sys.argv[1] if len(sys.argv) > 1 else 'interleave_layers__linear_attn_block__glu_gated_reglu__prompt.s'
    s = build(fn=fn)
    print('bytes', len(s), 'lines', s.count('\n'))
```

```python
import re

TRANS = ('v_exp_', 'v_log_', 'v_rcp_', 'v_rsq_', 'v_sqrt_', 'v_sin_', 'v_cos_')


def regs_of(tok):
    tok = tok.strip()
    neg = tok.lstrip('-|').rstrip('|')
    m = re.fullmatch(r'([vsa])(\d+)', neg)
    if m:
        return [(m.group(1), int(m.group(2)))]
    m = re.fullmatch(r'([vsa])\[(\d+):(\d+)\]', neg)
    if m:
        return [(m.group(1), i) for i in range(int(m.group(2)), int(m.group(3)) + 1)]
    if neg in ('vcc',):
        return [('s', 'vcc_lo'), ('s', 'vcc_hi')]
    if neg in ('vcc_lo', 'vcc_hi'):
        return [('s', neg)]
    if neg == 'exec':
        return [('s', 'exec_lo'), ('s', 'exec_hi')]
    if neg in ('exec_lo', 'exec_hi'):
        return [('s', neg)]
    if neg == 'm0':
        return [('s', 'm0')]
    return []


class Ins:
    __slots__ = ('text', 'kind', 'w', 'r', 'ab', 'c', 'states', 'wide', 'sr')

    def __init__(self):
        self.w = set(); self.r = set(); self.ab = set(); self.c = set(); self.states = 1
        self.wide = set(); self.sr = set()


def parse(text):
    t = text.split(';')[0].strip()
    parts = t.split(None, 1)
    op = parts[0]
    rest = parts[1] if len(parts) > 1 else ''
    ops = []
    depth = 0; cur = ''
    for ch in rest:
        if ch == '[': depth += 1
        if ch == ']': depth -= 1
        if ch == ',' and depth == 0:
            ops.append(cur.strip()); cur = ''
        else:
            cur += ch
    if cur.strip():
        ops.append(cur.strip())
    mods = ''
    if ops:
        last = ops[-1].split(None, 1)
        ops[-1] = last[0]
        mods = last[1] if len(last) > 1 else ''
    return op, ops, mods


def classify(text):
    op, ops, mods = parse(text)
    I = Ins(); I.text = text
    R = [regs_of(o) for o in ops]
    allr = set(x for l in R for x in l)
    if op == 's_nop':
        I.kind = 'nop'; I.states = int(ops[0], 0) + 1
    elif op.startswith('v_mfma'):
        I.kind = 'mfma'
        I.w = set(R[0]); I.ab = set(R[1]) | set(R[2]); I.c = set(R[3]); I.r = I.ab | I.c
    elif op.startswith('v_cmp'):
        I.kind = 'valu'; I.w = set(R[0]); I.r = allr - I.w if len(R) > 1 else set()
        I.r = set(x for l in R[1:] for x in l)
    elif op.startswith('v_permlane') and 'swap' in op:
        I.kind = 'perm'; I.w = set(allr); I.r = set(allr)
    elif op.startswith('v_readfirstlane') or op.startswith('v_readlane'):
        I.kind = 'rdlane'; I.w = set(R[0]); I.r = set(x for l in R[1:] for x in l)
    elif op.startswith('v_'):
        I.kind = 'trans' if op.startswith(TRANS) else 'valu'
        I.w = set(R[0]); I.r = set(x for l in R[1:] for x in l)
        if op.startswith(('v_fmac', 'v_dot2c', 'v_pk_fmac', 'v_writelane', 'v_mac')):
            I.r |= I.w
        if op.startswith(('v_add_co', 'v_sub_co', 'v_addc_co', 'v_subb_co', 'v_subrev_co', 'v_mad_u64', 'v_div_scale')):
            I.w |= set(R[1]); I.r = set(x for l in R[2:] for x in l)
        if op.startswith('v_cndmask') and len(ops) == 3:
            I.r |= {('s', 'vcc_lo'), ('s', 'vcc_hi')}
        if 'dpp' in op or 'row_' in mods or 'quad_perm' in mods:
            I.kind = 'dpp'
    elif op.startswith('ds_read') or op.startswith('ds_bpermute') or op.startswith('ds_permute') or op.startswith('ds_swizzle'):
        I.kind = 'dsr'; I.w = set(R[0]); I.r = set(x for l in R[1:] for x in l)
    elif op.startswith('ds_'):
        I.kind = 'dsw'; I.r = allr
    elif op.startswith('buffer_load') or op.startswith('global_load'):
        if re.search(r'\blds\b', mods) or 'lds' in op:
            I.kind = 'dma'; I.r = allr | {('s', 'm0')}
        else:
            I.kind = 'vld'; I.w = set(R[0]); I.r = set(x for l in R[1:] for x in l)
    elif op.startswith('buffer_store') or op.startswith('global_store'):
        I.kind = 'vst'; I.r = allr
        if 'x4' in op or 'x3' in op:
            I.wide = set(R[0]) if op.startswith('buffer') else set(R[1])
    elif op.startswith('buffer_atomic') or op.startswith('global_atomic'):
        I.kind = 'vst'; I.r = allr
        if re.search(r'\bsc0\b', mods):
            I.kind = 'vld'; I.w = set(R[0])
    elif op.startswith('s_load') or op.startswith('s_buffer_load') or op.startswith('s_memtime'):
        I.kind = 'smem'; I.w = set(R[0]); I.r = set(x for l in R[1:] for x in l)
    elif op.startswith(('s_cmp', 's_cbranch', 's_branch', 's_barrier', 's_waitcnt', 's_endpgm', 's_setprio', 's_sleep', 's_bitcmp')):
        I.kind = 'sctl'; I.r = allr
    elif op.startswith('s_'):
        I.kind = 'salu'; I.w = set(R[0]) if R else set(); I.r = set(x for l in R[1:] for x in l)
        if 'saveexec' in op:
            I.w |= {('s', 'exec_lo'), ('s', 'exec_hi')}
    else:
        raise ValueError('unknown instruction: ' + text)
    return I


VALU_K = ('valu', 'trans', 'perm', 'rdlane', 'dpp')
VMEM_K = ('vld', 'vst', 'dma')
DS_K = ('dsr', 'dsw')


def need(P, Q):
    n = 0
    pv = set(x for x in P.w if x[0] in 'va')
    ps = set(x for x in P.w if x[0] == 's')
    if P.kind in VALU_K:
        if Q.kind == 'mfma' and pv & Q.r: n = max(n, 2)
        if P.kind == 'trans' and Q.kind in VALU_K and Q.kind != 'trans' and pv & (Q.r | Q.w): n = max(n, 1)
        if P.kind == 'trans' and Q.kind in VMEM_K + DS_K and pv & Q.r: n = max(n, 1)
        if Q.kind == 'rdlane' and pv & Q.r: n = max(n, 1)
        if Q.kind in ('perm', 'dpp') and pv & Q.r: n = max(n, 2)
        if ps:
            if Q.kind in VALU_K + ('mfma',) and ps & Q.r: n = max(n, 4 if Q.kind == 'rdlane' else 2)
            if Q.kind in VMEM_K and ps & Q.r: n = max(n, 5)
            if ('s', 'exec_lo') in ps: n = max(n, 5)
    if P.kind == 'mfma':
        if Q.kind == 'mfma':
            if P.w & Q.ab: n = max(n, 8)
            if P.w & Q.c and P.w != Q.c: n = max(n, 6)
            if P.w & Q.w and P.w != Q.c: n = max(n, 8)
        elif Q.kind in VALU_K + VMEM_K + DS_K:
            if P.w & (Q.r | Q.w): n = max(n, 8)
            if Q.kind in VALU_K and P.c & Q.w: n = max(n, 3)
            if Q.kind in ('vld', 'dsr') and P.c & Q.w: n = max(n, 3)
    if P.kind == 'salu' and ('s', 'm0') in P.w and Q.kind == 'dma': n = max(n, 1)
    if P.wide and P.wide & Q.w: n = max(n, 2)
    return n


class Asm:
    def __init__(self):
        self.out = []
        self.hist = []
        self.lds = []
        self.vm = []
        self.nins = 0
        self.opt = None

    def raw(self, text):
        self.out.append(text)

    def label(self, name, pad=True):
        self.out.append(name + ':')

    def _push(self, I):
        self.out.append('    ' + I.text)
        self.hist.append(I)
        if getattr(self, '_rec', None) is not None and len(self._rec) < 16: self._rec.append(I)
        if len(self.hist) > 40:
            self.hist = self.hist[-30:]
        self.nins += 1

    def _autowait(self, I):
        touched = I.r | I.w
        idx = -1
        for i, d in enumerate(self.lds):
            if d & touched: idx = i
        vidx = -1
        for i, d in enumerate(self.vm):
            if d & touched: vidx = i
        w = []
        if vidx >= 0:
            n = len(self.vm) - 1 - vidx
            n = min(n, 63)
            w.append(f'vmcnt({n})')
            self.vm = self.vm[len(self.vm) - n:] if n else []
        if idx >= 0:
            n = len(self.lds) - 1 - idx
            n = min(n, 14)
            w.append(f'lgkmcnt({n})')
            self.lds = self.lds[len(self.lds) - n:] if n else []
        if w:
            self._push(classify('s_waitcnt ' + ' '.join(w)))

    def __call__(self, text):
        for line in text.strip().split('\n'):
            line = line.strip()
            if not line or line.startswith(';'):
                continue
            I = classify(line)
            self._autowait(I)
            d = 0; pad = 0
            for P in reversed(self.hist):
                n = need(P, I)
                if n > d: pad = max(pad, n - d)
                d += P.states
                if d >= 12: break
            while pad > 0:
                k = min(pad, 8)
                self._push(classify(f's_nop {k-1}'))
                pad -= k
            self._push(I)
            if I.kind == 'sctl' and line.startswith('s_waitcnt'):
                m = re.search(r'lgkmcnt\((\d+)\)', line)
                if m:
                    n = int(m.group(1)); self.lds = self.lds[len(self.lds) - n:] if n else []
                m = re.search(r'vmcnt\((\d+)\)', line)
                if m:
                    n = int(m.group(1)); self.vm = self.vm[len(self.vm) - n:] if n else []
            if I.kind in DS_K: self.lds.append(set(I.w))
            if I.kind in VMEM_K: self.vm.append(set(I.w))
            if I.kind == 'smem': self.lds.append(set())

    def wait_lds_all(self):
        if self.lds:
            self('s_waitcnt lgkmcnt(0)')

    def wait_vm_all(self):
        if self.vm:
            self('s_waitcnt vmcnt(0)')

    def vm_out(self):
        return len(self.vm)

    def flush_hazards(self, n=9):
        need_pad = 0
        d = 0
        for P in reversed(self.hist):
            if P.kind == 'mfma': need_pad = max(need_pad, 8 - d)
            elif P.kind in VALU_K: need_pad = max(need_pad, 5 - d)
            elif P.wide: need_pad = max(need_pad, 2 - d)
            elif P.kind == 'salu' and ('s', 'm0') in P.w: need_pad = max(need_pad, 1 - d)
            d += P.states
            if d >= 12: break
        if need_pad > 0:
            self(f's_nop {need_pad-1}')

    def begin_opt(self):
        assert self.opt is None
        self.opt = (list(self.hist), len(self.lds), len(self.vm))

    def end_opt(self):
        pre, nl, nv = self.opt
        assert len(self.lds) <= nl or True
        blk = self.hist[len(pre):] if len(self.hist) >= len(pre) and self.hist[:len(pre)] == pre else None
        newh = list(pre)
        if blk is None:
            blk = self.hist[-12:]
        for I in blk:
            J = Ins(); J.text = I.text; J.kind = I.kind; J.w = I.w; J.r = I.r; J.ab = I.ab; J.c = I.c
            J.wide = I.wide; J.states = 0
            newh.append(J)
        self.hist = newh
        self.opt = None

    def loop_begin(self, label):
        self.out.append(label + ':')
        self._lp = dict(label=label, first=[], lds=[set(x) for x in self.lds], nvm=len(self.vm), start=self.nins)
        self._rec = self._lp['first']

    def loop_end_check(self):
        lp = self._lp
        hist = list(self.hist)
        for I in lp['first'][:14]:
            d = 0
            for P in reversed(hist):
                n = need(P, I)
                assert n <= d, ('back-edge hazard', P.text, I.text, n, d)
                d += P.states
                if d >= 12: break
            hist.append(I)
        cur = self.lds; ass = lp['lds']
        assert len(cur) <= len(ass), ('lds queue longer on back edge', len(cur), len(ass))
        for x, y in zip(reversed(cur), reversed(ass)):
            assert x == y, ('lds queue mismatch on back edge', x, y)
        self._rec = None

    def fresh(self):
        self.hist = []; self.lds = []; self.vm = []

    def text(self):
        return '\n'.join(self.out) + '\n'


def kernel_text(name, body, vgpr, sgpr=102, accum=None):
    accum = accum or ((vgpr + 3) // 4 * 4)
    return f"""
.text
.globl {name}
.p2align 8
.type {name},@function
{name}:
{body}
.section .rodata,"a"
.p2align 6
.amdhsa_kernel {name}
  .amdhsa_next_free_vgpr {vgpr}
  .amdhsa_next_free_sgpr {sgpr}
  .amdhsa_accum_offset {accum}
  .amdhsa_group_segment_fixed_size 0
  .amdhsa_kernarg_size 80
  .amdhsa_user_sgpr_count 2
  .amdhsa_user_sgpr_kernarg_segment_ptr 1
  .amdhsa_system_sgpr_workgroup_id_x 1
.end_amdhsa_kernel
"""
```

```python
import sys, struct
from asmlib import Asm, kernel_text

KB = 1024
WS_PQ = 0
WS_X1 = 2 << 20
WS_H = 4 << 20
WS_X2 = 10 << 20
WS_KV = 12 << 20
WS_ST1 = (12 << 20) + (256 << 10)
WS_ST2 = (12 << 20) + (512 << 10)
WS_CS = (12 << 20) + (768 << 10)
WS_TS = 14 << 20
WS_BYTES = 268435456
S_PTR, S_DBG, S_WS = 16, 32, 34
SRD_A, SRD_B, SRD_W, SRD_M = 36, 40, 44, 48
LOG2E = 1.4426950408889634
MF = 'v_mfma_f32_16x16x32_bf16'
MF16 = 'v_mfma_f32_16x16x16_bf16'
OPT = {}


def f2u(x): return struct.unpack('<I', struct.pack('<f', x))[0]
def R(b, n=4): return f'v[{b}:{b+n-1}]' if n > 1 else f'v{b}'
def S4(b): return f's[{b}:{b+3}]'
def stmod(): return OPT.get('stmod', '')


def srd(a, dst, ptr, size):
    a(f's_mov_b32 s{dst}, s{ptr}')
    a(f's_mov_b32 s{dst+1}, s{ptr+1}')
    a(f's_mov_b32 s{dst+2}, {size}')
    a(f's_mov_b32 s{dst+3}, 0x00020000')


class Cfg: pass


TS = {'on': False, 'kidx': 0}


def ts(a):
    if not TS['on']: return
    a('s_waitcnt lgkmcnt(0)')
    a('s_memtime s[100:101]')
    a('s_waitcnt lgkmcnt(0)')
    a('s_mov_b32 s98, m0')
    a('s_mov_b32 m0, s99')
    a('s_nop 0')
    a('v_writelane_b32 v250, s100, m0')
    a('s_mov_b32 m0, s98')
    a('s_add_u32 s99, s99, 1')
    a('s_min_u32 s99, s99, 63')


def ts_flush(a):
    if not TS['on']: return
    ts(a)
    a('s_mov_b64 exec, -1')
    a('s_lshl_b32 s4, s2, 3')
    a('s_add_u32 s4, s4, s3')
    a('s_lshl_b32 s4, s4, 8')
    a(f's_add_u32 s4, s4, {WS_TS + TS["kidx"]*(1<<19)}')
    a('v_and_b32 v5, 63, v0')
    a('v_lshlrev_b32 v5, 2, v5')
    a(f'buffer_store_dword v250, v5, {S4(SRD_W)}, s4 offen')


def prologue(a, name, nwg):
    a(f's_cmp_ge_u32 s2, {nwg}')
    a(f's_cbranch_scc1 L_end_{name}')
    if TS['on']:
        a('v_mov_b32 v250, 0')
        a('s_mov_b32 s99, 0')
        a('s_mov_b32 m0, 0')
        ts(a)
    a(f's_load_dwordx16 s[16:31], s[0:1], 0')
    a(f's_load_dwordx4 s[32:35], s[0:1], 64')
    a('v_and_b32 v1, 63, v0')
    a('v_lshrrev_b32 v2, 6, v0')
    a('v_readfirstlane_b32 s3, v2')
    a('v_lshrrev_b32 v2, 4, v1')
    a('v_and_b32 v3, 15, v1')


def pk(op, d, s0, s1, s2=None, b0=None, b1=None, b2=None, neg0=False, neg1=False):
    def opnd(s, b):
        if b is None:
            assert s % 2 == 0, s
            return f'v[{s}:{s+1}]', 0, 1
        base = s & ~1; h = s & 1
        return f'v[{base}:{base+1}]', h, h
    srcs = [opnd(s0, b0), opnd(s1, b1)]
    if s2 is not None: srcs.append(opnd(s2, b2))
    assert d % 2 == 0
    t = f'{op} v[{d}:{d+1}], ' + ', '.join(s[0] for s in srcs)
    t += ' op_sel:[' + ','.join(str(s[1]) for s in srcs) + ']'
    t += ' op_sel_hi:[' + ','.join(str(s[2]) for s in srcs) + ']'
    if neg0 or neg1:
        n = [1 if neg0 else 0, 1 if neg1 else 0] + ([0] if s2 is not None else [])
        t += ' neg_lo:[' + ','.join(map(str, n)) + '] neg_hi:[' + ','.join(map(str, n)) + ']'
    return t


def loader_addr(a, C, amode, bmap, rowbytesB):
    if amode == 'F':
        a(f's_mul_i32 s10, s4, {C.KSA*KB}')
        a('s_add_u32 s10, s10, s8')
        a('v_lshl_add_u32 v8, v1, 4, s10')
        astep = 4 * C.KSA * KB
    else:
        a('v_lshrrev_b32 v4, 2, v1')
        a('v_and_b32 v5, 3, v1')
        a('v_sub_u32 v6, 4, v2')
        a('v_and_b32 v6, 3, v6')
        a('v_xor_b32 v5, v5, v6')
        a('v_lshlrev_b32 v4, 10, v4')
        a('v_lshl_add_u32 v8, v5, 4, v4')
        a('s_lshl_b32 s10, s4, 14')
        a('s_add_u32 s10, s10, s8')
        a('v_add_u32 v8, s10, v8')
        astep = 4 * 16 * KB
    for i in range(1, C.RT // 4):
        a(f'v_add_u32 v{8+i}, {i*astep}, v8')
    a('v_bfe_u32 v4, v1, 2, 2')
    a('v_bfe_u32 v5, v1, 1, 1')
    a('v_and_b32 v6, 1, v2')
    a('v_xor_b32 v5, v5, v6')
    a('v_and_b32 v6, 1, v1')
    a('v_lshlrev_b32 v5, 5, v5')
    a('v_lshl_add_u32 v5, v6, 4, v5')
    if bmap == 'F':
        a('v_lshl_add_u32 v4, v2, 2, v4'); hstep = 16
    else:
        a('v_lshl_add_u32 v4, v2, 3, v4'); hstep = 4
    a(f'v_mul_u32_u24 v4, {rowbytesB}, v4')
    a('s_and_b32 s10, s4, 1')
    a(f's_mul_i32 s10, s10, {hstep*rowbytesB}')
    a('s_add_u32 s10, s10, s9')
    a('v_add3_u32 v12, v4, v5, s10')
    for i in range(1, C.nBmax):
        a(f'v_add_u32 v{12+i}, {i*C.pstep}, v12')
    a(f's_mul_i32 s6, s14, {C.strideA}')
    a(f's_mul_i32 s7, s14, {C.strideB}')
    a('s_lshl_b32 s10, s4, 10')
    a('s_mov_b32 s5, s10')
    a(f's_add_u32 s11, s10, {C.NCH*2*C.slot}')
    a('s_mov_b32 s9, 0')


def loader(a, C, name, nB, stats=None):
    nA = C.RT // 4
    per2 = 2 * (nA + nB)
    NC, DC = C.NC, C.DC
    assert C.NCH >= DC + 1 and (DC - 1) * per2 <= 63
    ts(a)
    if stats:
        a('v_lshlrev_b32 v16, 4, v1')
        for t in range(2):
            a(f'buffer_load_dwordx4 {R(20+4*t)}, v16, {S4(SRD_W)}, s8 offen offset:{t*KB}')
    a.loop_begin(f'L_li_{name}')
    for kk in range(2):
        sa = 's6'
        if C.padk:
            a(f's_cmp_eq_u32 s6, {C.NKreal*C.strideA}')
            a(f's_cselect_b32 s8, 0x10000000, s6')
            sa = 's8'
        for i in range(nA):
            a(f's_add_u32 m0, s5, {kk*C.slot + i*4*KB}')
            a(f'buffer_load_dwordx4 v{8+i}, {S4(SRD_A)}, {sa} offen lds')
        for i in range(nB):
            a(f's_add_u32 m0, s5, {kk*C.slot + C.RT*KB + i*4*KB}')
            a(f'buffer_load_dwordx4 v{12+i}, {S4(SRD_B)}, s7 offen lds')
        a(f's_add_u32 s7, s7, {C.strideB}')
        a(f's_add_u32 s6, s6, {C.strideA}')
        a(f's_cmp_eq_u32 s6, {2*NC*C.strideA}')
        a('s_cselect_b32 s6, 0, s6')
        a('s_cselect_b32 s7, 0, s7')
    a(f's_add_u32 s5, s5, {2*C.slot}')
    a('s_cmp_eq_u32 s5, s11')
    a('s_cselect_b32 s5, s10, s5')
    a('s_add_u32 s9, s9, 1')
    a(f's_cmp_lt_u32 s9, {DC}')
    a(f's_cbranch_scc1 L_li_{name}')
    a(f's_waitcnt vmcnt({(DC-1)*per2})')
    ts(a)
    a('s_barrier')
    ts(a)
    a(f's_cmp_lt_u32 s9, {NC}')
    a(f's_cbranch_scc1 L_li_{name}')
    a.loop_end_check()
    a.vm = []
    if stats:
        STB = stats
        for t in range(2):
            a(pk('v_pk_add_f32', 20 + 4 * t, 20 + 4 * t, 22 + 4 * t))
        for qp in ('[1,0,3,2]', '[2,3,0,1]'):
            for t in range(2):
                for e in range(2):
                    r = 20 + 4 * t + e
                    a(f'v_add_f32_dpp v{r}, v{r}, v{r} quad_perm:{qp} row_mask:0xf bank_mask:0xf')
        for t in range(2):
            stats_finish(a, 20 + 4 * t, 21 + 4 * t, 22 + 4 * t, 23 + 4 * t, 17)
        a('v_lshrrev_b32 v16, 2, v1')
        a('s_lshl_b32 s8, s4, 7')
        a(f's_add_u32 s8, s8, {STB}')
        a('v_lshl_add_u32 v16, v16, 2, s8')
        for t in range(2):
            a(f'ds_write_b32 v16, v{22+4*t} offset:{64*t}')
            a(f'ds_write_b32 v16, v{23+4*t} offset:{512+64*t}')
        a('s_waitcnt lgkmcnt(0)')
    for r in range(1, DC):
        a(f's_waitcnt vmcnt({(DC-1-r)*per2})')
        ts(a)
        a('s_barrier')
        ts(a)
    ts_flush(a)
    a('s_endpgm')
    a.fresh()


def stats_finish(a, vsum, vsq, vmean, vrstd, tmp):
    a(f'v_mul_f32 v{vmean}, {hex(f2u(1/512))}, v{vsum}')
    a(f'v_mul_f32 v{tmp}, {hex(f2u(1/512))}, v{vsq}')
    a(f'v_fma_f32 v{tmp}, -v{vmean}, v{vmean}, v{tmp}')
    a(f'v_max_f32 v{tmp}, 0, v{tmp}')
    a(f'v_add_f32 v{tmp}, {hex(f2u(1e-5))}, v{tmp}')
    a(f'v_rsq_f32 v{vrstd}, v{tmp}')


def xbase(a, vX, xoff_sgpr, amode):
    if amode == 'F':
        a(f'v_lshl_add_u32 v{vX}, v1, 4, s{xoff_sgpr}')
    else:
        a('v_lshrrev_b32 v4, 2, v3')
        a('v_sub_u32 v4, 4, v4')
        a('v_and_b32 v4, 3, v4')
        a('v_xor_b32 v4, v4, v2')
        a('v_lshlrev_b32 v4, 4, v4')
        a(f'v_lshl_add_u32 v{vX}, v3, 6, v4')
        a(f'v_add_u32 v{vX}, s{xoff_sgpr}, v{vX}')


def wpat(a, d0, d1):
    a('v_and_b32 v4, 1, v2')
    a('v_lshlrev_b32 v4, 5, v4')
    a('v_lshl_add_u32 v4, v2, 8, v4')
    a('v_bfe_u32 v5, v1, 2, 2')
    a('v_lshl_add_u32 v4, v5, 6, v4')
    a('v_and_b32 v5, 3, v1')
    a(f'v_lshl_add_u32 v{d0}, v5, 3, v4')
    a(f'v_xor_b32 v{d1}, 32, v{d0}')


def rd128(dst, base, off): return f'ds_read_b128 {R(dst)}, v{base} offset:{off}'
def rdtr(dst, base, off): return f'ds_read_b64_tr_b16 {R(dst,2)}, v{base} offset:{off}'


def interleave(a, mf, rd, per=1, first=0):
    ri = 0
    for i, m in enumerate(mf):
        if callable(m): m()
        else: a(m)
        if i >= first:
            for _ in range(per):
                if ri < len(rd):
                    a(rd[ri]); ri += 1
    while ri < len(rd):
        a(rd[ri]); ri += 1


def advance(a, C, fixed, cur):
    a(f's_add_u32 s10, s10, {2*C.slot}')
    a(f's_cmp_eq_u32 s10, {C.NCH*2*C.slot}')
    a('s_cselect_b32 s10, 0, s10')
    for f, c in zip(fixed, cur):
        a(f'v_add_u32 v{c}, s10, v{f}')


def loop_big(a, C, name, fixed, cur, reads, mfmas, per=1):
    a('s_mov_b32 s10, 0')
    a('s_mov_b32 s9, 0')
    for f, c in zip(fixed, cur): a(f'v_mov_b32 v{c}, v{f}')
    ts(a)
    a('s_barrier')
    ts(a)
    for t in reads(0, 0): a(t)
    a.loop_begin(f'L_ml_{name}')
    interleave(a, mfmas(0), reads(1, 1), per=per)
    advance(a, C, fixed, cur)
    a('s_add_u32 s9, s9, 1')
    a.wait_lds_all()
    ts(a)
    a('s_barrier')
    ts(a)
    interleave(a, mfmas(1), reads(0, 0), per=per)
    a(f's_cmp_lt_u32 s9, {C.NC}')
    a(f's_cbranch_scc1 L_ml_{name}')
    a.loop_end_check()
    a.wait_lds_all()
    ts(a)


def gen_s1(name, L, opt):
    a = Asm(); C = Cfg()
    C.RT, C.P, C.NC = 8, 3, 8
    C.NCH, C.DC = opt.get('s1_nch', 5), opt.get('s1_dc', 3)
    C.slot = 14 * KB; C.padk = False
    SCR = C.NCH * 2 * C.slot
    STB = SCR + 9 * KB
    ZB = SCR + 8 * KB
    lds_bytes = SCR + 10 * KB
    amode = 'R' if L == 0 else 'F'
    bmap = 'S' if L == 0 else 'F'
    C.KSA = 16
    C.strideA = 64 if L == 0 else KB
    C.strideB = 32 * 3072
    C.pstep = 2048; C.nBmax = 2
    first = (L == 0)
    KVB = WS_KV + L * 65536
    prologue(a, name, 256)
    opt['map_s1'](a)
    a('s_cmp_lt_u32 s3, 4')
    a(f's_cbranch_scc1 L_comp_{name}')
    a('s_sub_u32 s4, s3, 4')
    a('s_lshl_b32 s8, s12, 17')
    if not first: a(f's_add_u32 s8, s8, {WS_X2}')
    a('s_lshr_b32 s9, s4, 1')
    a('s_lshl_b32 s9, s9, 10')
    a('s_lshl_b32 s10, s13, 6')
    a('s_add_u32 s9, s9, s10')
    loader_addr(a, C, amode, bmap, 3072)
    a('s_lshl_b32 s8, s12, 2')
    a('s_add_u32 s8, s8, s4')
    a('s_lshl_b32 s8, s8, 11')
    a(f's_add_u32 s8, s8, {WS_ST2}')
    a('s_waitcnt lgkmcnt(0)')
    if first: srd(a, SRD_A, S_PTR + 0, 2048 * 1024)
    else: srd(a, SRD_A, S_WS, WS_BYTES)
    srd(a, SRD_B, S_PTR + 2, 512 * 3072)
    srd(a, SRD_W, S_WS, WS_BYTES)
    a('s_cmp_ge_u32 s4, 2')
    a(f's_cbranch_scc1 L_ld1_{name}')
    sv = list(a.hist)
    loader(a, C, name + 'a', 2, None if first else STB)
    a.label(f'L_ld1_{name}')
    a.hist = sv
    loader(a, C, name + 'b', 1, None if first else STB)
    a.label(f'L_comp_{name}')
    a.lds = [set()]
    ACQ, ACK, ACV = 64, 80, 96
    SS, SG, CS = 112, 120, 128
    FR = 152
    ONES = 216
    fixed = [8, 9, 10]; cur = [11, 12, 13]
    vX, vW0, vW1 = cur
    vKVa, vZa, vT, vDb = 17, 18, 20, 21
    a('s_lshl_b32 s4, s3, 11')
    xbase(a, 8, 4, amode)
    wpat(a, 9, 10)
    a('s_lshl_b32 s5, s13, 11')
    a('s_lshl_b32 s6, s3, 9')
    a('s_add_u32 s5, s5, s6')
    a(f's_add_u32 s5, s5, {KVB}')
    a(f'v_lshl_add_u32 v{vKVa}, v1, 2, s5')
    a('s_lshl_b32 s5, s13, 7')
    a(f's_add_u32 s5, s5, {KVB + 32768}')
    a(f'v_lshl_add_u32 v{vZa}, v1, 2, s5')
    a('s_lshl_b32 s7, s13, 7')
    a(f's_add_u32 s7, s7, {WS_CS}')
    a('v_lshlrev_b32 v14, 4, v2')
    a('v_lshlrev_b32 v15, 2, v3')
    a('s_waitcnt lgkmcnt(0)')
    srd(a, SRD_W, S_WS, WS_BYTES)
    if first:
        srd(a, SRD_M, S_DBG, 256)
        a('s_lshl_b32 s4, s13, 4')
        a(f'v_mov_b32 v{vDb}, s4')
        a('s_cmp_lt_u32 s2, 16')
        a('s_cselect_b32 s4, 0, 1')
        a('s_or_b32 s4, s4, s3')
        a('s_cmp_eq_u32 s4, 0')
        a(f's_cbranch_scc0 L_nozero_{name}')
        a.begin_opt()
        a('v_mov_b32 v4, 0')
        a('s_lshl_b32 s4, s2, 11')
        a(f's_add_u32 s4, s4, {KVB}')
        a('v_lshlrev_b32 v5, 2, v1')
        for i in range(8):
            a(f'buffer_atomic_swap v4, v5, {S4(SRD_W)}, s4 offen offset:{i*256}')
        a('s_lshl_b32 s4, s2, 7')
        a(f's_add_u32 s4, s4, {KVB + 32768}')
        a('s_mov_b32 exec_hi, 0')
        a(f'buffer_atomic_swap v4, v5, {S4(SRD_W)}, s4 offen')
        a('s_mov_b64 exec, 1')
        a('s_lshl_b32 s4, s2, 4')
        a('v_mov_b32 v5, s4')
        a('v_mov_b32 v4, 1')
        a('s_waitcnt vmcnt(0)')
        a(f'buffer_atomic_swap v4, v5, {S4(SRD_M)}, 0 offen')
        a('s_mov_b64 exec, -1')
        a.end_opt()
        a.label(f'L_nozero_{name}')
        a.vm = []
    else:
        for u in range(2):
            a(f'buffer_load_dwordx4 {R(CS+4*u)}, v14, {S4(SRD_W)}, s7 offen offset:{64*u}')
        a('s_add_u32 s8, s7, 4096')
        for u in range(2):
            a(f'buffer_load_dword v{CS+8+4*u}, v15, {S4(SRD_W)}, s7 offen offset:{2048+64*u}')
            a(f'buffer_load_dword v{CS+16+4*u}, v15, {S4(SRD_W)}, s8 offen offset:{64*u}')
    for i in range(4): a(f'v_mov_b32 v{ONES+i}, 0x3f803f80')
    for r in range(64, 152 if first else 112): a(f'v_mov_b32 v{r}, 0')

    def fx(s, t): return FR + 32 * s + 4 * t
    def fw(s, p, u): return FR + 32 * s + 8 + 4 * (2 * p + u)

    def reads(s, kk):
        base = kk * C.slot
        l = [rd128(fx(s, 0), vX, base), rd128(fx(s, 1), vX, base + KB)]
        for p in range(3):
            for u in range(2):
                for h in range(2):
                    l.append(rdtr(fw(s, p, u) + 2 * h, vW1 if u else vW0, base + (8 + 2 * p + h) * KB))
        return l

    def mfmas(s):
        l = []
        if first:
            for t in range(2):
                l.append(f'{MF} {R(SS+4*t)}, {R(ONES)}, {R(fx(s,t))}, {R(SS+4*t)}')
                l.append(f'{MF} {R(SG+4*t)}, {R(fx(s,t))}, {R(fx(s,t))}, {R(SG+4*t)}')
        for u in range(2):
            for t in range(2):
                d = ACQ + 8 * t + 4 * u
                l.append(f'{MF} {R(d)}, {R(fw(s,0,u))}, {R(fx(s,t))}, {R(d)}')
            if first:
                l.append(f'{MF} {R(CS+4*u)}, {R(fw(s,0,u))}, {R(ONES)}, {R(CS+4*u)}')
        for p, AC in ((1, ACK), (2, ACV)):
            for u in range(2):
                for t in range(2):
                    d = AC + 8 * u + 4 * t
                    l.append(f'{MF} {R(d)}, {R(fx(s,t))}, {R(fw(s,p,u))}, {R(d)}')
                if first:
                    l.append(f'{MF} {R(CS+8*p+4*u)}, {R(ONES)}, {R(fw(s,p,u))}, {R(CS+8*p+4*u)}')
        return l

    return_vm = list(a.vm)
    loop_big(a, C, name, fixed, cur, reads, mfmas, per=1 if first else 2)
    MEAN, RSTD = 32, 34
    MT, RT_, RTL = 36, 44, 52
    a('s_lshl_b32 s4, s3, 7')
    a(f's_add_u32 s4, s4, {STB}')
    a(f'v_lshl_add_u32 v6, v3, 2, s4')
    a(f'v_lshl_add_u32 v7, v2, 4, s4')
    if first:
        a('s_cmp_eq_u32 s3, 0')
        a(f's_cbranch_scc0 L_nf_{name}')
        a.begin_opt()
        a('s_mov_b64 exec, 1')
        a(f'buffer_load_dword v{vT}, v{vDb}, {S4(SRD_M)}, 0 offen sc0 sc1')
        a('s_mov_b64 exec, -1')
        a.end_opt()
        a.label(f'L_nf_{name}')
        a.vm = []
        a('v_and_b32 v4, 3, v3')
        a('v_cmp_eq_u32 s[52:53], 1, v4')
        a('v_cmp_eq_u32 s[54:55], 2, v4')
        a('v_cmp_eq_u32 s[56:57], 3, v4')
        a('v_lshrrev_b32 v4, 2, v3')
        a('v_cmp_eq_u32 vcc, v4, v2')
        for t in range(2):
            a(f'v_cndmask_b32 v{SG+4*t}, v{SG+4*t}, v{SG+4*t+1}, s[52:53]')
            a(f'v_cndmask_b32 v{SG+4*t}, v{SG+4*t}, v{SG+4*t+2}, s[54:55]')
            a(f'v_cndmask_b32 v{SG+4*t}, v{SG+4*t}, v{SG+4*t+3}, s[56:57]')
        for t in range(2):
            stats_finish(a, SS + 4 * t, SG + 4 * t, MEAN + t, RSTD + t, 4 + t)
        a('s_mov_b64 exec, vcc')
        for t in range(2):
            a(f'ds_write_b32 v6, v{MEAN+t} offset:{64*t}')
            a(f'ds_write_b32 v6, v{RSTD+t} offset:{512+64*t}')
        a('s_mov_b64 exec, -1')
        a('s_waitcnt lgkmcnt(0)')
    for t in range(2):
        a(f'ds_read_b128 {R(MT+4*t)}, v7 offset:{64*t}')
        a(f'ds_read_b128 {R(RT_+4*t)}, v7 offset:{512+64*t}')
    for t in range(2):
        if not first: a(f'ds_read_b32 v{MEAN+t}, v6 offset:{64*t}')
        a(f'ds_read_b32 v{RSTD+t}, v6 offset:{512+64*t}')
    CONE, CEPS, CL2E = 60, 61, 62
    a(f'v_mov_b32 v{CONE}, 1.0')
    a(f'v_mov_b32 v{CEPS}, {hex(f2u(1e-6))}')
    a(f'v_mov_b32 v{CL2E}, {hex(f2u(LOG2E))}')
    if first:
        a('s_or_b32 s4, s12, s3')
        a('s_cmp_eq_u32 s4, 0')
        a(f's_cbranch_scc0 L_ncs_{name}')
        a.flush_hazards()
        a.begin_opt()
        a(f's_add_u32 s8, s7, 4096')
        for u in range(2):
            a(f'buffer_store_dwordx4 {R(CS+4*u)}, v14, {S4(SRD_W)}, s7 offen offset:{64*u}')
            a(f'buffer_store_dword v{CS+8+4*u}, v15, {S4(SRD_W)}, s7 offen offset:{2048+64*u}')
            a(f'buffer_store_dword v{CS+16+4*u}, v15, {S4(SRD_W)}, s8 offen offset:{64*u}')
        a.end_opt()
        a.label(f'L_ncs_{name}')
        a.vm = []
    else:
        a.vm = return_vm
    RFL = 24
    for i in range(0, 8, 2):
        a(pk('v_pk_mul_f32', RTL + i, RT_ + i, CL2E, b1=0))
    T = FR

    def phi_pairs(items):
        n = len(items)
        for i, (ac, m, cs, r, rl, dst) in enumerate(items):
            a(pk('v_pk_fma_f32', ac, m[0], cs[0], ac, b0=m[1], b1=cs[1], neg0=True))
        for i, (ac, m, cs, r, rl, dst) in enumerate(items):
            a(pk('v_pk_mul_f32', T + 2 * i, ac, rl[0], b1=rl[1]))
        for i, (ac, m, cs, r, rl, dst) in enumerate(items):
            a(f'v_exp_f32 v{T+2*i}, v{T+2*i} clamp')
            a(f'v_exp_f32 v{T+2*i+1}, v{T+2*i+1} clamp')
            a(pk('v_pk_fma_f32', ac, ac, r[0], CONE, b1=r[1], b2=0))
        for i, (ac, m, cs, r, rl, dst) in enumerate(items):
            a(f'v_max_f32 v{ac}, v{ac}, v{T+2*i}')
            a(f'v_max_f32 v{ac+1}, v{ac+1}, v{T+2*i+1}')
        for i, (ac, m, cs, r, rl, dst) in enumerate(items):
            a(pk('v_pk_add_f32', ac, ac, CEPS, b1=0))
        for i, (ac, m, cs, r, rl, dst) in enumerate(items):
            a(f'v_cvt_pk_bf16_f32 v{dst}, v{ac}, v{ac+1}')

    PK_, PV, PQ = FR + 16, FR + 24, FR + 32
    items = []
    for u in range(2):
        for t in range(2):
            for hh in range(2):
                items.append((ACK + 8 * u + 4 * t + 2 * hh, (MT + 4 * t + 2 * hh, None), (CS + 8 + 4 * u, 0),
                              (RT_ + 4 * t + 2 * hh, None), (RTL + 4 * t + 2 * hh, None), PK_ + 4 * u + 2 * t + hh))
    phi_pairs(items)
    vi = [(u, t, hh) for u in range(2) for t in range(2) for hh in range(2)]
    for u, t, hh in vi:
        ac = ACV + 8 * u + 4 * t + 2 * hh
        a(pk('v_pk_fma_f32', ac, MT + 4 * t + 2 * hh, CS + 16 + 4 * u, ac, b1=0, neg0=True))
    for u, t, hh in vi:
        ac = ACV + 8 * u + 4 * t + 2 * hh
        a(pk('v_pk_mul_f32', ac, ac, RT_ + 4 * t + 2 * hh))
    for u, t, hh in vi:
        ac = ACV + 8 * u + 4 * t + 2 * hh
        a(f'v_cvt_pk_bf16_f32 v{PV+4*u+2*t+hh}, v{ac}, v{ac+1}')
    KD, ZD = FR + 40, FR + 48
    for u in range(2):
        a(f'{MF} {R(KD+4*u)}, {R(PK_+4*u)}, {R(PV+4*u)}, 0')
        a(f'{MF} {R(ZD+4*u)}, {R(PK_+4*u)}, {R(ONES)}, 0')
    for t in range(2):
        a(f'v_mul_f32 v{RFL+t}, v{CL2E}, v{RSTD+t}')
    a('s_lshl_b32 s4, s3, 11')
    a(f's_add_u32 s4, s4, {SCR}')
    a(f'v_lshl_add_u32 v6, v1, 4, s4')
    a('s_lshl_b32 s4, s3, 7')
    a(f's_add_u32 s4, s4, {ZB}')
    a(f'v_lshl_add_u32 v7, v2, 4, s4')
    for u in range(2):
        a(f'ds_write_b128 v6, {R(KD+4*u)} offset:{u*KB}')
    a('s_mov_b32 exec_lo, 0x00010001')
    a('s_mov_b32 exec_hi, 0x00010001')
    for u in range(2):
        a(f'ds_write_b128 v7, {R(ZD+4*u)} offset:{u*64}')
    a('s_mov_b64 exec, -1')
    a('s_lshl_b32 s4, s3, 9')
    a(f's_add_u32 s4, s4, {SCR}')
    a(f'v_lshl_add_u32 v6, v1, 2, s4')
    a(f'v_and_b32 v7, 31, v1')
    a(f'v_lshlrev_b32 v7, 2, v7')
    a(f'v_add_u32 v7, {ZB}, v7')
    if first:
        a('s_cmp_eq_u32 s3, 0')
        a(f's_cbranch_scc0 L_go_{name}')
        a.label(f'L_poll_{name}')
        a('s_waitcnt vmcnt(0)')
        a(f'v_readfirstlane_b32 s9, v{vT}')
        a('s_cmp_lg_u32 s9, 0')
        a(f's_cbranch_scc1 L_go_{name}')
        a('s_sleep 4')
        a('s_mov_b64 exec, 1')
        a(f'buffer_load_dword v{vT}, v{vDb}, {S4(SRD_M)}, 0 offen sc0 sc1')
        a('s_mov_b64 exec, -1')
        a(f's_branch L_poll_{name}')
        a.label(f'L_go_{name}')
        a.vm = []
    a('s_waitcnt lgkmcnt(0)')
    a('s_barrier')
    RD = FR + 40
    for i in range(2):
        for w in range(4):
            a(f'ds_read_b32 v{RD+4*i+w}, v6 offset:{w*2048+i*256}')
    for w in range(4):
        a(f'ds_read_b32 v{RD+8+w}, v7 offset:{w*128}')
    items = []
    for t in range(2):
        for u in range(2):
            for hh in range(2):
                items.append((ACQ + 8 * t + 4 * u + 2 * hh, (MEAN + t, 0), (CS + 4 * u + 2 * hh, None),
                              (RSTD + t, 0), (RFL + t, 0), PQ + 4 * t + 2 * u + hh))
    phi_pairs(items[:4])
    for i in range(3):
        a(f'v_add_f32 v{RD+4*i}, v{RD+4*i}, v{RD+4*i+1}')
        a(f'v_add_f32 v{RD+4*i+2}, v{RD+4*i+2}, v{RD+4*i+3}')
    for i in range(3):
        a(f'v_add_f32 v{RD+4*i}, v{RD+4*i}, v{RD+4*i+2}')
    for i in range(2):
        a(f'buffer_atomic_add_f32 v{RD+4*i}, v{vKVa}, {S4(SRD_W)}, 0 offen offset:{i*256}')
    a('s_cmp_eq_u32 s3, 0')
    a(f's_cbranch_scc0 L_nz_{name}')
    a.begin_opt()
    a('s_mov_b32 exec_hi, 0')
    a(f'buffer_atomic_add_f32 v{RD+8}, v{vZa}, {S4(SRD_W)}, 0 offen')
    a('s_mov_b64 exec, -1')
    a.end_opt()
    a.label(f'L_nz_{name}')
    a.vm = []
    a('s_lshl_b32 s4, s12, 3')
    a('s_lshl_b32 s5, s3, 1')
    a('s_add_u32 s4, s4, s5')
    a('s_lshl_b32 s4, s4, 4')
    a('s_add_u32 s4, s4, s13')
    a('s_lshl_b32 s4, s4, 10')
    a(f's_add_u32 s4, s4, {WS_PQ}')
    a(f's_add_u32 s5, s4, {16*KB}')
    a('v_lshlrev_b32 v6, 4, v1')
    a(f'buffer_store_dwordx4 {R(PQ)}, v6, {S4(SRD_W)}, s4 offen {stmod()}')
    phi_pairs(items[4:])
    a(f'buffer_store_dwordx4 {R(PQ+4)}, v6, {S4(SRD_W)}, s5 offen {stmod()}')
    ts_flush(a)
    a.label(f'L_end_{name}')
    a('s_endpgm')
    return kernel_text(name, a.text(), 256 if TS['on'] else 224), lds_bytes, 256


def gen_s24(name, which, L, opt):
    a = Asm(); C = Cfg()
    C.RT, C.P = 4, 2
    att = (which == 2)
    C.NC = 8 if att else 22
    C.NKreal = 16 if att else 43
    C.padk = not att
    if att: C.NCH, C.DC = opt.get('s2_nch', 7), opt.get('s2_dc', 5)
    else: C.NCH, C.DC = opt.get('s4_nch', 8), opt.get('s4_dc', 5)
    C.slot = 8 * KB
    SCR = C.NCH * 2 * C.slot
    KVL, ZL, OUTL = SCR, SCR + 16 * KB, SCR
    lds_bytes = SCR + (20 * KB if att else 10 * KB)
    C.KSA = C.NKreal
    C.strideA = KB; C.strideB = 32 * 1024
    C.pstep = 0; C.nBmax = 1
    final = (which == 4 and L == 1)
    res_rowmajor = (which == 2 and L == 0)
    a_off = WS_PQ if att else WS_H
    res_off = (WS_X2 if att else WS_X1)
    out_off = (WS_X1 if att else WS_X2)
    st_off = WS_ST1 if att else WS_ST2
    prologue(a, name, 256)
    opt['map_s24'](a, C.NKreal)
    a('s_cmp_lt_u32 s3, 4')
    a(f's_cbranch_scc1 L_comp_{name}')
    a('s_sub_u32 s4, s3, 4')
    a(f's_mul_i32 s8, s12, {4*C.KSA*KB}')
    a(f's_add_u32 s8, s8, {a_off}')
    a('s_lshr_b32 s9, s4, 1')
    a('s_lshl_b32 s9, s9, 6')
    a('s_lshl_b32 s10, s13, 7')
    a('s_add_u32 s9, s9, s10')
    loader_addr(a, C, 'F', 'F', 1024)
    a('s_waitcnt lgkmcnt(0)')
    srd(a, SRD_A, S_WS, WS_BYTES)
    if att: srd(a, SRD_B, S_PTR + 4, 512 * 1024)
    else: srd(a, SRD_B, S_PTR + 12, 1376 * 1024)
    if TS['on']: srd(a, SRD_W, S_WS, WS_BYTES)
    loader(a, C, name, 1)
    a.label(f'L_comp_{name}')
    a.lds = [set()]
    ACC = 32
    FR = 48
    SETSZ = 56
    N = 160
    OF = 184
    EPS4, ONES = 192, 196
    RES = 24
    KVT = 200
    fixed = [8, 9, 10]; cur = [11, 12, 13]
    vX, vW0, vW1 = cur
    vKV, vZ = 14, 15
    a('s_lshl_b32 s15, s12, 2')
    a('s_add_u32 s15, s15, s3')
    a('s_lshl_b32 s4, s3, 10')
    xbase(a, 8, 4, 'F')
    wpat(a, 9, 10)
    a('v_lshlrev_b32 v16, 4, v1')
    a('s_lshl_b32 s6, s15, 4')
    a('s_lshl_b32 s5, s13, 1')
    a('s_add_u32 s6, s6, s5')
    a('s_lshl_b32 s6, s6, 10')
    a(f's_add_u32 s7, s6, {res_off}')
    a(f's_add_u32 s6, s6, {out_off}')
    a('s_lshl_b32 s8, s15, 14')
    a('s_lshl_b32 s5, s13, 7')
    a('s_add_u32 s8, s8, s5')
    if res_rowmajor:
        a('v_lshlrev_b32 v4, 10, v3')
        a('v_lshl_add_u32 v17, v2, 3, v4')
    if att:
        KVB = WS_KV + L * 65536
        a('s_lshl_b32 s4, s3, 13')
        a(f's_add_u32 s4, s4, {KVB}')
        a(f's_add_u32 s5, s4, 4096')
        a('v_and_b32 v18, 31, v1')
        a('s_lshl_b32 s11, s3, 9')
        a(f's_add_u32 s11, s11, {KVB + 32768}')
        a('v_lshlrev_b32 v18, 4, v18')
    a('s_waitcnt lgkmcnt(0)')
    srd(a, SRD_W, S_WS, WS_BYTES)
    if final: srd(a, SRD_M, S_PTR + 14, 2048 * 1024)
    elif res_rowmajor: srd(a, SRD_M, S_PTR + 0, 2048 * 1024)
    if att:
        for i in range(8):
            a(f'buffer_load_dwordx4 {R(KVT+4*i)}, v16, {S4(SRD_W)}, s{4+i//4} offen offset:{(i%4)*KB}')
        a(f'buffer_load_dwordx4 {R(N)}, v18, {S4(SRD_W)}, s11 offen')
    if res_rowmajor:
        for T in range(4):
            a(f'buffer_load_dwordx2 {R(RES+2*T,2)}, v17, {S4(SRD_M)}, s8 offen offset:{32*T}')
    else:
        for i in range(2):
            a(f'buffer_load_dwordx4 {R(RES+4*i)}, v16, {S4(SRD_W)}, s7 offen offset:{i*KB}')
    if att and L == 0:
        for i in range(4): a(f'v_mov_b32 v{OF+i}, 0')
        a('s_cmp_lt_u32 s2, 34')
        a('s_cselect_b32 s4, 0, 1')
        a('s_or_b32 s4, s4, s3')
        a('s_cmp_eq_u32 s4, 0')
        a(f's_cbranch_scc0 L_nozero_{name}')
        sv = list(a.vm)
        a.begin_opt()
        a('s_lshl_b32 s4, s2, 10')
        a(f's_add_u32 s4, s4, {WS_KV + 65536}')
        a(f'buffer_store_dwordx4 {R(OF)}, v16, {S4(SRD_W)}, s4 offen')
        a.end_opt()
        a.label(f'L_nozero_{name}')
        a.vm = sv
        ZERO_STORE = True
    else:
        ZERO_STORE = False
    for i in range(4): a(f'v_mov_b32 v{ONES+i}, 0x3f803f80')
    if att:
        for i in range(4): a(f'v_mov_b32 v{EPS4+i}, {hex(f2u(1e-6))}')
        a(f'v_add_u32 v{vKV}, {KVL}, v16')
        a(f'v_and_b32 v4, 1, v1')
        a(f'v_lshl_add_u32 v4, v2, 1, v4')
        a(f'v_lshlrev_b32 v4, 4, v4')
        a(f'v_add_u32 v{vZ}, {ZL}, v4')
        a('v_bfe_u32 v5, v1, 2, 1')
        a('v_cmp_eq_u32 vcc, 1, v5')
        a('v_bfe_u32 v6, v1, 3, 2')
        a('s_lshl_b32 s4, s3, 2')
        a('s_add_u32 s4, s4, 16')
        a('s_sub_u32 s4, s4, s14')
        a('v_add_u32 v6, s4, v6')
        a('v_and_b32 v6, 15, v6')
        a('v_lshlrev_b32 v6, 7, v6')
        a('v_and_b32 v7, 3, v1')
        a('v_lshl_add_u32 v7, v7, 1, v5')
        a('v_lshl_add_u32 v6, v7, 4, v6')
        a(f'v_add_u32 v6, {ZL}, v6')
        for i in range(4):
            for hh in range(2):
                src = KVT + 8 * i + 4 * hh
                a(f'v_cvt_pk_bf16_f32 v{KVT+8*i+2*hh}, v{src}, v{src+1}')
                a(f'v_cvt_pk_bf16_f32 v{KVT+8*i+2*hh+1}, v{src+2}, v{src+3}')
            a(f's_add_u32 s5, s4, {i}')
            a('s_and_b32 s5, s5, 15')
            a('s_lshl_b32 s5, s5, 10')
            a(f'v_add_u32 v4, s5, v{vKV}')
            a(f'ds_write_b128 v4, {R(KVT+8*i)}')
        a(f'v_cvt_pk_bf16_f32 v{N+4}, v{N}, v{N+1}')
        a(f'v_cvt_pk_bf16_f32 v{N+5}, v{N+2}, v{N+3}')
        a(f'v_cndmask_b32 v{N+8}, v{N+4}, 0, vcc')
        a(f'v_cndmask_b32 v{N+9}, v{N+5}, 0, vcc')
        a(f'v_cndmask_b32 v{N+10}, 0, v{N+4}, vcc')
        a(f'v_cndmask_b32 v{N+11}, 0, v{N+5}, vcc')
        a(f'ds_write_b128 v6, {R(N+8)}')
    for T in range(4):
        for hh in range(2):
            a(f'v_lshlrev_b32 v{ACC+4*T+2*hh}, 16, v{RES+2*T+hh}')
            a(f'v_and_b32 v{ACC+4*T+2*hh+1}, 0xffff0000, v{RES+2*T+hh}')

    def fx(s, kk): return FR + SETSZ * s + 4 * kk
    def fkv(s, kk): return FR + SETSZ * s + 8 + 4 * kk
    def fz(s, kk): return FR + SETSZ * s + 16 + 4 * kk
    def fw(s, kk, T): return FR + SETSZ * s + 24 + 16 * kk + 4 * T

    def reads(s):
        l = []
        for kk in range(2):
            l.append(rd128(fx(s, kk), vX, kk * C.slot))
            if att:
                l.append(rd128(fz(s, kk), vZ, kk * 128))
                l.append(rd128(fkv(s, kk), vKV, kk * KB))
        for kk in range(2):
            for T in range(4):
                p, u = T >> 1, T & 1
                for h in range(2):
                    l.append(rdtr(fw(s, kk, T) + 2 * h, vW1 if u else vW0, kk * C.slot + (4 + 2 * p + h) * KB))
        return l

    def adv():
        advance(a, C, fixed, cur)
        if att:
            a(f'v_add_u32 v{vKV}, {2*KB}, v{vKV}')
            a(f'v_add_u32 v{vZ}, 256, v{vZ}')

    def mainm(s, kk, xf):
        return [f'{MF} {R(ACC+4*T)}, {R(fw(s,kk,T))}, {R(xf)}, {R(ACC+4*T)}' for T in range(4)]

    def amf(s, kk):
        x, kv, z = fx(s, kk), fkv(s, kk), fz(s, kk)
        n = N + 12 * kk
        return [f'{MF} {R(n+8)}, {R(z)}, {R(x)}, {R(EPS4)}',
                f'{MF16} {R(n)}, {R(kv,2)}, {R(x,2)}, 0',
                f'{MF16} {R(n+4)}, {R(kv+2,2)}, {R(x+2,2)}, 0']

    def avalu(kk):
        n = N + 12 * kk; o = OF + 4 * kk; dn = n + 8
        return [f'v_rcp_f32 v{dn}, v{dn}', f'v_rcp_f32 v{dn+1}, v{dn+1}',
                pk('v_pk_mul_f32', n, n, dn, b1=0), pk('v_pk_mul_f32', n + 2, n + 2, dn, b1=0),
                pk('v_pk_mul_f32', n + 4, n + 4, dn + 1, b1=0), pk('v_pk_mul_f32', n + 6, n + 6, dn + 1, b1=0),
                f'v_cvt_pk_bf16_f32 v{o}, v{n}, v{n+1}', f'v_cvt_pk_bf16_f32 v{o+1}, v{n+2}, v{n+3}',
                f'v_cvt_pk_bf16_f32 v{o+2}, v{n+4}, v{n+5}', f'v_cvt_pk_bf16_f32 v{o+3}, v{n+6}, v{n+7}']

    def period(s):
        a.wait_lds_all()
        ts(a)
        a('s_barrier')
        ts(a)
        rd = reads(1 - s)
        if not att:
            interleave(a, mainm(s, 0, fx(s, 0)) + mainm(s, 1, fx(s, 1)), rd, per=3)
        else:
            interleave(a, amf(s, 0) + amf(s, 1), rd[:14], per=3)
            for t in avalu(0): a(t)
            interleave(a, mainm(s, 0, OF), avalu(1), per=3)
            interleave(a, mainm(s, 1, OF + 4), rd[14:], per=2)
        adv()

    a('s_mov_b32 s10, 0')
    a('s_mov_b32 s9, 0')
    for f, c in zip(fixed, cur): a(f'v_mov_b32 v{c}, v{f}')
    a.wait_lds_all()
    ts(a)
    a('s_barrier')
    ts(a)
    for t in reads(0): a(t)
    adv()
    a.loop_begin(f'L_ml_{name}')
    period(0)
    period(1)
    a('s_add_u32 s9, s9, 1')
    a(f's_cmp_lt_u32 s9, {C.NC//2}')
    a(f's_cbranch_scc1 L_ml_{name}')
    a.loop_end_check()
    a.wait_lds_all()
    ts(a)
    OUT = 24
    for T in range(4):
        for hh in range(2):
            a(f'v_cvt_pk_bf16_f32 v{OUT+2*T+hh}, v{ACC+4*T+2*hh}, v{ACC+4*T+2*hh+1}')
    if not final:
        SS, SG = N, N + 4
        a(f'{MF} {R(SS)}, {R(ONES)}, {R(OUT)}, 0')
        a(f'{MF} {R(SG)}, {R(OUT)}, {R(OUT)}, 0')
        a(f'{MF} {R(SS)}, {R(ONES)}, {R(OUT+4)}, {R(SS)}')
        a(f'{MF} {R(SG)}, {R(OUT+4)}, {R(OUT+4)}, {R(SG)}')
        for i in range(2):
            a(f'buffer_store_dwordx4 {R(OUT+4*i)}, v16, {S4(SRD_W)}, s6 offen offset:{i*KB} {stmod()}')
        a('s_lshl_b32 s4, s15, 10')
        a('s_lshl_b32 s5, s13, 3')
        a('s_add_u32 s4, s4, s5')
        a(f's_add_u32 s4, s4, {st_off}')
        a('v_lshlrev_b32 v5, 6, v3')
        a('v_and_b32 v6, 3, v3')
        a('v_cmp_eq_u32 s[52:53], 1, v6')
        a('v_cmp_eq_u32 s[54:55], 2, v6')
        a('v_cmp_eq_u32 s[56:57], 3, v6')
        a('v_lshrrev_b32 v6, 2, v3')
        a('v_cmp_eq_u32 vcc, v6, v2')
        a(f'v_cndmask_b32 v{SS+1}, v{SG}, v{SG+1}, s[52:53]')
        a(f'v_cndmask_b32 v{SS+1}, v{SS+1}, v{SG+2}, s[54:55]')
        a(f'v_cndmask_b32 v{SS+1}, v{SS+1}, v{SG+3}, s[56:57]')
        a('s_mov_b64 exec, vcc')
        a(f'buffer_store_dwordx2 {R(SS,2)}, v5, {S4(SRD_W)}, s4 offen {stmod()}')
    else:
        a(f's_mul_i32 s4, s3, {16*144}')
        a(f's_add_u32 s4, s4, {OUTL}')
        a(f'v_mul_u32_u24 v4, 144, v3')
        a('v_lshl_add_u32 v4, v2, 3, v4')
        a('v_add_u32 v4, s4, v4')
        for T in range(4):
            a(f'ds_write_b64 v4, {R(OUT+2*T,2)} offset:{32*T}')
        a('v_lshrrev_b32 v5, 3, v1')
        a('v_and_b32 v6, 7, v1')
        a('v_mul_u32_u24 v7, 144, v5')
        a('v_lshl_add_u32 v7, v6, 4, v7')
        a('v_add_u32 v7, s4, v7')
        a('s_waitcnt lgkmcnt(0)')
        for i in range(2):
            a(f'ds_read_b128 {R(ACC+4*i)}, v7 offset:{i*8*144}')
        a('v_lshlrev_b32 v5, 10, v5')
        a('v_lshl_add_u32 v5, v6, 4, v5')
        a(f's_add_u32 s9, s8, {8*KB}')
        for i in range(2):
            a(f'buffer_store_dwordx4 {R(ACC+4*i)}, v5, {S4(SRD_M)}, s{8+i} offen {stmod()}')
    ts_flush(a)
    a.label(f'L_end_{name}')
    a('s_endpgm')
    return kernel_text(name, a.text(), 256 if TS['on'] else 232), lds_bytes, 256


def gen_s3(name, L, opt):
    a = Asm(); C = Cfg()
    C.RT, C.P, C.NC = 8, 6, 8
    C.NCH, C.DC = opt.get('s3_nch', 3), opt.get('s3_dc', 2)
    C.slot = 20 * KB; C.padk = False
    SCR = C.NCH * 2 * C.slot
    STB = SCR
    CSX = SCR + KB
    lds_bytes = SCR + 4 * KB
    C.KSA = 16; C.strideA = KB; C.strideB = 32 * 2752
    C.pstep = 64; C.nBmax = 3
    first = (L == 0)
    prologue(a, name, 240)
    opt['map_s3'](a)
    a('s_cmp_lt_u32 s3, 4')
    a(f's_cbranch_scc1 L_comp_{name}')
    a('s_sub_u32 s4, s3, 4')
    a('s_lshl_b32 s8, s12, 17')
    a(f's_add_u32 s8, s8, {WS_X1}')
    a(f's_mul_i32 s9, s13, 192')
    loader_addr(a, C, 'F', 'F', 2752)
    a('s_lshl_b32 s8, s12, 2')
    a('s_add_u32 s8, s8, s4')
    a('s_lshl_b32 s8, s8, 11')
    a(f's_add_u32 s8, s8, {WS_ST1}')
    a('s_waitcnt lgkmcnt(0)')
    srd(a, SRD_A, S_WS, WS_BYTES)
    srd(a, SRD_W, S_WS, WS_BYTES)
    a('s_cmp_ge_u32 s4, 2')
    a(f's_cselect_b32 s{SRD_B}, s{S_PTR+10}, s{S_PTR+8}')
    a(f's_cselect_b32 s{SRD_B+1}, s{S_PTR+11}, s{S_PTR+9}')
    a(f's_mov_b32 s{SRD_B+2}, {512*2752}')
    a(f's_mov_b32 s{SRD_B+3}, 0x00020000')
    loader(a, C, name, 3, STB)
    a.label(f'L_comp_{name}')
    a.lds = [set()]
    ACG, ACU = 40, 88
    CS = 136
    FR = 160
    ONES = 240
    fixed = [8, 9, 10, 11]; cur = [12, 13, 14, 15]
    vX = 12; vW = 13
    MEAN, RSTD, R2 = 24, 28, 32
    a('s_lshr_b32 s6, s3, 1')
    a('s_and_b32 s11, s3, 1')
    a('s_lshl_b32 s15, s12, 3')
    a('s_lshl_b32 s5, s6, 2')
    a('s_add_u32 s15, s15, s5')
    a('s_lshl_b32 s4, s6, 12')
    xbase(a, 8, 4, 'F')
    wpat(a, 9, 10)
    a('s_lshl_b32 s4, s11, 5')
    a('v_xor_b32 v11, s4, v9')
    a('v_add_u32 v11, 4096, v11')
    a('s_lshl_b32 s4, s11, 13')
    a('v_add_u32 v9, s4, v9')
    a('v_add_u32 v10, s4, v10')
    a('s_mul_i32 s7, s13, 384')
    a(f's_add_u32 s7, s7, {WS_CS + 8*KB}')
    a('s_lshl_b32 s4, s11, 8')
    a('v_lshl_add_u32 v16, v2, 4, s4')
    a('s_lshl_b32 s4, s11, 6')
    a('s_add_u32 s4, s4, 128')
    a('v_lshl_add_u32 v17, v2, 4, s4')
    a(f's_add_u32 s8, s7, {8*KB}')
    a('s_waitcnt lgkmcnt(0)')
    srd(a, SRD_W, S_WS, WS_BYTES)

    def cs_mem(op):
        for gs in range(2):
            so = 's8' if gs else 's7'
            a(f'{op} {R(CS+12*gs)}, v16, {S4(SRD_W)}, {so} offen')
            a(f'{op} {R(CS+12*gs+4)}, v16, {S4(SRD_W)}, {so} offen offset:64')
            a(f'{op} {R(CS+12*gs+8)}, v17, {S4(SRD_W)}, {so} offen')
    if not first: cs_mem('buffer_load_dwordx4')
    for i in range(4): a(f'v_mov_b32 v{ONES+i}, 0x3f803f80')
    for r in range(40, 160 if first else 136): a(f'v_mov_b32 v{r}, 0')

    def fx(s, t): return FR + 40 * s + 4 * t
    def fw(s, gs, i): return FR + 40 * s + 16 + 4 * (2 * i + gs)

    def reads(s, kk):
        base = kk * C.slot
        wl = []
        for i in range(3):
            for gs in range(2):
                for h in range(2):
                    wl.append(rdtr(fw(s, gs, i) + 2 * h, vW + i, base + (8 + 2 * gs + h) * KB))
        xl = [rd128(fx(s, t), vX, base + t * KB) for t in range(4)]
        return wl[:2] + xl + wl[2:]

    cnt = [0]

    def mfmas(s):
        l = []
        for i in range(3):
            for gs, AC in ((0, ACG), (1, ACU)):
                for t in range(4):
                    d = AC + 12 * t + 4 * i
                    l.append(f'{MF} {R(d)}, {R(fw(s,gs,i))}, {R(fx(s,t))}, {R(d)}')
        if first:
            def csblk():
                cnt[0] += 1
                lab = f'L_cs{cnt[0]}_{name}'
                a(f's_cmp_eq_u32 s6, {s}')
                a(f's_cbranch_scc0 {lab}')
                a.begin_opt()
                for i in range(3):
                    for gs in range(2):
                        d = CS + 12 * gs + 4 * i
                        a(f'{MF} {R(d)}, {R(fw(s,gs,i))}, {R(ONES)}, {R(d)}')
                a.end_opt()
                a.label(lab)
            l.append(csblk)
        return l

    return_vm = list(a.vm)
    loop_big(a, C, name, fixed, cur, reads, mfmas, per=1)
    a.vm = return_vm
    a('s_lshl_b32 s4, s6, 8')
    a(f's_add_u32 s4, s4, {STB}')
    a(f'v_lshl_add_u32 v6, v3, 2, s4')
    for t in range(4):
        a(f'ds_read_b32 v{MEAN+t}, v6 offset:{64*t}')
        a(f'ds_read_b32 v{RSTD+t}, v6 offset:{512+64*t}')
    if first:
        a(f's_mul_i32 s4, s3, 384')
        a(f's_add_u32 s4, s4, {CSX}')
        a('v_lshl_add_u32 v4, v2, 4, s4')
        a('s_xor_b32 s5, s3, 2')
        a(f's_mul_i32 s5, s5, 384')
        a(f's_add_u32 s5, s5, {CSX}')
        a('v_lshl_add_u32 v5, v2, 4, s5')
        a('s_mov_b32 exec_lo, 0x00010001')
        a('s_mov_b32 exec_hi, 0x00010001')
        for i in range(6):
            a(f'ds_write_b128 v4, {R(CS+4*i)} offset:{64*i}')
        a('s_mov_b64 exec, -1')
        a('s_waitcnt lgkmcnt(0)')
        a('s_barrier')
        for i in range(6):
            a(f'ds_read_b128 {R(FR+4*i)}, v5 offset:{64*i}')
        for i in range(12):
            a(pk('v_pk_add_f32', CS + 2 * i, CS + 2 * i, FR + 2 * i))
        a('s_or_b32 s4, s12, s6')
        a('s_cmp_eq_u32 s4, 0')
        a(f's_cbranch_scc0 L_ncs_{name}')
        a.begin_opt()
        cs_mem('buffer_store_dwordx4')
        a.end_opt()
        a.label(f'L_ncs_{name}')
        a.vm = []
    for t in range(4):
        a(f'v_mul_f32 v{R2+t}, v{RSTD+t}, v{RSTD+t}')
    a(f's_mul_i32 s4, s15, 43')
    a(f's_mul_i32 s5, s13, 3')
    a('s_add_u32 s4, s4, s5')
    a('s_lshl_b32 s4, s4, 10')
    a(f's_add_u32 s4, s4, {WS_H}')
    a('s_lshl_b32 s5, s11, 11')
    a('s_add_u32 s5, s5, s4')
    a('s_lshl_b32 s6, s11, 3')
    a('s_add_u32 s6, s6, s4')
    a('s_add_u32 s6, s6, 1024')
    a('v_lshlrev_b32 v4, 4, v1')
    DUMP = WS_TS + (8 << 20)
    a('s_cmp_eq_u32 s13, 14')
    a(f's_cselect_b32 s6, {DUMP}, s6')
    a('s_cselect_b32 s7, s11, 0')
    a('s_cmp_lg_u32 s7, 0')
    a(f's_cselect_b32 s5, {DUMP}, s5')
    OUT = FR
    for t in range(4):
        idx = [(i, hh) for i in range(3) for hh in range(2)]
        for i, hh in idx:
            g = ACG + 12 * t + 4 * i + 2 * hh; u = ACU + 12 * t + 4 * i + 2 * hh
            a(pk('v_pk_fma_f32', g, MEAN + t, CS + 4 * i + 2 * hh, g, b0=0, neg0=True))
            a(pk('v_pk_fma_f32', u, MEAN + t, CS + 12 + 4 * i + 2 * hh, u, b0=0, neg0=True))
        for i, hh in idx:
            g = ACG + 12 * t + 4 * i + 2 * hh; u = ACU + 12 * t + 4 * i + 2 * hh
            a(f'v_max_f32 v{g}, 0, v{g}')
            a(f'v_max_f32 v{g+1}, 0, v{g+1}')
            a(pk('v_pk_mul_f32', u, u, R2 + t, b1=0))
        for i, hh in idx:
            g = ACG + 12 * t + 4 * i + 2 * hh; u = ACU + 12 * t + 4 * i + 2 * hh
            a(pk('v_pk_mul_f32', g, g, u))
        for i, hh in idx:
            g = ACG + 12 * t + 4 * i + 2 * hh
            a(f'v_cvt_pk_bf16_f32 v{OUT+8*t+2*i+hh}, v{g}, v{g+1}')
        a(f'buffer_store_dwordx4 {R(OUT+8*t)}, v4, {S4(SRD_W)}, s5 offen {stmod()}')
        a(f'buffer_store_dwordx2 {R(OUT+8*t+4,2)}, v4, {S4(SRD_W)}, s6 offen {stmod()}')
        if t < 3:
            a(f's_add_u32 s5, s5, {43*KB}')
            a(f's_add_u32 s6, s6, {43*KB}')
    ts_flush(a)
    a.label(f'L_end_{name}')
    a('s_endpgm')
    return kernel_text(name, a.text(), 256 if TS['on'] else 248), lds_bytes, 240


def map_s1_default(a):
    a('s_and_b32 s4, s2, 7')
    a('s_lshr_b32 s5, s2, 3')
    a('s_lshr_b32 s12, s4, 1')
    a('s_lshl_b32 s12, s12, 2')
    a('s_lshr_b32 s6, s5, 3')
    a('s_add_u32 s12, s12, s6')
    a('s_and_b32 s13, s4, 1')
    a('s_lshl_b32 s13, s13, 3')
    a('s_and_b32 s6, s5, 7')
    a('s_add_u32 s13, s13, s6')
    a('s_add_u32 s14, s12, s13')
    a('s_and_b32 s14, s14, 15')


def map_s24_default(a, nk):
    a('s_and_b32 s4, s2, 7')
    a('s_lshr_b32 s5, s2, 3')
    a('s_lshl_b32 s12, s4, 2')
    a('s_lshr_b32 s6, s5, 3')
    a('s_add_u32 s12, s12, s6')
    a('s_and_b32 s13, s5, 7')
    if nk == 16:
        a('s_lshl_b32 s14, s13, 1')
        a('s_add_u32 s14, s14, s12')
        a('s_and_b32 s14, s14, 15')
    else:
        a('s_mul_i32 s14, s13, 5')
        a('s_and_b32 s6, s12, 3')
        a('s_add_u32 s14, s14, s6')


def map_s3_default(a):
    a('s_and_b32 s4, s2, 7')
    a('s_lshr_b32 s5, s2, 3')
    a('s_and_b32 s6, s4, 1')
    a('s_mul_i32 s6, s6, 30')
    a('s_add_u32 s6, s6, s5')
    a('s_lshr_b32 s13, s6, 2')
    a('s_and_b32 s6, s6, 3')
    a('s_lshr_b32 s12, s4, 1')
    a('s_lshl_b32 s12, s12, 2')
    a('s_add_u32 s12, s12, s6')
    a('s_add_u32 s14, s12, s13')
    a('s_and_b32 s14, s14, 15')


def build(opt=None, fn=None):
    o = dict(map_s1=map_s1_default, map_s24=map_s24_default, map_s3=map_s3_default)
    o.update(opt or {})
    OPT.clear(); OPT.update(o)
    TS['on'] = o.get('ts', False)
    ks = []
    for L in range(2):
        TS['kidx'] = 4 * L
        ks.append((f's1l{L}_kernel',) + gen_s1(f's1l{L}_kernel', L, o))
        TS['kidx'] = 4 * L + 1
        ks.append((f's2l{L}_kernel',) + gen_s24(f's2l{L}_kernel', 2, L, o))
        TS['kidx'] = 4 * L + 2
        ks.append((f's3l{L}_kernel',) + gen_s3(f's3l{L}_kernel', L, o))
        TS['kidx'] = 4 * L + 3
        ks.append((f's4l{L}_kernel',) + gen_s24(f's4l{L}_kernel', 4, L, o))
    s = '; interleaved linear-attention / ReGLU layers: 8-kernel launch list (generated)\n'
    for n, t, lds, g in ks:
        s += f'; @launch kernel={n} grid=({g},1,1) block=(512,1,1) lds={lds}\n'
    s += '.amdgcn_target "amdgcn-amd-amdhsa--gfx950"\n'
    for n, t, lds, g in ks:
        s += t
    if fn: open(fn, 'w').write(s)
    return s


if __name__ == '__main__':
    fn = sys.argv[1]
    opt = {}
    for kv in sys.argv[2:]:
        k, v = kv.split('=', 1)
        opt[k] = eval(v)
    s = build(opt, fn=fn)
    print('bytes', len(s), 'lines', s.count('\n'))
```

```python
import sys, struct, json
from asmlib import Asm, kernel_text

KB = 1024
MB = 1 << 20
WS_PQ = [0, 2 * MB]
WS_X1 = [4 * MB, 6 * MB]
WS_H = [8 * MB, 14 * MB]
WS_X2 = 20 * MB
WS_KV = 22 * MB
WS_SYNC = 22 * MB + 128 * KB
WS_ST1 = [22 * MB + 256 * KB, 22 * MB + 384 * KB]
WS_ST2 = 22 * MB + 512 * KB
WS_DUMP = 23 * MB
WS_TS = 24 * MB
WS_BYTES = 268435456
S_PTR, S_DBG, S_WS = 16, 32, 34
SRD_A, SRD_B, SRD_W, SRD_M = 36, 40, 44, 48
S_RA, S_RB = 58, 59
S_TEAM, S_MEM, S_XCC, S_HET, S_VID = 60, 61, 62, 63, 96
SB_QKV, SB_WO, SB_WG, SB_WU, SB_WD = 64, 68, 72, 76, 80
LOG2E = 1.4426950408889634
MF = 'v_mfma_f32_16x16x32_bf16'
MF16 = 'v_mfma_f32_16x16x16_bf16'
OPT = {}
RB_SZ = 96 * KB
RA0 = 96 * KB
SCR = 144 * KB
CS1L = 154 * KB
CS3L = 155 * KB
VIDL = 156 * KB
LDS_BYTES = 157 * KB
SPIN = 1 << 17


def f2u(x): return struct.unpack('<I', struct.pack('<f', x))[0]
def R(b, n=4): return f'v[{b}:{b+n-1}]' if n > 1 else f'v{b}'
def S4(b): return f's[{b}:{b+3}]'
def stmod(): return OPT.get('stmod', '')


def srd(a, dst, ptr, size):
    a(f's_mov_b32 s{dst}, s{ptr}')
    a(f's_mov_b32 s{dst+1}, s{ptr+1}')
    a(f's_mov_b32 s{dst+2}, {size}')
    a(f's_mov_b32 s{dst+3}, 0x00020000')


TS = {'on': False, 'role': None, 'names': {}}


def tsl(a, p, name):
    if TS['on'] and OPT.get('tsp') == p.name: ts(a, name, True)


def ts(a, name, force=False):
    if not TS['on']: return
    if OPT.get('tsp') and not force and not name.startswith(OPT['tsp']) and name not in ('start', 'end'): return
    TS['names'].setdefault(TS['role'], []).append(name)
    a('s_waitcnt lgkmcnt(0)')
    a('s_memtime s[100:101]')
    a('s_waitcnt lgkmcnt(0)')
    a('s_mov_b32 s98, m0')
    a('s_mov_b32 m0, s99')
    a('s_nop 0')
    a('v_writelane_b32 v250, s100, m0')
    a('s_mov_b32 m0, s98')
    a('s_add_u32 s99, s99, 1')
    a('s_min_u32 s99, s99, 63')


def ts_flush(a):
    if not TS['on']: return
    ts(a, 'end')
    a('s_mov_b64 exec, -1')
    a(f's_lshl_b32 s4, s{S_VID}, 3')
    a('s_add_u32 s4, s4, s3')
    a('s_lshl_b32 s4, s4, 8')
    a(f's_add_u32 s4, s4, {WS_TS}')
    a('v_lshlrev_b32 v5, 2, v1')
    a(f'buffer_store_dword v250, v5, {S4(SRD_W)}, s4 offen')


def pk(op, d, s0, s1, s2=None, b0=None, b1=None, b2=None, neg0=False, neg1=False):
    def opnd(s, b):
        if b is None:
            assert s % 2 == 0, s
            return f'v[{s}:{s+1}]', 0, 1
        base = s & ~1; h = s & 1
        return f'v[{base}:{base+1}]', h, h
    srcs = [opnd(s0, b0), opnd(s1, b1)]
    if s2 is not None: srcs.append(opnd(s2, b2))
    assert d % 2 == 0
    t = f'{op} v[{d}:{d+1}], ' + ', '.join(s[0] for s in srcs)
    t += ' op_sel:[' + ','.join(str(s[1]) for s in srcs) + ']'
    t += ' op_sel_hi:[' + ','.join(str(s[2]) for s in srcs) + ']'
    if neg0 or neg1:
        n = [1 if neg0 else 0, 1 if neg1 else 0] + ([0] if s2 is not None else [])
        t += ' neg_lo:[' + ','.join(map(str, n)) + '] neg_hi:[' + ','.join(map(str, n)) + ']'
    return t


class Ph:
    def __init__(self, ph, L, opt):
        self.ph, self.L = ph, L
        self.name = f's{ph}l{L}'
        self.final = (ph == 4 and L == 1)
        self.padk = (ph == 4)
        self.NC = 22 if ph == 4 else 8
        self.NKreal = 43 if ph == 4 else 16
        self.RT = 8 if ph in (1, 3) else 4
        self.PB = {1: 6, 2: 4, 3: 12, 4: 4}[ph]
        self.sA = self.RT * KB; self.sB = self.PB * KB
        self.cA = 2 * self.sA; self.cB = 2 * self.sB
        self.NCH = {1: 3, 2: 5, 3: 3, 4: 6}[ph]
        self.DC = opt.get(f's{ph}_dc', self.NCH - 1)
        self.KSA = 16 if ph in (1, 3) else 43
        self.amode = 'R' if (ph == 1 and L == 0) else 'F'
        self.bmap = 'S' if (ph == 1 and L == 0) else 'F'
        self.strideA = 64 if self.amode == 'R' else KB
        self.rowB = {1: 3072, 2: 1024, 3: 2752, 4: 1024}[ph]
        self.strideB = 32 * self.rowB
        self.nX = 1 if (ph == 1 or (ph == 3 and L == 0)) else 0
        self.stats = (ph == 3) or (ph == 1 and L == 1)
        self.STB = SCR + 9 * KB if ph == 1 else SCR
        self.vB = {(1, 0): 12, (1, 1): 15, (2, 0): 18, (2, 1): 18, (4, 0): 18, (4, 1): 18, (3, 0): 20, (3, 1): 20}[(ph, L)]
        self.b0 = None
        self.touch = []


def phase_map(a, p):
    if p.ph in (1, 3):
        a(f's_mov_b32 s12, s{S_TEAM}')
        a(f's_mov_b32 s13, s{S_MEM}')
        rx = OPT.get('rotx', 0)
        if rx:
            a(f's_lshr_b32 s14, s{S_TEAM}, 1')
            a(f's_mul_i32 s14, s14, {rx}')
            a(f's_add_u32 s14, s14, s{S_MEM}')
            a('s_and_b32 s14, s14, 15')
        else:
            a(f's_mov_b32 s14, s{S_MEM}')
    else:
        a(f's_lshr_b32 s13, s{S_MEM}, 3')
        a(f's_lshl_b32 s12, s{S_TEAM}, 1')
        a('s_add_u32 s12, s12, s13')
        a(f's_and_b32 s13, s{S_MEM}, 7')
        if p.ph == 2: a('s_lshl_b32 s14, s13, 1')
        else: a('s_mul_i32 s14, s13, 5')


def stats_finish(a, vsum, vsq, vmean, vrstd, tmp):
    a(f'v_mul_f32 v{vmean}, {hex(f2u(1/512))}, v{vsum}')
    a(f'v_mul_f32 v{tmp}, {hex(f2u(1/512))}, v{vsq}')
    a(f'v_fma_f32 v{tmp}, -v{vmean}, v{vmean}, v{tmp}')
    a(f'v_max_f32 v{tmp}, 0, v{tmp}')
    a(f'v_add_f32 v{tmp}, {hex(f2u(1e-5))}, v{tmp}')
    a(f'v_rsq_f32 v{vrstd}, v{tmp}')


def xbase(a, vX, xoff_sgpr, amode):
    if amode == 'F':
        a(f'v_lshl_add_u32 v{vX}, v1, 4, s{xoff_sgpr}')
    else:
        a('v_lshrrev_b32 v4, 2, v3')
        a('v_sub_u32 v4, 4, v4')
        a('v_and_b32 v4, 3, v4')
        a('v_xor_b32 v4, v4, v2')
        a('v_lshlrev_b32 v4, 4, v4')
        a(f'v_lshl_add_u32 v{vX}, v3, 6, v4')
        a(f'v_add_u32 v{vX}, s{xoff_sgpr}, v{vX}')


def wpat(a, d0, d1):
    a('v_and_b32 v4, 1, v2')
    a('v_lshlrev_b32 v4, 5, v4')
    a('v_lshl_add_u32 v4, v2, 8, v4')
    a('v_bfe_u32 v5, v1, 2, 2')
    a('v_lshl_add_u32 v4, v5, 6, v4')
    a('v_and_b32 v5, 3, v1')
    a(f'v_lshl_add_u32 v{d0}, v5, 3, v4')
    a(f'v_xor_b32 v{d1}, 32, v{d0}')


def rd128(dst, base, off): return f'ds_read_b128 {R(dst)}, v{base} offset:{off}'
def rdtr(dst, base, off): return f'ds_read_b64_tr_b16 {R(dst,2)}, v{base} offset:{off}'


def interleave(a, mf, rd, per=1, first=0):
    ri = 0
    for i, m in enumerate(mf):
        if callable(m): m()
        else: a(m)
        if i >= first:
            for _ in range(per):
                if ri < len(rd):
                    a(rd[ri]); ri += 1
    while ri < len(rd):
        a(rd[ri]); ri += 1


def ring_init(a, p, fixed, cur):
    a(f's_mov_b32 s{S_RA}, 0')
    a(f's_mov_b32 s{S_RB}, {p.b0}')
    a('s_mov_b32 s9, 0')
    a(f'v_mov_b32 v{cur[0]}, v{fixed[0]}')
    for f, c in zip(fixed[1:], cur[1:]): a(f'v_add_u32 v{c}, s{S_RB}, v{f}')


def advance(a, p, fixed, cur):
    a(f's_add_u32 s{S_RA}, s{S_RA}, {p.cA}')
    a(f's_cmp_eq_u32 s{S_RA}, {p.NCH*p.cA}')
    a(f's_cselect_b32 s{S_RA}, 0, s{S_RA}')
    a(f's_add_u32 s{S_RB}, s{S_RB}, {p.cB}')
    a(f's_cmp_eq_u32 s{S_RB}, {RB_SZ}')
    a(f's_cselect_b32 s{S_RB}, 0, s{S_RB}')
    a(f'v_add_u32 v{cur[0]}, s{S_RA}, v{fixed[0]}')
    for f, c in zip(fixed[1:], cur[1:]):
        a(f'v_add_u32 v{c}, s{S_RB}, v{f}')


def loop_big(a, p, fixed, cur, reads, mfmas, per=1):
    ring_init(a, p, fixed, cur)
    ts(a, p.name + '.preP0')
    a('s_barrier')
    ts(a, p.name + '.P0')
    for t in reads(0, 0): a(t)
    for t in p.touch: a(t)
    a.loop_begin(f'L_ml_{p.name}')
    interleave(a, mfmas(0), reads(1, 1), per=per)
    advance(a, p, fixed, cur)
    a('s_add_u32 s9, s9, 1')
    a.wait_lds_all()
    tsl(a, p, 'pre')
    a('s_barrier')
    tsl(a, p, 'post')
    interleave(a, mfmas(1), reads(0, 0), per=per)
    a(f's_cmp_lt_u32 s9, {p.NC}')
    a(f's_cbranch_scc1 L_ml_{p.name}')
    a.loop_end_check()
    a.wait_lds_all()
    ts(a, p.name + '.loopend')


def end_phase(a, p):
    ts(a, p.name + '.epi')
    a('s_waitcnt vmcnt(0)')
    ts(a, p.name + '.vm0')
    a('s_barrier')
    a.vm = []


def poll(a, name, vdst, n, voff, soff, execmask):
    a(f's_mov_b32 s84, {SPIN}')
    if execmask == 0xffffffff: a('s_mov_b32 exec_hi, 0')
    elif execmask != -1: a(f's_mov_b64 exec, {execmask}')
    a.flush_hazards()
    a.label(f'L_poll_{name}')
    op = {1: 'buffer_load_dword', 4: 'buffer_load_dwordx4'}[n]
    a(f'{op} {R(vdst, n)}, v{voff}, {soff} offen sc1')
    a('s_waitcnt vmcnt(0)')
    if n == 4:
        a(f'v_min_u32 v{vdst}, v{vdst}, v{vdst+1}')
        a(f'v_min_u32 v{vdst+2}, v{vdst+2}, v{vdst+3}')
        a(f'v_min_u32 v{vdst}, v{vdst}, v{vdst+2}')
    a(f'v_cmp_eq_u32 vcc, 0, v{vdst}')
    a('s_nop 1')
    a(f's_cbranch_vccz L_pok_{name}')
    a('s_sub_u32 s84, s84, 1')
    a(f's_cbranch_scc1 L_pok_{name}')
    a(f's_sleep {OPT.get("sleep", 1)}')
    a(f's_branch L_poll_{name}')
    a.label(f'L_pok_{name}')
    if execmask != -1: a('s_mov_b64 exec, -1')
    a.vm = []


def load_counters(a, name, until_sum):
    a('v_lshlrev_b32 v4, 5, v1')
    a('s_mov_b64 exec, 0xff')
    a(f'buffer_load_dword v5, v4, {S4(SRD_M)}, 0 offen sc1')
    a('s_waitcnt vmcnt(0)')
    a('s_mov_b64 exec, -1')
    for i in range(8):
        a(f'v_readlane_b32 s{86+i}, v5, {i}')
    a('s_add_u32 s85, s86, s87')
    for i in range(2, 8):
        a(f's_add_u32 s85, s85, s{86+i}')


def stouch_setup(a, p, w, nw):
    if not OPT.get('stouch', 0): return []
    reuse = OPT.get('reuse', 1)
    out = []
    if p.ph == 1 and (p.L == 0 or not reuse):
        a('s_lshl_b32 s53, s12, 3')
        a('s_mul_i32 s53, s53, 43')
        a('s_add_u32 s53, s53, s13')
        a('s_lshl_b32 s53, s53, 10')
        a(f's_mul_i32 s54, s{w}, {KB//nw}')
        a('s_add_u32 s53, s53, s54')
        a(f's_add_u32 s53, s53, {WS_PQ[p.L]}')
        out.append((53, 7, 43 * KB, 8 // nw))
    if p.ph in (2, 4) and not p.final and ((p.ph == 2 and p.L == 0) or not reuse):
        a('s_lshl_b32 s53, s12, 16')
        a('s_lshl_b32 s54, s13, 11')
        a('s_add_u32 s53, s53, s54')
        a(f's_mul_i32 s54, s{w}, {2*KB//nw}')
        a('s_add_u32 s53, s53, s54')
        a(f's_add_u32 s53, s53, {WS_X1[p.L] if p.ph == 2 else WS_X2}')
        out.append((53, 3, 16 * KB, 16 // nw))
        a('s_lshl_b32 s55, s12, 12')
        a(f's_mul_i32 s54, s{w}, {KB//nw}')
        a('s_add_u32 s55, s55, s54')
        a(f's_add_u32 s55, s55, {WS_ST1[p.L] if p.ph == 2 else WS_ST2}')
        out.append((55, 3, KB, 8 // nw))
    if p.ph == 3:
        a('s_lshl_b32 s53, s12, 3')
        a('s_mul_i32 s53, s53, 43')
        a('s_mul_i32 s54, s13, 3')
        a('s_add_u32 s53, s53, s54')
        a('s_lshl_b32 s53, s53, 10')
        a(f's_mul_i32 s54, s{w}, {3*KB//nw}')
        a('s_add_u32 s53, s53, s54')
        a(f's_add_u32 s53, s53, {WS_H[p.L]}')
        out.append((53, 7, 43 * KB, 24 // nw))
    return out


def stouch(a, spec, it):
    for sb, mask, stride, n in spec:
        a(f's_and_b32 s56, s{it}, {mask}')
        a(f's_mul_i32 s56, s56, {stride}')
        a(f's_add_u32 s56, s56, s{sb}')
        for i in range(n):
            a.raw(f'    s_buffer_load_dword s52, {S4(SRD_W)}, s56 offset:{i*128}')


def entry(a):
    TS['role'] = 'all'
    a('s_cmp_ge_u32 s2, 256')
    a('s_cbranch_scc1 L_end')
    if TS['on']:
        a('v_mov_b32 v250, 0')
        a('s_mov_b32 s99, 0')
        a('s_mov_b32 m0, 0')
        ts(a, 'start')
    a(f's_load_dwordx16 s[16:31], s[0:1], 0')
    a(f's_load_dwordx4 s[32:35], s[0:1], 64')
    fx = OPT.get('fakexcc', 0)
    if fx == 0:
        a(f's_getreg_b32 s{S_XCC}, hwreg(HW_REG_XCC_ID, 0, 4)')
        a(f's_and_b32 s{S_XCC}, s{S_XCC}, 7')
    elif fx == 1:
        a(f's_lshr_b32 s{S_XCC}, s2, 5')
    else:
        a(f's_and_b32 s{S_XCC}, s2, 7')
        a(f's_cmp_ge_u32 s{S_XCC}, 6')
        a(f's_cselect_b32 s{S_XCC}, 1, s{S_XCC}')
    a('v_and_b32 v1, 63, v0')
    a('v_lshrrev_b32 v2, 6, v0')
    a('v_readfirstlane_b32 s3, v2')
    a('v_lshrrev_b32 v2, 4, v1')
    a('v_and_b32 v3, 15, v1')
    a(f's_mov_b32 s{S_HET}, 0')
    a('s_waitcnt lgkmcnt(0)')
    ts(a, 'karg')
    srd(a, SRD_W, S_WS, WS_BYTES)
    srd(a, SRD_M, S_DBG, 256)
    srd(a, SB_QKV, S_PTR + 2, 512 * 3072)
    srd(a, SB_WO, S_PTR + 4, 512 * 1024)
    srd(a, SB_WG, S_PTR + 8, 512 * 2752)
    srd(a, SB_WU, S_PTR + 10, 512 * 2752)
    srd(a, SB_WD, S_PTR + 12, 1376 * 1024)
    srd(a, SRD_A, S_PTR + 0, 2048 * 1024)
    a('s_cmp_eq_u32 s3, 0')
    a('s_cbranch_scc0 L_e1')
    a(f's_lshl_b32 s4, s{S_XCC}, 5')
    a('v_mov_b32 v4, s4')
    a('v_mov_b32 v5, 1')
    a('s_mov_b64 exec, 1')
    a(f'buffer_atomic_add v5, v4, {S4(SRD_M)}, 0 offen sc0')
    a('s_mov_b64 exec, -1')
    pt = OPT.get('pretouch', 3)
    npt = 0
    a('v_lshlrev_b32 v6, 7, v1')
    if pt & 2:
        a('s_lshr_b32 s7, s2, 3')
        a('s_and_b32 s7, s7, 31')
        a(f's_lshl_b32 s5, s{S_XCC}, 18')
        a('s_lshl_b32 s6, s7, 13')
        a('s_add_u32 s5, s5, s6')
        a(f'buffer_load_dword v255, v6, {S4(SRD_A)}, s5 offen')
        a.vm = []
        a('s_mul_i32 s7, s7, 49152')
        for i in range(6):
            a(f'buffer_load_dword v255, v6, {S4(SB_QKV)}, s7 offen')
            a.vm = []
            if i < 5: a('s_add_u32 s7, s7, 8192')
        npt += 7
    if pt & 1:
        a('s_mul_i32 s7, s2, 5504')
        a('s_lshl_b32 s5, s2, 11')
        a('s_mov_b64 exec, 0xffff')
        a(f'buffer_load_dword v255, v6, {S4(SB_WO)}, s5 offen')
        a.vm = []
        a('s_mov_b32 exec_lo, -1')
        a('s_mov_b32 exec_hi, 0x7ff')
        for sb in (SB_WG, SB_WU, SB_WD):
            a(f'buffer_load_dword v255, v6, {S4(sb)}, s7 offen')
            a.vm = []
        a('s_mov_b64 exec, -1')
        npt += 4
    a(f's_waitcnt vmcnt({npt})')
    a('v_readfirstlane_b32 s5, v5')
    a(f's_add_u32 s{S_VID}, s4, s5')
    a('s_cmp_lt_u32 s5, 32')
    a('s_cbranch_scc1 L_tk_ok')
    a(f's_mov_b32 s84, {SPIN}')
    a.flush_hazards()
    a.label('L_tk_wait')
    load_counters(a, 'tk', True)
    a('s_cmp_ge_u32 s85, 256')
    a('s_cbranch_scc1 L_tk_all')
    a('s_sub_u32 s84, s84, 1')
    a('s_cbranch_scc1 L_tk_all')
    a('s_sleep 2')
    a('s_branch L_tk_wait')
    a.label('L_tk_all')
    a('s_sub_u32 s5, s5, 32')
    for i in range(7):
        a(f's_max_u32 s6, s{86+i}, 32')
        a('s_sub_u32 s6, s6, 32')
        a(f's_cmp_gt_u32 s{S_XCC}, {i}')
        a('s_cselect_b32 s6, s6, 0')
        a('s_add_u32 s5, s5, s6')
    a(f's_mov_b32 s{S_VID}, 0')
    a('s_mov_b32 s7, 0')
    for i in range(8):
        a(f's_min_u32 s6, s{86+i}, 32')
        a('s_sub_u32 s8, 32, s6')
        a(f's_add_u32 s6, s6, {32*i}')
        a('s_add_u32 s6, s6, s5')
        a('s_cmp_lt_u32 s5, s8')
        a('s_cselect_b32 s10, 1, 0')
        a('s_andn2_b32 s10, s10, s7')
        a('s_or_b32 s7, s7, s10')
        a('s_cmp_lg_u32 s10, 0')
        a(f's_cselect_b32 s{S_VID}, s6, s{S_VID}')
        a('s_sub_u32 s5, s5, s8')
    a.label('L_tk_ok')
    a(f'v_mov_b32 v4, {VIDL}')
    a(f'v_mov_b32 v5, s{S_VID}')
    a('ds_write_b32 v4, v5')
    a('s_waitcnt lgkmcnt(0)')
    a('s_branch L_eT')
    a.fresh()
    a.label('L_e1')
    a('s_cmp_eq_u32 s3, 1')
    a('s_cbranch_scc0 L_eT')
    a('s_cmp_lt_u32 s2, 16')
    a('s_cbranch_scc0 L_eT')
    for i in range(4): a(f'v_mov_b32 v{4+i}, 0')
    a('v_lshlrev_b32 v8, 4, v1')
    a('s_lshl_b32 s4, s2, 11')
    for L in range(2):
        a(f's_add_u32 s5, s4, {WS_KV + L*65536}')
        for i in range(2):
            a(f'buffer_store_dwordx4 v[4:7], v8, {S4(SRD_W)}, s5 offen offset:{i*KB} sc1')
    a('s_lshl_b32 s4, s2, 7')
    a('s_mov_b64 exec, 0xff')
    for L in range(2):
        a(f's_add_u32 s5, s4, {WS_KV + L*65536 + 32768}')
        a(f'buffer_store_dwordx4 v[4:7], v8, {S4(SRD_W)}, s5 offen sc1')
    a('s_mul_i32 s4, s2, 896')
    a(f's_add_u32 s4, s4, {WS_SYNC}')
    a('s_mov_b32 exec_lo, -1')
    a('s_mov_b32 exec_hi, 0xffffff')
    a(f'buffer_store_dwordx4 v[4:7], v8, {S4(SRD_W)}, s4 offen sc1')
    a('s_mov_b64 exec, 1')
    a('s_lshr_b32 s4, s2, 1')
    a('s_lshl_b32 s4, s4, 5')
    a('s_and_b32 s5, s2, 1')
    a('s_lshl_b32 s5, s5, 2')
    a('s_add_u32 s4, s4, s5')
    a('s_add_u32 s4, s4, 4')
    a('v_mov_b32 v8, s4')
    a('v_mov_b32 v4, 1')
    a('s_waitcnt vmcnt(0)')
    a(f'buffer_store_dword v4, v8, {S4(SRD_M)}, 0 offen sc1')
    a('s_mov_b64 exec, -1')
    a.label('L_eT')
    a.fresh()
    a('s_nop 4')
    a('s_barrier')
    a(f'v_mov_b32 v4, {VIDL}')
    a('ds_read_b32 v5, v4')
    a('s_waitcnt lgkmcnt(0)')
    a(f'v_readfirstlane_b32 s{S_VID}, v5')
    a(f's_lshr_b32 s{S_TEAM}, s{S_VID}, 4')
    a(f's_and_b32 s{S_MEM}, s{S_VID}, 15')
    ts(a, 'T')
    a('s_cmp_lt_u32 s3, 4')
    a('s_cbranch_scc1 L_comp')
    a('s_cmp_lt_u32 s3, 6')
    a('s_cbranch_scc1 L_aload')


def bloader(a, phases, bars):
    TS['role'] = 'B'
    a('s_and_b32 s4, s3, 1')
    a(f's_cmp_eq_u32 s{S_MEM}, 15')
    a(f's_cselect_b32 s{SB_WG+2}, 0, s{SB_WG+2}')
    a(f's_cselect_b32 s{SB_WU+2}, 0, s{SB_WU+2}')
    a('v_bfe_u32 v4, v1, 2, 2')
    a('v_bfe_u32 v5, v1, 1, 1')
    a('v_and_b32 v6, 1, v2')
    a('v_xor_b32 v5, v5, v6')
    a('v_and_b32 v6, 1, v1')
    a('v_lshlrev_b32 v5, 5, v5')
    a('v_lshl_add_u32 v5, v6, 4, v5')
    a('v_lshl_add_u32 v6, v2, 3, v4')
    a('v_lshl_add_u32 v7, v2, 2, v4')
    done = set()
    for p in phases:
        if p.vB in done: continue
        done.add(p.vB)
        hstep = 16 if p.bmap == 'F' else 4
        if p.ph == 1: a(f's_lshl_b32 s9, s{S_MEM}, 6'); n, step = 3, 1024
        elif p.ph == 3: a(f's_mul_i32 s9, s{S_MEM}, 192'); n, step = 3, 64
        else:
            a(f's_and_b32 s9, s{S_MEM}, 7'); a('s_lshl_b32 s9, s9, 7'); n, step = 2, 64
        a(f's_mul_i32 s10, s4, {hstep*p.rowB}')
        a('s_add_u32 s10, s10, s9')
        a(f'v_mul_u32_u24 v8, {p.rowB}, v{7 if p.bmap == "F" else 6}')
        a(f'v_add3_u32 v{p.vB}, v8, v5, s10')
        for i in range(1, n):
            a(f'v_add_u32 v{p.vB+i}, {i*step}, v{p.vB}')
        if p is phases[0]:
            pass
    a('s_lshl_b32 s11, s4, 10')
    chunks = []
    pos = 0
    for p in phases:
        pos = (pos + p.cB - 1) // p.cB * p.cB
        if pos >= RB_SZ: pos = 0
        if p.name == 's2l1': pos = 72 * KB
        p.b0 = pos
        for c in range(p.NC):
            chunks.append(dict(p=p, c=c, off=pos, sz=p.cB, pub=bars.index((p.name, 'P', c)), fr=bars.index((p.name, 'P', c + 1))))
            pos += p.cB
            if pos >= RB_SZ: pos = 0
    for i, q in enumerate(chunks):
        e = 0
        for q2 in chunks[:i]:
            if q2['off'] < q['off'] + q['sz'] and q['off'] < q2['off'] + q2['sz']:
                e = max(e, q2['fr'])
        q['e'] = e
    maxahead = OPT.get('bahead', RB_SZ)
    steps = []
    nxt = 0
    issued = []
    last = max(q['pub'] for q in chunks)
    for j in range(1, last + 1):
        iss = []
        while nxt < len(chunks) and chunks[nxt]['e'] <= j - 1:
            ahead = sum(chunks[k]['sz'] for k, _ in issued if chunks[k]['pub'] >= j)
            if ahead + chunks[nxt]['sz'] > maxahead and chunks[nxt]['pub'] > j: break
            q = chunks[nxt]
            iss.append((q['p'].name, q['c'] == 0))
            issued.append((nxt, q['p'].PB))
            nxt += 1
        w = None
        for k, (ci, n) in enumerate(issued):
            if chunks[ci]['pub'] == j:
                w = min(63, sum(x[1] for x in issued[k+1:]))
        if any(q['pub'] == j for q in chunks): assert w is not None, ('chunk not issued in time', j, bars[j])
        steps.append((tuple(iss), w, bars[j]))
    byname = {p.name: p for p in phases}

    def issue(p, first):
        if first:
            phase_map(a, p)
            a(f's_mul_i32 s7, s14, {p.strideB}')
            a(f's_add_u32 s5, s11, {p.b0}')
        for kk in range(2):
            if p.ph == 3:
                for i in range(3):
                    for gs, sb in ((0, SB_WG), (1, SB_WU)):
                        a(f's_add_u32 m0, s5, {kk*p.sB + (4*i+2*gs)*KB}')
                        a(f'buffer_load_dwordx4 v{p.vB+i}, {S4(sb)}, s7 offen lds')
            else:
                sb = {1: SB_QKV, 2: SB_WO, 4: SB_WD}[p.ph]
                for i in range(p.PB // 2):
                    a(f's_add_u32 m0, s5, {kk*p.sB + 2*i*KB}')
                    a(f'buffer_load_dwordx4 v{p.vB+i}, {S4(sb)}, s7 offen lds')
            a(f's_add_u32 s7, s7, {p.strideB}')
            a(f's_cmp_eq_u32 s7, {2*p.NC*p.strideB}')
            a('s_cselect_b32 s7, 0, s7')
        a(f's_add_u32 s5, s5, {p.cB}')
        a(f's_cmp_ge_u32 s5, {RB_SZ}')
        a('s_cselect_b32 s5, s11, s5')

    def emit_iss(iss, tag):
        k = 0
        while k < len(iss):
            m = k
            while m < len(iss) and iss[m] == iss[k]: m += 1
            n = m - k
            if n >= 3 and not iss[k][1]:
                a(f's_mov_b32 s8, {n}')
                a.flush_hazards()
                a.loop_begin(f'L_bi_{tag}_{k}')
                issue(byname[iss[k][0]], False)
                a('s_sub_u32 s8, s8, 1')
                a('s_cmp_lg_u32 s8, 0')
                a(f's_cbranch_scc1 L_bi_{tag}_{k}')
                a.loop_end_check()
            else:
                for x in iss[k:m]: issue(byname[x[0]], x[1])
            k = m

    i = 0
    while i < len(steps):
        m = i
        while m < len(steps) and steps[m][:2] == steps[i][:2] and not (TS['on'] and m > i and steps[m][2][1] != 'P'): m += 1
        n = m - i
        iss, w, bar = steps[i]
        if TS['on'] and bar[1] != 'P': n = 1; m = i + 1
        if n >= 2 and len(iss) <= 2:
            a(f's_mov_b32 s9, {n}')
            a.flush_hazards()
            a.loop_begin(f'L_bs_{i}')
            for x in iss: issue(byname[x[0]], x[1])
            if w is not None: a(f's_waitcnt vmcnt({w})')
            tsl(a, byname[bar[0]], 'pre')
            a('s_barrier')
            a('s_sub_u32 s9, s9, 1')
            a('s_cmp_lg_u32 s9, 0')
            a(f's_cbranch_scc1 L_bs_{i}')
            a.loop_end_check()
            i = m
        else:
            emit_iss(iss, i)
            if w is not None: a(f's_waitcnt vmcnt({w})')
            if bar[1] != 'P' or bar[2] == 0: ts(a, f'{bar[0]}.pre{bar[1]}')
            else: tsl(a, byname[bar[0]], 'pre')
            a('s_barrier')
            i += 1
        a.vm = []
    ts_flush(a)
    a('s_endpgm')
    a.fresh()
    return steps


def aloader(a, phases):
    TS['role'] = 'A'
    a.label('L_aload')
    a('s_and_b32 s4, s3, 1')
    a('v_mov_b32 v40, 1')
    a(f's_lshl_b32 s5, s{S_MEM}, 2')
    a('v_mov_b32 v41, s5')
    a('v_lshlrev_b32 v42, 2, v1')
    a(f's_and_b32 s5, s{S_VID}, 31')
    a('s_lshl_b32 s5, s5, 2')
    a('v_mov_b32 v43, s5')
    a(f's_lshr_b32 s5, s{S_VID}, 5')
    a('s_lshl_b32 s5, s5, 2')
    a('v_lshl_add_u32 v48, v1, 7, s5')
    a('v_lshlrev_b32 v16, 4, v1')
    a('v_lshrrev_b32 v4, 3, v1')
    a('v_and_b32 v5, 7, v1')
    a(f'v_mul_u32_u24 v4, {43*KB}, v4')
    a('v_lshl_add_u32 v49, v5, 7, v4')
    a('v_lshlrev_b32 v50, 7, v1')
    ksync = 0
    for pi, p in enumerate(phases):
        nA = p.RT // 2
        per2 = 2 * nA
        NC, DC = p.NC, p.DC
        assert p.NCH >= DC + 1 and (DC - 1) * per2 <= 63
        phase_map(a, p)
        if p.ph == 1:
            a('s_lshl_b32 s8, s12, 17')
            if p.L: a(f's_add_u32 s8, s8, {WS_X2}')
        elif p.ph == 3:
            a('s_lshl_b32 s8, s12, 17')
            a(f's_add_u32 s8, s8, {WS_X1[p.L]}')
        else:
            a(f's_mul_i32 s8, s12, {4*p.KSA*KB}')
            a(f's_add_u32 s8, s8, {WS_PQ[p.L] if p.ph == 2 else WS_H[p.L]}')
        if p.amode == 'F':
            a(f's_mul_i32 s10, s4, {p.KSA*KB}')
            a('s_add_u32 s10, s10, s8')
            a('v_lshl_add_u32 v8, v1, 4, s10')
            astep = 2 * p.KSA * KB
        else:
            a('v_lshrrev_b32 v4, 2, v1')
            a('v_and_b32 v5, 3, v1')
            a('v_sub_u32 v6, 4, v2')
            a('v_and_b32 v6, 3, v6')
            a('v_xor_b32 v5, v5, v6')
            a('v_lshlrev_b32 v4, 10, v4')
            a('v_lshl_add_u32 v8, v5, 4, v4')
            a('s_lshl_b32 s10, s4, 14')
            a('s_add_u32 s10, s10, s8')
            a('v_add_u32 v8, s10, v8')
            astep = 2 * 16 * KB
        for i in range(1, nA):
            a(f'v_add_u32 v{8+i}, {i*astep}, v8')
        a(f's_mul_i32 s6, s14, {p.strideA}')
        a('s_lshl_b32 s10, s4, 10')
        a(f's_add_u32 s10, s10, {RA0}')
        a('s_mov_b32 s5, s10')
        a(f's_add_u32 s11, s10, {p.NCH*p.cA}')
        a('s_mov_b32 s9, 0')
        spec = stouch_setup(a, p, 4, 2)
        if pi == 1: srd(a, SRD_A, S_WS, WS_BYTES)
        if p.ph == 3:
            a(f's_cmp_eq_u32 s{S_MEM}, 15')
            a(f's_cselect_b32 s{SRD_A+2}, 0, s{SRD_A+2}')
        if p.ph == 4:
            a(f's_mov_b32 s{SRD_A+2}, {WS_BYTES}')
        if p.stats:
            a('s_lshl_b32 s7, s12, 1')
            a('s_add_u32 s7, s7, s4')
            a('s_lshl_b32 s7, s7, 12')
            a(f's_add_u32 s7, s7, {WS_ST1[p.L] if p.ph == 3 else WS_ST2}')
        if pi > 0:
            prev = phases[pi - 1]
            glob = (prev.ph == 1)
            if glob:
                a(f's_lshr_b32 s15, s{S_VID}, 5')
                a('s_lshl_b32 s15, s15, 7')
                a(f's_add_u32 s15, s15, {WS_SYNC + 10240 + prev.L*2048}')
                a(f's_add_u32 s97, s15, 1024')
            else:
                a(f's_lshl_b32 s15, s{S_TEAM}, 7')
                a(f's_add_u32 s15, s15, {WS_SYNC + ksync*2048}')
                ksync += 1
            ts(a, prev.name + '.preE')
            a('s_barrier')
            ts(a, prev.name + '.E')
            a('s_cmp_eq_u32 s3, 4')
            a(f's_cbranch_scc0 L_ns_{p.name}')
            a.begin_opt()
            a('s_mov_b64 exec, 1')
            a(f's_cmp_eq_u32 s{S_HET}, 0')
            a(f's_cbranch_scc1 L_hom_{p.name}')
            a.raw('    buffer_wbl2 sc1')
            a('s_waitcnt vmcnt(0)')
            vo = 43 if glob else 41
            a(f'buffer_store_dword v40, v{vo}, {S4(SRD_W)}, s15 offen sc1')
            a(f's_branch L_sg_{p.name}')
            a.label(f'L_hom_{p.name}')
            a(f'buffer_store_dword v40, v{vo}, {S4(SRD_W)}, s15 offen')
            a.label(f'L_sg_{p.name}')
            a('s_mov_b64 exec, -1')
            if glob:
                a(f's_and_b32 s85, s{S_VID}, 31')
                a('s_cmp_eq_u32 s85, 0')
                a(f's_cbranch_scc0 L_ns_{p.name}')
                poll(a, 'g' + p.name, 44, 1, 42, f'{S4(SRD_W)}, s15', 0xffffffff)
                a(f's_mov_b32 s85, {WS_SYNC + 10240 + prev.L*2048 + 1024}')
                a('s_mov_b64 exec, 0xff')
                a(f'buffer_store_dword v40, v48, {S4(SRD_W)}, s85 offen sc1')
                a('s_mov_b64 exec, -1')
            a.end_opt()
            a.label(f'L_ns_{p.name}')
            a.vm = []
            if glob: poll(a, p.name, 44, 1, 42, f'{S4(SRD_W)}, s97', 0xff)
            else: poll(a, p.name, 44, 1, 42, f'{S4(SRD_W)}, s15', 0xffff)
            ts(a, p.name + '.flag')
            if p.ph == 2: a('s_barrier')
        if p.stats:
            for t in range(4):
                a(f'buffer_load_dwordx4 {R(20+4*t)}, v16, {S4(SRD_W)}, s7 offen offset:{t*KB} sc1')
            if OPT.get('dbg1') and OPT.get('tsp') == p.name:
                tsl(a, p, 'iss')
                a('s_waitcnt vmcnt(0)')
                tsl(a, p, 'stl')
                a(f's_add_u32 m0, s5, 0')
                a(f'buffer_load_dwordx4 v8, {S4(SRD_A)}, s6 offen lds')
                a('s_waitcnt vmcnt(0)')
                tsl(a, p, 'a1')
                a(f'buffer_load_dwordx4 v9, {S4(SRD_A)}, s6 offen lds')
                a('s_waitcnt vmcnt(0)')
                tsl(a, p, 'a2')
        a.flush_hazards()
        a.loop_begin(f'L_li_{p.name}')
        for kk in range(2):
            sa = 's6'
            if p.padk:
                a(f's_cmp_eq_u32 s6, {p.NKreal*p.strideA}')
                a(f's_cselect_b32 s8, 0x10000000, s6')
                sa = 's8'
            for i in range(nA):
                a(f's_add_u32 m0, s5, {kk*p.sA + i*2*KB}')
                a(f'buffer_load_dwordx4 v{8+i}, {S4(SRD_A)}, {sa} offen {OPT.get("amod", "")} lds')
            a(f's_add_u32 s6, s6, {p.strideA}')
            a(f's_cmp_eq_u32 s6, {2*NC*p.strideA}')
            a('s_cselect_b32 s6, 0, s6')
        a(f's_add_u32 s5, s5, {p.cA}')
        a('s_cmp_eq_u32 s5, s11')
        a('s_cselect_b32 s5, s10, s5')
        a('s_add_u32 s9, s9, 1')
        a(f's_cmp_lt_u32 s9, {DC}')
        a(f's_cbranch_scc1 L_li_{p.name}')
        stouch(a, spec, 9)
        a(f's_waitcnt vmcnt({(DC-1)*per2})')
        tsl(a, p, 'pre')
        a('s_barrier')
        a(f's_cmp_lt_u32 s9, {NC}')
        a(f's_cbranch_scc1 L_li_{p.name}')
        a.loop_end_check()
        a.vm = []
        nt = 0
        vt = OPT.get('vtouch', 7)
        if p.name == 's1l0' and vt & 1:
            a(f's_mul_i32 s53, s12, {8*43*KB}')
            a('s_lshl_b32 s54, s13, 10')
            a('s_add_u32 s53, s53, s54')
            a(f's_add_u32 s53, s53, {WS_PQ[0]}')
            a(f's_lshl_b32 s54, s{S_VID}, 13')
            a(f's_add_u32 s54, s54, {WS_X1[0]}')
            a('s_cmp_eq_u32 s4, 0')
            a('s_cselect_b32 s53, s53, s54')
            a('s_cselect_b64 vcc, -1, 0')
            a('v_cndmask_b32 v51, v50, v49, vcc')
            a(f'buffer_load_dword v52, v51, {S4(SRD_W)}, s53 offen sc1')
            a(f's_lshl_b32 s54, s{S_VID}, 9')
            a(f's_add_u32 s54, s54, {WS_ST1[0]}')
            a('s_mov_b64 exec, 15')
            a(f'buffer_load_dword v53, v50, {S4(SRD_W)}, s54 offen sc1')
            a('s_mov_b64 exec, -1')
            nt = 2
        if p.ph == 3 and vt & (2 << p.L):
            a(f's_mul_i32 s53, s12, {8*43*KB}')
            a(f's_mul_i32 s54, s13, {3*KB}')
            a('s_add_u32 s53, s53, s54')
            a(f's_add_u32 s53, s53, {WS_H[p.L]}')
            a('s_lshl_b32 s54, s4, 10')
            a('s_add_u32 s54, s54, s53')
            a(f'buffer_load_dword v52, v49, {S4(SRD_W)}, s54 offen sc1')
            a('s_cmp_eq_u32 s4, 0')
            a('s_cselect_b32 exec_lo, -1, 0')
            a('s_cselect_b32 exec_hi, 0, -1')
            a(f'buffer_load_dword v53, v49, {S4(SRD_W)}, s53 offen offset:2048 sc1')
            a('s_mov_b64 exec, -1')
            nt = 2
        a.vm = []
        if p.stats:
            for t in range(4):
                a(pk('v_pk_add_f32', 20 + 4 * t, 20 + 4 * t, 22 + 4 * t))
            for qp in ('[1,0,3,2]', '[2,3,0,1]'):
                for t in range(4):
                    for e in range(2):
                        r = 20 + 4 * t + e
                        a(f'v_add_f32_dpp v{r}, v{r}, v{r} quad_perm:{qp} row_mask:0xf bank_mask:0xf')
            for t in range(4):
                stats_finish(a, 20 + 4 * t, 21 + 4 * t, 22 + 4 * t, 23 + 4 * t, 17)
            a('v_lshrrev_b32 v18, 2, v1')
            a('s_lshl_b32 s8, s4, 8')
            a(f's_add_u32 s8, s8, {p.STB}')
            a('v_lshl_add_u32 v18, v18, 2, s8')
            for t in range(4):
                a(f'ds_write_b32 v18, v{22+4*t} offset:{64*t}')
                a(f'ds_write_b32 v18, v{23+4*t} offset:{512+64*t}')
            a('s_waitcnt lgkmcnt(0)')
        for r in range(1, DC):
            if spec and max(x[1] for x in spec) + 1 >= NC - DC + 1 + r:
                a('s_add_u32 s9, s9, 1')
                stouch(a, spec, 9)
            a(f's_waitcnt vmcnt({(DC-1-r)*per2 + nt})')
            tsl(a, p, 'pre')
            a('s_barrier')
        a.vm = []
        if p.final: break
        a('s_barrier')
        if pi == 0:
            if OPT.get('fakexcc', 0):
                a(f's_mov_b32 s{S_HET}, 1')
            else:
                a(f's_mov_b32 s84, {SPIN}')
                a.flush_hazards()
                a.label('L_het')
                load_counters(a, 'het', False)
                a(f's_lshr_b32 s94, s{S_TEAM}, 1')
                a('s_mov_b32 s95, s86')
                for i in range(1, 8):
                    a(f's_cmp_eq_u32 s94, {i}')
                    a(f's_cselect_b32 s95, s{86+i}, s95')
                a('s_cmp_ge_u32 s95, 32')
                a('s_cbranch_scc1 L_het_done')
                a(f's_mov_b32 s{S_HET}, 1')
                a('s_cmp_ge_u32 s85, 256')
                a('s_cbranch_scc1 L_het_done')
                a('s_sub_u32 s84, s84, 1')
                a('s_cbranch_scc1 L_het_done')
                a(f's_mov_b32 s{S_HET}, 0')
                a('s_sleep 2')
                a('s_branch L_het')
                a.label('L_het_done')
        for _ in range(p.nX): a('s_barrier')
    ts_flush(a)
    a('s_endpgm')
    a.fresh()


def comp_s1(a, p):
    name = p.name; L = p.L
    STB = p.STB
    ZB = SCR + 8 * KB
    first = (L == 0)
    KVB = WS_KV + L * 65536
    ACQ, ACK, ACV = 64, 80, 96
    SS, SG, CS = 112, 120, 128
    FR = 152
    ONES = 216
    fixed = [8, 9, 10]; cur = [11, 12, 13]
    vX, vW0, vW1 = cur
    vKVa, vZa, vT, vDb = 17, 18, 20, 21
    phase_map(a, p)
    a('s_lshl_b32 s4, s3, 11')
    a(f's_add_u32 s4, s4, {RA0}')
    xbase(a, 8, 4, p.amode)
    wpat(a, 9, 10)
    a('s_lshl_b32 s5, s13, 11')
    a('s_lshl_b32 s6, s3, 9')
    a('s_add_u32 s5, s5, s6')
    a(f's_add_u32 s5, s5, {KVB}')
    a(f'v_lshl_add_u32 v{vKVa}, v1, 2, s5')
    a('s_lshl_b32 s5, s13, 7')
    a(f's_add_u32 s5, s5, {KVB + 32768}')
    a(f'v_lshl_add_u32 v{vZa}, v1, 2, s5')
    a('v_lshlrev_b32 v14, 4, v2')
    a(f'v_add_u32 v14, {CS1L}, v14')
    a('v_lshlrev_b32 v15, 2, v3')
    a(f'v_add_u32 v15, {CS1L}, v15')
    if first:
        a('v_lshrrev_b32 v4, 1, v1')
        a('v_and_b32 v5, 1, v1')
        a('v_lshlrev_b32 v4, 5, v4')
        a('v_lshl_add_u32 v4, v5, 2, v4')
        a(f'v_add_u32 v{vDb}, 4, v4')
    a('s_lshl_b32 s7, s12, 3')
    a('s_lshl_b32 s5, s3, 1')
    a('s_add_u32 s7, s7, s5')
    a('s_mul_i32 s7, s7, 43')
    a('s_add_u32 s7, s7, s13')
    a('s_lshl_b32 s7, s7, 10')
    a(f's_add_u32 s7, s7, {WS_PQ[L]}')
    if OPT.get('otouch', 0):
        a('v_lshrrev_b32 v4, 3, v1')
        a('v_and_b32 v5, 7, v1')
        a(f'v_mul_u32_u24 v4, {43*KB}, v4')
        a('v_lshl_add_u32 v252, v5, 7, v4')
        p.touch = ['s_mov_b64 exec, 0xffff', f'buffer_load_dword v254, v252, {S4(SRD_W)}, s7 offen sc1', 's_mov_b64 exec, -1']
    for i in range(4): a(f'v_mov_b32 v{ONES+i}, 0x3f803f80')
    for r in range(64, 152 if first else 112): a(f'v_mov_b32 v{r}, 0')

    def fx(s, t): return FR + 32 * s + 4 * t
    def fw(s, q, u): return FR + 32 * s + 8 + 4 * (2 * q + u)

    def reads(s, kk):
        l = [rd128(fx(s, 0), vX, kk * p.sA), rd128(fx(s, 1), vX, kk * p.sA + KB)]
        for q in range(3):
            for u in range(2):
                for h in range(2):
                    l.append(rdtr(fw(s, q, u) + 2 * h, vW1 if u else vW0, kk * p.sB + (2 * q + h) * KB))
        return l

    def mfmas(s):
        l = []
        if first:
            for t in range(2):
                l.append(f'{MF} {R(SS+4*t)}, {R(ONES)}, {R(fx(s,t))}, {R(SS+4*t)}')
                l.append(f'{MF} {R(SG+4*t)}, {R(fx(s,t))}, {R(fx(s,t))}, {R(SG+4*t)}')
        for u in range(2):
            for t in range(2):
                d = ACQ + 8 * t + 4 * u
                l.append(f'{MF} {R(d)}, {R(fw(s,0,u))}, {R(fx(s,t))}, {R(d)}')
            if first:
                l.append(f'{MF} {R(CS+4*u)}, {R(fw(s,0,u))}, {R(ONES)}, {R(CS+4*u)}')
        for q, AC in ((1, ACK), (2, ACV)):
            for u in range(2):
                for t in range(2):
                    d = AC + 8 * u + 4 * t
                    l.append(f'{MF} {R(d)}, {R(fx(s,t))}, {R(fw(s,q,u))}, {R(d)}')
                if first:
                    l.append(f'{MF} {R(CS+8*q+4*u)}, {R(ONES)}, {R(fw(s,q,u))}, {R(CS+8*q+4*u)}')
        return l

    loop_big(a, p, fixed, cur, reads, mfmas, per=1 if first else 2)
    MEAN, RSTD = 32, 34
    MT, RT_, RTL = 36, 44, 52
    a('s_lshl_b32 s4, s3, 7')
    a(f's_add_u32 s4, s4, {STB}')
    a(f'v_lshl_add_u32 v6, v3, 2, s4')
    a(f'v_lshl_add_u32 v7, v2, 4, s4')
    if first:
        a('v_and_b32 v4, 3, v3')
        a('v_cmp_eq_u32 s[52:53], 1, v4')
        a('v_cmp_eq_u32 s[54:55], 2, v4')
        a('v_cmp_eq_u32 s[56:57], 3, v4')
        a('v_lshrrev_b32 v4, 2, v3')
        a('v_cmp_eq_u32 vcc, v4, v2')
        for t in range(2):
            a(f'v_cndmask_b32 v{SG+4*t}, v{SG+4*t}, v{SG+4*t+1}, s[52:53]')
            a(f'v_cndmask_b32 v{SG+4*t}, v{SG+4*t}, v{SG+4*t+2}, s[54:55]')
            a(f'v_cndmask_b32 v{SG+4*t}, v{SG+4*t}, v{SG+4*t+3}, s[56:57]')
        for t in range(2):
            stats_finish(a, SS + 4 * t, SG + 4 * t, MEAN + t, RSTD + t, 4 + t)
        a('s_mov_b64 exec, vcc')
        for t in range(2):
            a(f'ds_write_b32 v6, v{MEAN+t} offset:{64*t}')
            a(f'ds_write_b32 v6, v{RSTD+t} offset:{512+64*t}')
        a('s_mov_b64 exec, -1')
        for u in range(2):
            a(f'ds_write_b128 v14, {R(CS+4*u)} offset:{64*u}')
            a(f'ds_write_b32 v15, v{CS+8+4*u} offset:{128+64*u}')
            a(f'ds_write_b32 v15, v{CS+16+4*u} offset:{256+64*u}')
        a('s_waitcnt lgkmcnt(0)')
    else:
        for u in range(2):
            a(f'ds_read_b32 v{CS+8+4*u}, v15 offset:{128+64*u}')
            a(f'ds_read_b32 v{CS+16+4*u}, v15 offset:{256+64*u}')
    for t in range(2):
        a(f'ds_read_b128 {R(MT+4*t)}, v7 offset:{64*t}')
        a(f'ds_read_b128 {R(RT_+4*t)}, v7 offset:{512+64*t}')
    for t in range(2):
        a(f'ds_read_b32 v{MEAN+t}, v6 offset:{64*t}')
        a(f'ds_read_b32 v{RSTD+t}, v6 offset:{512+64*t}')
    if not first:
        for u in range(2):
            a(f'ds_read_b128 {R(CS+4*u)}, v14 offset:{64*u}')
    CONE, CEPS, CL2E = 60, 61, 62
    a(f'v_mov_b32 v{CONE}, 1.0')
    a(f'v_mov_b32 v{CEPS}, {hex(f2u(1e-6))}')
    a(f'v_mov_b32 v{CL2E}, {hex(f2u(LOG2E))}')
    RFL = 24
    for i in range(0, 8, 2):
        a(pk('v_pk_mul_f32', RTL + i, RT_ + i, CL2E, b1=0))
    T = FR

    def phi_pairs(items):
        for i, (ac, m, cs, r, rl, dst) in enumerate(items):
            a(pk('v_pk_fma_f32', ac, m[0], cs[0], ac, b0=m[1], b1=cs[1], neg0=True))
        for i, (ac, m, cs, r, rl, dst) in enumerate(items):
            a(pk('v_pk_mul_f32', T + 2 * i, ac, rl[0], b1=rl[1]))
        for i, (ac, m, cs, r, rl, dst) in enumerate(items):
            a(f'v_exp_f32 v{T+2*i}, v{T+2*i} clamp')
            a(f'v_exp_f32 v{T+2*i+1}, v{T+2*i+1} clamp')
            a(pk('v_pk_fma_f32', ac, ac, r[0], CONE, b1=r[1], b2=0))
        for i, (ac, m, cs, r, rl, dst) in enumerate(items):
            a(f'v_max_f32 v{ac}, v{ac}, v{T+2*i}')
            a(f'v_max_f32 v{ac+1}, v{ac+1}, v{T+2*i+1}')
        for i, (ac, m, cs, r, rl, dst) in enumerate(items):
            a(pk('v_pk_add_f32', ac, ac, CEPS, b1=0))
        for i, (ac, m, cs, r, rl, dst) in enumerate(items):
            a(f'v_cvt_pk_bf16_f32 v{dst}, v{ac}, v{ac+1}')

    PK_, PV, PQ = FR + 16, FR + 24, FR + 32
    items = []
    for u in range(2):
        for t in range(2):
            for hh in range(2):
                items.append((ACK + 8 * u + 4 * t + 2 * hh, (MT + 4 * t + 2 * hh, None), (CS + 8 + 4 * u, 0),
                              (RT_ + 4 * t + 2 * hh, None), (RTL + 4 * t + 2 * hh, None), PK_ + 4 * u + 2 * t + hh))
    phi_pairs(items)
    vi = [(u, t, hh) for u in range(2) for t in range(2) for hh in range(2)]
    for u, t, hh in vi:
        ac = ACV + 8 * u + 4 * t + 2 * hh
        a(pk('v_pk_fma_f32', ac, MT + 4 * t + 2 * hh, CS + 16 + 4 * u, ac, b1=0, neg0=True))
    for u, t, hh in vi:
        ac = ACV + 8 * u + 4 * t + 2 * hh
        a(pk('v_pk_mul_f32', ac, ac, RT_ + 4 * t + 2 * hh))
    for u, t, hh in vi:
        ac = ACV + 8 * u + 4 * t + 2 * hh
        a(f'v_cvt_pk_bf16_f32 v{PV+4*u+2*t+hh}, v{ac}, v{ac+1}')
    KD, ZD = FR + 40, FR + 48
    for u in range(2):
        a(f'{MF} {R(KD+4*u)}, {R(PK_+4*u)}, {R(PV+4*u)}, 0')
        a(f'{MF} {R(ZD+4*u)}, {R(PK_+4*u)}, {R(ONES)}, 0')
    for t in range(2):
        a(f'v_mul_f32 v{RFL+t}, v{CL2E}, v{RSTD+t}')
    a('s_lshl_b32 s4, s3, 11')
    a(f's_add_u32 s4, s4, {SCR}')
    a(f'v_lshl_add_u32 v6, v1, 4, s4')
    a('s_lshl_b32 s4, s3, 7')
    a(f's_add_u32 s4, s4, {ZB}')
    a(f'v_lshl_add_u32 v7, v2, 4, s4')
    for u in range(2):
        a(f'ds_write_b128 v6, {R(KD+4*u)} offset:{u*KB}')
    a('s_mov_b32 exec_lo, 0x00010001')
    a('s_mov_b32 exec_hi, 0x00010001')
    for u in range(2):
        a(f'ds_write_b128 v7, {R(ZD+4*u)} offset:{u*64}')
    a('s_mov_b64 exec, -1')
    a('s_lshl_b32 s4, s3, 9')
    a(f's_add_u32 s4, s4, {SCR}')
    a(f'v_lshl_add_u32 v6, v1, 2, s4')
    a(f'v_and_b32 v7, 31, v1')
    a(f'v_lshlrev_b32 v7, 2, v7')
    a(f'v_add_u32 v7, {ZB}, v7')
    if first:
        a('s_cmp_eq_u32 s3, 0')
        a(f's_cbranch_scc0 L_go_{name}')
        sv = list(a.lds)
        poll(a, 'init', vT, 1, vDb, f'{S4(SRD_M)}, 0', 0xffff)
        a.label(f'L_go_{name}')
    a('s_waitcnt lgkmcnt(0)')
    a('s_barrier')
    RD = FR + 40
    for i in range(2):
        for w in range(4):
            a(f'ds_read_b32 v{RD+4*i+w}, v6 offset:{w*2048+i*256}')
    for w in range(4):
        a(f'ds_read_b32 v{RD+8+w}, v7 offset:{w*128}')
    items = []
    for t in range(2):
        for u in range(2):
            for hh in range(2):
                items.append((ACQ + 8 * t + 4 * u + 2 * hh, (MEAN + t, 0), (CS + 4 * u + 2 * hh, None),
                              (RSTD + t, 0), (RFL + t, 0), PQ + 4 * t + 2 * u + hh))
    for i in range(3):
        a(f'v_add_f32 v{RD+4*i}, v{RD+4*i}, v{RD+4*i+1}')
        a(f'v_add_f32 v{RD+4*i+2}, v{RD+4*i+2}, v{RD+4*i+3}')
    for i in range(3):
        a(f'v_add_f32 v{RD+4*i}, v{RD+4*i}, v{RD+4*i+2}')
    for i in range(2):
        a(f'buffer_atomic_add_f32 v{RD+4*i}, v{vKVa}, {S4(SRD_W)}, 0 offen offset:{i*256}')
    a('s_cmp_eq_u32 s3, 0')
    a(f's_cbranch_scc0 L_nz_{name}')
    a.begin_opt()
    a('s_mov_b32 exec_hi, 0')
    a(f'buffer_atomic_add_f32 v{RD+8}, v{vZa}, {S4(SRD_W)}, 0 offen')
    a('s_mov_b64 exec, -1')
    a.end_opt()
    a.label(f'L_nz_{name}')
    a.vm = []
    phi_pairs(items[:4])
    a(f's_add_u32 s5, s7, {43*KB}')
    a('v_lshlrev_b32 v6, 4, v1')
    a(f'buffer_store_dwordx4 {R(PQ)}, v6, {S4(SRD_W)}, s7 offen {stmod()}')
    phi_pairs(items[4:])
    a(f'buffer_store_dwordx4 {R(PQ+4)}, v6, {S4(SRD_W)}, s5 offen {stmod()}')
    end_phase(a, p)


def comp_s24(a, p):
    name = p.name; L = p.L
    att = (p.ph == 2)
    KVL, ZL, OUTL = 136 * KB, 152 * KB, SCR
    final = p.final
    res_rowmajor = (att and L == 0)
    res_off = (WS_X2 if att else WS_X1[L])
    out_off = (WS_X1[L] if att else WS_X2)
    st_off = WS_ST1[L] if att else WS_ST2
    ACC = 32
    FR = 48
    SETSZ = 56
    N = 160
    OF = 184
    EPS4, ONES = 192, 196
    RES = 24
    KVT = 200
    fixed = [8, 9, 10]; cur = [11, 12, 13]
    vX, vW0, vW1 = cur
    vKV, vZ = 14, 15
    phase_map(a, p)
    a('s_lshl_b32 s15, s12, 2')
    a('s_add_u32 s15, s15, s3')
    a('v_lshlrev_b32 v16, 4, v1')
    a('s_lshl_b32 s6, s15, 4')
    a('s_lshl_b32 s5, s13, 1')
    a('s_add_u32 s6, s6, s5')
    a('s_lshl_b32 s6, s6, 10')
    a(f's_add_u32 s7, s6, {res_off}')
    a(f's_add_u32 s6, s6, {out_off}')
    a('s_lshl_b32 s8, s15, 14')
    a('s_lshl_b32 s5, s13, 7')
    a('s_add_u32 s8, s8, s5')
    if final: srd(a, SRD_M, S_PTR + 14, 2048 * 1024)
    if res_rowmajor:
        a('v_lshlrev_b32 v4, 10, v3')
        a('v_lshl_add_u32 v17, v2, 3, v4')
        for T in range(4):
            a(f'buffer_load_dwordx2 {R(RES+2*T,2)}, v17, {S4(SRD_A)}, s8 offen offset:{32*T}')
    else:
        for i in range(2):
            a(f'buffer_load_dwordx4 {R(RES+4*i)}, v16, {S4(SRD_W)}, s7 offen offset:{i*KB}')
    if OPT.get('otouch', 0) and not final:
        a('v_lshlrev_b32 v252, 7, v1')
        p.touch = ['s_lshl_b32 s4, s15, 10', f's_add_u32 s4, s4, {st_off}', 's_mov_b64 exec, 0xffff',
                   f'buffer_load_dword v254, v252, {S4(SRD_W)}, s6 offen sc1', 's_mov_b64 exec, 0xff',
                   f'buffer_load_dword v253, v252, {S4(SRD_W)}, s4 offen sc1', 's_mov_b64 exec, -1']
    a('s_lshl_b32 s4, s3, 10')
    a(f's_add_u32 s4, s4, {RA0}')
    xbase(a, 8, 4, 'F')
    wpat(a, 9, 10)
    for i in range(4): a(f'v_mov_b32 v{ONES+i}, 0x3f803f80')
    if att:
        KVB = WS_KV + L * 65536
        a('v_and_b32 v18, 31, v1')
        a('s_lshl_b32 s11, s3, 9')
        a(f's_add_u32 s11, s11, {KVB + 32768}')
        a('v_lshlrev_b32 v18, 4, v18')
        for i in range(4): a(f'v_mov_b32 v{EPS4+i}, {hex(f2u(1e-6))}')
        a(f'v_add_u32 v{vKV}, {KVL}, v16')
        a(f'v_and_b32 v4, 1, v1')
        a(f'v_lshl_add_u32 v4, v2, 1, v4')
        a(f'v_lshlrev_b32 v4, 4, v4')
        a(f'v_add_u32 v{vZ}, {ZL}, v4')
        a('v_bfe_u32 v5, v1, 2, 1')
        a('v_cmp_eq_u32 vcc, 1, v5')
        a('v_bfe_u32 v6, v1, 3, 2')
        a('s_lshl_b32 s10, s3, 2')
        a('s_add_u32 s10, s10, 16')
        a('s_sub_u32 s10, s10, s14')
        a('v_add_u32 v6, s10, v6')
        a('v_and_b32 v6, 15, v6')
        a('v_lshlrev_b32 v6, 7, v6')
        a('v_and_b32 v7, 3, v1')
        a('v_lshl_add_u32 v7, v7, 1, v5')
        a('v_lshl_add_u32 v6, v7, 4, v6')
        a(f'v_add_u32 v6, {ZL}, v6')
        a('s_lshl_b32 s4, s3, 13')
        a(f's_add_u32 s4, s4, {KVB}')
        a(f's_add_u32 s5, s4, 4096')
    for T in range(4):
        for hh in range(2):
            a(f'v_lshlrev_b32 v{ACC+4*T+2*hh}, 16, v{RES+2*T+hh}')
            a(f'v_and_b32 v{ACC+4*T+2*hh+1}, 0xffff0000, v{RES+2*T+hh}')
    if att:
        ts(a, name + '.preF')
        a('s_barrier')
        ts(a, name + '.F')
        for i in range(8):
            a(f'buffer_load_dwordx4 {R(KVT+4*i)}, v16, {S4(SRD_W)}, s{4+i//4} offen offset:{(i%4)*KB}')
        a(f'buffer_load_dwordx4 {R(N)}, v18, {S4(SRD_W)}, s11 offen')
        for i in range(4):
            for hh in range(2):
                src = KVT + 8 * i + 4 * hh
                a(f'v_cvt_pk_bf16_f32 v{KVT+8*i+2*hh}, v{src}, v{src+1}')
                a(f'v_cvt_pk_bf16_f32 v{KVT+8*i+2*hh+1}, v{src+2}, v{src+3}')
            a(f's_add_u32 s5, s10, {i}')
            a('s_and_b32 s5, s5, 15')
            a('s_lshl_b32 s5, s5, 10')
            a(f'v_add_u32 v4, s5, v{vKV}')
            a(f'ds_write_b128 v4, {R(KVT+8*i)}')
        a(f'v_cvt_pk_bf16_f32 v{N+4}, v{N}, v{N+1}')
        a(f'v_cvt_pk_bf16_f32 v{N+5}, v{N+2}, v{N+3}')
        a(f'v_cndmask_b32 v{N+8}, v{N+4}, 0, vcc')
        a(f'v_cndmask_b32 v{N+9}, v{N+5}, 0, vcc')
        a(f'v_cndmask_b32 v{N+10}, 0, v{N+4}, vcc')
        a(f'v_cndmask_b32 v{N+11}, 0, v{N+5}, vcc')
        a(f'ds_write_b128 v6, {R(N+8)}')

    def fx(s, kk): return FR + SETSZ * s + 4 * kk
    def fkv(s, kk): return FR + SETSZ * s + 8 + 4 * kk
    def fz(s, kk): return FR + SETSZ * s + 16 + 4 * kk
    def fw(s, kk, T): return FR + SETSZ * s + 24 + 16 * kk + 4 * T

    def reads(s):
        l = []
        for kk in range(2):
            l.append(rd128(fx(s, kk), vX, kk * p.sA))
            if att:
                l.append(rd128(fz(s, kk), vZ, kk * 128))
                l.append(rd128(fkv(s, kk), vKV, kk * KB))
        for kk in range(2):
            for T in range(4):
                q, u = T >> 1, T & 1
                for h in range(2):
                    l.append(rdtr(fw(s, kk, T) + 2 * h, vW1 if u else vW0, kk * p.sB + (2 * q + h) * KB))
        return l

    def adv():
        advance(a, p, fixed, cur)
        if att:
            a(f'v_add_u32 v{vKV}, {2*KB}, v{vKV}')
            a(f'v_add_u32 v{vZ}, 256, v{vZ}')

    def mainm(s, kk, xf):
        return [f'{MF} {R(ACC+4*T)}, {R(fw(s,kk,T))}, {R(xf)}, {R(ACC+4*T)}' for T in range(4)]

    def amf(s, kk):
        x, kv, z = fx(s, kk), fkv(s, kk), fz(s, kk)
        n = N + 12 * kk
        return [f'{MF} {R(n+8)}, {R(z)}, {R(x)}, {R(EPS4)}',
                f'{MF16} {R(n)}, {R(kv,2)}, {R(x,2)}, 0',
                f'{MF16} {R(n+4)}, {R(kv+2,2)}, {R(x+2,2)}, 0']

    def avalu(kk):
        n = N + 12 * kk; o = OF + 4 * kk; dn = n + 8
        return [f'v_rcp_f32 v{dn}, v{dn}', f'v_rcp_f32 v{dn+1}, v{dn+1}',
                pk('v_pk_mul_f32', n, n, dn, b1=0), pk('v_pk_mul_f32', n + 2, n + 2, dn, b1=0),
                pk('v_pk_mul_f32', n + 4, n + 4, dn + 1, b1=0), pk('v_pk_mul_f32', n + 6, n + 6, dn + 1, b1=0),
                f'v_cvt_pk_bf16_f32 v{o}, v{n}, v{n+1}', f'v_cvt_pk_bf16_f32 v{o+1}, v{n+2}, v{n+3}',
                f'v_cvt_pk_bf16_f32 v{o+2}, v{n+4}, v{n+5}', f'v_cvt_pk_bf16_f32 v{o+3}, v{n+6}, v{n+7}']

    def period(s):
        a.wait_lds_all()
        tsl(a, p, 'pre')
        a('s_barrier')
        tsl(a, p, 'post')
        rd = reads(1 - s)
        if not att:
            interleave(a, mainm(s, 0, fx(s, 0)) + mainm(s, 1, fx(s, 1)), rd, per=3)
        else:
            interleave(a, amf(s, 0) + amf(s, 1), rd[:14], per=3)
            for t in avalu(0): a(t)
            interleave(a, mainm(s, 0, OF), avalu(1), per=3)
            interleave(a, mainm(s, 1, OF + 4), rd[14:], per=2)
        adv()

    ring_init(a, p, fixed, cur)
    a.wait_lds_all()
    ts(a, name + '.preP0')
    a('s_barrier')
    ts(a, name + '.P0')
    for t in reads(0): a(t)
    for t in p.touch: a(t)
    adv()
    a.loop_begin(f'L_ml_{name}')
    period(0)
    period(1)
    a('s_add_u32 s9, s9, 1')
    a(f's_cmp_lt_u32 s9, {p.NC//2}')
    a(f's_cbranch_scc1 L_ml_{name}')
    a.loop_end_check()
    a.wait_lds_all()
    ts(a, name + '.loopend')
    OUT = 24
    for T in range(4):
        for hh in range(2):
            a(f'v_cvt_pk_bf16_f32 v{OUT+2*T+hh}, v{ACC+4*T+2*hh}, v{ACC+4*T+2*hh+1}')
    if not final:
        SS, SG = N, N + 4
        a(f'{MF} {R(SS)}, {R(ONES)}, {R(OUT)}, 0')
        a(f'{MF} {R(SG)}, {R(OUT)}, {R(OUT)}, 0')
        a(f'{MF} {R(SS)}, {R(ONES)}, {R(OUT+4)}, {R(SS)}')
        a(f'{MF} {R(SG)}, {R(OUT+4)}, {R(OUT+4)}, {R(SG)}')
        for i in range(2):
            a(f'buffer_store_dwordx4 {R(OUT+4*i)}, v16, {S4(SRD_W)}, s6 offen offset:{i*KB} {stmod()}')
        a('s_lshl_b32 s4, s15, 10')
        a('s_lshl_b32 s5, s13, 3')
        a('s_add_u32 s4, s4, s5')
        a(f's_add_u32 s4, s4, {st_off}')
        a('v_lshlrev_b32 v5, 6, v3')
        a('v_and_b32 v6, 3, v3')
        a('v_cmp_eq_u32 s[52:53], 1, v6')
        a('v_cmp_eq_u32 s[54:55], 2, v6')
        a('v_cmp_eq_u32 s[56:57], 3, v6')
        a('v_lshrrev_b32 v6, 2, v3')
        a('v_cmp_eq_u32 vcc, v6, v2')
        a(f'v_cndmask_b32 v{SS+1}, v{SG}, v{SG+1}, s[52:53]')
        a(f'v_cndmask_b32 v{SS+1}, v{SS+1}, v{SG+2}, s[54:55]')
        a(f'v_cndmask_b32 v{SS+1}, v{SS+1}, v{SG+3}, s[56:57]')
        a('s_mov_b64 exec, vcc')
        a(f'buffer_store_dwordx2 {R(SS,2)}, v5, {S4(SRD_W)}, s4 offen {stmod()}')
        a('s_mov_b64 exec, -1')
        end_phase(a, p)
    else:
        a(f's_mul_i32 s4, s3, {16*144}')
        a(f's_add_u32 s4, s4, {OUTL}')
        a(f'v_mul_u32_u24 v4, 144, v3')
        a('v_lshl_add_u32 v4, v2, 3, v4')
        a('v_add_u32 v4, s4, v4')
        for T in range(4):
            a(f'ds_write_b64 v4, {R(OUT+2*T,2)} offset:{32*T}')
        a('v_lshrrev_b32 v5, 3, v1')
        a('v_and_b32 v6, 7, v1')
        a('v_mul_u32_u24 v7, 144, v5')
        a('v_lshl_add_u32 v7, v6, 4, v7')
        a('v_add_u32 v7, s4, v7')
        a('s_waitcnt lgkmcnt(0)')
        for i in range(2):
            a(f'ds_read_b128 {R(ACC+4*i)}, v7 offset:{i*8*144}')
        a('v_lshlrev_b32 v5, 10, v5')
        a('v_lshl_add_u32 v5, v6, 4, v5')
        a(f's_add_u32 s9, s8, {8*KB}')
        for i in range(2):
            a(f'buffer_store_dwordx4 {R(ACC+4*i)}, v5, {S4(SRD_M)}, s{8+i} offen {OPT.get("outmod", "")}')


def comp_s3(a, p):
    name = p.name; L = p.L
    STB = p.STB
    CSX = SCR + KB
    first = (L == 0)
    ACG, ACU = 40, 88
    CS = 136
    FR = 160
    ONES = 240
    fixed = [8, 9, 10, 11]; cur = [12, 13, 14, 15]
    vX = 12; vW = 13
    MEAN, RSTD, R2 = 24, 28, 32
    phase_map(a, p)
    a('s_lshr_b32 s6, s3, 1')
    a('s_and_b32 s11, s3, 1')
    a('s_lshl_b32 s15, s12, 3')
    a('s_lshl_b32 s5, s6, 2')
    a('s_add_u32 s15, s15, s5')
    a('s_lshl_b32 s4, s6, 12')
    a(f's_add_u32 s4, s4, {RA0}')
    xbase(a, 8, 4, 'F')
    wpat(a, 9, 10)
    a('s_lshl_b32 s4, s11, 5')
    a('v_xor_b32 v11, s4, v9')
    a('v_add_u32 v11, 4096, v11')
    a('s_lshl_b32 s4, s11, 13')
    a('v_add_u32 v9, s4, v9')
    a('v_add_u32 v10, s4, v10')
    a(f's_mul_i32 s4, s15, 43')
    a(f's_mul_i32 s5, s13, 3')
    a('s_add_u32 s4, s4, s5')
    a('s_lshl_b32 s4, s4, 10')
    a(f's_add_u32 s4, s4, {WS_H[L]}')
    a('s_lshl_b32 s7, s11, 11')
    a('s_add_u32 s7, s7, s4')
    a('s_lshl_b32 s8, s11, 3')
    a('s_add_u32 s8, s8, s4')
    a('s_add_u32 s8, s8, 1024')
    a('s_cmp_ge_u32 s13, 14')
    a(f's_cselect_b32 s8, {WS_DUMP}, s8')
    a('s_cselect_b32 s5, s11, 0')
    a('s_cmp_eq_u32 s13, 15')
    a('s_cselect_b32 s5, 1, s5')
    a('s_cmp_lg_u32 s5, 0')
    a(f's_cselect_b32 s7, {WS_DUMP}, s7')
    if OPT.get('otouch', 0):
        a('v_lshrrev_b32 v4, 3, v1')
        a('v_and_b32 v5, 7, v1')
        a(f'v_mul_u32_u24 v4, {43*KB}, v4')
        a('v_lshl_add_u32 v252, v5, 7, v4')
        p.touch = ['s_mov_b32 exec_hi, 0', f'buffer_load_dword v254, v252, {S4(SRD_W)}, s7 offen sc1',
                   f'buffer_load_dword v253, v252, {S4(SRD_W)}, s8 offen sc1', 's_mov_b64 exec, -1']
    a('s_mul_i32 s4, s11, 384')
    a(f's_add_u32 s4, s4, {CS3L}')
    a('v_lshl_add_u32 v16, v2, 4, s4')
    for i in range(4): a(f'v_mov_b32 v{ONES+i}, 0x3f803f80')
    for r in range(40, 160 if first else 136): a(f'v_mov_b32 v{r}, 0')

    def fx(s, t): return FR + 40 * s + 4 * t
    def fw(s, gs, i): return FR + 40 * s + 16 + 4 * (2 * i + gs)

    def reads(s, kk):
        wl = []
        for i in range(3):
            for gs in range(2):
                for h in range(2):
                    wl.append(rdtr(fw(s, gs, i) + 2 * h, vW + i, kk * p.sB + (2 * gs + h) * KB))
        xl = [rd128(fx(s, t), vX, kk * p.sA + t * KB) for t in range(4)]
        return wl[:2] + xl + wl[2:]

    cnt = [0]

    def mfmas(s):
        l = []
        for i in range(3):
            for gs, AC in ((0, ACG), (1, ACU)):
                for t in range(4):
                    d = AC + 12 * t + 4 * i
                    l.append(f'{MF} {R(d)}, {R(fw(s,gs,i))}, {R(fx(s,t))}, {R(d)}')
        if first:
            def csblk():
                cnt[0] += 1
                lab = f'L_cs{cnt[0]}_{name}'
                a(f's_cmp_eq_u32 s6, {s}')
                a(f's_cbranch_scc0 {lab}')
                a.begin_opt()
                for i in range(3):
                    for gs in range(2):
                        d = CS + 12 * gs + 4 * i
                        a(f'{MF} {R(d)}, {R(fw(s,gs,i))}, {R(ONES)}, {R(d)}')
                a.end_opt()
                a.label(lab)
            l.append(csblk)
        return l

    loop_big(a, p, fixed, cur, reads, mfmas, per=1)
    a('s_lshl_b32 s4, s6, 8')
    a(f's_add_u32 s4, s4, {STB}')
    a(f'v_lshl_add_u32 v6, v3, 2, s4')
    for t in range(4):
        a(f'ds_read_b32 v{MEAN+t}, v6 offset:{64*t}')
        a(f'ds_read_b32 v{RSTD+t}, v6 offset:{512+64*t}')
    if first:
        a(f's_mul_i32 s4, s3, 384')
        a(f's_add_u32 s4, s4, {CSX}')
        a('v_lshl_add_u32 v4, v2, 4, s4')
        a('s_xor_b32 s5, s3, 2')
        a(f's_mul_i32 s5, s5, 384')
        a(f's_add_u32 s5, s5, {CSX}')
        a('v_lshl_add_u32 v5, v2, 4, s5')
        a('s_mov_b32 exec_lo, 0x00010001')
        a('s_mov_b32 exec_hi, 0x00010001')
        for i in range(6):
            a(f'ds_write_b128 v4, {R(CS+4*i)} offset:{64*i}')
        a('s_mov_b64 exec, -1')
        a('s_waitcnt lgkmcnt(0)')
        a('s_barrier')
        for i in range(6):
            a(f'ds_read_b128 {R(FR+4*i)}, v5 offset:{64*i}')
        for i in range(12):
            a(pk('v_pk_add_f32', CS + 2 * i, CS + 2 * i, FR + 2 * i))
        a('s_mov_b32 exec_lo, 0x00010001')
        a('s_mov_b32 exec_hi, 0x00010001')
        for i in range(6):
            a(f'ds_write_b128 v16, {R(CS+4*i)} offset:{64*i}')
        a('s_mov_b64 exec, -1')
    else:
        for i in range(6):
            a(f'ds_read_b128 {R(CS+4*i)}, v16 offset:{64*i}')
    for t in range(4):
        a(f'v_mul_f32 v{R2+t}, v{RSTD+t}, v{RSTD+t}')
    a('v_lshlrev_b32 v4, 4, v1')
    a('s_mov_b32 s5, s7')
    a('s_mov_b32 s6, s8')
    OUT = FR
    for t in range(4):
        idx = [(i, hh) for i in range(3) for hh in range(2)]
        for i, hh in idx:
            g = ACG + 12 * t + 4 * i + 2 * hh; u = ACU + 12 * t + 4 * i + 2 * hh
            a(pk('v_pk_fma_f32', g, MEAN + t, CS + 4 * i + 2 * hh, g, b0=0, neg0=True))
            a(pk('v_pk_fma_f32', u, MEAN + t, CS + 12 + 4 * i + 2 * hh, u, b0=0, neg0=True))
        for i, hh in idx:
            g = ACG + 12 * t + 4 * i + 2 * hh; u = ACU + 12 * t + 4 * i + 2 * hh
            a(f'v_max_f32 v{g}, 0, v{g}')
            a(f'v_max_f32 v{g+1}, 0, v{g+1}')
            a(pk('v_pk_mul_f32', u, u, R2 + t, b1=0))
        for i, hh in idx:
            g = ACG + 12 * t + 4 * i + 2 * hh; u = ACU + 12 * t + 4 * i + 2 * hh
            a(pk('v_pk_mul_f32', g, g, u))
        for i, hh in idx:
            g = ACG + 12 * t + 4 * i + 2 * hh
            a(f'v_cvt_pk_bf16_f32 v{OUT+8*t+2*i+hh}, v{g}, v{g+1}')
        a(f'buffer_store_dwordx4 {R(OUT+8*t)}, v4, {S4(SRD_W)}, s5 offen {stmod()}')
        a(f'buffer_store_dwordx2 {R(OUT+8*t+4,2)}, v4, {S4(SRD_W)}, s6 offen {stmod()}')
        if t < 3:
            a(f's_add_u32 s5, s5, {43*KB}')
            a(f's_add_u32 s6, s6, {43*KB}')
    a.wait_lds_all()
    end_phase(a, p)


def build(opt=None, fn=None):
    global WS_X2, WS_ST2
    o = dict(opt or {})
    OPT.clear(); OPT.update(o)
    OPT.setdefault('amod', 'sc1')
    if o.get('reuse', 1):
        WS_PQ[0] = WS_PQ[1] = WS_H[0] = WS_H[1] = 8 * MB
        WS_X1[0] = WS_X1[1] = WS_X2 = 4 * MB
        WS_ST1[0] = WS_ST1[1] = WS_ST2
    else:
        WS_PQ[0], WS_PQ[1] = 26 * MB, 32 * MB
    TS['on'] = o.get('ts', False); TS['names'] = {}
    phases = [Ph(ph, L, o) for L in range(2) for ph in (1, 2, 3, 4)]
    bars = ['T']
    for p in phases:
        if p.ph == 2: bars.append((p.name, 'F', 0))
        for c in range(p.NC + 1): bars.append((p.name, 'P', c))
        for x in range(p.nX): bars.append((p.name, 'X', x))
        if not p.final: bars.append((p.name, 'E', 0))
    a = Asm()
    entry(a)
    hist = list(a.hist)
    steps = bloader(a, phases, bars)
    a.hist = list(hist)
    aloader(a, phases)
    a.hist = list(hist)
    TS['role'] = 'C'
    a.label('L_comp')
    for p in phases:
        {1: comp_s1, 2: comp_s24, 3: comp_s3, 4: comp_s24}[p.ph](a, p)
    ts_flush(a)
    a.label('L_end')
    a('s_endpgm')
    name = 'interleave_layers__linear_attn_block__glu_gated_reglu__prompt_kernel'
    s = '; interleaved linear-attention / ReGLU layers: one persistent kernel (generated)\n'
    s += f'; @launch grid=(256,1,1) block=(512,1,1) lds={LDS_BYTES}\n'
    s += '.amdgcn_target "amdgcn-amd-amdhsa--gfx950"\n'
    s += kernel_text(name, a.text(), 256)
    if fn:
        open(fn, 'w').write(s)
        if TS['on']: json.dump(TS['names'], open(fn + '.ts.json', 'w'))
    if o.get('verbose'):
        for st in steps: print(st)
    return s


if __name__ == '__main__':
    fn = sys.argv[1]
    opt = {}
    for kv in sys.argv[2:]:
        k, v = kv.split('=', 1)
        opt[k] = eval(v)
    s = build(opt, fn=fn)
    print('bytes', len(s), 'lines', s.count('\n'))
```

```python
import sys, struct, json
from asmlib import Asm, kernel_text

KB = 1024
MB = 1 << 20
WS_PQ = [0, 2 * MB]
WS_X1 = [4 * MB, 6 * MB]
WS_H = [8 * MB, 14 * MB]
WS_X2 = 20 * MB
WS_KV = 22 * MB
WS_SYNC = 22 * MB + 128 * KB
WS_ST1 = [21 * MB + 0 * KB + 38 * MB, 21 * MB + 256 * KB + 38 * MB]
WS_ST2 = 22 * MB + 512 * KB
WS_DUMP = 23 * MB
WS_TS = 24 * MB
WS_BYTES = 268435456
S_PTR, S_DBG, S_WS = 16, 32, 34
SRD_A, SRD_B, SRD_W, SRD_M = 36, 40, 44, 48
S_RA, S_RB = 58, 59
S_TEAM, S_MEM, S_XCC, S_HET, S_VID = 60, 61, 62, 63, 96
SB_QKV, SB_WO, SB_WG, SB_WU, SB_WD = 64, 68, 72, 76, 80
LOG2E = 1.4426950408889634
MF = 'v_mfma_f32_16x16x32_bf16'
MF16 = 'v_mfma_f32_16x16x16_bf16'
OPT = {}
RB_SZ = 96 * KB
RA0 = 96 * KB
SCR = 144 * KB
CS1L = 154 * KB
CS3L = 155 * KB
VIDL = 156 * KB
LDS_BYTES = 157 * KB
SPIN = 1 << 17


def f2u(x): return struct.unpack('<I', struct.pack('<f', x))[0]
def R(b, n=4): return f'v[{b}:{b+n-1}]' if n > 1 else f'v{b}'
def S4(b): return f's[{b}:{b+3}]'
def stmod(): return OPT.get('stmod', '')


def srd(a, dst, ptr, size):
    a(f's_mov_b32 s{dst}, s{ptr}')
    a(f's_mov_b32 s{dst+1}, s{ptr+1}')
    a(f's_mov_b32 s{dst+2}, {size}')
    a(f's_mov_b32 s{dst+3}, 0x00020000')


TS = {'on': False, 'role': None, 'names': {}}


def tsl(a, p, name):
    if TS['on'] and OPT.get('tsp') == p.name: ts(a, name, True)


def ts(a, name, force=False):
    if not TS['on']: return
    if OPT.get('tsp') and not force and not name.startswith(OPT['tsp']) and name not in ('start', 'end'): return
    TS['names'].setdefault(TS['role'], []).append(name)
    a('s_waitcnt lgkmcnt(0)')
    a('s_memtime s[100:101]')
    a('s_waitcnt lgkmcnt(0)')
    a('s_mov_b32 s98, m0')
    a('s_mov_b32 m0, s99')
    a('s_nop 0')
    a('v_writelane_b32 v0, s100, m0')
    a('s_mov_b32 m0, s98')
    a('s_add_u32 s99, s99, 1')
    a('s_min_u32 s99, s99, 63')


def ts_flush(a):
    if not TS['on']: return
    ts(a, 'end')
    a('s_mov_b64 exec, -1')
    a(f's_lshl_b32 s4, s{S_VID}, 3')
    a('s_add_u32 s4, s4, s3')
    a('s_lshl_b32 s4, s4, 8')
    a(f's_add_u32 s4, s4, {WS_TS}')
    a('v_lshlrev_b32 v5, 2, v1')
    a(f'buffer_store_dword v0, v5, {S4(SRD_W)}, s4 offen')


def pk(op, d, s0, s1, s2=None, b0=None, b1=None, b2=None, neg0=False, neg1=False):
    def opnd(s, b):
        if b is None:
            assert s % 2 == 0, s
            return f'v[{s}:{s+1}]', 0, 1
        base = s & ~1; h = s & 1
        return f'v[{base}:{base+1}]', h, h
    srcs = [opnd(s0, b0), opnd(s1, b1)]
    if s2 is not None: srcs.append(opnd(s2, b2))
    assert d % 2 == 0
    t = f'{op} v[{d}:{d+1}], ' + ', '.join(s[0] for s in srcs)
    t += ' op_sel:[' + ','.join(str(s[1]) for s in srcs) + ']'
    t += ' op_sel_hi:[' + ','.join(str(s[2]) for s in srcs) + ']'
    if neg0 or neg1:
        n = [1 if neg0 else 0, 1 if neg1 else 0] + ([0] if s2 is not None else [])
        t += ' neg_lo:[' + ','.join(map(str, n)) + '] neg_hi:[' + ','.join(map(str, n)) + ']'
    return t


class Ph:
    def __init__(self, ph, L, opt):
        self.ph, self.L = ph, L
        self.name = f's{ph}l{L}'
        self.final = (ph == 4 and L == 1)
        self.padk = (ph == 4)
        self.NC = 22 if ph == 4 else 8
        self.NKreal = 43 if ph == 4 else 16
        self.RT = 8 if ph in (1, 3) else 4
        self.PB = {1: 6, 2: 4, 3: 12, 4: 4}[ph]
        self.sA = self.RT * KB; self.sB = self.PB * KB
        self.cA = 2 * self.sA; self.cB = 2 * self.sB
        ql = opt.get('qlate', 1)
        self.NCH = {1: 3, 2: 6 if ql else 5, 3: 3, 4: 6}[ph]
        self.lag = 2 if (ph in (2, 4) and opt.get('relax', 1)) else 1
        self.DC = opt.get(f's{ph}_dc', self.NCH - self.lag)
        self.KSA = 16 if ph in (1, 3) else 43
        self.amode = 'R' if (ph == 1 and L == 0) else 'F'
        self.bmap = 'S' if (ph == 1 and L == 0) else 'F'
        self.strideA = 64 if self.amode == 'R' else KB
        self.rowB = {1: 3072, 2: 1024, 3: 2752, 4: 1024}[ph]
        self.strideB = 32 * self.rowB
        self.nX = 1 if (ph == 1 or (ph == 3 and L == 0)) else 0
        if ql and ph == 1 and L == 0: self.nX = 2
        self.stats = (ph == 3) or (ph == 1 and L == 1)
        self.st2 = (ph == 1 and opt.get('g4', 1)) or ql
        self.STB = SCR + 9 * KB if ph == 1 else SCR
        self.vB = {(1, 0): 12, (1, 1): 15, (2, 0): 18, (2, 1): 18, (4, 0): 18, (4, 1): 18, (3, 0): 20, (3, 1): 20}[(ph, L)]
        self.b0 = None
        self.touch = []


def phase_map(a, p):
    if p.ph in (1, 3):
        a(f's_mov_b32 s12, s{S_TEAM}')
        a(f's_mov_b32 s13, s{S_MEM}')
        rx = OPT.get('rotx', 0)
        if rx:
            a(f's_lshr_b32 s14, s{S_TEAM}, 1')
            a(f's_mul_i32 s14, s14, {rx}')
            a(f's_add_u32 s14, s14, s{S_MEM}')
            a('s_and_b32 s14, s14, 15')
        elif p.amode == 'R' and OPT.get('evenrot', 1):
            a(f's_lshl_b32 s14, s{S_MEM}, 1')
            a('s_and_b32 s14, s14, 15')
        else:
            a(f's_mov_b32 s14, s{S_MEM}')
    else:
        a(f's_lshr_b32 s13, s{S_MEM}, 3')
        a(f's_lshl_b32 s12, s{S_TEAM}, 1')
        a('s_add_u32 s12, s12, s13')
        a(f's_and_b32 s13, s{S_MEM}, 7')
        if p.ph == 2: a('s_lshl_b32 s14, s13, 1')
        else: a('s_mul_i32 s14, s13, 5')


def stats_finish(a, vsum, vsq, vmean, vrstd, tmp):
    a(f'v_mul_f32 v{vmean}, {hex(f2u(1/512))}, v{vsum}')
    a(f'v_mul_f32 v{tmp}, {hex(f2u(1/512))}, v{vsq}')
    a(f'v_fma_f32 v{tmp}, -v{vmean}, v{vmean}, v{tmp}')
    a(f'v_max_f32 v{tmp}, 0, v{tmp}')
    a(f'v_add_f32 v{tmp}, {hex(f2u(1e-5))}, v{tmp}')
    a(f'v_rsq_f32 v{vrstd}, v{tmp}')


def xbase(a, vX, xoff_sgpr, amode):
    if amode == 'F':
        a(f'v_lshl_add_u32 v{vX}, v1, 4, s{xoff_sgpr}')
    else:
        a('v_lshrrev_b32 v4, 2, v3')
        a('v_sub_u32 v4, 4, v4')
        a('v_and_b32 v4, 3, v4')
        a('v_xor_b32 v4, v4, v2')
        a('v_lshlrev_b32 v4, 4, v4')
        a(f'v_lshl_add_u32 v{vX}, v3, 6, v4')
        a(f'v_add_u32 v{vX}, s{xoff_sgpr}, v{vX}')


def wpat(a, d0, d1):
    a('v_and_b32 v4, 1, v2')
    a('v_lshlrev_b32 v4, 5, v4')
    a('v_lshl_add_u32 v4, v2, 8, v4')
    a('v_bfe_u32 v5, v1, 2, 2')
    a('v_lshl_add_u32 v4, v5, 6, v4')
    a('v_and_b32 v5, 3, v1')
    a(f'v_lshl_add_u32 v{d0}, v5, 3, v4')
    a(f'v_xor_b32 v{d1}, 32, v{d0}')


def rd128(dst, base, off): return f'ds_read_b128 {R(dst)}, v{base} offset:{off}'
def rdtr(dst, base, off): return f'ds_read_b64_tr_b16 {R(dst,2)}, v{base} offset:{off}'


def interleave(a, mf, rd, per=1, first=0):
    ri = 0
    for i, m in enumerate(mf):
        if callable(m): m()
        else: a(m)
        if i >= first:
            for _ in range(per):
                if ri < len(rd):
                    a(rd[ri]); ri += 1
    while ri < len(rd):
        a(rd[ri]); ri += 1


def ring_init(a, p, fixed, cur):
    a(f's_mov_b32 s{S_RA}, 0')
    a(f's_mov_b32 s{S_RB}, {p.b0}')
    a('s_mov_b32 s9, 0')
    a(f'v_mov_b32 v{cur[0]}, v{fixed[0]}')
    for f, c in zip(fixed[1:], cur[1:]): a(f'v_add_u32 v{c}, s{S_RB}, v{f}')


def advance(a, p, fixed, cur):
    a(f's_add_u32 s{S_RA}, s{S_RA}, {p.cA}')
    a(f's_cmp_eq_u32 s{S_RA}, {p.NCH*p.cA}')
    a(f's_cselect_b32 s{S_RA}, 0, s{S_RA}')
    a(f's_add_u32 s{S_RB}, s{S_RB}, {p.cB}')
    a(f's_cmp_eq_u32 s{S_RB}, {RB_SZ}')
    a(f's_cselect_b32 s{S_RB}, 0, s{S_RB}')
    a(f'v_add_u32 v{cur[0]}, s{S_RA}, v{fixed[0]}')
    for f, c in zip(fixed[1:], cur[1:]):
        a(f'v_add_u32 v{c}, s{S_RB}, v{f}')


def loop_big(a, p, fixed, cur, reads, mfmas, per=1):
    ring_init(a, p, fixed, cur)
    ts(a, p.name + '.preP0')
    a('s_barrier')
    ts(a, p.name + '.P0')
    for t in reads(0, 0): a(t)
    for t in p.touch:
        if t == 'LATE':
            a('s_cmp_eq_u32 s3, 3')
            a('s_cbranch_scc0 L_nolt')
            a.begin_opt()
            late_touch(a, 22)
            a.end_opt()
            a.label('L_nolt')
            a.vm = []
        else: a(t)
    a.loop_begin(f'L_ml_{p.name}')
    if p.ph == 3 and OPT.get('s3adv', 1):
        class Rec(list):
            def __call__(self, t): self.append(t)
        rec = Rec(); advance(rec, p, fixed, cur); rec('s_add_u32 s9, s9, 1')
        m = mfmas(0); rd = reads(1, 1)
        interleave(a, m[:len(rd)], rd, per=1)
        interleave(a, m[len(rd):], rec, per=2)
    else:
        interleave(a, mfmas(0), reads(1, 1), per=per)
        advance(a, p, fixed, cur)
        a('s_add_u32 s9, s9, 1')
    a.wait_lds_all()
    tsl(a, p, 'pre')
    a('s_barrier')
    tsl(a, p, 'post')
    interleave(a, mfmas(1), reads(0, 0), per=per)
    a(f's_cmp_lt_u32 s9, {p.NC}')
    a(f's_cbranch_scc1 L_ml_{p.name}')
    a.loop_end_check()
    a.wait_lds_all()
    ts(a, p.name + '.loopend')


def end_phase(a, p):
    ts(a, p.name + '.epi')
    a('s_waitcnt vmcnt(0)')
    ts(a, p.name + '.vm0')
    a('s_barrier')
    a.vm = []


def poll(a, name, vdst, n, voff, soff, execmask):
    a(f's_mov_b32 s84, {SPIN}')
    if execmask == 0xffffffff: a('s_mov_b32 exec_hi, 0')
    elif execmask != -1: a(f's_mov_b64 exec, {execmask}')
    a.flush_hazards()
    a.label(f'L_poll_{name}')
    op = {1: 'buffer_load_dword', 4: 'buffer_load_dwordx4'}[n]
    a(f'{op} {R(vdst, n)}, v{voff}, {soff} offen sc1')
    a('s_waitcnt vmcnt(0)')
    if n == 4:
        a(f'v_min_u32 v{vdst}, v{vdst}, v{vdst+1}')
        a(f'v_min_u32 v{vdst+2}, v{vdst+2}, v{vdst+3}')
        a(f'v_min_u32 v{vdst}, v{vdst}, v{vdst+2}')
    a(f'v_cmp_eq_u32 vcc, 0, v{vdst}')
    a('s_nop 1')
    a(f's_cbranch_vccz L_pok_{name}')
    a('s_sub_u32 s84, s84, 1')
    a(f's_cbranch_scc1 L_pok_{name}')
    a(f's_sleep {OPT.get("sleep", 1)}')
    a(f's_branch L_poll_{name}')
    a.label(f'L_pok_{name}')
    if execmask != -1: a('s_mov_b64 exec, -1')
    a.vm = []


def load_counters(a, name, until_sum):
    a('v_lshlrev_b32 v4, 5, v1')
    a('s_mov_b64 exec, 0xff')
    a(f'buffer_load_dword v5, v4, {S4(SRD_M)}, 0 offen sc1')
    a('s_waitcnt vmcnt(0)')
    a('s_mov_b64 exec, -1')
    for i in range(8):
        a(f'v_readlane_b32 s{86+i}, v5, {i}')
    a('s_add_u32 s85, s86, s87')
    for i in range(2, 8):
        a(f's_add_u32 s85, s85, s{86+i}')


def stouch_setup(a, p, w, nw):
    if not OPT.get('stouch', 0): return []
    reuse = OPT.get('reuse', 1)
    out = []
    if p.ph == 1 and (p.L == 0 or not reuse):
        a('s_lshl_b32 s53, s12, 3')
        a('s_mul_i32 s53, s53, 43')
        a('s_add_u32 s53, s53, s13')
        a('s_lshl_b32 s53, s53, 10')
        a(f's_mul_i32 s54, s{w}, {KB//nw}')
        a('s_add_u32 s53, s53, s54')
        a(f's_add_u32 s53, s53, {WS_PQ[p.L]}')
        out.append((53, 7, 43 * KB, 8 // nw))
    if p.ph in (2, 4) and not p.final and ((p.ph == 2 and p.L == 0) or not reuse):
        a('s_lshl_b32 s53, s12, 16')
        a('s_lshl_b32 s54, s13, 11')
        a('s_add_u32 s53, s53, s54')
        a(f's_mul_i32 s54, s{w}, {2*KB//nw}')
        a('s_add_u32 s53, s53, s54')
        a(f's_add_u32 s53, s53, {WS_X1[p.L] if p.ph == 2 else WS_X2}')
        out.append((53, 3, 16 * KB, 16 // nw))
        a('s_lshl_b32 s55, s12, 12')
        a(f's_mul_i32 s54, s{w}, {KB//nw}')
        a('s_add_u32 s55, s55, s54')
        a(f's_add_u32 s55, s55, {WS_ST1[p.L] if p.ph == 2 else WS_ST2}')
        out.append((55, 3, KB, 8 // nw))
    if p.ph == 3:
        a('s_lshl_b32 s53, s12, 3')
        a('s_mul_i32 s53, s53, 43')
        a('s_mul_i32 s54, s13, 3')
        a('s_add_u32 s53, s53, s54')
        a('s_lshl_b32 s53, s53, 10')
        a(f's_mul_i32 s54, s{w}, {3*KB//nw}')
        a('s_add_u32 s53, s53, s54')
        a(f's_add_u32 s53, s53, {WS_H[p.L]}')
        out.append((53, 7, 43 * KB, 24 // nw))
    return out


def stouch(a, spec, it):
    for sb, mask, stride, n in spec:
        a(f's_and_b32 s56, s{it}, {mask}')
        a(f's_mul_i32 s56, s56, {stride}')
        a(f's_add_u32 s56, s56, s{sb}')
        for i in range(n):
            a.raw(f'    s_buffer_load_dword s52, {S4(SRD_W)}, s56 offset:{i*128}')


def init_flag(a):
    a('s_mov_b64 exec, 1')
    a('s_lshr_b32 s4, s2, 1')
    a('s_lshl_b32 s4, s4, 5')
    a('s_and_b32 s5, s2, 1')
    a('s_lshl_b32 s5, s5, 2')
    a('s_add_u32 s4, s4, s5')
    a('s_add_u32 s4, s4, 4')
    a('v_mov_b32 v22, s4')
    a('v_mov_b32 v23, 1')
    a('s_waitcnt vmcnt(0)')
    a(f'buffer_store_dword v23, v22, {S4(SRD_M)}, 0 offen sc1')
    a('s_mov_b64 exec, -1')


def late_touch(a, vl):
    a('s_mul_i32 s53, s2, 5504')
    a('s_lshl_b32 s54, s2, 11')
    a('s_mov_b64 exec, 0xffff')
    a(f'buffer_load_dword v31, v{vl}, {S4(SB_WO)}, s54 offen')
    a.vm = []
    a('s_mov_b32 exec_lo, -1')
    a('s_mov_b32 exec_hi, 0x7ff')
    for sb in (SB_WG, SB_WU, SB_WD):
        a(f'buffer_load_dword v31, v{vl}, {S4(sb)}, s53 offen')
        a.vm = []
    a('s_mov_b64 exec, -1')


def entry(a):
    TS['role'] = 'all'
    a('s_cmp_ge_u32 s2, 256')
    a('s_cbranch_scc1 L_end')
    a('v_and_b32 v1, 63, v0')
    a('v_lshrrev_b32 v2, 6, v0')
    if TS['on']:
        a('v_mov_b32 v0, 0')
        a('s_mov_b32 s99, 0')
        a('s_mov_b32 m0, 0')
        ts(a, 'start')
    a(f's_load_dwordx16 s[16:31], s[0:1], 0')
    a(f's_load_dwordx4 s[32:35], s[0:1], 64')
    fx = OPT.get('fakexcc', 0)
    if fx == 0:
        a(f's_getreg_b32 s{S_XCC}, hwreg(HW_REG_XCC_ID, 0, 4)')
        a(f's_and_b32 s{S_XCC}, s{S_XCC}, 7')
    elif fx == 1:
        a(f's_lshr_b32 s{S_XCC}, s2, 5')
    else:
        a(f's_and_b32 s{S_XCC}, s2, 7')
        a(f's_cmp_ge_u32 s{S_XCC}, 6')
        a(f's_cselect_b32 s{S_XCC}, 1, s{S_XCC}')
    a('v_readfirstlane_b32 s3, v2')
    a('v_lshrrev_b32 v2, 4, v1')
    a('v_and_b32 v3, 15, v1')
    a(f's_mov_b32 s{S_HET}, 0')
    a('s_waitcnt lgkmcnt(0)')
    ts(a, 'karg')
    srd(a, SRD_W, S_WS, WS_BYTES)
    srd(a, SRD_M, S_DBG, 256)
    srd(a, SB_QKV, S_PTR + 2, 512 * 3072)
    srd(a, SB_WO, S_PTR + 4, 512 * 1024)
    srd(a, SB_WG, S_PTR + 8, 512 * 2752)
    srd(a, SB_WU, S_PTR + 10, 512 * 2752)
    srd(a, SB_WD, S_PTR + 12, 1376 * 1024)
    srd(a, SRD_A, S_PTR + 0, 2048 * 1024)
    a('s_cmp_eq_u32 s3, 0')
    a('s_cbranch_scc0 L_e1')
    a(f's_lshl_b32 s4, s{S_XCC}, 5')
    a('v_mov_b32 v4, s4')
    a('v_mov_b32 v5, 1')
    a('s_mov_b64 exec, 1')
    a(f'buffer_atomic_add v5, v4, {S4(SRD_M)}, 0 offen sc0')
    a('s_mov_b64 exec, -1')
    pt = OPT.get('pretouch', 65)
    npt = 0
    a('v_lshlrev_b32 v6, 7, v1')
    if pt & 2:
        a('s_lshr_b32 s7, s2, 3')
        a('s_and_b32 s7, s7, 31')
        a(f's_lshl_b32 s5, s{S_XCC}, 18')
        a('s_lshl_b32 s6, s7, 13')
        a('s_add_u32 s5, s5, s6')
        a(f'buffer_load_dword v31, v6, {S4(SRD_A)}, s5 offen')
        a.vm = []
        a('s_mul_i32 s7, s7, 49152')
        for i in range(6):
            a(f'buffer_load_dword v31, v6, {S4(SB_QKV)}, s7 offen')
            a.vm = []
            if i < 5: a('s_add_u32 s7, s7, 8192')
        npt += 7
    if pt & 32:
        a('s_lshr_b32 s7, s2, 3')
        a('s_and_b32 s7, s7, 31')
        a(f's_lshl_b32 s5, s{S_XCC}, 18')
        a('s_lshl_b32 s6, s7, 13')
        a('s_add_u32 s5, s5, s6')
        a(f'buffer_load_dword v31, v6, {S4(SRD_A)}, s5 offen')
        a.vm = []
        a('v_and_b32 v7, 7, v1')
        a('v_bfe_u32 v8, v1, 3, 1')
        a('v_mul_u32_u24 v8, 3072, v8')
        a('v_lshl_add_u32 v8, v2, 10, v8')
        a('v_lshl_add_u32 v8, v7, 7, v8')
        a('v_and_b32 v7, 3, v7')
        a('v_lshlrev_b32 v7, 1, v7')
        a('s_mul_i32 s7, s7, 6144')
        a('s_mov_b32 exec_lo, -1')
        a('s_mov_b32 exec_hi, 0xffff')
        for tau in range(OPT.get('ntau', 3)):
            a(f'v_add_u32 v9, {tau}, v7')
            a('v_and_b32 v9, 7, v9')
            a(f'v_mov_b32 v10, {64*3072}')
            a('v_mad_u32_u24 v9, v9, v10, v8')
            a(f'buffer_load_dword v31, v9, {S4(SB_QKV)}, s7 offen')
            a.vm = []
        a('s_mov_b64 exec, -1')
        npt += 1 + OPT.get('ntau', 3)
    if pt & 64:
        a('s_lshr_b32 s7, s2, 3')
        a('s_and_b32 s7, s7, 31')
        a(f's_lshl_b32 s5, s{S_XCC}, 18')
        a('s_lshl_b32 s6, s7, 13')
        a('s_add_u32 s5, s5, s6')
        a(f'buffer_load_dword v31, v6, {S4(SRD_A)}, s5 offen')
        a.vm = []
        a('s_mul_i32 s7, s2, 6144')
        a('s_mov_b32 exec_hi, 0xffff')
        a(f'buffer_load_dword v31, v6, {S4(SB_QKV)}, s7 offen')
        a.vm = []
        a('s_mov_b64 exec, -1')
        npt += 2
    if pt & 1:
        late_touch(a, 6)
        npt += 4
    if pt & 4:
        a('s_mov_b64 exec, 1')
        a('s_lshl_b32 s7, s2, 11')
        for sb in (SB_WO, SB_WG, SB_WU, SB_WD):
            a(f'buffer_load_dword v31, v6, {S4(sb)}, s7 offen')
            a.vm = []
        a('s_mov_b64 exec, -1')
        npt += 4
    a(f's_waitcnt vmcnt({npt})')
    if OPT.get('dbg2'):
        TS['role'] = 'W0'
        for k in range(npt, -1, -1):
            a(f's_waitcnt vmcnt({k})')
            ts(a, f'w{k}', True)
        TS['role'] = 'all'
    a('v_readfirstlane_b32 s5, v5')
    a(f's_add_u32 s{S_VID}, s4, s5')
    a('s_cmp_lt_u32 s5, 32')
    a('s_cbranch_scc1 L_tk_ok')
    a(f's_mov_b32 s84, {SPIN}')
    a.flush_hazards()
    a.label('L_tk_wait')
    load_counters(a, 'tk', True)
    a('s_cmp_ge_u32 s85, 256')
    a('s_cbranch_scc1 L_tk_all')
    a('s_sub_u32 s84, s84, 1')
    a('s_cbranch_scc1 L_tk_all')
    a('s_sleep 2')
    a('s_branch L_tk_wait')
    a.label('L_tk_all')
    a('s_sub_u32 s5, s5, 32')
    for i in range(7):
        a(f's_max_u32 s6, s{86+i}, 32')
        a('s_sub_u32 s6, s6, 32')
        a(f's_cmp_gt_u32 s{S_XCC}, {i}')
        a('s_cselect_b32 s6, s6, 0')
        a('s_add_u32 s5, s5, s6')
    a(f's_mov_b32 s{S_VID}, 0')
    a('s_mov_b32 s7, 0')
    for i in range(8):
        a(f's_min_u32 s6, s{86+i}, 32')
        a('s_sub_u32 s8, 32, s6')
        a(f's_add_u32 s6, s6, {32*i}')
        a('s_add_u32 s6, s6, s5')
        a('s_cmp_lt_u32 s5, s8')
        a('s_cselect_b32 s10, 1, 0')
        a('s_andn2_b32 s10, s10, s7')
        a('s_or_b32 s7, s7, s10')
        a('s_cmp_lg_u32 s10, 0')
        a(f's_cselect_b32 s{S_VID}, s6, s{S_VID}')
        a('s_sub_u32 s5, s5, s8')
    a.label('L_tk_ok')
    a(f'v_mov_b32 v4, {VIDL}')
    a(f'v_mov_b32 v5, s{S_VID}')
    a('ds_write_b32 v4, v5')
    a('s_waitcnt lgkmcnt(0)')
    a('s_branch L_eT')
    a.fresh()
    a.label('L_e1')
    a('s_cmp_eq_u32 s3, 1')
    a('s_cbranch_scc0 L_eT')
    a('s_cmp_lt_u32 s2, 16')
    a('s_cbranch_scc0 L_eT')
    for i in range(4): a(f'v_mov_b32 v{4+i}, 0')
    a('v_lshlrev_b32 v8, 4, v1')
    a('s_lshl_b32 s4, s2, 11')
    for L in range(2):
        a(f's_add_u32 s5, s4, {WS_KV + L*65536}')
        for i in range(2):
            a(f'buffer_store_dwordx4 v[4:7], v8, {S4(SRD_W)}, s5 offen offset:{i*KB} sc1')
    a('s_lshl_b32 s4, s2, 7')
    a('s_mov_b64 exec, 0xff')
    for L in range(2):
        a(f's_add_u32 s5, s4, {WS_KV + L*65536 + 32768}')
        a(f'buffer_store_dwordx4 v[4:7], v8, {S4(SRD_W)}, s5 offen sc1')
    a('s_mul_i32 s4, s2, 1152')
    a(f's_add_u32 s4, s4, {WS_SYNC}')
    a(f'buffer_store_dwordx4 v[4:7], v8, {S4(SRD_W)}, s4 offen offset:1024 sc1')
    a('s_mov_b64 exec, -1')
    a(f'buffer_store_dwordx4 v[4:7], v8, {S4(SRD_W)}, s4 offen sc1')
    if not OPT.get('lateinit', 1): init_flag(a)
    a('s_mov_b64 exec, -1')
    a.label('L_eT')
    a.fresh()
    a('s_nop 4')
    a('s_barrier')
    a(f'v_mov_b32 v4, {VIDL}')
    a('ds_read_b32 v5, v4')
    a('s_waitcnt lgkmcnt(0)')
    a(f'v_readfirstlane_b32 s{S_VID}, v5')
    a(f's_lshr_b32 s{S_TEAM}, s{S_VID}, 4')
    a(f's_and_b32 s{S_MEM}, s{S_VID}, 15')
    ts(a, 'T')
    a('s_cmp_lt_u32 s3, 4')
    a('s_cbranch_scc1 L_comp')
    a('s_cmp_lt_u32 s3, 6')
    a('s_cbranch_scc1 L_aload')


def bloader(a, phases, bars):
    TS['role'] = 'B'
    a('s_and_b32 s4, s3, 1')
    if OPT.get('btouch', 0):
        srd(a, SRD_A, S_PTR + 8, 512 * 2752)
        srd(a, SRD_B, S_PTR + 10, 512 * 2752)
    a(f's_cmp_eq_u32 s{S_MEM}, 15')
    a(f's_cselect_b32 s{SB_WG+2}, 0, s{SB_WG+2}')
    a(f's_cselect_b32 s{SB_WU+2}, 0, s{SB_WU+2}')
    a('v_bfe_u32 v4, v1, 2, 2')
    a('v_bfe_u32 v5, v1, 1, 1')
    a('v_and_b32 v6, 1, v2')
    a('v_xor_b32 v5, v5, v6')
    a('v_and_b32 v6, 1, v1')
    a('v_lshlrev_b32 v5, 5, v5')
    a('v_lshl_add_u32 v5, v6, 4, v5')
    a('v_lshl_add_u32 v6, v2, 3, v4')
    a('v_lshl_add_u32 v7, v2, 2, v4')
    done = set()
    for p in phases:
        if p.vB in done: continue
        done.add(p.vB)
        hstep = 16 if p.bmap == 'F' else 4
        if p.ph == 1: a(f's_lshl_b32 s9, s{S_MEM}, 6'); n, step = 3, 1024
        elif p.ph == 3: a(f's_mul_i32 s9, s{S_MEM}, 192'); n, step = 3, 64
        else:
            a(f's_and_b32 s9, s{S_MEM}, 7'); a('s_lshl_b32 s9, s9, 7'); n, step = 2, 64
        a(f's_mul_i32 s10, s4, {hstep*p.rowB}')
        a('s_add_u32 s10, s10, s9')
        a(f'v_mul_u32_u24 v8, {p.rowB}, v{7 if p.bmap == "F" else 6}')
        a(f'v_add3_u32 v{p.vB}, v8, v5, s10')
        for i in range(1, n):
            a(f'v_add_u32 v{p.vB+i}, {i*step}, v{p.vB}')
        if p is phases[0]:
            pass
    a('s_lshl_b32 s11, s4, 10')
    chunks = []
    pos = 0
    streams = []
    for p in phases:
        if p.ph == 1 and OPT.get('qlate', 1):
            streams.append(dict(name=p.name, p=p, pieces=[(p.vB + 1, SB_QKV), (p.vB + 2, SB_QKV)], uk=2, n=8, sB=4 * KB, al=8 * KB,
                                pub=lambda c, p=p: bars.index((p.name, 'P', c)), fr=lambda c, p=p: bars.index((p.name, 'P', c)) + 1))
            streams.append(dict(name=p.name + 'q', p=p, pieces=[(p.vB, SB_QKV)], uk=4, n=4, sB=2 * KB, al=8 * KB,
                                pub=lambda c, p=p: bars.index((p.name, 'E', 0)), fr=lambda c, p=p: bars.index((p.name, 'F', 0))))
            continue
        uk = 1 if (p.ph == 4 and OPT.get('half4', 1)) else 2
        if p.ph == 3: pcs = [(p.vB + i, sb) for i in range(3) for sb in (SB_WG, SB_WU)]
        else: pcs = [(p.vB + i, {1: SB_QKV, 2: SB_WO, 4: SB_WD}[p.ph]) for i in range(p.PB // 2)]
        streams.append(dict(name=p.name, p=p, pieces=pcs, uk=uk, n=p.NC * 2 // uk, sB=p.sB,
                            al=2 * p.cB if (p.ph == 4 or (p.ph == 2 and OPT.get('qlate', 1))) else p.cB,
                            pub=lambda c, p=p, uk=uk: bars.index((p.name, 'P', c * uk // 2)),
                            fr=lambda c, p=p, uk=uk: bars.index((p.name, 'P', c * uk // 2)) + p.lag))
    for st in streams:
        al = st['al']
        pos = (pos + al - 1) // al * al
        if pos >= RB_SZ: pos = 0
        if st['name'] == 's2l1' and not OPT.get('qlate', 1): pos = 72 * KB
        st['b0'] = pos
        if st['name'].endswith('q'): st['p'].b0q = pos
        else: st['p'].b0 = pos
        for c in range(st['n']):
            chunks.append(dict(p=st, c=c, off=pos, sz=st['uk'] * st['sB'], pub=st['pub'](c), fr=st['fr'](c)))
            pos += st['uk'] * st['sB']
            if pos >= RB_SZ: pos = 0
    for i, q in enumerate(chunks):
        e = 0
        for q2 in chunks[:i]:
            if q2['off'] < q['off'] + q['sz'] and q['off'] < q2['off'] + q2['sz']:
                e = max(e, q2['fr'])
        q['e'] = e
    maxahead = OPT.get('bahead', RB_SZ)
    steps = []
    nxt = 0
    issued = []
    last = max(q['pub'] for q in chunks)
    for j in range(1, last + 1):
        iss = []
        while nxt < len(chunks) and chunks[nxt]['e'] <= j - 1:
            ahead = sum(chunks[k]['sz'] for k, _ in issued if k >= 0 and chunks[k]['pub'] >= j)
            if ahead + chunks[nxt]['sz'] > maxahead and chunks[nxt]['pub'] > j: break
            cap = OPT.get('b0n', 3) if j == 1 else OPT.get('bcap', 2)
            q = chunks[nxt]
            if q['p']['uk'] == 1:
                cap *= 2
                if bars[j][0] == q['p']['name'] and bars[j][1] == 'P' and bars[j][2] >= 2 and q['pub'] > j + OPT.get('h4m', 3): cap = 1
            bj = bars[j]
            key = bj[0][:2] + bj[1] + (str(bj[2]) if bj[1] == 'P' else '')
            if j > 1 and key in OPT.get('quiet', ()): cap = 0
            if OPT.get('wolate', 1) and q['p']['name'][:2] == 's2' and bj[0][:2] == 's1':
                cap = 99 if bj[1] in 'FG' else 0
            if len(iss) >= cap and chunks[nxt]['pub'] > j + 1: break
            iss.append((q['p']['name'], q['c'] == 0))
            issued.append((nxt, len(q['p']['pieces']) * q['p']['uk']))
            nxt += 1
        for tk, (tkey, tn) in OPT.get('l2t', {}).items():
            bj = bars[j]
            if tkey == bj[0][:2] + bj[1] + (str(bj[2]) if bj[1] == 'P' else '') and not (tk[0] == 'q' and bj[0][3] == '1'):
                iss.append(('T' + tk, True))
                issued.append((-1, tn))
        w = None
        for k, (ci, n) in enumerate(issued):
            if ci >= 0 and chunks[ci]['pub'] == j:
                w = min(63, sum(x[1] for x in issued[k+1:]))
        if any(q['pub'] == j for q in chunks): assert w is not None, ('chunk not issued in time', j, bars[j])
        steps.append((tuple(iss), w, bars[j]))
    byname = {p.name: p for p in phases}
    bystream = {st['name']: st for st in streams}
    for tk, (tkey, tn) in OPT.get('l2t', {}).items(): bystream['T' + tk] = (tk, tn)

    def l2touch(tk, tn):
        if tk[0] == 'g':
            f0 = int(tk[1:])
            a(f's_mul_i32 s53, s{S_MEM}, 192')
            a('s_mul_i32 s54, s4, 188')
            a('s_add_u32 s53, s53, s54')
            a(f's_and_b32 s54, s{S_TEAM}, 1')
            a('s_lshl_b32 s54, s54, 2')
            a(f's_add_u32 s54, s54, s{S_MEM}')
            a('s_lshl_b32 s54, s54, 5')
            a('v_mov_b32 v33, 2752')
            for i in range(f0, f0 + tn):
                if i % 2 == 0 or i == f0:
                    a(f's_add_u32 s55, s54, {256 + 64*(i//2)}')
                    a('v_add_u32 v32, s55, v1')
                    a('v_and_b32 v32, 511, v32')
                    a('v_mul_u32_u24 v32, v32, v33')
                a(f'buffer_load_dword v31, v32, {S4(SB_WU if i % 2 else SB_WG)}, s53 offen')
                a.vm = []
        else:
            f0 = int(tk[1:])
            per = {'d': 44032, 'q': 49152}[tk[0]]
            a(f's_and_b32 s53, s{S_VID}, 31')
            a(f's_mul_i32 s53, s53, {per}')
            a('s_lshl_b32 s54, s4, 13')
            a('s_add_u32 s53, s53, s54')
            a('v_lshlrev_b32 v32, 7, v1')
            for i in range(f0, f0 + tn):
                a(f's_add_u32 s55, s53, {i*16384}')
                a(f'buffer_load_dword v31, v32, {S4(SB_WD if tk[0] == "d" else SB_QKV)}, s55 offen')
                a.vm = []

    byname['TOUCH'] = None

    def btouch():
        a('s_lshr_b32 s53, s2, 3')
        a('s_and_b32 s53, s53, 31')
        a('s_mul_i32 s53, s53, 6144')
        a('s_mul_i32 s54, s4, 3072')
        a('s_add_u32 s53, s53, s54')
        a('v_and_b32 v30, 7, v1')
        a('v_lshrrev_b32 v31, 3, v1')
        a('v_lshlrev_b32 v31, 10, v31')
        a('v_lshl_add_u32 v31, v30, 7, v31')
        a('v_and_b32 v30, 3, v30')
        a('v_lshlrev_b32 v30, 1, v30')
        a(f'v_mov_b32 v33, {64*3072}')
        a('s_mov_b64 exec, 0xffffff')
        for tau in range(OPT.get('ntau', 3), 8):
            a(f'v_add_u32 v32, {tau}, v30')
            a('v_and_b32 v32, 7, v32')
            a('v_mad_u32_u24 v32, v32, v33, v31')
            a(f'buffer_load_dword v31, v32, {S4(SB_QKV)}, s53 offen')
            a.vm = []
        a('s_mov_b64 exec, -1')
        a('v_lshlrev_b32 v30, 8, v1')
        a('s_lshl_b32 s55, s4, 7')
        a('s_mul_i32 s53, s2, 5504')
        a('s_add_u32 s53, s53, s55')
        a('s_lshl_b32 s54, s2, 11')
        a('s_add_u32 s54, s54, s55')
        a('s_mov_b64 exec, 0xff')
        a(f'buffer_load_dword v31, v30, {S4(SB_WO)}, s54 offen')
        a.vm = []
        a('s_mov_b64 exec, 0x3fffff')
        for sb in (SRD_A, SRD_B, SB_WD):
            a(f'buffer_load_dword v31, v30, {S4(sb)}, s53 offen')
            a.vm = []
        a('s_mov_b64 exec, -1')

    def issue(st, first):
        if isinstance(st, tuple): return l2touch(*st)
        p = st['p']
        if first:
            phase_map(a, p)
            a(f's_mul_i32 s7, s14, {p.strideB}')
            a(f's_add_u32 s5, s11, {st["b0"]}')
        for kk in range(st['uk']):
            for i, (vr, sb) in enumerate(st['pieces']):
                a(f's_add_u32 m0, s5, {kk*st["sB"] + 2*i*KB}')
                nt = st['name'] in OPT.get('bnt', ()) or (sb == SB_WU and 'wu' in OPT.get('bnt', ()))
                a(f'buffer_load_dwordx4 v{vr}, {S4(sb)}, s7 offen {OPT.get("bntm", "nt") if nt else ""} lds')
            a(f's_add_u32 s7, s7, {p.strideB}')
            a(f's_cmp_eq_u32 s7, {2*p.NC*p.strideB}')
            a('s_cselect_b32 s7, 0, s7')
        a(f's_add_u32 s5, s5, {st["uk"]*st["sB"]}')
        a(f's_cmp_ge_u32 s5, {RB_SZ}')
        a('s_cselect_b32 s5, s11, s5')

    def emit_iss(iss, tag):
        k = 0
        while k < len(iss):
            m = k
            while m < len(iss) and iss[m] == iss[k]: m += 1
            n = m - k
            if n >= 3 and not iss[k][1]:
                a(f's_mov_b32 s8, {n}')
                a.flush_hazards()
                a.loop_begin(f'L_bi_{tag}_{k}')
                issue(bystream[iss[k][0]], False)
                a('s_sub_u32 s8, s8, 1')
                a('s_cmp_lg_u32 s8, 0')
                a(f's_cbranch_scc1 L_bi_{tag}_{k}')
                a.loop_end_check()
            else:
                for x in iss[k:m]: issue(bystream[x[0]], x[1])
            k = m

    i = 0
    while i < len(steps):
        m = i
        while m < len(steps) and steps[m][:2] == steps[i][:2] and not (TS['on'] and m > i and steps[m][2][1] != 'P'): m += 1
        n = m - i
        iss, w, bar = steps[i]
        if TS['on'] and bar[1] != 'P': n = 1; m = i + 1
        if n >= 2 and len(iss) <= 2:
            a(f's_mov_b32 s9, {n}')
            a.flush_hazards()
            a.loop_begin(f'L_bs_{i}')
            for x in iss: issue(bystream[x[0]], x[1])
            if w is not None: a(f's_waitcnt vmcnt({w})')
            tsl(a, byname[bar[0]], 'pre')
            a('s_barrier')
            a('s_sub_u32 s9, s9, 1')
            a('s_cmp_lg_u32 s9, 0')
            a(f's_cbranch_scc1 L_bs_{i}')
            a.loop_end_check()
            i = m
        else:
            emit_iss(iss, i)
            if w is not None: a(f's_waitcnt vmcnt({w})')
            if bar[1] != 'P' or bar[2] == 0: ts(a, f'{bar[0]}.pre{bar[1]}')
            else: tsl(a, byname[bar[0]], 'pre')
            a('s_barrier')
            i += 1
        a.vm = []
    ts_flush(a)
    a('s_endpgm')
    a.fresh()
    return steps


def aloader(a, phases):
    TS['role'] = 'A'
    a.label('L_aload')
    a('s_and_b32 s4, s3, 1')
    a('v_mov_b32 v40, 1')
    a(f's_lshl_b32 s5, s{S_MEM}, 2')
    a('v_mov_b32 v41, s5')
    a('v_lshlrev_b32 v42, 2, v1')
    a(f's_and_b32 s5, s{S_VID}, 31')
    a('s_lshl_b32 s5, s5, 2')
    a('v_mov_b32 v43, s5')
    a(f's_lshr_b32 s5, s{S_VID}, 5')
    a('s_lshl_b32 s5, s5, 2')
    a('v_lshl_add_u32 v48, v1, 7, s5')
    a('v_lshlrev_b32 v16, 4, v1')
    a('v_lshrrev_b32 v4, 3, v1')
    a('v_and_b32 v5, 7, v1')
    a(f'v_mul_u32_u24 v4, {43*KB}, v4')
    a('v_lshl_add_u32 v49, v5, 7, v4')
    a('v_lshlrev_b32 v50, 7, v1')
    a('v_and_b32 v4, 3, v1')
    a('v_lshlrev_b32 v4, 6, v4')
    a('v_and_b32 v5, 60, v1')
    a('v_add_u32 v55, v4, v5')
    ksync = 0
    for pi, p in enumerate(phases):
        nA = p.RT // 2
        per2 = 2 * nA
        NC, DC = p.NC, p.DC
        assert p.NCH >= DC + p.lag and (DC - 1) * per2 <= 63
        phase_map(a, p)
        if p.ph == 1:
            a('s_lshl_b32 s8, s12, 17')
            if p.L: a(f's_add_u32 s8, s8, {WS_X2}')
        elif p.ph == 3:
            a('s_lshl_b32 s8, s12, 17')
            a(f's_add_u32 s8, s8, {WS_X1[p.L]}')
        else:
            a(f's_mul_i32 s8, s12, {4*p.KSA*KB}')
            a(f's_add_u32 s8, s8, {WS_PQ[p.L] if p.ph == 2 else WS_H[p.L]}')
        if p.amode == 'F':
            a(f's_mul_i32 s10, s4, {p.KSA*KB}')
            a('s_add_u32 s10, s10, s8')
            a('v_lshl_add_u32 v8, v1, 4, s10')
            astep = 2 * p.KSA * KB
        else:
            a('v_lshrrev_b32 v4, 2, v1')
            a('v_and_b32 v5, 3, v1')
            a('v_sub_u32 v6, 4, v2')
            a('v_and_b32 v6, 3, v6')
            a('v_xor_b32 v5, v5, v6')
            a('v_lshlrev_b32 v4, 10, v4')
            a('v_lshl_add_u32 v8, v5, 4, v4')
            a('s_lshl_b32 s10, s4, 14')
            a('s_add_u32 s10, s10, s8')
            a('v_add_u32 v8, s10, v8')
            astep = 2 * 16 * KB
        for i in range(1, nA):
            a(f'v_add_u32 v{8+i}, {i*astep}, v8')
        a(f's_mul_i32 s6, s14, {p.strideA}')
        a('s_lshl_b32 s10, s4, 10')
        a(f's_add_u32 s10, s10, {RA0}')
        a('s_mov_b32 s5, s10')
        a(f's_add_u32 s11, s10, {p.NCH*p.cA}')
        a('s_mov_b32 s9, 0')
        spec = stouch_setup(a, p, 4, 2)
        if pi == 1: srd(a, SRD_A, S_WS, WS_BYTES)
        if p.ph == 3:
            a(f's_cmp_eq_u32 s{S_MEM}, 15')
            a(f's_cselect_b32 s{SRD_A+2}, 0, s{SRD_A+2}')
        if p.ph == 4:
            a(f's_mov_b32 s{SRD_A+2}, {WS_BYTES}')
        if p.stats:
            a('s_lshl_b32 s7, s12, 1')
            a('s_add_u32 s7, s7, s4')
            a('s_lshl_b32 s7, s7, 12')
            a(f's_add_u32 s7, s7, {WS_ST1[p.L] if p.ph == 3 else WS_ST2}')
        if pi > 0:
            prev = phases[pi - 1]
            kinds = ['t']
            if prev.ph == 1: kinds = ['g', 't'] if OPT.get('qlate', 1) else ['g']
            for kind in kinds:
                glob = (kind == 'g')
                tag = p.name + kind
                if glob:
                    a(f's_lshr_b32 s15, s{S_VID}, 5')
                    a('s_lshl_b32 s15, s15, 7')
                    a(f's_add_u32 s15, s15, {WS_SYNC + 14336 + prev.L*2048}')
                    a(f's_add_u32 s97, s15, 1024')
                else:
                    a(f's_lshl_b32 s15, s{S_TEAM}, 7')
                    a(f's_add_u32 s15, s15, {WS_SYNC + ksync*2048}')
                    ksync += 1
                ts(a, prev.name + '.preE' + kind)
                a('s_barrier')
                ts(a, prev.name + '.E' + kind)
                a('s_cmp_eq_u32 s3, 4')
                a(f's_cbranch_scc0 L_ns_{tag}')
                a.begin_opt()
                a('s_mov_b64 exec, 1')
                a(f's_cmp_eq_u32 s{S_HET}, 0')
                a(f's_cbranch_scc1 L_hom_{tag}')
                a.raw('    buffer_wbl2 sc1')
                a('s_waitcnt vmcnt(0)')
                vo = 43 if glob else 41
                a(f'buffer_store_dword v40, v{vo}, {S4(SRD_W)}, s15 offen sc1')
                a(f's_branch L_sg_{tag}')
                a.label(f'L_hom_{tag}')
                a(f'buffer_store_dword v40, v{vo}, {S4(SRD_W)}, s15 offen')
                a.label(f'L_sg_{tag}')
                a('s_mov_b64 exec, -1')
                if glob:
                    a(f's_and_b32 s85, s{S_VID}, 31')
                    a('s_cmp_eq_u32 s85, 0')
                    a(f's_cbranch_scc0 L_ns_{tag}')
                    poll(a, 'g' + tag, 44, 1, 42, f'{S4(SRD_W)}, s15', 0xffffffff)
                    a(f's_mov_b32 s85, {WS_SYNC + 14336 + prev.L*2048 + 1024}')
                    a('s_mov_b64 exec, 0xff')
                    a(f'buffer_store_dword v40, v48, {S4(SRD_W)}, s85 offen sc1')
                    a('s_mov_b64 exec, -1')
                a.end_opt()
                a.label(f'L_ns_{tag}')
                a.vm = []
                if glob: poll(a, tag, 44, 1, 42, f'{S4(SRD_W)}, s97', 0xff)
                else: poll(a, tag, 44, 1, 42, f'{S4(SRD_W)}, s15', 0xffff)
                ts(a, p.name + '.flag' + kind)
                if glob: a('s_barrier')
        if p.stats:
            for t in range(4):
                a(f'buffer_load_dwordx4 {R(20+4*t)}, v16, {S4(SRD_W)}, s7 offen offset:{t*KB} sc1')
            if p.st2:
                a(f's_add_u32 s7, s7, {128*KB}')
                for t in range(4):
                    a(f'buffer_load_dwordx4 {R(56+4*t)}, v16, {S4(SRD_W)}, s7 offen offset:{t*KB} sc1')
            if OPT.get('dbg1') and OPT.get('tsp') == p.name:
                tsl(a, p, 'iss')
                a('s_waitcnt vmcnt(0)')
                tsl(a, p, 'stl')
                a(f's_add_u32 m0, s5, 0')
                a(f'buffer_load_dwordx4 v8, {S4(SRD_A)}, s6 offen lds')
                a('s_waitcnt vmcnt(0)')
                tsl(a, p, 'a1')
                a(f'buffer_load_dwordx4 v9, {S4(SRD_A)}, s6 offen lds')
                a('s_waitcnt vmcnt(0)')
                tsl(a, p, 'a2')
        a.flush_hazards()
        a.loop_begin(f'L_li_{p.name}')
        if p.amode == 'R' and OPT.get('evenrot', 1):
            for i in range(nA):
                for kk in range(2):
                    a(f's_add_u32 m0, s5, {kk*p.sA + i*2*KB - kk*64}')
                    a(f'buffer_load_dwordx4 v{8+i}, {S4(SRD_A)}, s6 offen offset:{kk*64} lds')
            a(f's_add_u32 s6, s6, {2*p.strideA}')
            a(f's_cmp_eq_u32 s6, {2*NC*p.strideA}')
            a('s_cselect_b32 s6, 0, s6')
        for kk in range(0 if (p.amode == 'R' and OPT.get('evenrot', 1)) else 2):
            sa = 's6'
            if p.padk:
                a(f's_cmp_eq_u32 s6, {p.NKreal*p.strideA}')
                a(f's_cselect_b32 s8, 0x10000000, s6')
                sa = 's8'
            for i in range(nA):
                a(f's_add_u32 m0, s5, {kk*p.sA + i*2*KB}')
                a(f'buffer_load_dwordx4 v{8+i}, {S4(SRD_A)}, {sa} offen {OPT.get("amod", "")} lds')
            a(f's_add_u32 s6, s6, {p.strideA}')
            a(f's_cmp_eq_u32 s6, {2*NC*p.strideA}')
            a('s_cselect_b32 s6, 0, s6')
        a(f's_add_u32 s5, s5, {p.cA}')
        a('s_cmp_eq_u32 s5, s11')
        a('s_cselect_b32 s5, s10, s5')
        a('s_add_u32 s9, s9, 1')
        apro = p.lag if OPT.get('apro', 0) & (1 << pi) else 0
        assert (DC + apro - 1) * per2 <= 63
        a(f's_cmp_lt_u32 s9, {DC + apro}')
        a(f's_cbranch_scc1 L_li_{p.name}')
        if apro:
            a(f's_cmp_eq_u32 s9, {DC+apro}')
            a(f's_cbranch_scc0 L_lp_{p.name}')
            for x in range(apro):
                a(f's_waitcnt vmcnt({(DC+apro-1-x)*per2})')
                tsl(a, p, 'pre')
                a('s_barrier')
            a.label(f'L_lp_{p.name}')
        stouch(a, spec, 9)
        a(f's_waitcnt vmcnt({(DC-1)*per2})')
        tsl(a, p, 'pre')
        a('s_barrier')
        a(f's_cmp_lt_u32 s9, {NC}')
        a(f's_cbranch_scc1 L_li_{p.name}')
        a.loop_end_check()
        a.vm = []
        nt = 0
        vt = OPT.get('vtouch', 7)
        if p.name == 's1l0' and vt & 1:
            a(f's_mul_i32 s53, s12, {8*43*KB}')
            a('s_lshl_b32 s54, s13, 10')
            a('s_add_u32 s53, s53, s54')
            a(f's_add_u32 s53, s53, {WS_PQ[0]}')
            a(f's_lshl_b32 s54, s{S_VID}, 13')
            a(f's_add_u32 s54, s54, {WS_X1[0]}')
            a('s_cmp_eq_u32 s4, 0')
            a('s_cselect_b32 s53, s53, s54')
            a('s_cselect_b64 vcc, -1, 0')
            a('v_cndmask_b32 v51, v50, v49, vcc')
            a(f'buffer_load_dword v52, v51, {S4(SRD_W)}, s53 offen sc1')
            a(f's_lshl_b32 s54, s{S_VID}, 9')
            a(f's_add_u32 s54, s54, {WS_ST1[0]}')
            a('s_lshl_b32 s53, s4, 17')
            a('s_add_u32 s54, s54, s53')
            a('s_mov_b64 exec, 15')
            a(f'buffer_load_dword v53, v50, {S4(SRD_W)}, s54 offen sc1')
            a('s_mov_b64 exec, -1')
            nt = 2
        if pi == 0:
            a(f'buffer_load_dword v54, v42, {S4(SRD_M)}, 0 offen sc1')
            nt += 1
        if p.name == 's1l0' and OPT.get('pretouch', 65) & 8:
            a('s_cmp_eq_u32 s4, 0')
            a('s_cselect_b32 s%d, s%d, 0' % (SB_WO + 2, SB_WO + 2))
            a('s_cselect_b32 s%d, s%d, 0' % (SB_WG + 2, SB_WG + 2))
            a('s_cselect_b32 s%d, 0, s%d' % (SB_WU + 2, SB_WU + 2))
            a('s_cselect_b32 s%d, 0, s%d' % (SB_WD + 2, SB_WD + 2))
            late_touch(a, 50)
            nt += 4
        if p.ph == 3 and vt & (2 << p.L):
            a(f's_mul_i32 s53, s12, {8*43*KB}')
            a(f's_mul_i32 s54, s13, {3*KB}')
            a('s_add_u32 s53, s53, s54')
            a(f's_add_u32 s53, s53, {WS_H[p.L]}')
            a('s_lshl_b32 s54, s4, 10')
            a('s_add_u32 s54, s54, s53')
            a(f'buffer_load_dword v52, v49, {S4(SRD_W)}, s54 offen sc1')
            a('s_cmp_eq_u32 s4, 0')
            a('s_cselect_b32 exec_lo, -1, 0')
            a('s_cselect_b32 exec_hi, 0, -1')
            a(f'buffer_load_dword v53, v49, {S4(SRD_W)}, s53 offen offset:2048 sc1')
            a('s_mov_b64 exec, -1')
            nt = 2
        a.vm = []
        if p.stats:
            if p.st2:
                for t in range(8):
                    a(pk('v_pk_add_f32', 20 + 2 * t, 20 + 2 * t, 56 + 2 * t))
            for t in range(4):
                a(pk('v_pk_add_f32', 20 + 4 * t, 20 + 4 * t, 22 + 4 * t))
            a('v_and_b32 v17, 1, v1')
            a('v_cmp_eq_u32 vcc, 1, v17')
            for t in range(4):
                for e in range(2):
                    r = 20 + 4 * t + e
                    a(f'v_add_f32_dpp v{r}, v{r}, v{r} quad_perm:[1,0,3,2] row_mask:0xf bank_mask:0xf')
            for h in range(2):
                for e in range(2):
                    a(f'v_cndmask_b32 v{20+8*h+e}, v{20+8*h+e}, v{24+8*h+e}, vcc')

            def stats2():
                a('v_and_b32 v17, 2, v1')
                a('v_cmp_eq_u32 vcc, 2, v17')
                for h in range(2):
                    for e in range(2):
                        r = 20 + 8 * h + e
                        a(f'v_add_f32_dpp v{r}, v{r}, v{r} quad_perm:[2,3,0,1] row_mask:0xf bank_mask:0xf')
                for e in range(2):
                    a(f'v_cndmask_b32 v{20+e}, v{20+e}, v{28+e}, vcc')
                stats_finish(a, 20, 21, 22, 23, 17)
                a('s_lshl_b32 s8, s4, 8')
                a(f's_add_u32 s8, s8, {p.STB}')
                a('v_add_u32 v18, s8, v55')
                a(f'ds_write_b32 v18, v22')
                a(f'ds_write_b32 v18, v23 offset:512')
                a('s_waitcnt lgkmcnt(0)')
        for r in range(1, DC):
            if spec and max(x[1] for x in spec) + 1 >= NC - DC + 1 + r:
                a('s_add_u32 s9, s9, 1')
                stouch(a, spec, 9)
            a(f's_waitcnt vmcnt({(DC-1-r)*per2 + nt})')
            tsl(a, p, 'pre')
            a('s_barrier')
        a.vm = []
        if p.final: break
        if p.stats: stats2()
        a('s_barrier')
        if pi == 0:
            a(f's_mov_b32 s84, {SPIN}')
            a('s_mov_b32 s52, 0x06060606')
            a('s_mov_b32 s53, 0x06060606')
            a(f's_lshr_b32 s94, s{S_TEAM}, 1')
            a('s_lshl_b32 s94, s94, 3')
            a('s_waitcnt vmcnt(0)')
            a('s_branch L_het1')
            a.label('L_het')
            a('s_sleep 2')
            a(f'buffer_load_dword v54, v42, {S4(SRD_M)}, 0 offen sc1')
            a('s_waitcnt vmcnt(0)')
            a.label('L_het1')
            a('s_sub_u32 s84, s84, 1')
            a(f's_mov_b32 s{S_HET}, 1')
            a('s_cbranch_scc1 L_het_done')
            a('v_cmp_eq_u32 vcc, 0, v54')
            a('v_readlane_b32 s95, v54, s94')
            a('s_nop 0')
            a('s_and_b64 s[54:55], vcc, s[52:53]')
            a('s_cbranch_scc1 L_het')
            if not OPT.get('fakexcc', 0):
                a(f's_mov_b32 s{S_HET}, 0')
                a('s_cmp_ge_u32 s95, 32')
                a('s_cbranch_scc1 L_het_done')
                a(f's_mov_b32 s{S_HET}, 1')
                for i in range(8):
                    a(f'v_readlane_b32 s{86+i}, v54, {8*i}')
                a('s_add_u32 s85, s86, s87')
                for i in range(2, 8):
                    a(f's_add_u32 s85, s85, s{86+i}')
                a('s_cmp_ge_u32 s85, 256')
                a('s_cbranch_scc0 L_het')
            a.label('L_het_done')
            a.vm = []
        for _ in range(p.nX): a('s_barrier')
    ts_flush(a)
    a('s_endpgm')
    a.fresh()


def comp_s1(a, p):
    name = p.name; L = p.L
    STB = p.STB
    ZB = SCR + 8 * KB
    first = (L == 0)
    KVB = WS_KV + L * 65536
    ACQ, ACK, ACV = 64, 80, 96
    SS, SG, CS = 112, 120, 128
    FR = 152
    ONES = 216
    fixed = [8, 9, 10]; cur = [11, 12, 13]
    vX, vW0, vW1 = cur
    vKVa, vZa, vT, vDb = 17, 18, 20, 21
    phase_map(a, p)
    a('s_lshl_b32 s4, s3, 11')
    a(f's_add_u32 s4, s4, {RA0}')
    xbase(a, 8, 4, p.amode)
    wpat(a, 9, 10)
    a('s_lshl_b32 s5, s13, 11')
    a('s_lshl_b32 s6, s3, 9')
    a('s_add_u32 s5, s5, s6')
    a(f's_add_u32 s5, s5, {KVB}')
    a(f'v_lshl_add_u32 v{vKVa}, v1, 2, s5')
    a('s_lshl_b32 s5, s13, 7')
    a(f's_add_u32 s5, s5, {KVB + 32768}')
    a(f'v_lshl_add_u32 v{vZa}, v1, 2, s5')
    a('v_lshlrev_b32 v14, 4, v2')
    a(f'v_add_u32 v14, {CS1L}, v14')
    a('v_lshlrev_b32 v15, 2, v3')
    a(f'v_add_u32 v15, {CS1L}, v15')
    if first:
        a('v_lshrrev_b32 v4, 1, v1')
        a('v_and_b32 v5, 1, v1')
        a('v_lshlrev_b32 v4, 5, v4')
        a('v_lshl_add_u32 v4, v5, 2, v4')
        a(f'v_add_u32 v{vDb}, 4, v4')
    a('s_lshl_b32 s7, s12, 3')
    a('s_lshl_b32 s5, s3, 1')
    a('s_add_u32 s7, s7, s5')
    a('s_mul_i32 s7, s7, 43')
    a('s_add_u32 s7, s7, s13')
    a('s_lshl_b32 s7, s7, 10')
    a(f's_add_u32 s7, s7, {WS_PQ[L]}')
    if OPT.get('otouch', 0):
        a('v_lshrrev_b32 v4, 3, v1')
        a('v_and_b32 v5, 7, v1')
        a(f'v_mul_u32_u24 v4, {43*KB}, v4')
        a('v_lshl_add_u32 v252, v5, 7, v4')
        p.touch = ['s_mov_b64 exec, 0xffff', f'buffer_load_dword v254, v252, {S4(SRD_W)}, s7 offen sc1', 's_mov_b64 exec, -1']
    for i in range(4): a(f'v_mov_b32 v{ONES+i}, 0x3f803f80')
    for r in range(64, 152 if first else 112): a(f'v_mov_b32 v{r}, 0')
    if first and OPT.get('lateinit', 1):
        a('s_cmp_eq_u32 s3, 1')
        a('s_cbranch_scc0 L_noif')
        a('s_cmp_lt_u32 s2, 16')
        a('s_cbranch_scc0 L_noif')
        a.begin_opt()
        init_flag(a)
        a.end_opt()
        a.label('L_noif')
        a.vm = []
    if first and OPT.get('pretouch', 65) & 16:
        a('v_lshlrev_b32 v22, 7, v1')
        p.touch = ['LATE']

    def fx(s, t): return FR + 32 * s + 4 * t
    def fw(s, q, u): return FR + 32 * s + 8 + 4 * (2 * q + u)

    def reads(s, kk):
        l = [rd128(fx(s, 0), vX, kk * p.sA), rd128(fx(s, 1), vX, kk * p.sA + KB)]
        for q in range(3):
            for u in range(2):
                for h in range(2):
                    l.append(rdtr(fw(s, q, u) + 2 * h, vW1 if u else vW0, kk * p.sB + (2 * q + h) * KB))
        return l

    def mfmas(s):
        l = []
        if first:
            for t in range(2):
                l.append(f'{MF} {R(SS+4*t)}, {R(ONES)}, {R(fx(s,t))}, {R(SS+4*t)}')
                l.append(f'{MF} {R(SG+4*t)}, {R(fx(s,t))}, {R(fx(s,t))}, {R(SG+4*t)}')
        for u in range(2):
            for t in range(2):
                d = ACQ + 8 * t + 4 * u
                l.append(f'{MF} {R(d)}, {R(fw(s,0,u))}, {R(fx(s,t))}, {R(d)}')
            if first:
                l.append(f'{MF} {R(CS+4*u)}, {R(fw(s,0,u))}, {R(ONES)}, {R(CS+4*u)}')
        for q, AC in ((1, ACK), (2, ACV)):
            for u in range(2):
                for t in range(2):
                    d = AC + 8 * u + 4 * t
                    l.append(f'{MF} {R(d)}, {R(fx(s,t))}, {R(fw(s,q,u))}, {R(d)}')
                if first:
                    l.append(f'{MF} {R(CS+8*q+4*u)}, {R(ONES)}, {R(fw(s,q,u))}, {R(CS+8*q+4*u)}')
        return l

    loop_big(a, p, fixed, cur, reads, mfmas, per=1 if first else 2)
    MEAN, RSTD = 32, 34
    MT, RT_, RTL = 36, 44, 52
    a('s_lshl_b32 s4, s3, 7')
    a(f's_add_u32 s4, s4, {STB}')
    a(f'v_lshl_add_u32 v6, v3, 2, s4')
    a(f'v_lshl_add_u32 v7, v2, 4, s4')
    if first:
        a('v_and_b32 v4, 3, v3')
        a('v_cmp_eq_u32 s[52:53], 1, v4')
        a('v_cmp_eq_u32 s[54:55], 2, v4')
        a('v_cmp_eq_u32 s[56:57], 3, v4')
        a('v_lshrrev_b32 v4, 2, v3')
        a('v_cmp_eq_u32 vcc, v4, v2')
        for t in range(2):
            a(f'v_cndmask_b32 v{SG+4*t}, v{SG+4*t}, v{SG+4*t+1}, s[52:53]')
            a(f'v_cndmask_b32 v{SG+4*t}, v{SG+4*t}, v{SG+4*t+2}, s[54:55]')
            a(f'v_cndmask_b32 v{SG+4*t}, v{SG+4*t}, v{SG+4*t+3}, s[56:57]')
        for t in range(2):
            stats_finish(a, SS + 4 * t, SG + 4 * t, MEAN + t, RSTD + t, 4 + t)
        a('s_mov_b64 exec, vcc')
        for t in range(2):
            a(f'ds_write_b32 v6, v{MEAN+t} offset:{64*t}')
            a(f'ds_write_b32 v6, v{RSTD+t} offset:{512+64*t}')
        a('s_mov_b64 exec, -1')
        for u in range(2):
            a(f'ds_write_b128 v14, {R(CS+4*u)} offset:{64*u}')
            a(f'ds_write_b32 v15, v{CS+8+4*u} offset:{128+64*u}')
            a(f'ds_write_b32 v15, v{CS+16+4*u} offset:{256+64*u}')
        a('s_waitcnt lgkmcnt(0)')
    else:
        for u in range(2):
            a(f'ds_read_b32 v{CS+8+4*u}, v15 offset:{128+64*u}')
            a(f'ds_read_b32 v{CS+16+4*u}, v15 offset:{256+64*u}')
    for t in range(2):
        a(f'ds_read_b128 {R(MT+4*t)}, v7 offset:{64*t}')
        a(f'ds_read_b128 {R(RT_+4*t)}, v7 offset:{512+64*t}')
    for t in range(2):
        a(f'ds_read_b32 v{MEAN+t}, v6 offset:{64*t}')
        a(f'ds_read_b32 v{RSTD+t}, v6 offset:{512+64*t}')
    if not first:
        for u in range(2):
            a(f'ds_read_b128 {R(CS+4*u)}, v14 offset:{64*u}')
    CONE, CEPS, CL2E = 60, 61, 62
    a(f'v_mov_b32 v{CONE}, 1.0')
    a(f'v_mov_b32 v{CEPS}, {hex(f2u(1e-6))}')
    a(f'v_mov_b32 v{CL2E}, {hex(f2u(LOG2E))}')
    RFL = 24
    for i in range(0, 8, 2):
        a(pk('v_pk_mul_f32', RTL + i, RT_ + i, CL2E, b1=0))
    T = FR

    def phi_pairs(items):
        for i, (ac, m, cs, r, rl, dst) in enumerate(items):
            a(pk('v_pk_fma_f32', ac, m[0], cs[0], ac, b0=m[1], b1=cs[1], neg0=True))
        for i, (ac, m, cs, r, rl, dst) in enumerate(items):
            a(pk('v_pk_mul_f32', T + 2 * i, ac, rl[0], b1=rl[1]))
        for i, (ac, m, cs, r, rl, dst) in enumerate(items):
            a(f'v_exp_f32 v{T+2*i}, v{T+2*i} clamp')
            a(f'v_exp_f32 v{T+2*i+1}, v{T+2*i+1} clamp')
            a(pk('v_pk_fma_f32', ac, ac, r[0], CONE, b1=r[1], b2=0))
        for i, (ac, m, cs, r, rl, dst) in enumerate(items):
            a(f'v_max_f32 v{ac}, v{ac}, v{T+2*i}')
            a(f'v_max_f32 v{ac+1}, v{ac+1}, v{T+2*i+1}')
        for i, (ac, m, cs, r, rl, dst) in enumerate(items):
            a(pk('v_pk_add_f32', ac, ac, CEPS, b1=0))
        for i, (ac, m, cs, r, rl, dst) in enumerate(items):
            a(f'v_cvt_pk_bf16_f32 v{dst}, v{ac}, v{ac+1}')

    PK_, PV, PQ = FR + 16, FR + 24, FR + 32
    items = []
    for u in range(2):
        for t in range(2):
            for hh in range(2):
                items.append((ACK + 8 * u + 4 * t + 2 * hh, (MT + 4 * t + 2 * hh, None), (CS + 8 + 4 * u, 0),
                              (RT_ + 4 * t + 2 * hh, None), (RTL + 4 * t + 2 * hh, None), PK_ + 4 * u + 2 * t + hh))
    phi_pairs(items)
    vi = [(u, t, hh) for u in range(2) for t in range(2) for hh in range(2)]
    for u, t, hh in vi:
        ac = ACV + 8 * u + 4 * t + 2 * hh
        a(pk('v_pk_fma_f32', ac, MT + 4 * t + 2 * hh, CS + 16 + 4 * u, ac, b1=0, neg0=True))
    for u, t, hh in vi:
        ac = ACV + 8 * u + 4 * t + 2 * hh
        a(pk('v_pk_mul_f32', ac, ac, RT_ + 4 * t + 2 * hh))
    for u, t, hh in vi:
        ac = ACV + 8 * u + 4 * t + 2 * hh
        a(f'v_cvt_pk_bf16_f32 v{PV+4*u+2*t+hh}, v{ac}, v{ac+1}')
    KD, ZD = FR + 40, FR + 48
    for u in range(2):
        a(f'{MF} {R(KD+4*u)}, {R(PK_+4*u)}, {R(PV+4*u)}, 0')
        a(f'{MF} {R(ZD+4*u)}, {R(PK_+4*u)}, {R(ONES)}, 0')
    for t in range(2):
        a(f'v_mul_f32 v{RFL+t}, v{CL2E}, v{RSTD+t}')
    a('s_lshl_b32 s4, s3, 11')
    a(f's_add_u32 s4, s4, {SCR}')
    a(f'v_lshl_add_u32 v6, v1, 4, s4')
    a('s_lshl_b32 s4, s3, 7')
    a(f's_add_u32 s4, s4, {ZB}')
    a(f'v_lshl_add_u32 v7, v2, 4, s4')
    for u in range(2):
        a(f'ds_write_b128 v6, {R(KD+4*u)} offset:{u*KB}')
    a('s_mov_b32 exec_lo, 0x00010001')
    a('s_mov_b32 exec_hi, 0x00010001')
    for u in range(2):
        a(f'ds_write_b128 v7, {R(ZD+4*u)} offset:{u*64}')
    a('s_mov_b64 exec, -1')
    a('s_lshl_b32 s4, s3, 9')
    a(f's_add_u32 s4, s4, {SCR}')
    a(f'v_lshl_add_u32 v6, v1, 2, s4')
    a(f'v_and_b32 v7, 31, v1')
    a(f'v_lshlrev_b32 v7, 2, v7')
    a(f'v_add_u32 v7, {ZB}, v7')
    if first:
        a('s_cmp_eq_u32 s3, 0')
        a(f's_cbranch_scc0 L_go_{name}')
        sv = list(a.lds)
        poll(a, 'init', vT, 1, vDb, f'{S4(SRD_M)}, 0', 0xffff)
        a.label(f'L_go_{name}')
    a('s_waitcnt lgkmcnt(0)')
    a('s_barrier')
    RD = FR + 40
    for i in range(2):
        for w in range(4):
            a(f'ds_read_b32 v{RD+4*i+w}, v6 offset:{w*2048+i*256}')
    for w in range(4):
        a(f'ds_read_b32 v{RD+8+w}, v7 offset:{w*128}')
    items = []
    for t in range(2):
        for u in range(2):
            for hh in range(2):
                items.append((ACQ + 8 * t + 4 * u + 2 * hh, (MEAN + t, 0), (CS + 4 * u + 2 * hh, None),
                              (RSTD + t, 0), (RFL + t, 0), PQ + 4 * t + 2 * u + hh))
    for i in range(3):
        a(f'v_add_f32 v{RD+4*i}, v{RD+4*i}, v{RD+4*i+1}')
        a(f'v_add_f32 v{RD+4*i+2}, v{RD+4*i+2}, v{RD+4*i+3}')
    for i in range(3):
        a(f'v_add_f32 v{RD+4*i}, v{RD+4*i}, v{RD+4*i+2}')
    for i in range(2):
        a(f'buffer_atomic_add_f32 v{RD+4*i}, v{vKVa}, {S4(SRD_W)}, 0 offen offset:{i*256}')
    a('s_cmp_eq_u32 s3, 0')
    a(f's_cbranch_scc0 L_nz_{name}')
    a.begin_opt()
    a('s_mov_b32 exec_hi, 0')
    a(f'buffer_atomic_add_f32 v{RD+8}, v{vZa}, {S4(SRD_W)}, 0 offen')
    a('s_mov_b64 exec, -1')
    a.end_opt()
    a.label(f'L_nz_{name}')
    a.vm = []
    phi_pairs(items[:4])
    a(f's_add_u32 s5, s7, {43*KB}')
    a('v_lshlrev_b32 v6, 4, v1')
    a(f'buffer_store_dwordx4 {R(PQ)}, v6, {S4(SRD_W)}, s7 offen {stmod()}')
    phi_pairs(items[4:])
    a(f'buffer_store_dwordx4 {R(PQ+4)}, v6, {S4(SRD_W)}, s5 offen {stmod()}')
    end_phase(a, p)


def comp_s1q(a, p):
    name = p.name; L = p.L
    STB = p.STB
    ZB = SCR + 8 * KB
    CSX = RA0
    first = (L == 0)
    KVB = WS_KV + L * 65536
    ONES = 24
    MEAN, RSTD = 28, 26 + 64 + 4
    ACK, ACV, BF = 32, 48, 64
    SS, SG, CS = 96, 104, 112
    AF = 128
    vKVa, vZa, vT, vDb = 17, 18, 20, 21
    phase_map(a, p)
    a('s_lshl_b32 s4, s3, 11')
    a(f's_add_u32 s4, s4, {RA0}')
    xbase(a, 8, 4, p.amode)
    wpat(a, 9, 10)
    a(f'v_add_u32 v11, {48*KB}, v9')
    a(f'v_add_u32 v12, {48*KB}, v10')
    a('s_lshl_b32 s10, s13, 11')
    a(f's_add_u32 s10, s10, {KVB}')
    a('s_lshl_b32 s6, s3, 9')
    a('s_add_u32 s5, s10, s6')
    a(f'v_lshl_add_u32 v{vKVa}, v1, 2, s5')
    a('s_lshl_b32 s11, s13, 7')
    a(f's_add_u32 s11, s11, {KVB + 32768}')
    a(f'v_lshl_add_u32 v{vZa}, v1, 2, s11')
    a('v_lshlrev_b32 v14, 4, v2')
    a(f'v_add_u32 v14, {CS1L}, v14')
    a('v_lshlrev_b32 v15, 2, v3')
    a(f'v_add_u32 v15, {CS1L}, v15')
    if first:
        a('v_lshrrev_b32 v4, 1, v1')
        a('v_and_b32 v5, 1, v1')
        a('v_lshlrev_b32 v4, 5, v4')
        a('v_lshl_add_u32 v4, v5, 2, v4')
        a(f'v_add_u32 v{vDb}, 4, v4')
    a('s_lshl_b32 s7, s12, 3')
    a('s_lshl_b32 s5, s3, 1')
    a('s_add_u32 s7, s7, s5')
    a('s_mul_i32 s7, s7, 43')
    a('s_add_u32 s7, s7, s13')
    a('s_lshl_b32 s7, s7, 10')
    a(f's_add_u32 s7, s7, {WS_PQ[L]}')
    for i in range(4): a(f'v_mov_b32 v{ONES+i}, 0x3f803f80')
    if first:
        for r in range(CS, CS + 16): a(f'v_mov_b32 v{r}, 0')
        a('s_cmp_eq_u32 s3, 1')
        a('s_cbranch_scc0 L_noif')
        a('s_cmp_lt_u32 s2, 16')
        a('s_cbranch_scc0 L_noif')
        a.begin_opt()
        init_flag(a)
        a.end_opt()
        a.label('L_noif')
        a.vm = []

    def af(ks, t): return AF + 8 * ks + 4 * t
    def fw(ks, q, u): return BF + 16 * (ks & 1) + 8 * q + 4 * u
    def wr(dst, u, pos):
        pos %= RB_SZ
        return rdtr(dst, (9 + u) if pos < 48 * KB else (11 + u), pos if pos < 48 * KB else pos - 48 * KB)

    def reads(ks):
        oa = ((ks >> 1) % 3) * p.cA + (ks & 1) * p.sA
        l = [rd128(af(ks, 0), 8, oa)]
        for q in range(2):
            for u in range(2):
                for h in range(2):
                    l.append(wr(fw(ks, q, u) + 2 * h, u, p.b0 + ks * 4 * KB + (2 * q + h) * KB))
                if q == 0 and u == 0: l.append(rd128(af(ks, 1), 8, oa + KB))
        return l

    def mfmas(ks):
        l = []
        def c(d): return R(d) if ks else '0'
        for q, AC in ((0, ACK), (1, ACV)):
            for u in range(2):
                for t in range(2):
                    d = AC + 8 * u + 4 * t
                    l.append(f'{MF} {R(d)}, {R(af(ks,t))}, {R(fw(ks,q,u))}, {c(d)}')
            if first:
                t = q
                l.append(f'{MF} {R(SS+4*t)}, {R(ONES)}, {R(af(ks,t))}, {c(SS+4*t)}')
                l.append(f'{MF} {R(SG+4*t)}, {R(af(ks,t))}, {R(af(ks,t))}, {c(SG+4*t)}')
        if first:
            def csblk():
                lab = f'L_cs{ks}_{name}'
                a(f's_cmp_eq_u32 s3, {ks & 3}')
                a(f's_cbranch_scc0 {lab}')
                a.begin_opt()
                for q in range(2):
                    for u in range(2):
                        d = CS + 8 * q + 4 * u
                        a(f'{MF} {R(d)}, {R(ONES)}, {R(fw(ks,q,u))}, {R(d)}')
                a.end_opt()
                a.label(lab)
            l.append(csblk)
        return l

    ts(a, name + '.preP0')
    a('s_barrier')
    ts(a, name + '.P0')
    for t in reads(0): a(t)
    per = 1 if first else 2
    for c in range(8):
        interleave(a, mfmas(2 * c), reads(2 * c + 1), per=per)
        a.wait_lds_all()
        tsl(a, p, 'pre')
        a('s_barrier')
        tsl(a, p, 'post')
        interleave(a, mfmas(2 * c + 1), reads(2 * c + 2) if c < 7 else [], per=per)
    ts(a, name + '.loopend')
    MT, RT_, RTL = 64, 72, 80
    CONE, CEPS, CL2E = 88, 89, 90
    RFL = 92
    T = 96
    CK = [CS, CS + 4]; CV = [CS + 8, CS + 12]
    a('s_lshl_b32 s4, s3, 7')
    a(f's_add_u32 s4, s4, {STB}')
    a(f'v_lshl_add_u32 v6, v3, 2, s4')
    a(f'v_lshl_add_u32 v7, v2, 4, s4')
    if first:
        a('s_lshl_b32 s5, s3, 2')
        a(f's_add_u32 s5, s5, {CSX}')
        a('v_lshl_add_u32 v13, v3, 4, s5')
        a('v_and_b32 v4, 3, v3')
        a('v_cmp_eq_u32 s[52:53], 1, v4')
        a('v_cmp_eq_u32 s[54:55], 2, v4')
        a('v_cmp_eq_u32 s[56:57], 3, v4')
        a('v_lshrrev_b32 v4, 2, v3')
        a('v_cmp_eq_u32 vcc, v4, v2')
        for i in range(4):
            a(f'ds_write_b32 v13, v{CS+4*i} offset:{256*i}')
        for t in range(2):
            a(f'v_cndmask_b32 v{SG+4*t}, v{SG+4*t}, v{SG+4*t+1}, s[52:53]')
            a(f'v_cndmask_b32 v{SG+4*t}, v{SG+4*t}, v{SG+4*t+2}, s[54:55]')
            a(f'v_cndmask_b32 v{SG+4*t}, v{SG+4*t}, v{SG+4*t+3}, s[56:57]')
        for t in range(2):
            stats_finish(a, SS + 4 * t, SG + 4 * t, MEAN + t, RSTD + t, 4 + t)
        a('s_mov_b64 exec, vcc')
        for t in range(2):
            a(f'ds_write_b32 v6, v{MEAN+t} offset:{64*t}')
            a(f'ds_write_b32 v6, v{RSTD+t} offset:{512+64*t}')
        a('s_mov_b64 exec, -1')
        a('v_lshlrev_b32 v13, 4, v3')
        a(f'v_add_u32 v13, {CSX}, v13')
        a('s_waitcnt lgkmcnt(0)')
        a('s_barrier')
        for i in range(4):
            a(f'ds_read_b128 {R(CS+4*i)}, v13 offset:{256*i}')
    else:
        for u in range(2):
            a(f'ds_read_b32 v{CK[u]}, v15 offset:{128+64*u}')
            a(f'ds_read_b32 v{CV[u]}, v15 offset:{256+64*u}')
    for t in range(2):
        a(f'ds_read_b128 {R(MT+4*t)}, v7 offset:{64*t}')
        a(f'ds_read_b128 {R(RT_+4*t)}, v7 offset:{512+64*t}')
    for t in range(2):
        a(f'ds_read_b32 v{MEAN+t}, v6 offset:{64*t}')
        a(f'ds_read_b32 v{RSTD+t}, v6 offset:{512+64*t}')
    a(f'v_mov_b32 v{CONE}, 1.0')
    a(f'v_mov_b32 v{CEPS}, {hex(f2u(1e-6))}')
    a(f'v_mov_b32 v{CL2E}, {hex(f2u(LOG2E))}')
    if first:
        for i in range(4):
            a(pk('v_pk_add_f32', CS + 4 * i, CS + 4 * i, CS + 4 * i + 2))
        for i in range(4):
            a(f'v_add_f32 v{CS+4*i}, v{CS+4*i}, v{CS+4*i+1}')
        for u in range(2):
            a(f'ds_write_b32 v15, v{CK[u]} offset:{128+64*u}')
            a(f'ds_write_b32 v15, v{CV[u]} offset:{256+64*u}')
    for i in range(0, 8, 2):
        a(pk('v_pk_mul_f32', RTL + i, RT_ + i, CL2E, b1=0))

    def phi_pairs(items, T):
        for i, (ac, m, cs, r, rl, dst) in enumerate(items):
            a(pk('v_pk_fma_f32', ac, m[0], cs[0], ac, b0=m[1], b1=cs[1], neg0=True))
        for i, (ac, m, cs, r, rl, dst) in enumerate(items):
            a(pk('v_pk_mul_f32', T + 2 * i, ac, rl[0], b1=rl[1]))
        for i, (ac, m, cs, r, rl, dst) in enumerate(items):
            a(f'v_exp_f32 v{T+2*i}, v{T+2*i} clamp')
            a(f'v_exp_f32 v{T+2*i+1}, v{T+2*i+1} clamp')
            a(pk('v_pk_fma_f32', ac, ac, r[0], CONE, b1=r[1], b2=0))
        for i, (ac, m, cs, r, rl, dst) in enumerate(items):
            a(f'v_max_f32 v{ac}, v{ac}, v{T+2*i}')
            a(f'v_max_f32 v{ac+1}, v{ac+1}, v{T+2*i+1}')
        for i, (ac, m, cs, r, rl, dst) in enumerate(items):
            a(pk('v_pk_add_f32', ac, ac, CEPS, b1=0))
        for i, (ac, m, cs, r, rl, dst) in enumerate(items):
            a(f'v_cvt_pk_bf16_f32 v{dst}, v{ac}, v{ac+1}')

    PK_, PV = ACK, ACV
    vi = [(u, t, hh) for u in range(2) for t in range(2) for hh in range(2)]
    phi_pairs([(ACK + 8 * u + 4 * t + 2 * hh, (MT + 4 * t + 2 * hh, None), (CK[u], 0), (RT_ + 4 * t + 2 * hh, None),
                (RTL + 4 * t + 2 * hh, None), PK_ + 4 * u + 2 * t + hh) for u, t, hh in vi], T)
    for u, t, hh in vi:
        ac = ACV + 8 * u + 4 * t + 2 * hh
        a(pk('v_pk_fma_f32', ac, MT + 4 * t + 2 * hh, CV[u], ac, b1=0, neg0=True))
    for u, t, hh in vi:
        ac = ACV + 8 * u + 4 * t + 2 * hh
        a(pk('v_pk_mul_f32', ac, ac, RT_ + 4 * t + 2 * hh))
    for u, t, hh in vi:
        ac = ACV + 8 * u + 4 * t + 2 * hh
        a(f'v_cvt_pk_bf16_f32 v{PV+4*u+2*t+hh}, v{ac}, v{ac+1}')
    KD, ZD = T, T + 8
    for u in range(2):
        a(f'{MF} {R(KD+4*u)}, {R(PK_+4*u)}, {R(PV+4*u)}, 0')
        a(f'{MF} {R(ZD+4*u)}, {R(PK_+4*u)}, {R(ONES)}, 0')
    for t in range(2):
        a(f'v_mul_f32 v{RFL+t}, v{CL2E}, v{RSTD+t}')
    a('s_lshl_b32 s4, s3, 11')
    a(f's_add_u32 s4, s4, {SCR}')
    a(f'v_lshl_add_u32 v6, v1, 4, s4')
    a('s_lshl_b32 s4, s3, 7')
    a(f's_add_u32 s4, s4, {ZB}')
    a(f'v_lshl_add_u32 v7, v2, 4, s4')
    for u in range(2):
        a(f'ds_write_b128 v6, {R(KD+4*u)} offset:{u*KB}')
    a('s_mov_b32 exec_lo, 0x00010001')
    a('s_mov_b32 exec_hi, 0x00010001')
    for u in range(2):
        a(f'ds_write_b128 v7, {R(ZD+4*u)} offset:{u*64}')
    a('s_mov_b64 exec, -1')
    a('s_lshl_b32 s4, s3, 9')
    a(f's_add_u32 s4, s4, {SCR}')
    a(f'v_lshl_add_u32 v6, v1, 2, s4')
    a(f'v_and_b32 v7, 31, v1')
    a(f'v_lshlrev_b32 v7, 2, v7')
    a(f'v_add_u32 v7, {ZB}, v7')
    a('s_waitcnt lgkmcnt(0)')
    a('s_barrier')
    RD = 112
    for i in range(2):
        for w in range(4):
            a(f'ds_read_b32 v{RD+4*i+w}, v6 offset:{w*2048+i*256}')
    for w in range(4):
        a(f'ds_read_b32 v{RD+8+w}, v7 offset:{w*128}')
    for i in range(3):
        a(f'v_add_f32 v{RD+4*i}, v{RD+4*i}, v{RD+4*i+1}')
        a(f'v_add_f32 v{RD+4*i+2}, v{RD+4*i+2}, v{RD+4*i+3}')
    for i in range(3):
        a(f'v_add_f32 v{RD+4*i}, v{RD+4*i}, v{RD+4*i+2}')
    for i in range(2):
        a(f'buffer_atomic_add_f32 v{RD+4*i}, v{vKVa}, {S4(SRD_W)}, 0 offen offset:{i*256}')
    a('s_cmp_eq_u32 s3, 0')
    a(f's_cbranch_scc0 L_nz_{name}')
    a.begin_opt()
    a('s_mov_b32 exec_hi, 0')
    a(f'buffer_atomic_add_f32 v{RD+8}, v{vZa}, {S4(SRD_W)}, 0 offen')
    a('s_mov_b64 exec, -1')
    a.end_opt()
    a.label(f'L_nz_{name}')
    end_phase(a, p)
    ACQ, CQ = 32, 96
    def fq(ks, u): return BF + 8 * (ks & 1) + 4 * u
    def qreads(ks):
        return [wr(fq(ks, u) + 2 * h, u, p.b0q + ks * 2 * KB + h * KB) for u in range(2) for h in range(2)]
    def qm(ks):
        l = []
        def c(d): return R(d) if ks else '0'
        for u in range(2):
            for t in range(2):
                d = ACQ + 8 * t + 4 * u
                l.append(f'{MF} {R(d)}, {R(fq(ks,u))}, {R(af(ks,t))}, {c(d)}')
            if first: l.append(f'{MF} {R(CQ+4*u)}, {R(fq(ks,u))}, {R(ONES)}, {c(CQ+4*u)}')
        return l
    for t in qreads(0): a(t)
    if not first:
        for u in range(2):
            a(f'ds_read_b128 {R(CQ+4*u)}, v14 offset:{64*u}')
    for ks in range(16):
        interleave(a, qm(ks), qreads(ks + 1) if ks < 15 else [], per=1)
    if first:
        for u in range(2):
            a(f'ds_write_b128 v14, {R(CQ+4*u)} offset:{64*u}')
    PQ = ACQ
    phi_pairs([(ACQ + 8 * t + 4 * u + 2 * hh, (MEAN + t, 0), (CQ + 4 * u + 2 * hh, None), (RSTD + t, 0), (RFL + t, 0),
                PQ + 4 * t + 2 * u + hh) for t in range(2) for u in range(2) for hh in range(2)], 64)
    KVF, ZF, EPS4, N, OF = 128, 136, 140, 144, 176
    a('v_lshlrev_b32 v6, 4, v1')
    a('v_and_b32 v4, 1, v1')
    a('v_cmp_eq_u32 vcc, 1, v4')
    a('v_lshlrev_b32 v4, 6, v4')
    a('v_lshl_add_u32 v7, v2, 4, v4')
    for i in range(4): a(f'v_mov_b32 v{EPS4+i}, {hex(f2u(1e-6))}')
    a(f's_add_u32 s5, s7, {43*KB}')
    a.wait_lds_all()
    ts(a, name + '.preF')
    a('s_barrier')
    ts(a, name + '.F')
    a(f'buffer_load_dwordx4 {R(ZF)}, v7, {S4(SRD_W)}, s11 offen')
    for u in range(2):
        a(f'buffer_load_dwordx4 {R(KVF+4*u)}, v6, {S4(SRD_W)}, s10 offen offset:{u*KB}')
    a(f'v_cvt_pk_bf16_f32 v4, v{ZF}, v{ZF+1}')
    a(f'v_cvt_pk_bf16_f32 v5, v{ZF+2}, v{ZF+3}')
    a(f'v_cndmask_b32 v{ZF}, v4, 0, vcc')
    a(f'v_cndmask_b32 v{ZF+1}, v5, 0, vcc')
    a(f'v_cndmask_b32 v{ZF+2}, 0, v4, vcc')
    a(f'v_cndmask_b32 v{ZF+3}, 0, v5, vcc')
    for t in range(2):
        a(f'{MF} {R(N+12*t+8)}, {R(ZF)}, {R(PQ+4*t)}, {R(EPS4)}')
    for i in range(4):
        a(f'v_cvt_pk_bf16_f32 v{KVF+i}, v{KVF+2*i}, v{KVF+2*i+1}')
    for t in range(2):
        for u in range(2):
            a(f'{MF16} {R(N+12*t+4*u)}, {R(KVF+2*u,2)}, {R(PQ+4*t+2*u,2)}, 0')
    for t in range(2):
        dn = N + 12 * t + 8
        a(f'v_rcp_f32 v{dn}, v{dn}')
        a(f'v_rcp_f32 v{dn+1}, v{dn+1}')
    for t in range(2):
        n = N + 12 * t; o = OF + 4 * t; dn = n + 8
        for i in range(4): a(pk('v_pk_mul_f32', n + 2 * i, n + 2 * i, dn + (i >> 1), b1=0))
        for i in range(4): a(f'v_cvt_pk_bf16_f32 v{o+i}, v{n+2*i}, v{n+2*i+1}')
        a(f'buffer_store_dwordx4 {R(o)}, v6, {S4(SRD_W)}, s{5 if t else 7} offen {stmod()}')
    ts(a, name + '.o')
    a('s_waitcnt vmcnt(0)')
    ts(a, name + '.ovm')
    a('s_barrier')
    a.vm = []


def comp_s24(a, p):
    name = p.name; L = p.L
    att = (p.ph == 2)
    KVL, ZL, OUTL = 136 * KB, 152 * KB, SCR
    final = p.final
    res_rowmajor = (att and L == 0)
    res_off = (WS_X2 if att else WS_X1[L])
    out_off = (WS_X1[L] if att else WS_X2)
    st_off = WS_ST1[L] if att else WS_ST2
    ACC = 32
    FR = 48
    SETSZ = 56
    N = 160
    OF = 184
    EPS4, ONES = 192, 196
    RES = 24
    KVT = 200
    fixed = [8, 9, 10]; cur = [11, 12, 13]
    vX, vW0, vW1 = cur
    vKV, vZ = 14, 15
    phase_map(a, p)
    a('s_lshl_b32 s15, s12, 2')
    a('s_add_u32 s15, s15, s3')
    a('v_lshlrev_b32 v16, 4, v1')
    a('s_lshl_b32 s6, s15, 4')
    a('s_lshl_b32 s5, s13, 1')
    a('s_add_u32 s6, s6, s5')
    a('s_lshl_b32 s6, s6, 10')
    a(f's_add_u32 s7, s6, {res_off}')
    a(f's_add_u32 s6, s6, {out_off}')
    a('s_lshl_b32 s8, s15, 14')
    a('s_lshl_b32 s5, s13, 7')
    a('s_add_u32 s8, s8, s5')
    if final: srd(a, SRD_M, S_PTR + 14, 2048 * 1024)
    if res_rowmajor:
        a('v_lshlrev_b32 v4, 10, v3')
        a('v_lshl_add_u32 v17, v2, 3, v4')
        for T in range(4):
            a(f'buffer_load_dwordx2 {R(RES+2*T,2)}, v17, {S4(SRD_A)}, s8 offen offset:{32*T}')
    else:
        for i in range(2):
            a(f'buffer_load_dwordx4 {R(RES+4*i)}, v16, {S4(SRD_W)}, s7 offen offset:{i*KB}')
    if OPT.get('otouch', 0) and not final:
        a('v_lshlrev_b32 v252, 7, v1')
        p.touch = ['s_lshl_b32 s4, s15, 10', f's_add_u32 s4, s4, {st_off}', 's_mov_b64 exec, 0xffff',
                   f'buffer_load_dword v254, v252, {S4(SRD_W)}, s6 offen sc1', 's_mov_b64 exec, 0xff',
                   f'buffer_load_dword v253, v252, {S4(SRD_W)}, s4 offen sc1', 's_mov_b64 exec, -1']
    a('s_lshl_b32 s4, s3, 10')
    a(f's_add_u32 s4, s4, {RA0}')
    xbase(a, 8, 4, 'F')
    wpat(a, 9, 10)
    for i in range(4): a(f'v_mov_b32 v{ONES+i}, 0x3f803f80')
    if att:
        KVB = WS_KV + L * 65536
        a('v_and_b32 v18, 31, v1')
        a('s_lshl_b32 s11, s3, 9')
        a(f's_add_u32 s11, s11, {KVB + 32768}')
        a('v_lshlrev_b32 v18, 4, v18')
        for i in range(4): a(f'v_mov_b32 v{EPS4+i}, {hex(f2u(1e-6))}')
        a(f'v_add_u32 v{vKV}, {KVL}, v16')
        a(f'v_and_b32 v4, 1, v1')
        a(f'v_lshl_add_u32 v4, v2, 1, v4')
        a(f'v_lshlrev_b32 v4, 4, v4')
        a(f'v_add_u32 v{vZ}, {ZL}, v4')
        a('v_bfe_u32 v5, v1, 2, 1')
        a('v_cmp_eq_u32 vcc, 1, v5')
        a('v_bfe_u32 v6, v1, 3, 2')
        a('s_lshl_b32 s10, s3, 2')
        a('s_add_u32 s10, s10, 16')
        a('s_sub_u32 s10, s10, s14')
        a('v_add_u32 v6, s10, v6')
        a('v_and_b32 v6, 15, v6')
        a('v_lshlrev_b32 v6, 7, v6')
        a('v_and_b32 v7, 3, v1')
        a('v_lshl_add_u32 v7, v7, 1, v5')
        a('v_lshl_add_u32 v6, v7, 4, v6')
        a(f'v_add_u32 v6, {ZL}, v6')
        a('s_lshl_b32 s4, s3, 13')
        a(f's_add_u32 s4, s4, {KVB}')
        a(f's_add_u32 s5, s4, 4096')
    for T in range(4):
        for hh in range(2):
            a(f'v_lshlrev_b32 v{ACC+4*T+2*hh}, 16, v{RES+2*T+hh}')
            a(f'v_and_b32 v{ACC+4*T+2*hh+1}, 0xffff0000, v{RES+2*T+hh}')
    if att:
        ts(a, name + '.preF')
        a('s_barrier')
        ts(a, name + '.F')
        for i in range(8):
            a(f'buffer_load_dwordx4 {R(KVT+4*i)}, v16, {S4(SRD_W)}, s{4+i//4} offen offset:{(i%4)*KB}')
        a(f'buffer_load_dwordx4 {R(N)}, v18, {S4(SRD_W)}, s11 offen')
        for i in range(4):
            for hh in range(2):
                src = KVT + 8 * i + 4 * hh
                a(f'v_cvt_pk_bf16_f32 v{KVT+8*i+2*hh}, v{src}, v{src+1}')
                a(f'v_cvt_pk_bf16_f32 v{KVT+8*i+2*hh+1}, v{src+2}, v{src+3}')
            a(f's_add_u32 s5, s10, {i}')
            a('s_and_b32 s5, s5, 15')
            a('s_lshl_b32 s5, s5, 10')
            a(f'v_add_u32 v4, s5, v{vKV}')
            a(f'ds_write_b128 v4, {R(KVT+8*i)}')
        a(f'v_cvt_pk_bf16_f32 v{N+4}, v{N}, v{N+1}')
        a(f'v_cvt_pk_bf16_f32 v{N+5}, v{N+2}, v{N+3}')
        a(f'v_cndmask_b32 v{N+8}, v{N+4}, 0, vcc')
        a(f'v_cndmask_b32 v{N+9}, v{N+5}, 0, vcc')
        a(f'v_cndmask_b32 v{N+10}, 0, v{N+4}, vcc')
        a(f'v_cndmask_b32 v{N+11}, 0, v{N+5}, vcc')
        a(f'ds_write_b128 v6, {R(N+8)}')

    def fx(s, kk): return FR + SETSZ * s + 4 * kk
    def fkv(s, kk): return FR + SETSZ * s + 8 + 4 * kk
    def fz(s, kk): return FR + SETSZ * s + 16 + 4 * kk
    def fw(s, kk, T): return FR + SETSZ * s + 24 + 16 * kk + 4 * T

    def reads(s):
        l = []
        for kk in range(2):
            l.append(rd128(fx(s, kk), vX, kk * p.sA))
            if att:
                l.append(rd128(fz(s, kk), vZ, kk * 128))
                l.append(rd128(fkv(s, kk), vKV, kk * KB))
        for kk in range(2):
            for T in range(4):
                q, u = T >> 1, T & 1
                for h in range(2):
                    l.append(rdtr(fw(s, kk, T) + 2 * h, vW1 if u else vW0, kk * p.sB + (2 * q + h) * KB))
        return l

    def adv():
        advance(a, p, fixed, cur)
        if att:
            a(f'v_add_u32 v{vKV}, {2*KB}, v{vKV}')
            a(f'v_add_u32 v{vZ}, 256, v{vZ}')

    def mainm(s, kk, xf):
        return [f'{MF} {R(ACC+4*T)}, {R(fw(s,kk,T))}, {R(xf)}, {R(ACC+4*T)}' for T in range(4)]

    def amf(s, kk):
        x, kv, z = fx(s, kk), fkv(s, kk), fz(s, kk)
        n = N + 12 * kk
        return [f'{MF} {R(n+8)}, {R(z)}, {R(x)}, {R(EPS4)}',
                f'{MF16} {R(n)}, {R(kv,2)}, {R(x,2)}, 0',
                f'{MF16} {R(n+4)}, {R(kv+2,2)}, {R(x+2,2)}, 0']

    def avalu(kk):
        n = N + 12 * kk; o = OF + 4 * kk; dn = n + 8
        return [f'v_rcp_f32 v{dn}, v{dn}', f'v_rcp_f32 v{dn+1}, v{dn+1}',
                pk('v_pk_mul_f32', n, n, dn, b1=0), pk('v_pk_mul_f32', n + 2, n + 2, dn, b1=0),
                pk('v_pk_mul_f32', n + 4, n + 4, dn + 1, b1=0), pk('v_pk_mul_f32', n + 6, n + 6, dn + 1, b1=0),
                f'v_cvt_pk_bf16_f32 v{o}, v{n}, v{n+1}', f'v_cvt_pk_bf16_f32 v{o+1}, v{n+2}, v{n+3}',
                f'v_cvt_pk_bf16_f32 v{o+2}, v{n+4}, v{n+5}', f'v_cvt_pk_bf16_f32 v{o+3}, v{n+6}, v{n+7}']

    def period(s):
        if p.lag == 1: a.wait_lds_all()
        tsl(a, p, 'pre')
        a('s_barrier')
        tsl(a, p, 'post')
        rd = reads(1 - s)
        if not att:
            interleave(a, mainm(s, 0, fx(s, 0)) + mainm(s, 1, fx(s, 1)), rd, per=3)
        elif OPT.get('s2sched', 1) == 0:
            interleave(a, amf(s, 0) + amf(s, 1), rd[:14], per=3)
            for t in avalu(0): a(t)
            interleave(a, mainm(s, 0, OF), avalu(1), per=3)
            interleave(a, mainm(s, 1, OF + 4), rd[14:], per=2)
        else:
            ops = amf(s, 0) + amf(s, 1) + avalu(0)
            m0 = mainm(s, 0, OF); v1_ = avalu(1)
            for i in range(4):
                ops.append(m0[i]); ops += v1_[3*i:3*i+3]
            ops += mainm(s, 1, OF + 4)
            def cost(t): return 16 if t.startswith(MF) else 8 if ('mfma' in t or 'rcp' in t) else 4
            tot = sum(cost(t) for t in ops)
            rc = [16 if 'b128' in r else 11 for r in rd]
            rtot = sum(rc)
            acc = 0; racc = 0; ri = 0
            for t in ops:
                a(t); acc += cost(t)
                while ri < len(rd) and racc * tot <= acc * rtot * OPT.get('s2f', 1.0):
                    a(rd[ri]); racc += rc[ri]; ri += 1
            while ri < len(rd):
                a(rd[ri]); ri += 1
        adv()

    ring_init(a, p, fixed, cur)
    a.wait_lds_all()
    ts(a, name + '.preP0')
    a('s_barrier')
    ts(a, name + '.P0')
    for t in reads(0): a(t)
    for t in p.touch: a(t)
    adv()
    a.loop_begin(f'L_ml_{name}')
    period(0)
    period(1)
    a('s_add_u32 s9, s9, 1')
    a(f's_cmp_lt_u32 s9, {p.NC//2}')
    a(f's_cbranch_scc1 L_ml_{name}')
    a.loop_end_check()
    a.wait_lds_all()
    ts(a, name + '.loopend')
    OUT = 24
    for T in range(4):
        for hh in range(2):
            a(f'v_cvt_pk_bf16_f32 v{OUT+2*T+hh}, v{ACC+4*T+2*hh}, v{ACC+4*T+2*hh+1}')
    if not final:
        SS, SG = N, N + 4
        a(f'{MF} {R(SS)}, {R(ONES)}, {R(OUT)}, 0')
        a(f'{MF} {R(SG)}, {R(OUT)}, {R(OUT)}, 0')
        a(f'{MF} {R(SS)}, {R(ONES)}, {R(OUT+4)}, {R(SS)}')
        a(f'{MF} {R(SG)}, {R(OUT+4)}, {R(OUT+4)}, {R(SG)}')
        for i in range(2):
            a(f'buffer_store_dwordx4 {R(OUT+4*i)}, v16, {S4(SRD_W)}, s6 offen offset:{i*KB} {stmod()}')
        a('s_lshl_b32 s4, s15, 10')
        a('s_lshl_b32 s5, s13, 3')
        a('s_add_u32 s4, s4, s5')
        a(f's_add_u32 s4, s4, {st_off}')
        a('v_lshlrev_b32 v5, 6, v3')
        a('v_and_b32 v6, 3, v3')
        a('v_cmp_eq_u32 s[52:53], 1, v6')
        a('v_cmp_eq_u32 s[54:55], 2, v6')
        a('v_cmp_eq_u32 s[56:57], 3, v6')
        a('v_lshrrev_b32 v6, 2, v3')
        a('v_cmp_eq_u32 vcc, v6, v2')
        a(f'v_cndmask_b32 v{SS+1}, v{SG}, v{SG+1}, s[52:53]')
        a(f'v_cndmask_b32 v{SS+1}, v{SS+1}, v{SG+2}, s[54:55]')
        a(f'v_cndmask_b32 v{SS+1}, v{SS+1}, v{SG+3}, s[56:57]')
        a('s_mov_b64 exec, vcc')
        a(f'buffer_store_dwordx2 {R(SS,2)}, v5, {S4(SRD_W)}, s4 offen {stmod()}')
        a('s_mov_b64 exec, -1')
        end_phase(a, p)
    else:
        a(f's_mul_i32 s4, s3, {16*144}')
        a(f's_add_u32 s4, s4, {OUTL}')
        a(f'v_mul_u32_u24 v4, 144, v3')
        a('v_lshl_add_u32 v4, v2, 3, v4')
        a('v_add_u32 v4, s4, v4')
        for T in range(4):
            a(f'ds_write_b64 v4, {R(OUT+2*T,2)} offset:{32*T}')
        a('v_lshrrev_b32 v5, 3, v1')
        a('v_and_b32 v6, 7, v1')
        a('v_mul_u32_u24 v7, 144, v5')
        a('v_lshl_add_u32 v7, v6, 4, v7')
        a('v_add_u32 v7, s4, v7')
        a('s_waitcnt lgkmcnt(0)')
        for i in range(2):
            a(f'ds_read_b128 {R(ACC+4*i)}, v7 offset:{i*8*144}')
        a('v_lshlrev_b32 v5, 10, v5')
        a('v_lshl_add_u32 v5, v6, 4, v5')
        a(f's_add_u32 s9, s8, {8*KB}')
        for i in range(2):
            a(f'buffer_store_dwordx4 {R(ACC+4*i)}, v5, {S4(SRD_M)}, s{8+i} offen {OPT.get("outmod", "")}')


def comp_g(a, p):
    name = p.name; L = p.L
    s2 = (p.ph == 2)
    final = p.final
    res_rowmajor = (s2 and L == 0)
    res_off = (WS_X2 if s2 else WS_X1[L])
    out_off = (WS_X1[L] if s2 else WS_X2)
    st_off = WS_ST1[L] if s2 else WS_ST2
    ACC, FR, SETSZ, N, ONES, RES = 32, 48, 32, 112, 128, 24
    fixed = [8, 9, 10]; cur = [11, 12, 13]
    vX, vW0, vW1 = cur
    assert p.b0 % (2 * p.cB) == 0 and p.NCH % 2 == 0
    phase_map(a, p)
    a('s_lshr_b32 s10, s3, 1')
    a('s_and_b32 s11, s3, 1')
    a('s_lshl_b32 s15, s12, 2')
    a('s_lshl_b32 s5, s10, 1')
    a('s_add_u32 s15, s15, s5')
    a('v_lshlrev_b32 v16, 4, v1')
    a('s_lshl_b32 s6, s15, 4')
    a('s_lshl_b32 s5, s13, 1')
    a('s_add_u32 s6, s6, s5')
    a('s_add_u32 s6, s6, s11')
    a('s_lshl_b32 s6, s6, 10')
    a(f's_add_u32 s7, s6, {res_off}')
    a(f's_add_u32 s6, s6, {out_off}')
    a('s_lshl_b32 s8, s15, 14')
    a('s_lshl_b32 s5, s13, 7')
    a('s_add_u32 s8, s8, s5')
    a('s_lshl_b32 s5, s11, 6')
    a('s_add_u32 s8, s8, s5')
    if final: srd(a, SRD_M, S_PTR + 14, 2048 * 1024)
    if res_rowmajor:
        a('v_lshlrev_b32 v4, 10, v3')
        a('v_lshl_add_u32 v17, v2, 3, v4')
        a(f's_add_u32 s5, s8, {16*KB}')
        for t in range(2):
            for u in range(2):
                a(f'buffer_load_dwordx2 {R(RES+4*t+2*u,2)}, v17, {S4(SRD_A)}, s{5 if t else 8} offen offset:{32*u}')
    else:
        a(f's_add_u32 s5, s7, {16*KB}')
        for t in range(2):
            a(f'buffer_load_dwordx4 {R(RES+4*t)}, v16, {S4(SRD_W)}, s{5 if t else 7} offen')
    a('s_lshl_b32 s4, s10, 11')
    a(f's_add_u32 s4, s4, {RA0}')
    xbase(a, 8, 4, 'F')
    wpat(a, 9, 10)
    a('s_lshl_b32 s4, s11, 11')
    a('v_add_u32 v9, s4, v9')
    a('v_add_u32 v10, s4, v10')
    if not final:
        for i in range(4): a(f'v_mov_b32 v{ONES+i}, 0x3f803f80')
    for i in range(8):
        a(f'v_lshlrev_b32 v{ACC+2*i}, 16, v{RES+i}')
        a(f'v_and_b32 v{ACC+2*i+1}, 0xffff0000, v{RES+i}')

    def fx(s, kk, t): return FR + SETSZ * s + 8 * kk + 4 * t
    def fw(s, kk, u): return FR + SETSZ * s + 16 + 8 * kk + 4 * u

    def reads(s, odd):
        l = []
        for kk in range(2):
            oa = odd * p.cA + kk * p.sA; ob = odd * p.cB + kk * p.sB
            l.append(rd128(fx(s, kk, 0), vX, oa))
            l += [rdtr(fw(s, kk, 0) + 2 * h, vW0, ob + h * KB) for h in range(2)]
            l.append(rd128(fx(s, kk, 1), vX, oa + KB))
            l += [rdtr(fw(s, kk, 1) + 2 * h, vW1, ob + h * KB) for h in range(2)]
        return l

    def mainm(s):
        return [f'{MF} {R(ACC+8*t+4*u)}, {R(fw(s,kk,u))}, {R(fx(s,kk,t))}, {R(ACC+8*t+4*u)}'
                for kk in range(2) for u in range(2) for t in range(2)]

    sadv = [f's_add_u32 s{S_RA}, s{S_RA}, {2*p.cA}', f's_cmp_eq_u32 s{S_RA}, {p.NCH*p.cA}', f's_cselect_b32 s{S_RA}, 0, s{S_RA}',
            f's_add_u32 s{S_RB}, s{S_RB}, {2*p.cB}', f's_cmp_eq_u32 s{S_RB}, {RB_SZ}', f's_cselect_b32 s{S_RB}, 0, s{S_RB}']
    vadv = [f'v_add_u32 v{cur[0]}, s{S_RA}, v{fixed[0]}'] + [f'v_add_u32 v{c}, s{S_RB}, v{f}' for f, c in zip(fixed[1:], cur[1:])]

    def period(s):
        if p.lag == 1: a.wait_lds_all()
        tsl(a, p, 'pre')
        a('s_barrier')
        tsl(a, p, 'post')
        rd = reads(1 - s, 1 - s)
        if s == 0: rd = rd + sadv + vadv
        else: rd = rd + ['s_add_u32 s9, s9, 1', f's_cmp_lt_u32 s9, {p.NC//2}']
        m = mainm(s)
        per = [2, 2, 2, 2, 2, 2, 5, 4] if s == 0 else [2, 2, 2, 2, 2, 2, 1, 1]
        ri = 0
        for mm, n in zip(m, per):
            a(mm)
            for t in rd[ri:ri+n]: a(t)
            ri += n
        assert ri == len(rd)

    ring_init(a, p, fixed, cur)
    a.wait_lds_all()
    ts(a, name + '.preP0')
    a('s_barrier')
    ts(a, name + '.P0')
    for t in reads(0, 0): a(t)
    a.loop_begin(f'L_ml_{name}')
    period(0)
    period(1)
    a(f's_cbranch_scc1 L_ml_{name}')
    a.loop_end_check()
    a.wait_lds_all()
    ts(a, name + '.loopend')
    OUT = 24
    for i in range(8):
        a(f'v_cvt_pk_bf16_f32 v{OUT+i}, v{ACC+2*i}, v{ACC+2*i+1}')
    if not final:
        for t in range(2):
            a(f'{MF} {R(N+8*t)}, {R(ONES)}, {R(OUT+4*t)}, 0')
            a(f'{MF} {R(N+8*t+4)}, {R(OUT+4*t)}, {R(OUT+4*t)}, 0')
        a(f's_add_u32 s5, s6, {16*KB}')
        for t in range(2):
            a(f'buffer_store_dwordx4 {R(OUT+4*t)}, v16, {S4(SRD_W)}, s{5 if t else 6} offen {stmod()}')
        a('s_lshl_b32 s4, s15, 10')
        a('s_lshl_b32 s5, s13, 3')
        a('s_add_u32 s4, s4, s5')
        a('s_lshl_b32 s5, s11, 17')
        a('s_add_u32 s4, s4, s5')
        a(f's_add_u32 s4, s4, {st_off}')
        a('v_lshlrev_b32 v5, 6, v3')
        a('v_and_b32 v6, 3, v3')
        a('v_cmp_eq_u32 s[52:53], 1, v6')
        a('v_cmp_eq_u32 s[54:55], 2, v6')
        a('v_cmp_eq_u32 s[56:57], 3, v6')
        a('v_lshrrev_b32 v6, 2, v3')
        a('v_cmp_eq_u32 vcc, v6, v2')
        for t in range(2):
            SS, SG = N + 8 * t, N + 8 * t + 4
            a(f'v_cndmask_b32 v{SS+1}, v{SG}, v{SG+1}, s[52:53]')
            a(f'v_cndmask_b32 v{SS+1}, v{SS+1}, v{SG+2}, s[54:55]')
            a(f'v_cndmask_b32 v{SS+1}, v{SS+1}, v{SG+3}, s[56:57]')
        a('s_mov_b64 exec, vcc')
        for t in range(2):
            a(f'buffer_store_dwordx2 {R(N+8*t,2)}, v5, {S4(SRD_W)}, s4 offen offset:{t*KB} {stmod()}')
        a('s_mov_b64 exec, -1')
        end_phase(a, p)
    else:
        a(f's_mul_i32 s4, s3, {32*80}')
        a(f's_add_u32 s4, s4, {SCR}')
        a(f'v_mul_u32_u24 v4, 80, v3')
        a('v_lshl_add_u32 v4, v2, 3, v4')
        a('v_add_u32 v4, s4, v4')
        for t in range(2):
            for u in range(2):
                a(f'ds_write_b64 v4, {R(OUT+4*t+2*u,2)} offset:{t*16*80 + 32*u}')
        a('v_lshrrev_b32 v5, 2, v1')
        a('v_and_b32 v6, 3, v1')
        a('v_mul_u32_u24 v7, 80, v5')
        a('v_lshl_add_u32 v7, v6, 4, v7')
        a('v_add_u32 v7, s4, v7')
        a('s_waitcnt lgkmcnt(0)')
        for t in range(2):
            a(f'ds_read_b128 {R(ACC+4*t)}, v7 offset:{t*16*80}')
        a('v_lshlrev_b32 v5, 10, v5')
        a('v_lshl_add_u32 v5, v6, 4, v5')
        a(f's_add_u32 s9, s8, {16*KB}')
        for t in range(2):
            a(f'buffer_store_dwordx4 {R(ACC+4*t)}, v5, {S4(SRD_M)}, s{8+t} offen {OPT.get("outmod", "")}')


def comp_s3(a, p):
    name = p.name; L = p.L
    STB = p.STB
    CSX = SCR + KB
    first = (L == 0)
    ACG, ACU = 40, 88
    CS = 136
    FR = 160
    ONES = 240
    fixed = [8, 9, 10, 11]; cur = [12, 13, 14, 15]
    vX = 12; vW = 13
    MEAN, RSTD, R2 = 24, 28, 32
    phase_map(a, p)
    a('s_lshr_b32 s6, s3, 1')
    a('s_and_b32 s11, s3, 1')
    a('s_lshl_b32 s15, s12, 3')
    a('s_lshl_b32 s5, s6, 2')
    a('s_add_u32 s15, s15, s5')
    a('s_lshl_b32 s4, s6, 12')
    a(f's_add_u32 s4, s4, {RA0}')
    xbase(a, 8, 4, 'F')
    wpat(a, 9, 10)
    a('s_lshl_b32 s4, s11, 5')
    a('v_xor_b32 v11, s4, v9')
    a('v_add_u32 v11, 4096, v11')
    a('s_lshl_b32 s4, s11, 13')
    a('v_add_u32 v9, s4, v9')
    a('v_add_u32 v10, s4, v10')
    a(f's_mul_i32 s4, s15, 43')
    a(f's_mul_i32 s5, s13, 3')
    a('s_add_u32 s4, s4, s5')
    a('s_lshl_b32 s4, s4, 10')
    a(f's_add_u32 s4, s4, {WS_H[L]}')
    a('s_lshl_b32 s7, s11, 11')
    a('s_add_u32 s7, s7, s4')
    a('s_lshl_b32 s8, s11, 3')
    a('s_add_u32 s8, s8, s4')
    a('s_add_u32 s8, s8, 1024')
    a('s_cmp_ge_u32 s13, 14')
    a(f's_cselect_b32 s8, {WS_DUMP}, s8')
    a('s_cselect_b32 s5, s11, 0')
    a('s_cmp_eq_u32 s13, 15')
    a('s_cselect_b32 s5, 1, s5')
    a('s_cmp_lg_u32 s5, 0')
    a(f's_cselect_b32 s7, {WS_DUMP}, s7')
    if OPT.get('otouch', 0):
        a('v_lshrrev_b32 v4, 3, v1')
        a('v_and_b32 v5, 7, v1')
        a(f'v_mul_u32_u24 v4, {43*KB}, v4')
        a('v_lshl_add_u32 v252, v5, 7, v4')
        p.touch = ['s_mov_b32 exec_hi, 0', f'buffer_load_dword v254, v252, {S4(SRD_W)}, s7 offen sc1',
                   f'buffer_load_dword v253, v252, {S4(SRD_W)}, s8 offen sc1', 's_mov_b64 exec, -1']
    a('s_mul_i32 s4, s11, 384')
    a(f's_add_u32 s4, s4, {CS3L}')
    a('v_lshl_add_u32 v16, v2, 4, s4')
    for i in range(4): a(f'v_mov_b32 v{ONES+i}, 0x3f803f80')
    for r in range(40, 160 if first else 136): a(f'v_mov_b32 v{r}, 0')

    def fx(s, t): return FR + 40 * s + 4 * t
    def fw(s, gs, i): return FR + 40 * s + 16 + 4 * (2 * i + gs)

    def reads(s, kk):
        wl = []
        for i in range(3):
            for gs in range(2):
                for h in range(2):
                    wl.append(rdtr(fw(s, gs, i) + 2 * h, vW + i, kk * p.sB + (2 * gs + h) * KB))
        xl = [rd128(fx(s, t), vX, kk * p.sA + t * KB) for t in range(4)]
        return wl[:2] + xl + wl[2:]

    cnt = [0]

    def mfmas(s):
        l = []
        for i in range(3):
            for gs, AC in ((0, ACG), (1, ACU)):
                for t in range(4):
                    d = AC + 12 * t + 4 * i
                    l.append(f'{MF} {R(d)}, {R(fw(s,gs,i))}, {R(fx(s,t))}, {R(d)}')
        if first:
            def csblk():
                cnt[0] += 1
                lab = f'L_cs{cnt[0]}_{name}'
                a(f's_cmp_eq_u32 s6, {s}')
                a(f's_cbranch_scc0 {lab}')
                a.begin_opt()
                for i in range(3):
                    for gs in range(2):
                        d = CS + 12 * gs + 4 * i
                        a(f'{MF} {R(d)}, {R(fw(s,gs,i))}, {R(ONES)}, {R(d)}')
                a.end_opt()
                a.label(lab)
            l.append(csblk)
        return l

    loop_big(a, p, fixed, cur, reads, mfmas, per=1)
    a('s_lshl_b32 s4, s6, 8')
    a(f's_add_u32 s4, s4, {STB}')
    a(f'v_lshl_add_u32 v6, v3, 2, s4')
    for t in range(4):
        a(f'ds_read_b32 v{MEAN+t}, v6 offset:{64*t}')
        a(f'ds_read_b32 v{RSTD+t}, v6 offset:{512+64*t}')
    if first:
        a(f's_mul_i32 s4, s3, 384')
        a(f's_add_u32 s4, s4, {CSX}')
        a('v_lshl_add_u32 v4, v2, 4, s4')
        a('s_xor_b32 s5, s3, 2')
        a(f's_mul_i32 s5, s5, 384')
        a(f's_add_u32 s5, s5, {CSX}')
        a('v_lshl_add_u32 v5, v2, 4, s5')
        a('s_mov_b32 exec_lo, 0x00010001')
        a('s_mov_b32 exec_hi, 0x00010001')
        for i in range(6):
            a(f'ds_write_b128 v4, {R(CS+4*i)} offset:{64*i}')
        a('s_mov_b64 exec, -1')
        a('s_waitcnt lgkmcnt(0)')
        a('s_barrier')
        for i in range(6):
            a(f'ds_read_b128 {R(FR+4*i)}, v5 offset:{64*i}')
        for i in range(12):
            a(pk('v_pk_add_f32', CS + 2 * i, CS + 2 * i, FR + 2 * i))
        a('s_mov_b32 exec_lo, 0x00010001')
        a('s_mov_b32 exec_hi, 0x00010001')
        for i in range(6):
            a(f'ds_write_b128 v16, {R(CS+4*i)} offset:{64*i}')
        a('s_mov_b64 exec, -1')
    else:
        for i in range(6):
            a(f'ds_read_b128 {R(CS+4*i)}, v16 offset:{64*i}')
    for t in range(4):
        a(f'v_mul_f32 v{R2+t}, v{RSTD+t}, v{RSTD+t}')
    a('v_lshlrev_b32 v4, 4, v1')
    a('s_mov_b32 s5, s7')
    a('s_mov_b32 s6, s8')
    OUT = FR
    for t in range(4):
        idx = [(i, hh) for i in range(3) for hh in range(2)]
        for i, hh in idx:
            g = ACG + 12 * t + 4 * i + 2 * hh; u = ACU + 12 * t + 4 * i + 2 * hh
            a(pk('v_pk_fma_f32', g, MEAN + t, CS + 4 * i + 2 * hh, g, b0=0, neg0=True))
            a(pk('v_pk_fma_f32', u, MEAN + t, CS + 12 + 4 * i + 2 * hh, u, b0=0, neg0=True))
        for i, hh in idx:
            g = ACG + 12 * t + 4 * i + 2 * hh; u = ACU + 12 * t + 4 * i + 2 * hh
            a(f'v_max_f32 v{g}, 0, v{g}')
            a(f'v_max_f32 v{g+1}, 0, v{g+1}')
            a(pk('v_pk_mul_f32', u, u, R2 + t, b1=0))
        for i, hh in idx:
            g = ACG + 12 * t + 4 * i + 2 * hh; u = ACU + 12 * t + 4 * i + 2 * hh
            a(pk('v_pk_mul_f32', g, g, u))
        for i, hh in idx:
            g = ACG + 12 * t + 4 * i + 2 * hh
            a(f'v_cvt_pk_bf16_f32 v{OUT+8*t+2*i+hh}, v{g}, v{g+1}')
        a(f'buffer_store_dwordx4 {R(OUT+8*t)}, v4, {S4(SRD_W)}, s5 offen {stmod()}')
        a(f'buffer_store_dwordx2 {R(OUT+8*t+4,2)}, v4, {S4(SRD_W)}, s6 offen {stmod()}')
        if t < 3:
            a(f's_add_u32 s5, s5, {43*KB}')
            a(f's_add_u32 s6, s6, {43*KB}')
    a.wait_lds_all()
    end_phase(a, p)


def build(opt=None, fn=None):
    global WS_X2, WS_ST2
    o = dict(opt or {})
    OPT.clear(); OPT.update(o)
    OPT.setdefault('amod', 'sc1')
    if o.get('reuse', 1):
        WS_PQ[0] = WS_PQ[1] = WS_H[0] = WS_H[1] = 8 * MB
        WS_X1[0] = WS_X1[1] = WS_X2 = 4 * MB
        WS_ST1[0] = WS_ST1[1] = WS_ST2
    else:
        WS_PQ[0], WS_PQ[1] = 26 * MB, 32 * MB
    TS['on'] = o.get('ts', False); TS['names'] = {}
    phases = [Ph(ph, L, o) for L in range(2) for ph in (1, 2, 3, 4)]
    bars = ['T']
    for p in phases:
        ql = o.get('qlate', 1)
        if p.ph == 2 and not ql: bars.append((p.name, 'F', 0))
        for c in range(p.NC + 1): bars.append((p.name, 'P', c))
        for x in range(p.nX): bars.append((p.name, 'X', x))
        if not p.final: bars.append((p.name, 'E', 0))
        if p.ph == 1 and ql: bars += [(p.name, 'F', 0), (p.name, 'G', 0)]
    a = Asm()
    entry(a)
    hist = list(a.hist)
    steps = bloader(a, phases, bars)
    a.hist = list(hist)
    aloader(a, phases)
    a.hist = list(hist)
    TS['role'] = 'C'
    a.label('L_comp')
    for p in phases:
        {1: comp_s1q if OPT.get('qlate', 1) else comp_s1, 2: comp_g if OPT.get('qlate', 1) else comp_s24, 3: comp_s3,
         4: comp_g if OPT.get('g4', 1) else comp_s24}[p.ph](a, p)
    ts_flush(a)
    a.label('L_end')
    a('s_endpgm')
    name = 'interleave_layers__linear_attn_block__glu_gated_reglu__prompt_kernel'
    s = '; interleaved linear-attention / ReGLU layers: one persistent kernel (generated)\n'
    s += f'; @launch grid=(256,1,1) block=(512,1,1) lds={LDS_BYTES}\n'
    s += '.amdgcn_target "amdgcn-amd-amdhsa--gfx950"\n'
    s += kernel_text(name, a.text(), 256)
    if fn:
        open(fn, 'w').write(s)
        if TS['on']: json.dump(TS['names'], open(fn + '.ts.json', 'w'))
    if o.get('verbose'):
        for st in steps: print(st)
    return s


if __name__ == '__main__':
    fn = sys.argv[1]
    opt = {}
    for kv in sys.argv[2:]:
        k, v = kv.split('=', 1)
        opt[k] = eval(v)
    s = build(opt, fn=fn)
    print('bytes', len(s), 'lines', s.count('\n'))
```

```python
import sys, struct, json
from asmlib import Asm, kernel_text

KB = 1024
MB = 1 << 20
WS_PQ = [0, 2 * MB]
WS_X1 = [4 * MB, 6 * MB]
WS_H = [8 * MB, 14 * MB]
WS_X2 = 20 * MB
WS_KV = 22 * MB
WS_SYNC = 22 * MB + 128 * KB
WS_ST1 = [21 * MB + 0 * KB + 38 * MB, 21 * MB + 256 * KB + 38 * MB]
WS_ST2 = 22 * MB + 512 * KB
WS_DUMP = 23 * MB
WS_TS = 24 * MB
WS_BYTES = 268435456
S_PTR, S_DBG, S_WS = 16, 32, 34
SRD_A, SRD_B, SRD_W, SRD_M = 36, 40, 44, 48
S_RA, S_RB = 58, 59
S_TEAM, S_MEM, S_XCC, S_HET, S_VID = 60, 61, 62, 63, 96
SB_QKV, SB_WO, SB_WG, SB_WU, SB_WD = 64, 68, 72, 76, 80
LOG2E = 1.4426950408889634
MF = 'v_mfma_f32_16x16x32_bf16'
MF16 = 'v_mfma_f32_16x16x16_bf16'
OPT = {}
RB_SZ = 96 * KB
RA0 = 96 * KB
SCR = 144 * KB
CS1L = 154 * KB
CS3L = 155 * KB
VIDL = 156 * KB
LDS_BYTES = 157 * KB
SPIN = 1 << 17


def f2u(x): return struct.unpack('<I', struct.pack('<f', x))[0]
def R(b, n=4): return f'v[{b}:{b+n-1}]' if n > 1 else f'v{b}'
def S4(b): return f's[{b}:{b+3}]'
def stmod(): return OPT.get('stmod', '')


def srd(a, dst, ptr, size):
    a(f's_mov_b32 s{dst}, s{ptr}')
    a(f's_mov_b32 s{dst+1}, s{ptr+1}')
    a(f's_mov_b32 s{dst+2}, {size}')
    a(f's_mov_b32 s{dst+3}, 0x00020000')


TS = {'on': False, 'role': None, 'names': {}}


def tsl(a, p, name):
    if TS['on'] and OPT.get('tsp') == p.name: ts(a, name, True)


def ts(a, name, force=False):
    if not TS['on']: return
    if OPT.get('tsp') and not force and not name.startswith(OPT['tsp']) and name not in ('start', 'end'): return
    TS['names'].setdefault(TS['role'], []).append(name)
    a('s_waitcnt lgkmcnt(0)')
    a('s_memtime s[100:101]')
    a('s_waitcnt lgkmcnt(0)')
    a('s_mov_b32 s98, m0')
    a('s_mov_b32 m0, s99')
    a('s_nop 0')
    a('v_writelane_b32 v0, s100, m0')
    a('s_mov_b32 m0, s98')
    a('s_add_u32 s99, s99, 1')
    a('s_min_u32 s99, s99, 63')


def ts_flush(a):
    if not TS['on']: return
    ts(a, 'end')
    a('s_mov_b64 exec, -1')
    a(f's_lshl_b32 s4, s{S_VID}, 3')
    a('s_add_u32 s4, s4, s3')
    a('s_lshl_b32 s4, s4, 8')
    a(f's_add_u32 s4, s4, {WS_TS}')
    a('v_lshlrev_b32 v5, 2, v1')
    a(f'buffer_store_dword v0, v5, {S4(SRD_W)}, s4 offen')


def pk(op, d, s0, s1, s2=None, b0=None, b1=None, b2=None, neg0=False, neg1=False):
    def opnd(s, b):
        if b is None:
            assert s % 2 == 0, s
            return f'v[{s}:{s+1}]', 0, 1
        base = s & ~1; h = s & 1
        return f'v[{base}:{base+1}]', h, h
    srcs = [opnd(s0, b0), opnd(s1, b1)]
    if s2 is not None: srcs.append(opnd(s2, b2))
    assert d % 2 == 0
    t = f'{op} v[{d}:{d+1}], ' + ', '.join(s[0] for s in srcs)
    t += ' op_sel:[' + ','.join(str(s[1]) for s in srcs) + ']'
    t += ' op_sel_hi:[' + ','.join(str(s[2]) for s in srcs) + ']'
    if neg0 or neg1:
        n = [1 if neg0 else 0, 1 if neg1 else 0] + ([0] if s2 is not None else [])
        t += ' neg_lo:[' + ','.join(map(str, n)) + '] neg_hi:[' + ','.join(map(str, n)) + ']'
    return t


class Ph:
    def __init__(self, ph, L, opt):
        self.ph, self.L = ph, L
        self.name = f's{ph}l{L}'
        self.final = (ph == 4 and L == 1)
        self.padk = (ph == 4)
        self.NC = 22 if ph == 4 else 8
        self.NKreal = 43 if ph == 4 else 16
        self.RT = 8 if ph in (1, 3) else 4
        self.PB = {1: 6, 2: 4, 3: 12, 4: 4}[ph]
        self.sA = self.RT * KB; self.sB = self.PB * KB
        self.cA = 2 * self.sA; self.cB = 2 * self.sB
        ql = opt.get('qlate', 1)
        self.NCH = {1: 3, 2: 6 if ql else 5, 3: 3, 4: 6}[ph]
        self.lag = 2 if (ph in (2, 4) and opt.get('relax', 1)) else 1
        self.DC = opt.get(f's{ph}_dc', self.NCH - self.lag)
        self.KSA = 16 if ph in (1, 3) else 43
        self.amode = 'R' if (ph == 1 and L == 0) else 'F'
        self.bmap = 'S' if (ph == 1 and L == 0) else 'F'
        self.strideA = 64 if self.amode == 'R' else KB
        self.rowB = {1: 3072, 2: 1024, 3: 2752, 4: 1024}[ph]
        self.strideB = 32 * self.rowB
        self.nX = 1 if (ph == 1 or (ph == 3 and L == 0)) else 0
        if ql and ph == 1 and L == 0: self.nX = 2
        self.stats = (ph == 3) or (ph == 1 and L == 1)
        self.st2 = (ph == 1 and opt.get('g4', 1)) or ql
        self.STB = SCR + 9 * KB if ph == 1 else SCR
        self.vB = {(1, 0): 12, (1, 1): 15, (2, 0): 18, (2, 1): 18, (4, 0): 18, (4, 1): 18, (3, 0): 20, (3, 1): 20}[(ph, L)]
        self.b0 = None
        self.touch = []


def phase_map(a, p):
    if p.ph in (1, 3):
        a(f's_mov_b32 s12, s{S_TEAM}')
        a(f's_mov_b32 s13, s{S_MEM}')
        rx = OPT.get('rotx', 0)
        if rx:
            a(f's_lshr_b32 s14, s{S_TEAM}, 1')
            a(f's_mul_i32 s14, s14, {rx}')
            a(f's_add_u32 s14, s14, s{S_MEM}')
            a('s_and_b32 s14, s14, 15')
        elif p.amode == 'R' and OPT.get('evenrot', 1):
            a(f's_lshl_b32 s14, s{S_MEM}, 1')
            a('s_and_b32 s14, s14, 15')
        else:
            a(f's_mov_b32 s14, s{S_MEM}')
    else:
        a(f's_lshr_b32 s13, s{S_MEM}, 3')
        a(f's_lshl_b32 s12, s{S_TEAM}, 1')
        a('s_add_u32 s12, s12, s13')
        a(f's_and_b32 s13, s{S_MEM}, 7')
        if p.ph == 2: a('s_lshl_b32 s14, s13, 1')
        else: a('s_mul_i32 s14, s13, 5')


def stats_finish(a, vsum, vsq, vmean, vrstd, tmp):
    a(f'v_mul_f32 v{vmean}, {hex(f2u(1/512))}, v{vsum}')
    a(f'v_mul_f32 v{tmp}, {hex(f2u(1/512))}, v{vsq}')
    a(f'v_fma_f32 v{tmp}, -v{vmean}, v{vmean}, v{tmp}')
    a(f'v_max_f32 v{tmp}, 0, v{tmp}')
    a(f'v_add_f32 v{tmp}, {hex(f2u(1e-5))}, v{tmp}')
    a(f'v_rsq_f32 v{vrstd}, v{tmp}')


def xbase(a, vX, xoff_sgpr, amode):
    if amode == 'F':
        a(f'v_lshl_add_u32 v{vX}, v1, 4, s{xoff_sgpr}')
    else:
        a('v_lshrrev_b32 v4, 2, v3')
        a('v_sub_u32 v4, 4, v4')
        a('v_and_b32 v4, 3, v4')
        a('v_xor_b32 v4, v4, v2')
        a('v_lshlrev_b32 v4, 4, v4')
        a(f'v_lshl_add_u32 v{vX}, v3, 6, v4')
        a(f'v_add_u32 v{vX}, s{xoff_sgpr}, v{vX}')


def wpat(a, d0, d1):
    a('v_and_b32 v4, 1, v2')
    a('v_lshlrev_b32 v4, 5, v4')
    a('v_lshl_add_u32 v4, v2, 8, v4')
    a('v_bfe_u32 v5, v1, 2, 2')
    a('v_lshl_add_u32 v4, v5, 6, v4')
    a('v_and_b32 v5, 3, v1')
    a(f'v_lshl_add_u32 v{d0}, v5, 3, v4')
    a(f'v_xor_b32 v{d1}, 32, v{d0}')


def rd128(dst, base, off): return f'ds_read_b128 {R(dst)}, v{base} offset:{off}'
def rdtr(dst, base, off): return f'ds_read_b64_tr_b16 {R(dst,2)}, v{base} offset:{off}'


def interleave(a, mf, rd, per=1, first=0):
    ri = 0
    for i, m in enumerate(mf):
        if callable(m): m()
        else: a(m)
        if i >= first:
            for _ in range(per):
                if ri < len(rd):
                    a(rd[ri]); ri += 1
    while ri < len(rd):
        a(rd[ri]); ri += 1


def ring_init(a, p, fixed, cur):
    a(f's_mov_b32 s{S_RA}, 0')
    a(f's_mov_b32 s{S_RB}, {p.b0}')
    a('s_mov_b32 s9, 0')
    a(f'v_mov_b32 v{cur[0]}, v{fixed[0]}')
    for f, c in zip(fixed[1:], cur[1:]): a(f'v_add_u32 v{c}, s{S_RB}, v{f}')


def advance(a, p, fixed, cur):
    a(f's_add_u32 s{S_RA}, s{S_RA}, {p.cA}')
    a(f's_cmp_eq_u32 s{S_RA}, {p.NCH*p.cA}')
    a(f's_cselect_b32 s{S_RA}, 0, s{S_RA}')
    a(f's_add_u32 s{S_RB}, s{S_RB}, {p.cB}')
    a(f's_cmp_eq_u32 s{S_RB}, {RB_SZ}')
    a(f's_cselect_b32 s{S_RB}, 0, s{S_RB}')
    a(f'v_add_u32 v{cur[0]}, s{S_RA}, v{fixed[0]}')
    for f, c in zip(fixed[1:], cur[1:]):
        a(f'v_add_u32 v{c}, s{S_RB}, v{f}')


def loop_big(a, p, fixed, cur, reads, mfmas, per=1):
    ring_init(a, p, fixed, cur)
    ts(a, p.name + '.preP0')
    a('s_barrier')
    ts(a, p.name + '.P0')
    for t in reads(0, 0): a(t)
    for t in p.touch:
        if t == 'LATE':
            a('s_cmp_eq_u32 s3, 3')
            a('s_cbranch_scc0 L_nolt')
            a.begin_opt()
            late_touch(a, 22)
            a.end_opt()
            a.label('L_nolt')
            a.vm = []
        else: a(t)
    a.loop_begin(f'L_ml_{p.name}')
    if p.ph == 3 and OPT.get('s3adv', 1):
        class Rec(list):
            def __call__(self, t): self.append(t)
        rec = Rec(); advance(rec, p, fixed, cur); rec('s_add_u32 s9, s9, 1')
        m = mfmas(0); rd = reads(1, 1)
        interleave(a, m[:len(rd)], rd, per=1)
        interleave(a, m[len(rd):], rec, per=2)
    else:
        interleave(a, mfmas(0), reads(1, 1), per=per)
        advance(a, p, fixed, cur)
        a('s_add_u32 s9, s9, 1')
    a.wait_lds_all()
    tsl(a, p, 'pre')
    a('s_barrier')
    tsl(a, p, 'post')
    interleave(a, mfmas(1), reads(0, 0), per=per)
    a(f's_cmp_lt_u32 s9, {p.NC}')
    a(f's_cbranch_scc1 L_ml_{p.name}')
    a.loop_end_check()
    a.wait_lds_all()
    ts(a, p.name + '.loopend')


def end_phase(a, p):
    ts(a, p.name + '.epi')
    a('s_waitcnt vmcnt(0)')
    ts(a, p.name + '.vm0')
    a('s_barrier')
    a.vm = []


def poll(a, name, vdst, n, voff, soff, execmask):
    a(f's_mov_b32 s84, {SPIN}')
    if execmask == 0xffffffff: a('s_mov_b32 exec_hi, 0')
    elif execmask != -1: a(f's_mov_b64 exec, {execmask}')
    a.flush_hazards()
    a.label(f'L_poll_{name}')
    op = {1: 'buffer_load_dword', 4: 'buffer_load_dwordx4'}[n]
    a(f'{op} {R(vdst, n)}, v{voff}, {soff} offen sc1')
    a('s_waitcnt vmcnt(0)')
    if n == 4:
        a(f'v_min_u32 v{vdst}, v{vdst}, v{vdst+1}')
        a(f'v_min_u32 v{vdst+2}, v{vdst+2}, v{vdst+3}')
        a(f'v_min_u32 v{vdst}, v{vdst}, v{vdst+2}')
    a(f'v_cmp_eq_u32 vcc, 0, v{vdst}')
    a('s_nop 1')
    a(f's_cbranch_vccz L_pok_{name}')
    a('s_sub_u32 s84, s84, 1')
    a(f's_cbranch_scc1 L_pok_{name}')
    a(f's_sleep {OPT.get("sleep", 1)}')
    a(f's_branch L_poll_{name}')
    a.label(f'L_pok_{name}')
    if execmask != -1: a('s_mov_b64 exec, -1')
    a.vm = []


def load_counters(a, name, until_sum):
    a('v_lshlrev_b32 v4, 5, v1')
    a('s_mov_b64 exec, 0xff')
    a(f'buffer_load_dword v5, v4, {S4(SRD_M)}, 0 offen sc1')
    a('s_waitcnt vmcnt(0)')
    a('s_mov_b64 exec, -1')
    for i in range(8):
        a(f'v_readlane_b32 s{86+i}, v5, {i}')
    a('s_add_u32 s85, s86, s87')
    for i in range(2, 8):
        a(f's_add_u32 s85, s85, s{86+i}')


def stouch_setup(a, p, w, nw):
    if not OPT.get('stouch', 0): return []
    reuse = OPT.get('reuse', 1)
    out = []
    if p.ph == 1 and (p.L == 0 or not reuse):
        a('s_lshl_b32 s53, s12, 3')
        a('s_mul_i32 s53, s53, 43')
        a('s_add_u32 s53, s53, s13')
        a('s_lshl_b32 s53, s53, 10')
        a(f's_mul_i32 s54, s{w}, {KB//nw}')
        a('s_add_u32 s53, s53, s54')
        a(f's_add_u32 s53, s53, {WS_PQ[p.L]}')
        out.append((53, 7, 43 * KB, 8 // nw))
    if p.ph in (2, 4) and not p.final and ((p.ph == 2 and p.L == 0) or not reuse):
        a('s_lshl_b32 s53, s12, 16')
        a('s_lshl_b32 s54, s13, 11')
        a('s_add_u32 s53, s53, s54')
        a(f's_mul_i32 s54, s{w}, {2*KB//nw}')
        a('s_add_u32 s53, s53, s54')
        a(f's_add_u32 s53, s53, {WS_X1[p.L] if p.ph == 2 else WS_X2}')
        out.append((53, 3, 16 * KB, 16 // nw))
        a('s_lshl_b32 s55, s12, 12')
        a(f's_mul_i32 s54, s{w}, {KB//nw}')
        a('s_add_u32 s55, s55, s54')
        a(f's_add_u32 s55, s55, {WS_ST1[p.L] if p.ph == 2 else WS_ST2}')
        out.append((55, 3, KB, 8 // nw))
    if p.ph == 3:
        a('s_lshl_b32 s53, s12, 3')
        a('s_mul_i32 s53, s53, 43')
        a('s_mul_i32 s54, s13, 3')
        a('s_add_u32 s53, s53, s54')
        a('s_lshl_b32 s53, s53, 10')
        a(f's_mul_i32 s54, s{w}, {3*KB//nw}')
        a('s_add_u32 s53, s53, s54')
        a(f's_add_u32 s53, s53, {WS_H[p.L]}')
        out.append((53, 7, 43 * KB, 24 // nw))
    return out


def stouch(a, spec, it):
    for sb, mask, stride, n in spec:
        a(f's_and_b32 s56, s{it}, {mask}')
        a(f's_mul_i32 s56, s56, {stride}')
        a(f's_add_u32 s56, s56, s{sb}')
        for i in range(n):
            a.raw(f'    s_buffer_load_dword s52, {S4(SRD_W)}, s56 offset:{i*128}')


def init_flag(a):
    a('s_mov_b64 exec, 1')
    a('s_lshr_b32 s4, s2, 1')
    a('s_lshl_b32 s4, s4, 5')
    a('s_and_b32 s5, s2, 1')
    a('s_lshl_b32 s5, s5, 2')
    a('s_add_u32 s4, s4, s5')
    a('s_add_u32 s4, s4, 4')
    a('v_mov_b32 v22, s4')
    a('v_mov_b32 v23, 1')
    a('s_waitcnt vmcnt(0)')
    a(f'buffer_store_dword v23, v22, {S4(SRD_M)}, 0 offen sc1')
    a('s_mov_b64 exec, -1')


def late_touch(a, vl):
    a('s_mul_i32 s53, s2, 5504')
    a('s_lshl_b32 s54, s2, 11')
    a('s_mov_b64 exec, 0xffff')
    a(f'buffer_load_dword v31, v{vl}, {S4(SB_WO)}, s54 offen')
    a.vm = []
    a('s_mov_b32 exec_lo, -1')
    a('s_mov_b32 exec_hi, 0x7ff')
    for sb in (SB_WG, SB_WU, SB_WD):
        a(f'buffer_load_dword v31, v{vl}, {S4(sb)}, s53 offen')
        a.vm = []
    a('s_mov_b64 exec, -1')


def entry(a):
    TS['role'] = 'all'
    a('s_cmp_ge_u32 s2, 256')
    a('s_cbranch_scc1 L_end')
    a('v_and_b32 v1, 63, v0')
    a('v_lshrrev_b32 v2, 6, v0')
    if TS['on']:
        a('v_mov_b32 v0, 0')
        a('s_mov_b32 s99, 0')
        a('s_mov_b32 m0, 0')
        ts(a, 'start')
    a(f's_load_dwordx16 s[16:31], s[0:1], 0')
    a(f's_load_dwordx4 s[32:35], s[0:1], 64')
    fx = OPT.get('fakexcc', 0)
    if fx == 0:
        a(f's_getreg_b32 s{S_XCC}, hwreg(HW_REG_XCC_ID, 0, 4)')
        a(f's_and_b32 s{S_XCC}, s{S_XCC}, 7')
    elif fx == 1:
        a(f's_lshr_b32 s{S_XCC}, s2, 5')
    else:
        a(f's_and_b32 s{S_XCC}, s2, 7')
        a(f's_cmp_ge_u32 s{S_XCC}, 6')
        a(f's_cselect_b32 s{S_XCC}, 1, s{S_XCC}')
    a('v_readfirstlane_b32 s3, v2')
    a('v_lshrrev_b32 v2, 4, v1')
    a('v_and_b32 v3, 15, v1')
    a(f's_mov_b32 s{S_HET}, 0')
    a('s_waitcnt lgkmcnt(0)')
    ts(a, 'karg')
    srd(a, SRD_W, S_WS, WS_BYTES)
    srd(a, SRD_M, S_DBG, 256)
    srd(a, SB_QKV, S_PTR + 2, 512 * 3072)
    srd(a, SB_WO, S_PTR + 4, 512 * 1024)
    srd(a, SB_WG, S_PTR + 8, 512 * 2752)
    srd(a, SB_WU, S_PTR + 10, 512 * 2752)
    srd(a, SB_WD, S_PTR + 12, 1376 * 1024)
    srd(a, SRD_A, S_PTR + 0, 2048 * 1024)
    a('s_cmp_eq_u32 s3, 0')
    a('s_cbranch_scc0 L_e1')
    a(f's_lshl_b32 s4, s{S_XCC}, 5')
    a('v_mov_b32 v4, s4')
    a('v_mov_b32 v5, 1')
    a('s_mov_b64 exec, 1')
    a(f'buffer_atomic_add v5, v4, {S4(SRD_M)}, 0 offen sc0')
    a('s_mov_b64 exec, -1')
    pt = OPT.get('pretouch', 65)
    npt = 0
    a('v_lshlrev_b32 v6, 7, v1')
    if pt & 2:
        a('s_lshr_b32 s7, s2, 3')
        a('s_and_b32 s7, s7, 31')
        a(f's_lshl_b32 s5, s{S_XCC}, 18')
        a('s_lshl_b32 s6, s7, 13')
        a('s_add_u32 s5, s5, s6')
        a(f'buffer_load_dword v31, v6, {S4(SRD_A)}, s5 offen')
        a.vm = []
        a('s_mul_i32 s7, s7, 49152')
        for i in range(6):
            a(f'buffer_load_dword v31, v6, {S4(SB_QKV)}, s7 offen')
            a.vm = []
            if i < 5: a('s_add_u32 s7, s7, 8192')
        npt += 7
    if pt & 32:
        a('s_lshr_b32 s7, s2, 3')
        a('s_and_b32 s7, s7, 31')
        a(f's_lshl_b32 s5, s{S_XCC}, 18')
        a('s_lshl_b32 s6, s7, 13')
        a('s_add_u32 s5, s5, s6')
        a(f'buffer_load_dword v31, v6, {S4(SRD_A)}, s5 offen')
        a.vm = []
        a('v_and_b32 v7, 7, v1')
        a('v_bfe_u32 v8, v1, 3, 1')
        a('v_mul_u32_u24 v8, 3072, v8')
        a('v_lshl_add_u32 v8, v2, 10, v8')
        a('v_lshl_add_u32 v8, v7, 7, v8')
        a('v_and_b32 v7, 3, v7')
        a('v_lshlrev_b32 v7, 1, v7')
        a('s_mul_i32 s7, s7, 6144')
        a('s_mov_b32 exec_lo, -1')
        a('s_mov_b32 exec_hi, 0xffff')
        for tau in range(OPT.get('ntau', 3)):
            a(f'v_add_u32 v9, {tau}, v7')
            a('v_and_b32 v9, 7, v9')
            a(f'v_mov_b32 v10, {64*3072}')
            a('v_mad_u32_u24 v9, v9, v10, v8')
            a(f'buffer_load_dword v31, v9, {S4(SB_QKV)}, s7 offen')
            a.vm = []
        a('s_mov_b64 exec, -1')
        npt += 1 + OPT.get('ntau', 3)
    if pt & 128:
        a('s_lshr_b32 s7, s2, 3')
        a('s_and_b32 s7, s7, 31')
        a('s_mul_i32 s7, s7, 49152')
        a('v_lshlrev_b32 v7, 10, v1')
        a('s_mov_b32 exec_hi, 0xffff')
        a(f'buffer_load_dword v31, v7, {S4(SB_QKV)}, s7 offen offset:384')
        a.vm = []
        a('s_mov_b64 exec, -1')
        npt += 1
    if pt & 64:
        a('s_lshr_b32 s7, s2, 3')
        a('s_and_b32 s7, s7, 31')
        a(f's_lshl_b32 s5, s{S_XCC}, 18')
        a('s_lshl_b32 s6, s7, 13')
        a('s_add_u32 s5, s5, s6')
        a(f'buffer_load_dword v31, v6, {S4(SRD_A)}, s5 offen')
        a.vm = []
        a('s_mul_i32 s7, s2, 6144')
        a('s_mov_b32 exec_hi, 0xffff')
        a(f'buffer_load_dword v31, v6, {S4(SB_QKV)}, s7 offen')
        a.vm = []
        a('s_mov_b64 exec, -1')
        npt += 2
    if pt & 1:
        late_touch(a, 6)
        npt += 4
    if pt & 4:
        a('s_mov_b64 exec, 1')
        a('s_lshl_b32 s7, s2, 11')
        for sb in (SB_WO, SB_WG, SB_WU, SB_WD):
            a(f'buffer_load_dword v31, v6, {S4(sb)}, s7 offen')
            a.vm = []
        a('s_mov_b64 exec, -1')
        npt += 4
    a(f's_waitcnt vmcnt({npt})')
    if OPT.get('dbg2'):
        TS['role'] = 'W0'
        for k in range(npt, -1, -1):
            a(f's_waitcnt vmcnt({k})')
            ts(a, f'w{k}', True)
        TS['role'] = 'all'
    a('v_readfirstlane_b32 s5, v5')
    a(f's_add_u32 s{S_VID}, s4, s5')
    a('s_cmp_lt_u32 s5, 32')
    a('s_cbranch_scc1 L_tk_ok')
    a(f's_mov_b32 s84, {SPIN}')
    a.flush_hazards()
    a.label('L_tk_wait')
    load_counters(a, 'tk', True)
    a('s_cmp_ge_u32 s85, 256')
    a('s_cbranch_scc1 L_tk_all')
    a('s_sub_u32 s84, s84, 1')
    a('s_cbranch_scc1 L_tk_all')
    a('s_sleep 2')
    a('s_branch L_tk_wait')
    a.label('L_tk_all')
    a('s_sub_u32 s5, s5, 32')
    for i in range(7):
        a(f's_max_u32 s6, s{86+i}, 32')
        a('s_sub_u32 s6, s6, 32')
        a(f's_cmp_gt_u32 s{S_XCC}, {i}')
        a('s_cselect_b32 s6, s6, 0')
        a('s_add_u32 s5, s5, s6')
    a(f's_mov_b32 s{S_VID}, 0')
    a('s_mov_b32 s7, 0')
    for i in range(8):
        a(f's_min_u32 s6, s{86+i}, 32')
        a('s_sub_u32 s8, 32, s6')
        a(f's_add_u32 s6, s6, {32*i}')
        a('s_add_u32 s6, s6, s5')
        a('s_cmp_lt_u32 s5, s8')
        a('s_cselect_b32 s10, 1, 0')
        a('s_andn2_b32 s10, s10, s7')
        a('s_or_b32 s7, s7, s10')
        a('s_cmp_lg_u32 s10, 0')
        a(f's_cselect_b32 s{S_VID}, s6, s{S_VID}')
        a('s_sub_u32 s5, s5, s8')
    a.label('L_tk_ok')
    a(f'v_mov_b32 v4, {VIDL}')
    a(f'v_mov_b32 v5, s{S_VID}')
    a('ds_write_b32 v4, v5')
    a('s_waitcnt lgkmcnt(0)')
    a('s_branch L_eT')
    a.fresh()
    a.label('L_e1')
    a('s_cmp_eq_u32 s3, 1')
    a('s_cbranch_scc0 L_eT')
    a('s_cmp_lt_u32 s2, 16')
    a('s_cbranch_scc0 L_eT')
    for i in range(4): a(f'v_mov_b32 v{4+i}, 0')
    a('v_lshlrev_b32 v8, 4, v1')
    a('s_lshl_b32 s4, s2, 11')
    for L in range(2):
        a(f's_add_u32 s5, s4, {WS_KV + L*65536}')
        for i in range(2):
            a(f'buffer_store_dwordx4 v[4:7], v8, {S4(SRD_W)}, s5 offen offset:{i*KB} sc1')
    a('s_lshl_b32 s4, s2, 7')
    a('s_mov_b64 exec, 0xff')
    for L in range(2):
        a(f's_add_u32 s5, s4, {WS_KV + L*65536 + 32768}')
        a(f'buffer_store_dwordx4 v[4:7], v8, {S4(SRD_W)}, s5 offen sc1')
    a('s_mul_i32 s4, s2, 1152')
    a(f's_add_u32 s4, s4, {WS_SYNC}')
    a(f'buffer_store_dwordx4 v[4:7], v8, {S4(SRD_W)}, s4 offen offset:1024 sc1')
    a('s_mov_b64 exec, -1')
    a(f'buffer_store_dwordx4 v[4:7], v8, {S4(SRD_W)}, s4 offen sc1')
    if not OPT.get('lateinit', 1): init_flag(a)
    a('s_mov_b64 exec, -1')
    a.label('L_eT')
    a.fresh()
    a('s_nop 4')
    a('s_barrier')
    a(f'v_mov_b32 v4, {VIDL}')
    a('ds_read_b32 v5, v4')
    a('s_waitcnt lgkmcnt(0)')
    a(f'v_readfirstlane_b32 s{S_VID}, v5')
    a(f's_lshr_b32 s{S_TEAM}, s{S_VID}, 4')
    a(f's_and_b32 s{S_MEM}, s{S_VID}, 15')
    ts(a, 'T')
    a('s_cmp_lt_u32 s3, 4')
    a('s_cbranch_scc1 L_comp')
    a('s_cmp_lt_u32 s3, 6')
    a('s_cbranch_scc1 L_aload')


def bloader(a, phases, bars):
    TS['role'] = 'B'
    a('s_and_b32 s4, s3, 1')
    if OPT.get('ft', 0) or OPT.get('lt'):
        srd(a, SRD_A, S_PTR + 8, 512 * 2752)
        srd(a, SRD_B, S_PTR + 10, 512 * 2752)
    a(f's_cmp_eq_u32 s{S_MEM}, 15')
    a(f's_cselect_b32 s{SB_WG+2}, 0, s{SB_WG+2}')
    a(f's_cselect_b32 s{SB_WU+2}, 0, s{SB_WU+2}')
    a('v_bfe_u32 v4, v1, 2, 2')
    a('v_bfe_u32 v5, v1, 1, 1')
    a('v_and_b32 v6, 1, v2')
    a('v_xor_b32 v5, v5, v6')
    a('v_and_b32 v6, 1, v1')
    a('v_lshlrev_b32 v5, 5, v5')
    a('v_lshl_add_u32 v5, v6, 4, v5')
    a('v_lshl_add_u32 v6, v2, 3, v4')
    a('v_lshl_add_u32 v7, v2, 2, v4')
    done = set()
    for p in phases:
        if p.vB in done: continue
        done.add(p.vB)
        hstep = 16 if p.bmap == 'F' else 4
        if p.ph == 1: a(f's_lshl_b32 s9, s{S_MEM}, 6'); n, step = 3, 1024
        elif p.ph == 3: a(f's_mul_i32 s9, s{S_MEM}, 192'); n, step = 3, 64
        else:
            a(f's_and_b32 s9, s{S_MEM}, 7'); a('s_lshl_b32 s9, s9, 7'); n, step = 2, 64
        a(f's_mul_i32 s10, s4, {hstep*p.rowB}')
        a('s_add_u32 s10, s10, s9')
        a(f'v_mul_u32_u24 v8, {p.rowB}, v{7 if p.bmap == "F" else 6}')
        a(f'v_add3_u32 v{p.vB}, v8, v5, s10')
        for i in range(1, n):
            a(f'v_add_u32 v{p.vB+i}, {i*step}, v{p.vB}')
        if p is phases[0]:
            pass
    a('s_lshl_b32 s11, s4, 10')
    chunks = []
    pos = 0
    streams = []
    for p in phases:
        if p.ph == 1 and OPT.get('qlate', 1):
            streams.append(dict(name=p.name, p=p, pieces=[(p.vB + 1, SB_QKV), (p.vB + 2, SB_QKV)], uk=2, n=8, sB=4 * KB, al=8 * KB,
                                pub=lambda c, p=p: bars.index((p.name, 'P', c)), fr=lambda c, p=p: bars.index((p.name, 'P', c)) + 1))
            streams.append(dict(name=p.name + 'q', p=p, pieces=[(p.vB, SB_QKV)], uk=4, n=4, sB=2 * KB, al=8 * KB,
                                pub=lambda c, p=p: bars.index((p.name, 'E', 0)), fr=lambda c, p=p: bars.index((p.name, 'F', 0))))
            continue
        uk = 1 if (p.ph == 4 and OPT.get('half4', 1)) else 2
        if p.ph == 3: pcs = [(p.vB + i, sb) for i in range(3) for sb in (SB_WG, SB_WU)]
        else: pcs = [(p.vB + i, {1: SB_QKV, 2: SB_WO, 4: SB_WD}[p.ph]) for i in range(p.PB // 2)]
        streams.append(dict(name=p.name, p=p, pieces=pcs, uk=uk, n=p.NC * 2 // uk, sB=p.sB,
                            al=2 * p.cB if (p.ph == 4 or (p.ph == 2 and OPT.get('qlate', 1))) else p.cB,
                            pub=lambda c, p=p, uk=uk: bars.index((p.name, 'P', c * uk // 2)),
                            fr=lambda c, p=p, uk=uk: bars.index((p.name, 'P', c * uk // 2)) + p.lag))
    for st in streams:
        al = st['al']
        pos = (pos + al - 1) // al * al
        if pos >= RB_SZ: pos = 0
        if st['name'] == 's2l1' and not OPT.get('qlate', 1): pos = 72 * KB
        st['b0'] = pos
        if st['name'].endswith('q'): st['p'].b0q = pos
        else: st['p'].b0 = pos
        for c in range(st['n']):
            chunks.append(dict(p=st, c=c, off=pos, sz=st['uk'] * st['sB'], pub=st['pub'](c), fr=st['fr'](c)))
            pos += st['uk'] * st['sB']
            if pos >= RB_SZ: pos = 0
    for i, q in enumerate(chunks):
        e = 0
        for q2 in chunks[:i]:
            if q2['off'] < q['off'] + q['sz'] and q['off'] < q2['off'] + q2['sz']:
                e = max(e, q2['fr'])
        q['e'] = e
    maxahead = OPT.get('bahead', RB_SZ)
    steps = []
    nxt = 0
    issued = []
    last = max(q['pub'] for q in chunks)
    for j in range(1, last + 1):
        iss = []
        while nxt < len(chunks) and chunks[nxt]['e'] <= j - 1:
            ahead = sum(chunks[k]['sz'] for k, _ in issued if k >= 0 and chunks[k]['pub'] >= j)
            if ahead + chunks[nxt]['sz'] > maxahead and chunks[nxt]['pub'] > j: break
            cap = OPT.get('b0n', 3) if j == 1 else OPT.get('bcap', 2)
            q = chunks[nxt]
            if q['p']['uk'] == 1:
                cap *= 2
                if bars[j][0] == q['p']['name'] and bars[j][1] == 'P' and bars[j][2] >= 2 and q['pub'] > j + OPT.get('h4m', 3): cap = 1
            bj = bars[j]
            key = bj[0][:2] + bj[1] + (str(bj[2]) if bj[1] == 'P' else '')
            if j > 1 and key in OPT.get('quiet', ()): cap = 0
            if OPT.get('wolate', 1) and q['p']['name'][:2] == 's2' and bj[0][:2] == 's1':
                cap = 99 if bj[1] in 'FG' else 0
            if len(iss) >= cap and chunks[nxt]['pub'] > j + 1: break
            iss.append((q['p']['name'], q['c'] == 0))
            issued.append((nxt, len(q['p']['pieces']) * q['p']['uk']))
            nxt += 1
        for (bar, mat) in OPT.get('sl', ()):
            if bars[j] == bar:
                iss.append(('S' + mat, True))
                issued.append((-1, 1))
        if OPT.get('lt') and bars[j] == OPT['lt']:
            iss.append(('LT', True))
            issued.append((-1, 3))
        for (tph, t0, t1, mat) in OPT.get('ft', ()):
            bj = bars[j]
            if bj[0] == tph and bj[1] == 'P' and t0 <= bj[2] < t1:
                iss.append((f'F{mat}{t1-t0}', bj[2] == t0))
                issued.append((-1, 1))
        for tk, (tkey, tn) in OPT.get('l2t', {}).items():
            bj = bars[j]
            if tkey == bj[0][:2] + bj[1] + (str(bj[2]) if bj[1] == 'P' else '') and not (tk[0] == 'q' and bj[0][3] == '1'):
                iss.append(('T' + tk, True))
                issued.append((-1, tn))
        w = None
        for k, (ci, n) in enumerate(issued):
            if ci >= 0 and chunks[ci]['pub'] == j:
                w = min(63, sum(x[1] for x in issued[k+1:]))
        if any(q['pub'] == j for q in chunks): assert w is not None, ('chunk not issued in time', j, bars[j])
        steps.append((tuple(iss), w, bars[j]))
    byname = {p.name: p for p in phases}
    bystream = {st['name']: st for st in streams}
    for tk, (tkey, tn) in OPT.get('l2t', {}).items(): bystream['T' + tk] = (tk, tn)

    for (tph, t0, t1, mat) in OPT.get('ft', ()): bystream[f'F{mat}{t1-t0}'] = [mat, t1 - t0]

    def ftouch(mat, n, first):
        tot = {'q': 512 * 3072, 'd': 1376 * 1024, 'o': 512 * 1024, 'g': 512 * 2752, 'u': 512 * 2752}[mat]
        sb = {'q': SB_QKV, 'd': SB_WD, 'o': SB_WO, 'g': SRD_A, 'u': SRD_B}[mat]
        sr = {'q': 56, 'd': 57, 'o': 56, 'g': 56, 'u': 57}[mat]
        lanes = -(-tot // (128 * 64 * n))
        assert lanes <= 64
        if first:
            a(f's_and_b32 s{sr}, s{S_VID}, 31')
            a(f's_mul_i32 s{sr}, s{sr}, {2*n*lanes*128}')
            a(f's_mul_i32 s54, s4, {lanes*128}')
            a(f's_add_u32 s{sr}, s{sr}, s54')
            a('v_lshlrev_b32 v32, 7, v1')
        m = (1 << lanes) - 1
        a(f's_mov_b32 exec_lo, {hex(m & 0xffffffff)}')
        a(f's_mov_b32 exec_hi, {hex(m >> 32)}')
        a(f'buffer_load_dword v31, v32, {S4(sb)}, s{sr} offen')
        a.vm = []
        a('s_mov_b64 exec, -1')
        a(f's_add_u32 s{sr}, s{sr}, {2*lanes*128}')

    bystream['LT'] = 'LT'
    for m_ in 'qdo': bystream['S' + m_] = 'S' + m_

    def stouch1(mat):
        n = {'q': 24, 'd': 22, 'o': 8}[mat]
        a(f's_and_b32 s53, s{S_VID}, 31')
        a('s_lshl_b32 s53, s53, 1')
        a('s_add_u32 s53, s53, s4')
        a(f's_mul_i32 s53, s53, {n*KB}')
        a('v_lshlrev_b32 v32, 10, v1')
        a(f's_mov_b64 exec, {hex((1 << n) - 1)}')
        a(f'buffer_load_dword v31, v32, {S4({"q": SB_QKV, "d": SB_WD, "o": SB_WO}[mat])}, s53 offen offset:384')
        a.vm = []
        a('s_mov_b64 exec, -1')

    def ltouch():
        a('v_lshlrev_b32 v32, 8, v1')
        a('s_lshl_b32 s55, s4, 7')
        a('s_mul_i32 s53, s2, 5504')
        a('s_add_u32 s53, s53, s55')
        a('s_mov_b64 exec, 0x3fffff')
        for sb in (SRD_A, SRD_B, SB_WD):
            a(f'buffer_load_dword v31, v32, {S4(sb)}, s53 offen')
            a.vm = []
        a('s_mov_b64 exec, -1')

    def l2touch(tk, tn):
        if tk[0] == 'g':
            f0 = int(tk[1:])
            a(f's_mul_i32 s53, s{S_MEM}, 192')
            a('s_mul_i32 s54, s4, 188')
            a('s_add_u32 s53, s53, s54')
            a(f's_and_b32 s54, s{S_TEAM}, 1')
            a('s_lshl_b32 s54, s54, 2')
            a(f's_add_u32 s54, s54, s{S_MEM}')
            a('s_lshl_b32 s54, s54, 5')
            a('v_mov_b32 v33, 2752')
            for i in range(f0, f0 + tn):
                if i % 2 == 0 or i == f0:
                    a(f's_add_u32 s55, s54, {256 + 64*(i//2)}')
                    a('v_add_u32 v32, s55, v1')
                    a('v_and_b32 v32, 511, v32')
                    a('v_mul_u32_u24 v32, v32, v33')
                a(f'buffer_load_dword v31, v32, {S4(SB_WU if i % 2 else SB_WG)}, s53 offen')
                a.vm = []
        else:
            f0 = int(tk[1:])
            per = {'d': 44032, 'q': 49152}[tk[0]]
            a(f's_and_b32 s53, s{S_VID}, 31')
            a(f's_mul_i32 s53, s53, {per}')
            a('s_lshl_b32 s54, s4, 13')
            a('s_add_u32 s53, s53, s54')
            a('v_lshlrev_b32 v32, 7, v1')
            for i in range(f0, f0 + tn):
                a(f's_add_u32 s55, s53, {i*16384}')
                a(f'buffer_load_dword v31, v32, {S4(SB_WD if tk[0] == "d" else SB_QKV)}, s55 offen')
                a.vm = []

    byname['TOUCH'] = None

    def btouch():
        a('s_lshr_b32 s53, s2, 3')
        a('s_and_b32 s53, s53, 31')
        a('s_mul_i32 s53, s53, 6144')
        a('s_mul_i32 s54, s4, 3072')
        a('s_add_u32 s53, s53, s54')
        a('v_and_b32 v30, 7, v1')
        a('v_lshrrev_b32 v31, 3, v1')
        a('v_lshlrev_b32 v31, 10, v31')
        a('v_lshl_add_u32 v31, v30, 7, v31')
        a('v_and_b32 v30, 3, v30')
        a('v_lshlrev_b32 v30, 1, v30')
        a(f'v_mov_b32 v33, {64*3072}')
        a('s_mov_b64 exec, 0xffffff')
        for tau in range(OPT.get('ntau', 3), 8):
            a(f'v_add_u32 v32, {tau}, v30')
            a('v_and_b32 v32, 7, v32')
            a('v_mad_u32_u24 v32, v32, v33, v31')
            a(f'buffer_load_dword v31, v32, {S4(SB_QKV)}, s53 offen')
            a.vm = []
        a('s_mov_b64 exec, -1')
        a('v_lshlrev_b32 v30, 8, v1')
        a('s_lshl_b32 s55, s4, 7')
        a('s_mul_i32 s53, s2, 5504')
        a('s_add_u32 s53, s53, s55')
        a('s_lshl_b32 s54, s2, 11')
        a('s_add_u32 s54, s54, s55')
        a('s_mov_b64 exec, 0xff')
        a(f'buffer_load_dword v31, v30, {S4(SB_WO)}, s54 offen')
        a.vm = []
        a('s_mov_b64 exec, 0x3fffff')
        for sb in (SRD_A, SRD_B, SB_WD):
            a(f'buffer_load_dword v31, v30, {S4(sb)}, s53 offen')
            a.vm = []
        a('s_mov_b64 exec, -1')

    def issue(st, first):
        if st == 'LT': return ltouch()
        if isinstance(st, str): return stouch1(st[1])
        if isinstance(st, tuple): return l2touch(*st)
        if isinstance(st, list): return ftouch(st[0], st[1], first)
        p = st['p']
        if first:
            phase_map(a, p)
            a(f's_mul_i32 s7, s14, {p.strideB}')
            a(f's_add_u32 s5, s11, {st["b0"]}')
        for kk in range(st['uk']):
            for i, (vr, sb) in enumerate(st['pieces']):
                a(f's_add_u32 m0, s5, {kk*st["sB"] + 2*i*KB}')
                nt = st['name'] in OPT.get('bnt', ()) or (sb == SB_WU and 'wu' in OPT.get('bnt', ()))
                a(f'buffer_load_dwordx4 v{vr}, {S4(sb)}, s7 offen {OPT.get("bntm", "nt") if nt else ""} lds')
            a(f's_add_u32 s7, s7, {p.strideB}')
            a(f's_cmp_eq_u32 s7, {2*p.NC*p.strideB}')
            a('s_cselect_b32 s7, 0, s7')
        a(f's_add_u32 s5, s5, {st["uk"]*st["sB"]}')
        a(f's_cmp_ge_u32 s5, {RB_SZ}')
        a('s_cselect_b32 s5, s11, s5')

    def emit_iss(iss, tag):
        k = 0
        while k < len(iss):
            m = k
            while m < len(iss) and iss[m] == iss[k]: m += 1
            n = m - k
            if n >= 3 and not iss[k][1]:
                a(f's_mov_b32 s8, {n}')
                a.flush_hazards()
                a.loop_begin(f'L_bi_{tag}_{k}')
                issue(bystream[iss[k][0]], False)
                a('s_sub_u32 s8, s8, 1')
                a('s_cmp_lg_u32 s8, 0')
                a(f's_cbranch_scc1 L_bi_{tag}_{k}')
                a.loop_end_check()
            else:
                for x in iss[k:m]: issue(bystream[x[0]], x[1])
            k = m

    i = 0
    while i < len(steps):
        m = i
        while m < len(steps) and steps[m][:2] == steps[i][:2] and not (TS['on'] and m > i and steps[m][2][1] != 'P'): m += 1
        n = m - i
        iss, w, bar = steps[i]
        if TS['on'] and bar[1] != 'P': n = 1; m = i + 1
        if n >= 2 and len(iss) <= 2:
            a(f's_mov_b32 s9, {n}')
            a.flush_hazards()
            a.loop_begin(f'L_bs_{i}')
            for x in iss: issue(bystream[x[0]], x[1])
            if w is not None: a(f's_waitcnt vmcnt({w})')
            tsl(a, byname[bar[0]], 'pre')
            a('s_barrier')
            a('s_sub_u32 s9, s9, 1')
            a('s_cmp_lg_u32 s9, 0')
            a(f's_cbranch_scc1 L_bs_{i}')
            a.loop_end_check()
            i = m
        else:
            emit_iss(iss, i)
            if w is not None: a(f's_waitcnt vmcnt({w})')
            if bar[1] != 'P' or bar[2] == 0: ts(a, f'{bar[0]}.pre{bar[1]}')
            else: tsl(a, byname[bar[0]], 'pre')
            a('s_barrier')
            i += 1
        a.vm = []
    ts_flush(a)
    a('s_endpgm')
    a.fresh()
    return steps


def aloader(a, phases):
    TS['role'] = 'A'
    a.label('L_aload')
    a('s_and_b32 s4, s3, 1')
    a('v_mov_b32 v40, 1')
    a(f's_lshl_b32 s5, s{S_MEM}, 2')
    a('v_mov_b32 v41, s5')
    a('v_lshlrev_b32 v42, 2, v1')
    a(f's_and_b32 s5, s{S_VID}, 31')
    a('s_lshl_b32 s5, s5, 2')
    a('v_mov_b32 v43, s5')
    a(f's_lshr_b32 s5, s{S_VID}, 5')
    a('s_lshl_b32 s5, s5, 2')
    a('v_lshl_add_u32 v48, v1, 7, s5')
    a('v_lshlrev_b32 v16, 4, v1')
    a('v_lshrrev_b32 v4, 3, v1')
    a('v_and_b32 v5, 7, v1')
    a(f'v_mul_u32_u24 v4, {43*KB}, v4')
    a('v_lshl_add_u32 v49, v5, 7, v4')
    a('v_lshlrev_b32 v50, 7, v1')
    a('v_and_b32 v4, 3, v1')
    a('v_lshlrev_b32 v4, 6, v4')
    a('v_and_b32 v5, 60, v1')
    a('v_add_u32 v55, v4, v5')
    ksync = 0
    for pi, p in enumerate(phases):
        nA = p.RT // 2
        per2 = 2 * nA
        NC, DC = p.NC, p.DC
        assert p.NCH >= DC + p.lag and (DC - 1) * per2 <= 63
        phase_map(a, p)
        if p.ph == 1:
            a('s_lshl_b32 s8, s12, 17')
            if p.L: a(f's_add_u32 s8, s8, {WS_X2}')
        elif p.ph == 3:
            a('s_lshl_b32 s8, s12, 17')
            a(f's_add_u32 s8, s8, {WS_X1[p.L]}')
        else:
            a(f's_mul_i32 s8, s12, {4*p.KSA*KB}')
            a(f's_add_u32 s8, s8, {WS_PQ[p.L] if p.ph == 2 else WS_H[p.L]}')
        if p.amode == 'F':
            a(f's_mul_i32 s10, s4, {p.KSA*KB}')
            a('s_add_u32 s10, s10, s8')
            a('v_lshl_add_u32 v8, v1, 4, s10')
            astep = 2 * p.KSA * KB
        else:
            a('v_lshrrev_b32 v4, 2, v1')
            a('v_and_b32 v5, 3, v1')
            a('v_sub_u32 v6, 4, v2')
            a('v_and_b32 v6, 3, v6')
            a('v_xor_b32 v5, v5, v6')
            a('v_lshlrev_b32 v4, 10, v4')
            a('v_lshl_add_u32 v8, v5, 4, v4')
            a('s_lshl_b32 s10, s4, 14')
            a('s_add_u32 s10, s10, s8')
            a('v_add_u32 v8, s10, v8')
            astep = 2 * 16 * KB
        for i in range(1, nA):
            a(f'v_add_u32 v{8+i}, {i*astep}, v8')
        a(f's_mul_i32 s6, s14, {p.strideA}')
        a('s_lshl_b32 s10, s4, 10')
        a(f's_add_u32 s10, s10, {RA0}')
        a('s_mov_b32 s5, s10')
        a(f's_add_u32 s11, s10, {p.NCH*p.cA}')
        a('s_mov_b32 s9, 0')
        spec = stouch_setup(a, p, 4, 2)
        if pi == 1: srd(a, SRD_A, S_WS, WS_BYTES)
        if p.ph == 3:
            a(f's_cmp_eq_u32 s{S_MEM}, 15')
            a(f's_cselect_b32 s{SRD_A+2}, 0, s{SRD_A+2}')
        if p.ph == 4:
            a(f's_mov_b32 s{SRD_A+2}, {WS_BYTES}')
        if p.stats:
            a('s_lshl_b32 s7, s12, 1')
            a('s_add_u32 s7, s7, s4')
            a('s_lshl_b32 s7, s7, 12')
            a(f's_add_u32 s7, s7, {WS_ST1[p.L] if p.ph == 3 else WS_ST2}')
        if pi > 0:
            prev = phases[pi - 1]
            kinds = ['t']
            if prev.ph == 1: kinds = ['g', 't'] if OPT.get('qlate', 1) else ['g']
            for kind in kinds:
                glob = (kind == 'g')
                tag = p.name + kind
                if glob:
                    a(f's_lshr_b32 s15, s{S_VID}, 5')
                    a('s_lshl_b32 s15, s15, 7')
                    a(f's_add_u32 s15, s15, {WS_SYNC + 14336 + prev.L*2048}')
                    a(f's_add_u32 s97, s15, 1024')
                else:
                    a(f's_lshl_b32 s15, s{S_TEAM}, 7')
                    a(f's_add_u32 s15, s15, {WS_SYNC + ksync*2048}')
                    ksync += 1
                ts(a, prev.name + '.preE' + kind)
                a('s_barrier')
                ts(a, prev.name + '.E' + kind)
                a('s_cmp_eq_u32 s3, 4')
                a(f's_cbranch_scc0 L_ns_{tag}')
                a.begin_opt()
                a('s_mov_b64 exec, 1')
                a(f's_cmp_eq_u32 s{S_HET}, 0')
                a(f's_cbranch_scc1 L_hom_{tag}')
                a.raw('    buffer_wbl2 sc1')
                a('s_waitcnt vmcnt(0)')
                vo = 43 if glob else 41
                a(f'buffer_store_dword v40, v{vo}, {S4(SRD_W)}, s15 offen sc1')
                a(f's_branch L_sg_{tag}')
                a.label(f'L_hom_{tag}')
                a(f'buffer_store_dword v40, v{vo}, {S4(SRD_W)}, s15 offen')
                a.label(f'L_sg_{tag}')
                a('s_mov_b64 exec, -1')
                if glob:
                    a(f's_and_b32 s85, s{S_VID}, 31')
                    a('s_cmp_eq_u32 s85, 0')
                    a(f's_cbranch_scc0 L_ns_{tag}')
                    poll(a, 'g' + tag, 44, 1, 42, f'{S4(SRD_W)}, s15', 0xffffffff)
                    a(f's_mov_b32 s85, {WS_SYNC + 14336 + prev.L*2048 + 1024}')
                    a('s_mov_b64 exec, 0xff')
                    a(f'buffer_store_dword v40, v48, {S4(SRD_W)}, s85 offen sc1')
                    a('s_mov_b64 exec, -1')
                a.end_opt()
                a.label(f'L_ns_{tag}')
                a.vm = []
                if glob: poll(a, tag, 44, 1, 42, f'{S4(SRD_W)}, s97', 0xff)
                else: poll(a, tag, 44, 1, 42, f'{S4(SRD_W)}, s15', 0xffff)
                ts(a, p.name + '.flag' + kind)
                if glob: a('s_barrier')
        if p.stats:
            for t in range(4):
                a(f'buffer_load_dwordx4 {R(20+4*t)}, v16, {S4(SRD_W)}, s7 offen offset:{t*KB} sc1')
            if p.st2:
                a(f's_add_u32 s7, s7, {128*KB}')
                for t in range(4):
                    a(f'buffer_load_dwordx4 {R(56+4*t)}, v16, {S4(SRD_W)}, s7 offen offset:{t*KB} sc1')
            if OPT.get('dbg1') and OPT.get('tsp') == p.name:
                tsl(a, p, 'iss')
                a('s_waitcnt vmcnt(0)')
                tsl(a, p, 'stl')
                a(f's_add_u32 m0, s5, 0')
                a(f'buffer_load_dwordx4 v8, {S4(SRD_A)}, s6 offen lds')
                a('s_waitcnt vmcnt(0)')
                tsl(a, p, 'a1')
                a(f'buffer_load_dwordx4 v9, {S4(SRD_A)}, s6 offen lds')
                a('s_waitcnt vmcnt(0)')
                tsl(a, p, 'a2')
        a.flush_hazards()
        a.loop_begin(f'L_li_{p.name}')
        if p.amode == 'R' and OPT.get('evenrot', 1):
            for i in range(nA):
                for kk in range(2):
                    a(f's_add_u32 m0, s5, {kk*p.sA + i*2*KB - kk*64}')
                    a(f'buffer_load_dwordx4 v{8+i}, {S4(SRD_A)}, s6 offen offset:{kk*64} lds')
            a(f's_add_u32 s6, s6, {2*p.strideA}')
            a(f's_cmp_eq_u32 s6, {2*NC*p.strideA}')
            a('s_cselect_b32 s6, 0, s6')
        for kk in range(0 if (p.amode == 'R' and OPT.get('evenrot', 1)) else 2):
            sa = 's6'
            if p.padk:
                a(f's_cmp_eq_u32 s6, {p.NKreal*p.strideA}')
                a(f's_cselect_b32 s8, 0x10000000, s6')
                sa = 's8'
            for i in range(nA):
                a(f's_add_u32 m0, s5, {kk*p.sA + i*2*KB}')
                a(f'buffer_load_dwordx4 v{8+i}, {S4(SRD_A)}, {sa} offen {OPT.get("amod", "")} lds')
            a(f's_add_u32 s6, s6, {p.strideA}')
            a(f's_cmp_eq_u32 s6, {2*NC*p.strideA}')
            a('s_cselect_b32 s6, 0, s6')
        a(f's_add_u32 s5, s5, {p.cA}')
        a('s_cmp_eq_u32 s5, s11')
        a('s_cselect_b32 s5, s10, s5')
        a('s_add_u32 s9, s9, 1')
        apro = p.lag if OPT.get('apro', 0) & (1 << pi) else 0
        assert (DC + apro - 1) * per2 <= 63
        a(f's_cmp_lt_u32 s9, {DC + apro}')
        a(f's_cbranch_scc1 L_li_{p.name}')
        if apro:
            a(f's_cmp_eq_u32 s9, {DC+apro}')
            a(f's_cbranch_scc0 L_lp_{p.name}')
            for x in range(apro):
                a(f's_waitcnt vmcnt({(DC+apro-1-x)*per2})')
                tsl(a, p, 'pre')
                a('s_barrier')
            a.label(f'L_lp_{p.name}')
        stouch(a, spec, 9)
        a(f's_waitcnt vmcnt({(DC-1)*per2})')
        tsl(a, p, 'pre')
        a('s_barrier')
        a(f's_cmp_lt_u32 s9, {NC}')
        a(f's_cbranch_scc1 L_li_{p.name}')
        a.loop_end_check()
        a.vm = []
        nt = 0
        vt = OPT.get('vtouch', 7)
        if p.name == 's1l0' and vt & 1:
            a(f's_mul_i32 s53, s12, {8*43*KB}')
            a('s_lshl_b32 s54, s13, 10')
            a('s_add_u32 s53, s53, s54')
            a(f's_add_u32 s53, s53, {WS_PQ[0]}')
            a(f's_lshl_b32 s54, s{S_VID}, 13')
            a(f's_add_u32 s54, s54, {WS_X1[0]}')
            a('s_cmp_eq_u32 s4, 0')
            a('s_cselect_b32 s53, s53, s54')
            a('s_cselect_b64 vcc, -1, 0')
            a('v_cndmask_b32 v51, v50, v49, vcc')
            a(f'buffer_load_dword v52, v51, {S4(SRD_W)}, s53 offen sc1')
            a(f's_lshl_b32 s54, s{S_VID}, 9')
            a(f's_add_u32 s54, s54, {WS_ST1[0]}')
            a('s_lshl_b32 s53, s4, 17')
            a('s_add_u32 s54, s54, s53')
            a('s_mov_b64 exec, 15')
            a(f'buffer_load_dword v53, v50, {S4(SRD_W)}, s54 offen sc1')
            a('s_mov_b64 exec, -1')
            nt = 2
        if pi == 0:
            a(f'buffer_load_dword v54, v42, {S4(SRD_M)}, 0 offen sc1')
            nt += 1
        if p.name == 's1l0' and OPT.get('pretouch', 65) & 8:
            a('s_cmp_eq_u32 s4, 0')
            a('s_cselect_b32 s%d, s%d, 0' % (SB_WO + 2, SB_WO + 2))
            a('s_cselect_b32 s%d, s%d, 0' % (SB_WG + 2, SB_WG + 2))
            a('s_cselect_b32 s%d, 0, s%d' % (SB_WU + 2, SB_WU + 2))
            a('s_cselect_b32 s%d, 0, s%d' % (SB_WD + 2, SB_WD + 2))
            late_touch(a, 50)
            nt += 4
        if p.ph == 3 and vt & (2 << p.L):
            a(f's_mul_i32 s53, s12, {8*43*KB}')
            a(f's_mul_i32 s54, s13, {3*KB}')
            a('s_add_u32 s53, s53, s54')
            a(f's_add_u32 s53, s53, {WS_H[p.L]}')
            a('s_lshl_b32 s54, s4, 10')
            a('s_add_u32 s54, s54, s53')
            a(f'buffer_load_dword v52, v49, {S4(SRD_W)}, s54 offen sc1')
            a('s_cmp_eq_u32 s4, 0')
            a('s_cselect_b32 exec_lo, -1, 0')
            a('s_cselect_b32 exec_hi, 0, -1')
            a(f'buffer_load_dword v53, v49, {S4(SRD_W)}, s53 offen offset:2048 sc1')
            a('s_mov_b64 exec, -1')
            nt = 2
        a.vm = []
        if p.stats:
            if p.st2:
                for t in range(8):
                    a(pk('v_pk_add_f32', 20 + 2 * t, 20 + 2 * t, 56 + 2 * t))
            for t in range(4):
                a(pk('v_pk_add_f32', 20 + 4 * t, 20 + 4 * t, 22 + 4 * t))
            a('v_and_b32 v17, 1, v1')
            a('v_cmp_eq_u32 vcc, 1, v17')
            for t in range(4):
                for e in range(2):
                    r = 20 + 4 * t + e
                    a(f'v_add_f32_dpp v{r}, v{r}, v{r} quad_perm:[1,0,3,2] row_mask:0xf bank_mask:0xf')
            for h in range(2):
                for e in range(2):
                    a(f'v_cndmask_b32 v{20+8*h+e}, v{20+8*h+e}, v{24+8*h+e}, vcc')

            def stats2():
                a('v_and_b32 v17, 2, v1')
                a('v_cmp_eq_u32 vcc, 2, v17')
                for h in range(2):
                    for e in range(2):
                        r = 20 + 8 * h + e
                        a(f'v_add_f32_dpp v{r}, v{r}, v{r} quad_perm:[2,3,0,1] row_mask:0xf bank_mask:0xf')
                for e in range(2):
                    a(f'v_cndmask_b32 v{20+e}, v{20+e}, v{28+e}, vcc')
                stats_finish(a, 20, 21, 22, 23, 17)
                a('s_lshl_b32 s8, s4, 8')
                a(f's_add_u32 s8, s8, {p.STB}')
                a('v_add_u32 v18, s8, v55')
                a(f'ds_write_b32 v18, v22')
                a(f'ds_write_b32 v18, v23 offset:512')
                a('s_waitcnt lgkmcnt(0)')
        for r in range(1, DC):
            if spec and max(x[1] for x in spec) + 1 >= NC - DC + 1 + r:
                a('s_add_u32 s9, s9, 1')
                stouch(a, spec, 9)
            a(f's_waitcnt vmcnt({(DC-1-r)*per2 + nt})')
            tsl(a, p, 'pre')
            a('s_barrier')
        a.vm = []
        if p.final: break
        if p.stats: stats2()
        a('s_barrier')
        if pi == 0:
            a(f's_mov_b32 s84, {SPIN}')
            a('s_mov_b32 s52, 0x06060606')
            a('s_mov_b32 s53, 0x06060606')
            a(f's_lshr_b32 s94, s{S_TEAM}, 1')
            a('s_lshl_b32 s94, s94, 3')
            a('s_waitcnt vmcnt(0)')
            a('s_branch L_het1')
            a.label('L_het')
            a('s_sleep 2')
            a(f'buffer_load_dword v54, v42, {S4(SRD_M)}, 0 offen sc1')
            a('s_waitcnt vmcnt(0)')
            a.label('L_het1')
            a('s_sub_u32 s84, s84, 1')
            a(f's_mov_b32 s{S_HET}, 1')
            a('s_cbranch_scc1 L_het_done')
            a('v_cmp_eq_u32 vcc, 0, v54')
            a('v_readlane_b32 s95, v54, s94')
            a('s_nop 0')
            a('s_and_b64 s[54:55], vcc, s[52:53]')
            a('s_cbranch_scc1 L_het')
            if not OPT.get('fakexcc', 0):
                a(f's_mov_b32 s{S_HET}, 0')
                a('s_cmp_ge_u32 s95, 32')
                a('s_cbranch_scc1 L_het_done')
                a(f's_mov_b32 s{S_HET}, 1')
                for i in range(8):
                    a(f'v_readlane_b32 s{86+i}, v54, {8*i}')
                a('s_add_u32 s85, s86, s87')
                for i in range(2, 8):
                    a(f's_add_u32 s85, s85, s{86+i}')
                a('s_cmp_ge_u32 s85, 256')
                a('s_cbranch_scc0 L_het')
            a.label('L_het_done')
            a.vm = []
        for _ in range(p.nX): a('s_barrier')
    ts_flush(a)
    a('s_endpgm')
    a.fresh()


def comp_s1(a, p):
    name = p.name; L = p.L
    STB = p.STB
    ZB = SCR + 8 * KB
    first = (L == 0)
    KVB = WS_KV + L * 65536
    ACQ, ACK, ACV = 64, 80, 96
    SS, SG, CS = 112, 120, 128
    FR = 152
    ONES = 216
    fixed = [8, 9, 10]; cur = [11, 12, 13]
    vX, vW0, vW1 = cur
    vKVa, vZa, vT, vDb = 17, 18, 20, 21
    phase_map(a, p)
    a('s_lshl_b32 s4, s3, 11')
    a(f's_add_u32 s4, s4, {RA0}')
    xbase(a, 8, 4, p.amode)
    wpat(a, 9, 10)
    a('s_lshl_b32 s5, s13, 11')
    a('s_lshl_b32 s6, s3, 9')
    a('s_add_u32 s5, s5, s6')
    a(f's_add_u32 s5, s5, {KVB}')
    a(f'v_lshl_add_u32 v{vKVa}, v1, 2, s5')
    a('s_lshl_b32 s5, s13, 7')
    a(f's_add_u32 s5, s5, {KVB + 32768}')
    a(f'v_lshl_add_u32 v{vZa}, v1, 2, s5')
    a('v_lshlrev_b32 v14, 4, v2')
    a(f'v_add_u32 v14, {CS1L}, v14')
    a('v_lshlrev_b32 v15, 2, v3')
    a(f'v_add_u32 v15, {CS1L}, v15')
    if first:
        a('v_lshrrev_b32 v4, 1, v1')
        a('v_and_b32 v5, 1, v1')
        a('v_lshlrev_b32 v4, 5, v4')
        a('v_lshl_add_u32 v4, v5, 2, v4')
        a(f'v_add_u32 v{vDb}, 4, v4')
    a('s_lshl_b32 s7, s12, 3')
    a('s_lshl_b32 s5, s3, 1')
    a('s_add_u32 s7, s7, s5')
    a('s_mul_i32 s7, s7, 43')
    a('s_add_u32 s7, s7, s13')
    a('s_lshl_b32 s7, s7, 10')
    a(f's_add_u32 s7, s7, {WS_PQ[L]}')
    if OPT.get('otouch', 0):
        a('v_lshrrev_b32 v4, 3, v1')
        a('v_and_b32 v5, 7, v1')
        a(f'v_mul_u32_u24 v4, {43*KB}, v4')
        a('v_lshl_add_u32 v252, v5, 7, v4')
        p.touch = ['s_mov_b64 exec, 0xffff', f'buffer_load_dword v254, v252, {S4(SRD_W)}, s7 offen sc1', 's_mov_b64 exec, -1']
    for i in range(4): a(f'v_mov_b32 v{ONES+i}, 0x3f803f80')
    for r in range(64, 152 if first else 112): a(f'v_mov_b32 v{r}, 0')
    if first and OPT.get('lateinit', 1):
        a('s_cmp_eq_u32 s3, 1')
        a('s_cbranch_scc0 L_noif')
        a('s_cmp_lt_u32 s2, 16')
        a('s_cbranch_scc0 L_noif')
        a.begin_opt()
        init_flag(a)
        a.end_opt()
        a.label('L_noif')
        a.vm = []
    if first and OPT.get('pretouch', 65) & 16:
        a('v_lshlrev_b32 v22, 7, v1')
        p.touch = ['LATE']

    def fx(s, t): return FR + 32 * s + 4 * t
    def fw(s, q, u): return FR + 32 * s + 8 + 4 * (2 * q + u)

    def reads(s, kk):
        l = [rd128(fx(s, 0), vX, kk * p.sA), rd128(fx(s, 1), vX, kk * p.sA + KB)]
        for q in range(3):
            for u in range(2):
                for h in range(2):
                    l.append(rdtr(fw(s, q, u) + 2 * h, vW1 if u else vW0, kk * p.sB + (2 * q + h) * KB))
        return l

    def mfmas(s):
        l = []
        if first:
            for t in range(2):
                l.append(f'{MF} {R(SS+4*t)}, {R(ONES)}, {R(fx(s,t))}, {R(SS+4*t)}')
                l.append(f'{MF} {R(SG+4*t)}, {R(fx(s,t))}, {R(fx(s,t))}, {R(SG+4*t)}')
        for u in range(2):
            for t in range(2):
                d = ACQ + 8 * t + 4 * u
                l.append(f'{MF} {R(d)}, {R(fw(s,0,u))}, {R(fx(s,t))}, {R(d)}')
            if first:
                l.append(f'{MF} {R(CS+4*u)}, {R(fw(s,0,u))}, {R(ONES)}, {R(CS+4*u)}')
        for q, AC in ((1, ACK), (2, ACV)):
            for u in range(2):
                for t in range(2):
                    d = AC + 8 * u + 4 * t
                    l.append(f'{MF} {R(d)}, {R(fx(s,t))}, {R(fw(s,q,u))}, {R(d)}')
                if first:
                    l.append(f'{MF} {R(CS+8*q+4*u)}, {R(ONES)}, {R(fw(s,q,u))}, {R(CS+8*q+4*u)}')
        return l

    loop_big(a, p, fixed, cur, reads, mfmas, per=1 if first else 2)
    MEAN, RSTD = 32, 34
    MT, RT_, RTL = 36, 44, 52
    a('s_lshl_b32 s4, s3, 7')
    a(f's_add_u32 s4, s4, {STB}')
    a(f'v_lshl_add_u32 v6, v3, 2, s4')
    a(f'v_lshl_add_u32 v7, v2, 4, s4')
    if first:
        a('v_and_b32 v4, 3, v3')
        a('v_cmp_eq_u32 s[52:53], 1, v4')
        a('v_cmp_eq_u32 s[54:55], 2, v4')
        a('v_cmp_eq_u32 s[56:57], 3, v4')
        a('v_lshrrev_b32 v4, 2, v3')
        a('v_cmp_eq_u32 vcc, v4, v2')
        for t in range(2):
            a(f'v_cndmask_b32 v{SG+4*t}, v{SG+4*t}, v{SG+4*t+1}, s[52:53]')
            a(f'v_cndmask_b32 v{SG+4*t}, v{SG+4*t}, v{SG+4*t+2}, s[54:55]')
            a(f'v_cndmask_b32 v{SG+4*t}, v{SG+4*t}, v{SG+4*t+3}, s[56:57]')
        for t in range(2):
            stats_finish(a, SS + 4 * t, SG + 4 * t, MEAN + t, RSTD + t, 4 + t)
        a('s_mov_b64 exec, vcc')
        for t in range(2):
            a(f'ds_write_b32 v6, v{MEAN+t} offset:{64*t}')
            a(f'ds_write_b32 v6, v{RSTD+t} offset:{512+64*t}')
        a('s_mov_b64 exec, -1')
        for u in range(2):
            a(f'ds_write_b128 v14, {R(CS+4*u)} offset:{64*u}')
            a(f'ds_write_b32 v15, v{CS+8+4*u} offset:{128+64*u}')
            a(f'ds_write_b32 v15, v{CS+16+4*u} offset:{256+64*u}')
        a('s_waitcnt lgkmcnt(0)')
    else:
        for u in range(2):
            a(f'ds_read_b32 v{CS+8+4*u}, v15 offset:{128+64*u}')
            a(f'ds_read_b32 v{CS+16+4*u}, v15 offset:{256+64*u}')
    for t in range(2):
        a(f'ds_read_b128 {R(MT+4*t)}, v7 offset:{64*t}')
        a(f'ds_read_b128 {R(RT_+4*t)}, v7 offset:{512+64*t}')
    for t in range(2):
        a(f'ds_read_b32 v{MEAN+t}, v6 offset:{64*t}')
        a(f'ds_read_b32 v{RSTD+t}, v6 offset:{512+64*t}')
    if not first:
        for u in range(2):
            a(f'ds_read_b128 {R(CS+4*u)}, v14 offset:{64*u}')
    CONE, CEPS, CL2E = 60, 61, 62
    a(f'v_mov_b32 v{CONE}, 1.0')
    a(f'v_mov_b32 v{CEPS}, {hex(f2u(1e-6))}')
    a(f'v_mov_b32 v{CL2E}, {hex(f2u(LOG2E))}')
    RFL = 24
    for i in range(0, 8, 2):
        a(pk('v_pk_mul_f32', RTL + i, RT_ + i, CL2E, b1=0))
    T = FR

    def phi_pairs(items):
        for i, (ac, m, cs, r, rl, dst) in enumerate(items):
            a(pk('v_pk_fma_f32', ac, m[0], cs[0], ac, b0=m[1], b1=cs[1], neg0=True))
        for i, (ac, m, cs, r, rl, dst) in enumerate(items):
            a(pk('v_pk_mul_f32', T + 2 * i, ac, rl[0], b1=rl[1]))
        for i, (ac, m, cs, r, rl, dst) in enumerate(items):
            a(f'v_exp_f32 v{T+2*i}, v{T+2*i} clamp')
            a(f'v_exp_f32 v{T+2*i+1}, v{T+2*i+1} clamp')
            a(pk('v_pk_fma_f32', ac, ac, r[0], CONE, b1=r[1], b2=0))
        for i, (ac, m, cs, r, rl, dst) in enumerate(items):
            a(f'v_max_f32 v{ac}, v{ac}, v{T+2*i}')
            a(f'v_max_f32 v{ac+1}, v{ac+1}, v{T+2*i+1}')
        for i, (ac, m, cs, r, rl, dst) in enumerate(items):
            a(pk('v_pk_add_f32', ac, ac, CEPS, b1=0))
        for i, (ac, m, cs, r, rl, dst) in enumerate(items):
            a(f'v_cvt_pk_bf16_f32 v{dst}, v{ac}, v{ac+1}')

    PK_, PV, PQ = FR + 16, FR + 24, FR + 32
    items = []
    for u in range(2):
        for t in range(2):
            for hh in range(2):
                items.append((ACK + 8 * u + 4 * t + 2 * hh, (MT + 4 * t + 2 * hh, None), (CS + 8 + 4 * u, 0),
                              (RT_ + 4 * t + 2 * hh, None), (RTL + 4 * t + 2 * hh, None), PK_ + 4 * u + 2 * t + hh))
    phi_pairs(items)
    vi = [(u, t, hh) for u in range(2) for t in range(2) for hh in range(2)]
    for u, t, hh in vi:
        ac = ACV + 8 * u + 4 * t + 2 * hh
        a(pk('v_pk_fma_f32', ac, MT + 4 * t + 2 * hh, CS + 16 + 4 * u, ac, b1=0, neg0=True))
    for u, t, hh in vi:
        ac = ACV + 8 * u + 4 * t + 2 * hh
        a(pk('v_pk_mul_f32', ac, ac, RT_ + 4 * t + 2 * hh))
    for u, t, hh in vi:
        ac = ACV + 8 * u + 4 * t + 2 * hh
        a(f'v_cvt_pk_bf16_f32 v{PV+4*u+2*t+hh}, v{ac}, v{ac+1}')
    KD, ZD = FR + 40, FR + 48
    for u in range(2):
        a(f'{MF} {R(KD+4*u)}, {R(PK_+4*u)}, {R(PV+4*u)}, 0')
        a(f'{MF} {R(ZD+4*u)}, {R(PK_+4*u)}, {R(ONES)}, 0')
    for t in range(2):
        a(f'v_mul_f32 v{RFL+t}, v{CL2E}, v{RSTD+t}')
    a('s_lshl_b32 s4, s3, 11')
    a(f's_add_u32 s4, s4, {SCR}')
    a(f'v_lshl_add_u32 v6, v1, 4, s4')
    a('s_lshl_b32 s4, s3, 7')
    a(f's_add_u32 s4, s4, {ZB}')
    a(f'v_lshl_add_u32 v7, v2, 4, s4')
    for u in range(2):
        a(f'ds_write_b128 v6, {R(KD+4*u)} offset:{u*KB}')
    a('s_mov_b32 exec_lo, 0x00010001')
    a('s_mov_b32 exec_hi, 0x00010001')
    for u in range(2):
        a(f'ds_write_b128 v7, {R(ZD+4*u)} offset:{u*64}')
    a('s_mov_b64 exec, -1')
    a('s_lshl_b32 s4, s3, 9')
    a(f's_add_u32 s4, s4, {SCR}')
    a(f'v_lshl_add_u32 v6, v1, 2, s4')
    a(f'v_and_b32 v7, 31, v1')
    a(f'v_lshlrev_b32 v7, 2, v7')
    a(f'v_add_u32 v7, {ZB}, v7')
    if first:
        a('s_cmp_eq_u32 s3, 0')
        a(f's_cbranch_scc0 L_go_{name}')
        sv = list(a.lds)
        poll(a, 'init', vT, 1, vDb, f'{S4(SRD_M)}, 0', 0xffff)
        a.label(f'L_go_{name}')
    a('s_waitcnt lgkmcnt(0)')
    a('s_barrier')
    RD = FR + 40
    for i in range(2):
        for w in range(4):
            a(f'ds_read_b32 v{RD+4*i+w}, v6 offset:{w*2048+i*256}')
    for w in range(4):
        a(f'ds_read_b32 v{RD+8+w}, v7 offset:{w*128}')
    items = []
    for t in range(2):
        for u in range(2):
            for hh in range(2):
                items.append((ACQ + 8 * t + 4 * u + 2 * hh, (MEAN + t, 0), (CS + 4 * u + 2 * hh, None),
                              (RSTD + t, 0), (RFL + t, 0), PQ + 4 * t + 2 * u + hh))
    for i in range(3):
        a(f'v_add_f32 v{RD+4*i}, v{RD+4*i}, v{RD+4*i+1}')
        a(f'v_add_f32 v{RD+4*i+2}, v{RD+4*i+2}, v{RD+4*i+3}')
    for i in range(3):
        a(f'v_add_f32 v{RD+4*i}, v{RD+4*i}, v{RD+4*i+2}')
    for i in range(2):
        a(f'buffer_atomic_add_f32 v{RD+4*i}, v{vKVa}, {S4(SRD_W)}, 0 offen offset:{i*256}')
    a('s_cmp_eq_u32 s3, 0')
    a(f's_cbranch_scc0 L_nz_{name}')
    a.begin_opt()
    a('s_mov_b32 exec_hi, 0')
    a(f'buffer_atomic_add_f32 v{RD+8}, v{vZa}, {S4(SRD_W)}, 0 offen')
    a('s_mov_b64 exec, -1')
    a.end_opt()
    a.label(f'L_nz_{name}')
    a.vm = []
    phi_pairs(items[:4])
    a(f's_add_u32 s5, s7, {43*KB}')
    a('v_lshlrev_b32 v6, 4, v1')
    a(f'buffer_store_dwordx4 {R(PQ)}, v6, {S4(SRD_W)}, s7 offen {stmod()}')
    phi_pairs(items[4:])
    a(f'buffer_store_dwordx4 {R(PQ+4)}, v6, {S4(SRD_W)}, s5 offen {stmod()}')
    end_phase(a, p)


def comp_s1q(a, p):
    name = p.name; L = p.L
    STB = p.STB
    ZB = SCR + 8 * KB
    CSX = RA0
    first = (L == 0)
    KVB = WS_KV + L * 65536
    ONES = 24
    MEAN, RSTD = 28, 26 + 64 + 4
    ACK, ACV, BF = 32, 48, 64
    SS, SG, CS = 96, 104, 112
    AF = 128
    vKVa, vZa, vT, vDb = 17, 18, 20, 21
    phase_map(a, p)
    a('s_lshl_b32 s4, s3, 11')
    a(f's_add_u32 s4, s4, {RA0}')
    xbase(a, 8, 4, p.amode)
    wpat(a, 9, 10)
    a(f'v_add_u32 v11, {48*KB}, v9')
    a(f'v_add_u32 v12, {48*KB}, v10')
    a('s_lshl_b32 s10, s13, 11')
    a(f's_add_u32 s10, s10, {KVB}')
    a('s_lshl_b32 s6, s3, 9')
    a('s_add_u32 s5, s10, s6')
    a(f'v_lshl_add_u32 v{vKVa}, v1, 2, s5')
    a('s_lshl_b32 s11, s13, 7')
    a(f's_add_u32 s11, s11, {KVB + 32768}')
    a(f'v_lshl_add_u32 v{vZa}, v1, 2, s11')
    a('v_lshlrev_b32 v14, 4, v2')
    a(f'v_add_u32 v14, {CS1L}, v14')
    a('v_lshlrev_b32 v15, 2, v3')
    a(f'v_add_u32 v15, {CS1L}, v15')
    if first:
        a('v_lshrrev_b32 v4, 1, v1')
        a('v_and_b32 v5, 1, v1')
        a('v_lshlrev_b32 v4, 5, v4')
        a('v_lshl_add_u32 v4, v5, 2, v4')
        a(f'v_add_u32 v{vDb}, 4, v4')
    a('s_lshl_b32 s7, s12, 3')
    a('s_lshl_b32 s5, s3, 1')
    a('s_add_u32 s7, s7, s5')
    a('s_mul_i32 s7, s7, 43')
    a('s_add_u32 s7, s7, s13')
    a('s_lshl_b32 s7, s7, 10')
    a(f's_add_u32 s7, s7, {WS_PQ[L]}')
    for i in range(4): a(f'v_mov_b32 v{ONES+i}, 0x3f803f80')
    if first:
        for r in range(CS, CS + 16): a(f'v_mov_b32 v{r}, 0')
        a('s_cmp_eq_u32 s3, 1')
        a('s_cbranch_scc0 L_noif')
        a('s_cmp_lt_u32 s2, 16')
        a('s_cbranch_scc0 L_noif')
        a.begin_opt()
        init_flag(a)
        a.end_opt()
        a.label('L_noif')
        a.vm = []

    def af(ks, t): return AF + 8 * ks + 4 * t
    def fw(ks, q, u): return BF + 16 * (ks & 1) + 8 * q + 4 * u
    def wr(dst, u, pos):
        pos %= RB_SZ
        return rdtr(dst, (9 + u) if pos < 48 * KB else (11 + u), pos if pos < 48 * KB else pos - 48 * KB)

    def reads(ks):
        oa = ((ks >> 1) % 3) * p.cA + (ks & 1) * p.sA
        l = [rd128(af(ks, 0), 8, oa)]
        for q in range(2):
            for u in range(2):
                for h in range(2):
                    l.append(wr(fw(ks, q, u) + 2 * h, u, p.b0 + ks * 4 * KB + (2 * q + h) * KB))
                if q == 0 and u == 0: l.append(rd128(af(ks, 1), 8, oa + KB))
        return l

    def mfmas(ks):
        l = []
        def c(d): return R(d) if ks else '0'
        for q, AC in ((0, ACK), (1, ACV)):
            for u in range(2):
                for t in range(2):
                    d = AC + 8 * u + 4 * t
                    l.append(f'{MF} {R(d)}, {R(af(ks,t))}, {R(fw(ks,q,u))}, {c(d)}')
            if first:
                t = q
                l.append(f'{MF} {R(SS+4*t)}, {R(ONES)}, {R(af(ks,t))}, {c(SS+4*t)}')
                l.append(f'{MF} {R(SG+4*t)}, {R(af(ks,t))}, {R(af(ks,t))}, {c(SG+4*t)}')
        if first:
            def csblk():
                lab = f'L_cs{ks}_{name}'
                a(f's_cmp_eq_u32 s3, {ks & 3}')
                a(f's_cbranch_scc0 {lab}')
                a.begin_opt()
                for q in range(2):
                    for u in range(2):
                        d = CS + 8 * q + 4 * u
                        a(f'{MF} {R(d)}, {R(ONES)}, {R(fw(ks,q,u))}, {R(d)}')
                a.end_opt()
                a.label(lab)
            l.append(csblk)
        return l

    ts(a, name + '.preP0')
    a('s_barrier')
    ts(a, name + '.P0')
    for t in reads(0): a(t)
    per = 1 if first else 2
    for c in range(8):
        interleave(a, mfmas(2 * c), reads(2 * c + 1), per=per)
        a.wait_lds_all()
        tsl(a, p, 'pre')
        a('s_barrier')
        tsl(a, p, 'post')
        interleave(a, mfmas(2 * c + 1), reads(2 * c + 2) if c < 7 else [], per=per)
    ts(a, name + '.loopend')
    MT, RT_, RTL = 64, 72, 80
    CONE, CEPS, CL2E = 88, 89, 90
    RFL = 92
    T = 96
    CK = [CS, CS + 4]; CV = [CS + 8, CS + 12]
    a('s_lshl_b32 s4, s3, 7')
    a(f's_add_u32 s4, s4, {STB}')
    a(f'v_lshl_add_u32 v6, v3, 2, s4')
    a(f'v_lshl_add_u32 v7, v2, 4, s4')
    if first:
        a('s_lshl_b32 s5, s3, 2')
        a(f's_add_u32 s5, s5, {CSX}')
        a('v_lshl_add_u32 v13, v3, 4, s5')
        a('v_and_b32 v4, 3, v3')
        a('v_cmp_eq_u32 s[52:53], 1, v4')
        a('v_cmp_eq_u32 s[54:55], 2, v4')
        a('v_cmp_eq_u32 s[56:57], 3, v4')
        a('v_lshrrev_b32 v4, 2, v3')
        a('v_cmp_eq_u32 vcc, v4, v2')
        for i in range(4):
            a(f'ds_write_b32 v13, v{CS+4*i} offset:{256*i}')
        for t in range(2):
            a(f'v_cndmask_b32 v{SG+4*t}, v{SG+4*t}, v{SG+4*t+1}, s[52:53]')
            a(f'v_cndmask_b32 v{SG+4*t}, v{SG+4*t}, v{SG+4*t+2}, s[54:55]')
            a(f'v_cndmask_b32 v{SG+4*t}, v{SG+4*t}, v{SG+4*t+3}, s[56:57]')
        for t in range(2):
            stats_finish(a, SS + 4 * t, SG + 4 * t, MEAN + t, RSTD + t, 4 + t)
        a('s_mov_b64 exec, vcc')
        for t in range(2):
            a(f'ds_write_b32 v6, v{MEAN+t} offset:{64*t}')
            a(f'ds_write_b32 v6, v{RSTD+t} offset:{512+64*t}')
        a('s_mov_b64 exec, -1')
        a('v_lshlrev_b32 v13, 4, v3')
        a(f'v_add_u32 v13, {CSX}, v13')
        a('s_waitcnt lgkmcnt(0)')
        a('s_barrier')
        for i in range(4):
            a(f'ds_read_b128 {R(CS+4*i)}, v13 offset:{256*i}')
    else:
        for u in range(2):
            a(f'ds_read_b32 v{CK[u]}, v15 offset:{128+64*u}')
            a(f'ds_read_b32 v{CV[u]}, v15 offset:{256+64*u}')
    for t in range(2):
        a(f'ds_read_b128 {R(MT+4*t)}, v7 offset:{64*t}')
        a(f'ds_read_b128 {R(RT_+4*t)}, v7 offset:{512+64*t}')
    for t in range(2):
        a(f'ds_read_b32 v{MEAN+t}, v6 offset:{64*t}')
        a(f'ds_read_b32 v{RSTD+t}, v6 offset:{512+64*t}')
    a(f'v_mov_b32 v{CONE}, 1.0')
    a(f'v_mov_b32 v{CEPS}, {hex(f2u(1e-6))}')
    a(f'v_mov_b32 v{CL2E}, {hex(f2u(LOG2E))}')
    if first:
        for i in range(4):
            a(pk('v_pk_add_f32', CS + 4 * i, CS + 4 * i, CS + 4 * i + 2))
        for i in range(4):
            a(f'v_add_f32 v{CS+4*i}, v{CS+4*i}, v{CS+4*i+1}')
        for u in range(2):
            a(f'ds_write_b32 v15, v{CK[u]} offset:{128+64*u}')
            a(f'ds_write_b32 v15, v{CV[u]} offset:{256+64*u}')
    for i in range(0, 8, 2):
        a(pk('v_pk_mul_f32', RTL + i, RT_ + i, CL2E, b1=0))

    def phi_pairs(items, T):
        for i, (ac, m, cs, r, rl, dst) in enumerate(items):
            a(pk('v_pk_fma_f32', ac, m[0], cs[0], ac, b0=m[1], b1=cs[1], neg0=True))
        for i, (ac, m, cs, r, rl, dst) in enumerate(items):
            a(pk('v_pk_mul_f32', T + 2 * i, ac, rl[0], b1=rl[1]))
        for i, (ac, m, cs, r, rl, dst) in enumerate(items):
            a(f'v_exp_f32 v{T+2*i}, v{T+2*i} clamp')
            a(f'v_exp_f32 v{T+2*i+1}, v{T+2*i+1} clamp')
            a(pk('v_pk_fma_f32', ac, ac, r[0], CONE, b1=r[1], b2=0))
        for i, (ac, m, cs, r, rl, dst) in enumerate(items):
            a(f'v_max_f32 v{ac}, v{ac}, v{T+2*i}')
            a(f'v_max_f32 v{ac+1}, v{ac+1}, v{T+2*i+1}')
        for i, (ac, m, cs, r, rl, dst) in enumerate(items):
            a(pk('v_pk_add_f32', ac, ac, CEPS, b1=0))
        for i, (ac, m, cs, r, rl, dst) in enumerate(items):
            a(f'v_cvt_pk_bf16_f32 v{dst}, v{ac}, v{ac+1}')

    PK_, PV = ACK, ACV
    vi = [(u, t, hh) for u in range(2) for t in range(2) for hh in range(2)]
    phi_pairs([(ACK + 8 * u + 4 * t + 2 * hh, (MT + 4 * t + 2 * hh, None), (CK[u], 0), (RT_ + 4 * t + 2 * hh, None),
                (RTL + 4 * t + 2 * hh, None), PK_ + 4 * u + 2 * t + hh) for u, t, hh in vi], T)
    for u, t, hh in vi:
        ac = ACV + 8 * u + 4 * t + 2 * hh
        a(pk('v_pk_fma_f32', ac, MT + 4 * t + 2 * hh, CV[u], ac, b1=0, neg0=True))
    for u, t, hh in vi:
        ac = ACV + 8 * u + 4 * t + 2 * hh
        a(pk('v_pk_mul_f32', ac, ac, RT_ + 4 * t + 2 * hh))
    for u, t, hh in vi:
        ac = ACV + 8 * u + 4 * t + 2 * hh
        a(f'v_cvt_pk_bf16_f32 v{PV+4*u+2*t+hh}, v{ac}, v{ac+1}')
    KD, ZD = T, T + 8
    for u in range(2):
        a(f'{MF} {R(KD+4*u)}, {R(PK_+4*u)}, {R(PV+4*u)}, 0')
        a(f'{MF} {R(ZD+4*u)}, {R(PK_+4*u)}, {R(ONES)}, 0')
    for t in range(2):
        a(f'v_mul_f32 v{RFL+t}, v{CL2E}, v{RSTD+t}')
    a('s_lshl_b32 s4, s3, 11')
    a(f's_add_u32 s4, s4, {SCR}')
    a(f'v_lshl_add_u32 v6, v1, 4, s4')
    a('s_lshl_b32 s4, s3, 7')
    a(f's_add_u32 s4, s4, {ZB}')
    a(f'v_lshl_add_u32 v7, v2, 4, s4')
    for u in range(2):
        a(f'ds_write_b128 v6, {R(KD+4*u)} offset:{u*KB}')
    a('s_mov_b32 exec_lo, 0x00010001')
    a('s_mov_b32 exec_hi, 0x00010001')
    for u in range(2):
        a(f'ds_write_b128 v7, {R(ZD+4*u)} offset:{u*64}')
    a('s_mov_b64 exec, -1')
    a('s_lshl_b32 s4, s3, 9')
    a(f's_add_u32 s4, s4, {SCR}')
    a(f'v_lshl_add_u32 v6, v1, 2, s4')
    a(f'v_and_b32 v7, 31, v1')
    a(f'v_lshlrev_b32 v7, 2, v7')
    a(f'v_add_u32 v7, {ZB}, v7')
    a('s_waitcnt lgkmcnt(0)')
    a('s_barrier')
    RD = 112
    for i in range(2):
        for w in range(4):
            a(f'ds_read_b32 v{RD+4*i+w}, v6 offset:{w*2048+i*256}')
    for w in range(4):
        a(f'ds_read_b32 v{RD+8+w}, v7 offset:{w*128}')
    for i in range(3):
        a(f'v_add_f32 v{RD+4*i}, v{RD+4*i}, v{RD+4*i+1}')
        a(f'v_add_f32 v{RD+4*i+2}, v{RD+4*i+2}, v{RD+4*i+3}')
    for i in range(3):
        a(f'v_add_f32 v{RD+4*i}, v{RD+4*i}, v{RD+4*i+2}')
    for i in range(2):
        a(f'buffer_atomic_add_f32 v{RD+4*i}, v{vKVa}, {S4(SRD_W)}, 0 offen offset:{i*256}')
    a('s_cmp_eq_u32 s3, 0')
    a(f's_cbranch_scc0 L_nz_{name}')
    a.begin_opt()
    a('s_mov_b32 exec_hi, 0')
    a(f'buffer_atomic_add_f32 v{RD+8}, v{vZa}, {S4(SRD_W)}, 0 offen')
    a('s_mov_b64 exec, -1')
    a.end_opt()
    a.label(f'L_nz_{name}')
    end_phase(a, p)
    ACQ, CQ = 32, 96
    def fq(ks, u): return BF + 8 * (ks & 1) + 4 * u
    def qreads(ks):
        return [wr(fq(ks, u) + 2 * h, u, p.b0q + ks * 2 * KB + h * KB) for u in range(2) for h in range(2)]
    def qm(ks):
        l = []
        def c(d): return R(d) if ks else '0'
        for u in range(2):
            for t in range(2):
                d = ACQ + 8 * t + 4 * u
                l.append(f'{MF} {R(d)}, {R(fq(ks,u))}, {R(af(ks,t))}, {c(d)}')
            if first: l.append(f'{MF} {R(CQ+4*u)}, {R(fq(ks,u))}, {R(ONES)}, {c(CQ+4*u)}')
        return l
    for t in qreads(0): a(t)
    if not first:
        for u in range(2):
            a(f'ds_read_b128 {R(CQ+4*u)}, v14 offset:{64*u}')
    for ks in range(16):
        interleave(a, qm(ks), qreads(ks + 1) if ks < 15 else [], per=1)
    if first:
        for u in range(2):
            a(f'ds_write_b128 v14, {R(CQ+4*u)} offset:{64*u}')
    PQ = ACQ
    phi_pairs([(ACQ + 8 * t + 4 * u + 2 * hh, (MEAN + t, 0), (CQ + 4 * u + 2 * hh, None), (RSTD + t, 0), (RFL + t, 0),
                PQ + 4 * t + 2 * u + hh) for t in range(2) for u in range(2) for hh in range(2)], 64)
    KVF, ZF, EPS4, N, OF = 128, 136, 140, 144, 176
    a('v_lshlrev_b32 v6, 4, v1')
    a('v_and_b32 v4, 1, v1')
    a('v_cmp_eq_u32 vcc, 1, v4')
    a('v_lshlrev_b32 v4, 6, v4')
    a('v_lshl_add_u32 v7, v2, 4, v4')
    for i in range(4): a(f'v_mov_b32 v{EPS4+i}, {hex(f2u(1e-6))}')
    a(f's_add_u32 s5, s7, {43*KB}')
    a.wait_lds_all()
    ts(a, name + '.preF')
    a('s_barrier')
    ts(a, name + '.F')
    a(f'buffer_load_dwordx4 {R(ZF)}, v7, {S4(SRD_W)}, s11 offen')
    for u in range(2):
        a(f'buffer_load_dwordx4 {R(KVF+4*u)}, v6, {S4(SRD_W)}, s10 offen offset:{u*KB}')
    a(f'v_cvt_pk_bf16_f32 v4, v{ZF}, v{ZF+1}')
    a(f'v_cvt_pk_bf16_f32 v5, v{ZF+2}, v{ZF+3}')
    a(f'v_cndmask_b32 v{ZF}, v4, 0, vcc')
    a(f'v_cndmask_b32 v{ZF+1}, v5, 0, vcc')
    a(f'v_cndmask_b32 v{ZF+2}, 0, v4, vcc')
    a(f'v_cndmask_b32 v{ZF+3}, 0, v5, vcc')
    for t in range(2):
        a(f'{MF} {R(N+12*t+8)}, {R(ZF)}, {R(PQ+4*t)}, {R(EPS4)}')
    for i in range(4):
        a(f'v_cvt_pk_bf16_f32 v{KVF+i}, v{KVF+2*i}, v{KVF+2*i+1}')
    for t in range(2):
        for u in range(2):
            a(f'{MF16} {R(N+12*t+4*u)}, {R(KVF+2*u,2)}, {R(PQ+4*t+2*u,2)}, 0')
    for t in range(2):
        dn = N + 12 * t + 8
        a(f'v_rcp_f32 v{dn}, v{dn}')
        a(f'v_rcp_f32 v{dn+1}, v{dn+1}')
    for t in range(2):
        n = N + 12 * t; o = OF + 4 * t; dn = n + 8
        for i in range(4): a(pk('v_pk_mul_f32', n + 2 * i, n + 2 * i, dn + (i >> 1), b1=0))
        for i in range(4): a(f'v_cvt_pk_bf16_f32 v{o+i}, v{n+2*i}, v{n+2*i+1}')
        a(f'buffer_store_dwordx4 {R(o)}, v6, {S4(SRD_W)}, s{5 if t else 7} offen {stmod()}')
    ts(a, name + '.o')
    a('s_waitcnt vmcnt(0)')
    ts(a, name + '.ovm')
    a('s_barrier')
    a.vm = []


def comp_s24(a, p):
    name = p.name; L = p.L
    att = (p.ph == 2)
    KVL, ZL, OUTL = 136 * KB, 152 * KB, SCR
    final = p.final
    res_rowmajor = (att and L == 0)
    res_off = (WS_X2 if att else WS_X1[L])
    out_off = (WS_X1[L] if att else WS_X2)
    st_off = WS_ST1[L] if att else WS_ST2
    ACC = 32
    FR = 48
    SETSZ = 56
    N = 160
    OF = 184
    EPS4, ONES = 192, 196
    RES = 24
    KVT = 200
    fixed = [8, 9, 10]; cur = [11, 12, 13]
    vX, vW0, vW1 = cur
    vKV, vZ = 14, 15
    phase_map(a, p)
    a('s_lshl_b32 s15, s12, 2')
    a('s_add_u32 s15, s15, s3')
    a('v_lshlrev_b32 v16, 4, v1')
    a('s_lshl_b32 s6, s15, 4')
    a('s_lshl_b32 s5, s13, 1')
    a('s_add_u32 s6, s6, s5')
    a('s_lshl_b32 s6, s6, 10')
    a(f's_add_u32 s7, s6, {res_off}')
    a(f's_add_u32 s6, s6, {out_off}')
    a('s_lshl_b32 s8, s15, 14')
    a('s_lshl_b32 s5, s13, 7')
    a('s_add_u32 s8, s8, s5')
    if final: srd(a, SRD_M, S_PTR + 14, 2048 * 1024)
    if res_rowmajor:
        a('v_lshlrev_b32 v4, 10, v3')
        a('v_lshl_add_u32 v17, v2, 3, v4')
        for T in range(4):
            a(f'buffer_load_dwordx2 {R(RES+2*T,2)}, v17, {S4(SRD_A)}, s8 offen offset:{32*T}')
    else:
        for i in range(2):
            a(f'buffer_load_dwordx4 {R(RES+4*i)}, v16, {S4(SRD_W)}, s7 offen offset:{i*KB}')
    if OPT.get('otouch', 0) and not final:
        a('v_lshlrev_b32 v252, 7, v1')
        p.touch = ['s_lshl_b32 s4, s15, 10', f's_add_u32 s4, s4, {st_off}', 's_mov_b64 exec, 0xffff',
                   f'buffer_load_dword v254, v252, {S4(SRD_W)}, s6 offen sc1', 's_mov_b64 exec, 0xff',
                   f'buffer_load_dword v253, v252, {S4(SRD_W)}, s4 offen sc1', 's_mov_b64 exec, -1']
    a('s_lshl_b32 s4, s3, 10')
    a(f's_add_u32 s4, s4, {RA0}')
    xbase(a, 8, 4, 'F')
    wpat(a, 9, 10)
    for i in range(4): a(f'v_mov_b32 v{ONES+i}, 0x3f803f80')
    if att:
        KVB = WS_KV + L * 65536
        a('v_and_b32 v18, 31, v1')
        a('s_lshl_b32 s11, s3, 9')
        a(f's_add_u32 s11, s11, {KVB + 32768}')
        a('v_lshlrev_b32 v18, 4, v18')
        for i in range(4): a(f'v_mov_b32 v{EPS4+i}, {hex(f2u(1e-6))}')
        a(f'v_add_u32 v{vKV}, {KVL}, v16')
        a(f'v_and_b32 v4, 1, v1')
        a(f'v_lshl_add_u32 v4, v2, 1, v4')
        a(f'v_lshlrev_b32 v4, 4, v4')
        a(f'v_add_u32 v{vZ}, {ZL}, v4')
        a('v_bfe_u32 v5, v1, 2, 1')
        a('v_cmp_eq_u32 vcc, 1, v5')
        a('v_bfe_u32 v6, v1, 3, 2')
        a('s_lshl_b32 s10, s3, 2')
        a('s_add_u32 s10, s10, 16')
        a('s_sub_u32 s10, s10, s14')
        a('v_add_u32 v6, s10, v6')
        a('v_and_b32 v6, 15, v6')
        a('v_lshlrev_b32 v6, 7, v6')
        a('v_and_b32 v7, 3, v1')
        a('v_lshl_add_u32 v7, v7, 1, v5')
        a('v_lshl_add_u32 v6, v7, 4, v6')
        a(f'v_add_u32 v6, {ZL}, v6')
        a('s_lshl_b32 s4, s3, 13')
        a(f's_add_u32 s4, s4, {KVB}')
        a(f's_add_u32 s5, s4, 4096')
    for T in range(4):
        for hh in range(2):
            a(f'v_lshlrev_b32 v{ACC+4*T+2*hh}, 16, v{RES+2*T+hh}')
            a(f'v_and_b32 v{ACC+4*T+2*hh+1}, 0xffff0000, v{RES+2*T+hh}')
    if att:
        ts(a, name + '.preF')
        a('s_barrier')
        ts(a, name + '.F')
        for i in range(8):
            a(f'buffer_load_dwordx4 {R(KVT+4*i)}, v16, {S4(SRD_W)}, s{4+i//4} offen offset:{(i%4)*KB}')
        a(f'buffer_load_dwordx4 {R(N)}, v18, {S4(SRD_W)}, s11 offen')
        for i in range(4):
            for hh in range(2):
                src = KVT + 8 * i + 4 * hh
                a(f'v_cvt_pk_bf16_f32 v{KVT+8*i+2*hh}, v{src}, v{src+1}')
                a(f'v_cvt_pk_bf16_f32 v{KVT+8*i+2*hh+1}, v{src+2}, v{src+3}')
            a(f's_add_u32 s5, s10, {i}')
            a('s_and_b32 s5, s5, 15')
            a('s_lshl_b32 s5, s5, 10')
            a(f'v_add_u32 v4, s5, v{vKV}')
            a(f'ds_write_b128 v4, {R(KVT+8*i)}')
        a(f'v_cvt_pk_bf16_f32 v{N+4}, v{N}, v{N+1}')
        a(f'v_cvt_pk_bf16_f32 v{N+5}, v{N+2}, v{N+3}')
        a(f'v_cndmask_b32 v{N+8}, v{N+4}, 0, vcc')
        a(f'v_cndmask_b32 v{N+9}, v{N+5}, 0, vcc')
        a(f'v_cndmask_b32 v{N+10}, 0, v{N+4}, vcc')
        a(f'v_cndmask_b32 v{N+11}, 0, v{N+5}, vcc')
        a(f'ds_write_b128 v6, {R(N+8)}')

    def fx(s, kk): return FR + SETSZ * s + 4 * kk
    def fkv(s, kk): return FR + SETSZ * s + 8 + 4 * kk
    def fz(s, kk): return FR + SETSZ * s + 16 + 4 * kk
    def fw(s, kk, T): return FR + SETSZ * s + 24 + 16 * kk + 4 * T

    def reads(s):
        l = []
        for kk in range(2):
            l.append(rd128(fx(s, kk), vX, kk * p.sA))
            if att:
                l.append(rd128(fz(s, kk), vZ, kk * 128))
                l.append(rd128(fkv(s, kk), vKV, kk * KB))
        for kk in range(2):
            for T in range(4):
                q, u = T >> 1, T & 1
                for h in range(2):
                    l.append(rdtr(fw(s, kk, T) + 2 * h, vW1 if u else vW0, kk * p.sB + (2 * q + h) * KB))
        return l

    def adv():
        advance(a, p, fixed, cur)
        if att:
            a(f'v_add_u32 v{vKV}, {2*KB}, v{vKV}')
            a(f'v_add_u32 v{vZ}, 256, v{vZ}')

    def mainm(s, kk, xf):
        return [f'{MF} {R(ACC+4*T)}, {R(fw(s,kk,T))}, {R(xf)}, {R(ACC+4*T)}' for T in range(4)]

    def amf(s, kk):
        x, kv, z = fx(s, kk), fkv(s, kk), fz(s, kk)
        n = N + 12 * kk
        return [f'{MF} {R(n+8)}, {R(z)}, {R(x)}, {R(EPS4)}',
                f'{MF16} {R(n)}, {R(kv,2)}, {R(x,2)}, 0',
                f'{MF16} {R(n+4)}, {R(kv+2,2)}, {R(x+2,2)}, 0']

    def avalu(kk):
        n = N + 12 * kk; o = OF + 4 * kk; dn = n + 8
        return [f'v_rcp_f32 v{dn}, v{dn}', f'v_rcp_f32 v{dn+1}, v{dn+1}',
                pk('v_pk_mul_f32', n, n, dn, b1=0), pk('v_pk_mul_f32', n + 2, n + 2, dn, b1=0),
                pk('v_pk_mul_f32', n + 4, n + 4, dn + 1, b1=0), pk('v_pk_mul_f32', n + 6, n + 6, dn + 1, b1=0),
                f'v_cvt_pk_bf16_f32 v{o}, v{n}, v{n+1}', f'v_cvt_pk_bf16_f32 v{o+1}, v{n+2}, v{n+3}',
                f'v_cvt_pk_bf16_f32 v{o+2}, v{n+4}, v{n+5}', f'v_cvt_pk_bf16_f32 v{o+3}, v{n+6}, v{n+7}']

    def period(s):
        if p.lag == 1: a.wait_lds_all()
        tsl(a, p, 'pre')
        a('s_barrier')
        tsl(a, p, 'post')
        rd = reads(1 - s)
        if not att:
            interleave(a, mainm(s, 0, fx(s, 0)) + mainm(s, 1, fx(s, 1)), rd, per=3)
        elif OPT.get('s2sched', 1) == 0:
            interleave(a, amf(s, 0) + amf(s, 1), rd[:14], per=3)
            for t in avalu(0): a(t)
            interleave(a, mainm(s, 0, OF), avalu(1), per=3)
            interleave(a, mainm(s, 1, OF + 4), rd[14:], per=2)
        else:
            ops = amf(s, 0) + amf(s, 1) + avalu(0)
            m0 = mainm(s, 0, OF); v1_ = avalu(1)
            for i in range(4):
                ops.append(m0[i]); ops += v1_[3*i:3*i+3]
            ops += mainm(s, 1, OF + 4)
            def cost(t): return 16 if t.startswith(MF) else 8 if ('mfma' in t or 'rcp' in t) else 4
            tot = sum(cost(t) for t in ops)
            rc = [16 if 'b128' in r else 11 for r in rd]
            rtot = sum(rc)
            acc = 0; racc = 0; ri = 0
            for t in ops:
                a(t); acc += cost(t)
                while ri < len(rd) and racc * tot <= acc * rtot * OPT.get('s2f', 1.0):
                    a(rd[ri]); racc += rc[ri]; ri += 1
            while ri < len(rd):
                a(rd[ri]); ri += 1
        adv()

    ring_init(a, p, fixed, cur)
    a.wait_lds_all()
    ts(a, name + '.preP0')
    a('s_barrier')
    ts(a, name + '.P0')
    for t in reads(0): a(t)
    for t in p.touch: a(t)
    adv()
    a.loop_begin(f'L_ml_{name}')
    period(0)
    period(1)
    a('s_add_u32 s9, s9, 1')
    a(f's_cmp_lt_u32 s9, {p.NC//2}')
    a(f's_cbranch_scc1 L_ml_{name}')
    a.loop_end_check()
    a.wait_lds_all()
    ts(a, name + '.loopend')
    OUT = 24
    for T in range(4):
        for hh in range(2):
            a(f'v_cvt_pk_bf16_f32 v{OUT+2*T+hh}, v{ACC+4*T+2*hh}, v{ACC+4*T+2*hh+1}')
    if not final:
        SS, SG = N, N + 4
        a(f'{MF} {R(SS)}, {R(ONES)}, {R(OUT)}, 0')
        a(f'{MF} {R(SG)}, {R(OUT)}, {R(OUT)}, 0')
        a(f'{MF} {R(SS)}, {R(ONES)}, {R(OUT+4)}, {R(SS)}')
        a(f'{MF} {R(SG)}, {R(OUT+4)}, {R(OUT+4)}, {R(SG)}')
        for i in range(2):
            a(f'buffer_store_dwordx4 {R(OUT+4*i)}, v16, {S4(SRD_W)}, s6 offen offset:{i*KB} {stmod()}')
        a('s_lshl_b32 s4, s15, 10')
        a('s_lshl_b32 s5, s13, 3')
        a('s_add_u32 s4, s4, s5')
        a(f's_add_u32 s4, s4, {st_off}')
        a('v_lshlrev_b32 v5, 6, v3')
        a('v_and_b32 v6, 3, v3')
        a('v_cmp_eq_u32 s[52:53], 1, v6')
        a('v_cmp_eq_u32 s[54:55], 2, v6')
        a('v_cmp_eq_u32 s[56:57], 3, v6')
        a('v_lshrrev_b32 v6, 2, v3')
        a('v_cmp_eq_u32 vcc, v6, v2')
        a(f'v_cndmask_b32 v{SS+1}, v{SG}, v{SG+1}, s[52:53]')
        a(f'v_cndmask_b32 v{SS+1}, v{SS+1}, v{SG+2}, s[54:55]')
        a(f'v_cndmask_b32 v{SS+1}, v{SS+1}, v{SG+3}, s[56:57]')
        a('s_mov_b64 exec, vcc')
        a(f'buffer_store_dwordx2 {R(SS,2)}, v5, {S4(SRD_W)}, s4 offen {stmod()}')
        a('s_mov_b64 exec, -1')
        end_phase(a, p)
    else:
        a(f's_mul_i32 s4, s3, {16*144}')
        a(f's_add_u32 s4, s4, {OUTL}')
        a(f'v_mul_u32_u24 v4, 144, v3')
        a('v_lshl_add_u32 v4, v2, 3, v4')
        a('v_add_u32 v4, s4, v4')
        for T in range(4):
            a(f'ds_write_b64 v4, {R(OUT+2*T,2)} offset:{32*T}')
        a('v_lshrrev_b32 v5, 3, v1')
        a('v_and_b32 v6, 7, v1')
        a('v_mul_u32_u24 v7, 144, v5')
        a('v_lshl_add_u32 v7, v6, 4, v7')
        a('v_add_u32 v7, s4, v7')
        a('s_waitcnt lgkmcnt(0)')
        for i in range(2):
            a(f'ds_read_b128 {R(ACC+4*i)}, v7 offset:{i*8*144}')
        a('v_lshlrev_b32 v5, 10, v5')
        a('v_lshl_add_u32 v5, v6, 4, v5')
        a(f's_add_u32 s9, s8, {8*KB}')
        for i in range(2):
            a(f'buffer_store_dwordx4 {R(ACC+4*i)}, v5, {S4(SRD_M)}, s{8+i} offen {OPT.get("outmod", "")}')


def comp_g(a, p):
    name = p.name; L = p.L
    s2 = (p.ph == 2)
    final = p.final
    res_rowmajor = (s2 and L == 0)
    res_off = (WS_X2 if s2 else WS_X1[L])
    out_off = (WS_X1[L] if s2 else WS_X2)
    st_off = WS_ST1[L] if s2 else WS_ST2
    ACC, FR, SETSZ, N, ONES, RES = 32, 48, 32, 112, 128, 24
    fixed = [8, 9, 10]; cur = [11, 12, 13]
    vX, vW0, vW1 = cur
    assert p.b0 % (2 * p.cB) == 0 and p.NCH % 2 == 0
    phase_map(a, p)
    a('s_lshr_b32 s10, s3, 1')
    a('s_and_b32 s11, s3, 1')
    a('s_lshl_b32 s15, s12, 2')
    a('s_lshl_b32 s5, s10, 1')
    a('s_add_u32 s15, s15, s5')
    a('v_lshlrev_b32 v16, 4, v1')
    a('s_lshl_b32 s6, s15, 4')
    a('s_lshl_b32 s5, s13, 1')
    a('s_add_u32 s6, s6, s5')
    a('s_add_u32 s6, s6, s11')
    a('s_lshl_b32 s6, s6, 10')
    a(f's_add_u32 s7, s6, {res_off}')
    a(f's_add_u32 s6, s6, {out_off}')
    a('s_lshl_b32 s8, s15, 14')
    a('s_lshl_b32 s5, s13, 7')
    a('s_add_u32 s8, s8, s5')
    a('s_lshl_b32 s5, s11, 6')
    a('s_add_u32 s8, s8, s5')
    if final: srd(a, SRD_M, S_PTR + 14, 2048 * 1024)
    if res_rowmajor:
        a('v_lshlrev_b32 v4, 10, v3')
        a('v_lshl_add_u32 v17, v2, 3, v4')
        a(f's_add_u32 s5, s8, {16*KB}')
        for t in range(2):
            for u in range(2):
                a(f'buffer_load_dwordx2 {R(RES+4*t+2*u,2)}, v17, {S4(SRD_A)}, s{5 if t else 8} offen offset:{32*u}')
    else:
        a(f's_add_u32 s5, s7, {16*KB}')
        for t in range(2):
            a(f'buffer_load_dwordx4 {R(RES+4*t)}, v16, {S4(SRD_W)}, s{5 if t else 7} offen')
    a('s_lshl_b32 s4, s10, 11')
    a(f's_add_u32 s4, s4, {RA0}')
    xbase(a, 8, 4, 'F')
    wpat(a, 9, 10)
    a('s_lshl_b32 s4, s11, 11')
    a('v_add_u32 v9, s4, v9')
    a('v_add_u32 v10, s4, v10')
    if not final:
        for i in range(4): a(f'v_mov_b32 v{ONES+i}, 0x3f803f80')
    for i in range(8):
        a(f'v_lshlrev_b32 v{ACC+2*i}, 16, v{RES+i}')
        a(f'v_and_b32 v{ACC+2*i+1}, 0xffff0000, v{RES+i}')

    def fx(s, kk, t): return FR + SETSZ * s + 8 * kk + 4 * t
    def fw(s, kk, u): return FR + SETSZ * s + 16 + 8 * kk + 4 * u

    def reads(s, odd):
        l = []
        for kk in range(2):
            oa = odd * p.cA + kk * p.sA; ob = odd * p.cB + kk * p.sB
            l.append(rd128(fx(s, kk, 0), vX, oa))
            l += [rdtr(fw(s, kk, 0) + 2 * h, vW0, ob + h * KB) for h in range(2)]
            l.append(rd128(fx(s, kk, 1), vX, oa + KB))
            l += [rdtr(fw(s, kk, 1) + 2 * h, vW1, ob + h * KB) for h in range(2)]
        return l

    def mainm(s):
        return [f'{MF} {R(ACC+8*t+4*u)}, {R(fw(s,kk,u))}, {R(fx(s,kk,t))}, {R(ACC+8*t+4*u)}'
                for kk in range(2) for u in range(2) for t in range(2)]

    sadv = [f's_add_u32 s{S_RA}, s{S_RA}, {2*p.cA}', f's_cmp_eq_u32 s{S_RA}, {p.NCH*p.cA}', f's_cselect_b32 s{S_RA}, 0, s{S_RA}',
            f's_add_u32 s{S_RB}, s{S_RB}, {2*p.cB}', f's_cmp_eq_u32 s{S_RB}, {RB_SZ}', f's_cselect_b32 s{S_RB}, 0, s{S_RB}']
    vadv = [f'v_add_u32 v{cur[0]}, s{S_RA}, v{fixed[0]}'] + [f'v_add_u32 v{c}, s{S_RB}, v{f}' for f, c in zip(fixed[1:], cur[1:])]

    def period(s):
        if p.lag == 1: a.wait_lds_all()
        tsl(a, p, 'pre')
        a('s_barrier')
        tsl(a, p, 'post')
        rd = reads(1 - s, 1 - s)
        if s == 0: rd = rd + sadv + vadv
        else: rd = rd + ['s_add_u32 s9, s9, 1', f's_cmp_lt_u32 s9, {p.NC//2}']
        m = mainm(s)
        per = [2, 2, 2, 2, 2, 2, 5, 4] if s == 0 else [2, 2, 2, 2, 2, 2, 1, 1]
        ri = 0
        for mm, n in zip(m, per):
            a(mm)
            for t in rd[ri:ri+n]: a(t)
            ri += n
        assert ri == len(rd)

    ring_init(a, p, fixed, cur)
    a.wait_lds_all()
    ts(a, name + '.preP0')
    a('s_barrier')
    ts(a, name + '.P0')
    for t in reads(0, 0): a(t)
    a.loop_begin(f'L_ml_{name}')
    period(0)
    period(1)
    a(f's_cbranch_scc1 L_ml_{name}')
    a.loop_end_check()
    a.wait_lds_all()
    ts(a, name + '.loopend')
    OUT = 24
    for i in range(8):
        a(f'v_cvt_pk_bf16_f32 v{OUT+i}, v{ACC+2*i}, v{ACC+2*i+1}')
    if not final:
        for t in range(2):
            a(f'{MF} {R(N+8*t)}, {R(ONES)}, {R(OUT+4*t)}, 0')
            a(f'{MF} {R(N+8*t+4)}, {R(OUT+4*t)}, {R(OUT+4*t)}, 0')
        a(f's_add_u32 s5, s6, {16*KB}')
        for t in range(2):
            a(f'buffer_store_dwordx4 {R(OUT+4*t)}, v16, {S4(SRD_W)}, s{5 if t else 6} offen {stmod()}')
        a('s_lshl_b32 s4, s15, 10')
        a('s_lshl_b32 s5, s13, 3')
        a('s_add_u32 s4, s4, s5')
        a('s_lshl_b32 s5, s11, 17')
        a('s_add_u32 s4, s4, s5')
        a(f's_add_u32 s4, s4, {st_off}')
        a('v_lshlrev_b32 v5, 6, v3')
        a('v_and_b32 v6, 3, v3')
        a('v_cmp_eq_u32 s[52:53], 1, v6')
        a('v_cmp_eq_u32 s[54:55], 2, v6')
        a('v_cmp_eq_u32 s[56:57], 3, v6')
        a('v_lshrrev_b32 v6, 2, v3')
        a('v_cmp_eq_u32 vcc, v6, v2')
        for t in range(2):
            SS, SG = N + 8 * t, N + 8 * t + 4
            a(f'v_cndmask_b32 v{SS+1}, v{SG}, v{SG+1}, s[52:53]')
            a(f'v_cndmask_b32 v{SS+1}, v{SS+1}, v{SG+2}, s[54:55]')
            a(f'v_cndmask_b32 v{SS+1}, v{SS+1}, v{SG+3}, s[56:57]')
        a('s_mov_b64 exec, vcc')
        for t in range(2):
            a(f'buffer_store_dwordx2 {R(N+8*t,2)}, v5, {S4(SRD_W)}, s4 offen offset:{t*KB} {stmod()}')
        a('s_mov_b64 exec, -1')
        end_phase(a, p)
    else:
        a(f's_mul_i32 s4, s3, {32*80}')
        a(f's_add_u32 s4, s4, {SCR}')
        a(f'v_mul_u32_u24 v4, 80, v3')
        a('v_lshl_add_u32 v4, v2, 3, v4')
        a('v_add_u32 v4, s4, v4')
        for t in range(2):
            for u in range(2):
                a(f'ds_write_b64 v4, {R(OUT+4*t+2*u,2)} offset:{t*16*80 + 32*u}')
        a('v_lshrrev_b32 v5, 2, v1')
        a('v_and_b32 v6, 3, v1')
        a('v_mul_u32_u24 v7, 80, v5')
        a('v_lshl_add_u32 v7, v6, 4, v7')
        a('v_add_u32 v7, s4, v7')
        a('s_waitcnt lgkmcnt(0)')
        for t in range(2):
            a(f'ds_read_b128 {R(ACC+4*t)}, v7 offset:{t*16*80}')
        a('v_lshlrev_b32 v5, 10, v5')
        a('v_lshl_add_u32 v5, v6, 4, v5')
        a(f's_add_u32 s9, s8, {16*KB}')
        for t in range(2):
            a(f'buffer_store_dwordx4 {R(ACC+4*t)}, v5, {S4(SRD_M)}, s{8+t} offen {OPT.get("outmod", "")}')


def comp_s3(a, p):
    name = p.name; L = p.L
    STB = p.STB
    CSX = SCR + KB
    first = (L == 0)
    ACG, ACU = 40, 88
    CS = 136
    FR = 160
    ONES = 240
    fixed = [8, 9, 10, 11]; cur = [12, 13, 14, 15]
    vX = 12; vW = 13
    MEAN, RSTD, R2 = 24, 28, 32
    phase_map(a, p)
    a('s_lshr_b32 s6, s3, 1')
    a('s_and_b32 s11, s3, 1')
    a('s_lshl_b32 s15, s12, 3')
    a('s_lshl_b32 s5, s6, 2')
    a('s_add_u32 s15, s15, s5')
    a('s_lshl_b32 s4, s6, 12')
    a(f's_add_u32 s4, s4, {RA0}')
    xbase(a, 8, 4, 'F')
    wpat(a, 9, 10)
    a('s_lshl_b32 s4, s11, 5')
    a('v_xor_b32 v11, s4, v9')
    a('v_add_u32 v11, 4096, v11')
    a('s_lshl_b32 s4, s11, 13')
    a('v_add_u32 v9, s4, v9')
    a('v_add_u32 v10, s4, v10')
    a(f's_mul_i32 s4, s15, 43')
    a(f's_mul_i32 s5, s13, 3')
    a('s_add_u32 s4, s4, s5')
    a('s_lshl_b32 s4, s4, 10')
    a(f's_add_u32 s4, s4, {WS_H[L]}')
    a('s_lshl_b32 s7, s11, 11')
    a('s_add_u32 s7, s7, s4')
    a('s_lshl_b32 s8, s11, 3')
    a('s_add_u32 s8, s8, s4')
    a('s_add_u32 s8, s8, 1024')
    a('s_cmp_ge_u32 s13, 14')
    a(f's_cselect_b32 s8, {WS_DUMP}, s8')
    a('s_cselect_b32 s5, s11, 0')
    a('s_cmp_eq_u32 s13, 15')
    a('s_cselect_b32 s5, 1, s5')
    a('s_cmp_lg_u32 s5, 0')
    a(f's_cselect_b32 s7, {WS_DUMP}, s7')
    if OPT.get('otouch', 0):
        a('v_lshrrev_b32 v4, 3, v1')
        a('v_and_b32 v5, 7, v1')
        a(f'v_mul_u32_u24 v4, {43*KB}, v4')
        a('v_lshl_add_u32 v252, v5, 7, v4')
        p.touch = ['s_mov_b32 exec_hi, 0', f'buffer_load_dword v254, v252, {S4(SRD_W)}, s7 offen sc1',
                   f'buffer_load_dword v253, v252, {S4(SRD_W)}, s8 offen sc1', 's_mov_b64 exec, -1']
    a('s_mul_i32 s4, s11, 384')
    a(f's_add_u32 s4, s4, {CS3L}')
    a('v_lshl_add_u32 v16, v2, 4, s4')
    for i in range(4): a(f'v_mov_b32 v{ONES+i}, 0x3f803f80')
    for r in range(40, 160 if first else 136): a(f'v_mov_b32 v{r}, 0')

    def fx(s, t): return FR + 40 * s + 4 * t
    def fw(s, gs, i): return FR + 40 * s + 16 + 4 * (2 * i + gs)

    def reads(s, kk):
        wl = []
        for i in range(3):
            for gs in range(2):
                for h in range(2):
                    wl.append(rdtr(fw(s, gs, i) + 2 * h, vW + i, kk * p.sB + (2 * gs + h) * KB))
        xl = [rd128(fx(s, t), vX, kk * p.sA + t * KB) for t in range(4)]
        return wl[:2] + xl + wl[2:]

    cnt = [0]

    def mfmas(s):
        l = []
        for i in range(3):
            for gs, AC in ((0, ACG), (1, ACU)):
                for t in range(4):
                    d = AC + 12 * t + 4 * i
                    l.append(f'{MF} {R(d)}, {R(fw(s,gs,i))}, {R(fx(s,t))}, {R(d)}')
        if first:
            def csblk():
                cnt[0] += 1
                lab = f'L_cs{cnt[0]}_{name}'
                a(f's_cmp_eq_u32 s6, {s}')
                a(f's_cbranch_scc0 {lab}')
                a.begin_opt()
                for i in range(3):
                    for gs in range(2):
                        d = CS + 12 * gs + 4 * i
                        a(f'{MF} {R(d)}, {R(fw(s,gs,i))}, {R(ONES)}, {R(d)}')
                a.end_opt()
                a.label(lab)
            l.append(csblk)
        return l

    loop_big(a, p, fixed, cur, reads, mfmas, per=1)
    a('s_lshl_b32 s4, s6, 8')
    a(f's_add_u32 s4, s4, {STB}')
    a(f'v_lshl_add_u32 v6, v3, 2, s4')
    for t in range(4):
        a(f'ds_read_b32 v{MEAN+t}, v6 offset:{64*t}')
        a(f'ds_read_b32 v{RSTD+t}, v6 offset:{512+64*t}')
    if first:
        a(f's_mul_i32 s4, s3, 384')
        a(f's_add_u32 s4, s4, {CSX}')
        a('v_lshl_add_u32 v4, v2, 4, s4')
        a('s_xor_b32 s5, s3, 2')
        a(f's_mul_i32 s5, s5, 384')
        a(f's_add_u32 s5, s5, {CSX}')
        a('v_lshl_add_u32 v5, v2, 4, s5')
        a('s_mov_b32 exec_lo, 0x00010001')
        a('s_mov_b32 exec_hi, 0x00010001')
        for i in range(6):
            a(f'ds_write_b128 v4, {R(CS+4*i)} offset:{64*i}')
        a('s_mov_b64 exec, -1')
        a('s_waitcnt lgkmcnt(0)')
        a('s_barrier')
        for i in range(6):
            a(f'ds_read_b128 {R(FR+4*i)}, v5 offset:{64*i}')
        for i in range(12):
            a(pk('v_pk_add_f32', CS + 2 * i, CS + 2 * i, FR + 2 * i))
        a('s_mov_b32 exec_lo, 0x00010001')
        a('s_mov_b32 exec_hi, 0x00010001')
        for i in range(6):
            a(f'ds_write_b128 v16, {R(CS+4*i)} offset:{64*i}')
        a('s_mov_b64 exec, -1')
    else:
        for i in range(6):
            a(f'ds_read_b128 {R(CS+4*i)}, v16 offset:{64*i}')
    for t in range(4):
        a(f'v_mul_f32 v{R2+t}, v{RSTD+t}, v{RSTD+t}')
    a('v_lshlrev_b32 v4, 4, v1')
    a('s_mov_b32 s5, s7')
    a('s_mov_b32 s6, s8')
    OUT = FR
    for t in range(4):
        idx = [(i, hh) for i in range(3) for hh in range(2)]
        for i, hh in idx:
            g = ACG + 12 * t + 4 * i + 2 * hh; u = ACU + 12 * t + 4 * i + 2 * hh
            a(pk('v_pk_fma_f32', g, MEAN + t, CS + 4 * i + 2 * hh, g, b0=0, neg0=True))
            a(pk('v_pk_fma_f32', u, MEAN + t, CS + 12 + 4 * i + 2 * hh, u, b0=0, neg0=True))
        for i, hh in idx:
            g = ACG + 12 * t + 4 * i + 2 * hh; u = ACU + 12 * t + 4 * i + 2 * hh
            a(f'v_max_f32 v{g}, 0, v{g}')
            a(f'v_max_f32 v{g+1}, 0, v{g+1}')
            a(pk('v_pk_mul_f32', u, u, R2 + t, b1=0))
        for i, hh in idx:
            g = ACG + 12 * t + 4 * i + 2 * hh; u = ACU + 12 * t + 4 * i + 2 * hh
            a(pk('v_pk_mul_f32', g, g, u))
        for i, hh in idx:
            g = ACG + 12 * t + 4 * i + 2 * hh
            a(f'v_cvt_pk_bf16_f32 v{OUT+8*t+2*i+hh}, v{g}, v{g+1}')
        a(f'buffer_store_dwordx4 {R(OUT+8*t)}, v4, {S4(SRD_W)}, s5 offen {stmod()}')
        a(f'buffer_store_dwordx2 {R(OUT+8*t+4,2)}, v4, {S4(SRD_W)}, s6 offen {stmod()}')
        if t < 3:
            a(f's_add_u32 s5, s5, {43*KB}')
            a(f's_add_u32 s6, s6, {43*KB}')
    a.wait_lds_all()
    end_phase(a, p)


def build(opt=None, fn=None):
    global WS_X2, WS_ST2
    o = dict(opt or {})
    o.setdefault('sl', ((("s4l0","P",4),"q"),(("s3l0","P",2),"d"),(("s3l1","P",2),"d")))
    o.setdefault('pretouch', 192)
    o.setdefault('lt', ("s1l0","F",0))
    OPT.clear(); OPT.update(o)
    OPT.setdefault('amod', 'sc1')
    if o.get('reuse', 1):
        WS_PQ[0] = WS_PQ[1] = WS_H[0] = WS_H[1] = 8 * MB
        WS_X1[0] = WS_X1[1] = WS_X2 = 4 * MB
        WS_ST1[0] = WS_ST1[1] = WS_ST2
    else:
        WS_PQ[0], WS_PQ[1] = 26 * MB, 32 * MB
    TS['on'] = o.get('ts', False); TS['names'] = {}
    phases = [Ph(ph, L, o) for L in range(2) for ph in (1, 2, 3, 4)]
    bars = ['T']
    for p in phases:
        ql = o.get('qlate', 1)
        if p.ph == 2 and not ql: bars.append((p.name, 'F', 0))
        for c in range(p.NC + 1): bars.append((p.name, 'P', c))
        for x in range(p.nX): bars.append((p.name, 'X', x))
        if not p.final: bars.append((p.name, 'E', 0))
        if p.ph == 1 and ql: bars += [(p.name, 'F', 0), (p.name, 'G', 0)]
    a = Asm()
    entry(a)
    hist = list(a.hist)
    steps = bloader(a, phases, bars)
    a.hist = list(hist)
    aloader(a, phases)
    a.hist = list(hist)
    TS['role'] = 'C'
    a.label('L_comp')
    for p in phases:
        {1: comp_s1q if OPT.get('qlate', 1) else comp_s1, 2: comp_g if OPT.get('qlate', 1) else comp_s24, 3: comp_s3,
         4: comp_g if OPT.get('g4', 1) else comp_s24}[p.ph](a, p)
    ts_flush(a)
    a.label('L_end')
    a('s_endpgm')
    name = 'interleave_layers__linear_attn_block__glu_gated_reglu__prompt_kernel'
    s = '; interleaved linear-attention / ReGLU layers: one persistent kernel (generated)\n'
    s += f'; @launch grid=(256,1,1) block=(512,1,1) lds={LDS_BYTES}\n'
    s += '.amdgcn_target "amdgcn-amd-amdhsa--gfx950"\n'
    s += kernel_text(name, a.text(), 256)
    if fn:
        open(fn, 'w').write(s)
        if TS['on']: json.dump(TS['names'], open(fn + '.ts.json', 'w'))
    if o.get('verbose'):
        for st in steps: print(st)
    return s


if __name__ == '__main__':
    fn = sys.argv[1]
    opt = {}
    for kv in sys.argv[2:]:
        k, v = kv.split('=', 1)
        opt[k] = eval(v)
    s = build(opt, fn=fn)
    print('bytes', len(s), 'lines', s.count('\n'))
```

```python
import sys, struct, json
from asmlib import Asm, kernel_text

KB = 1024
MB = 1 << 20
WS_PQ = [0, 2 * MB]
WS_X1 = [4 * MB, 6 * MB]
WS_H = [8 * MB, 14 * MB]
WS_X2 = 20 * MB
WS_KV = 22 * MB
WS_SYNC = 22 * MB + 128 * KB
WS_ST1 = [21 * MB + 0 * KB + 38 * MB, 21 * MB + 256 * KB + 38 * MB]
WS_ST2 = 22 * MB + 512 * KB
WS_DUMP = 23 * MB
WS_TS = 24 * MB
WS_BYTES = 268435456
S_PTR, S_DBG, S_WS = 16, 32, 34
SRD_A, SRD_B, SRD_W, SRD_M = 36, 40, 44, 48
S_RA, S_RB = 58, 59
S_TEAM, S_MEM, S_XCC, S_HET, S_VID = 60, 61, 62, 63, 96
SB_QKV, SB_WO, SB_WG, SB_WU, SB_WD = 64, 68, 72, 76, 80
LOG2E = 1.4426950408889634
MF = 'v_mfma_f32_16x16x32_bf16'
MF16 = 'v_mfma_f32_16x16x16_bf16'
OPT = {}
RB_SZ = 96 * KB
RA0 = 96 * KB
SCR = 144 * KB
CS1L = 154 * KB
CS3L = 155 * KB
VIDL = 156 * KB
LDS_BYTES = 157 * KB
SPIN = 1 << 17


def f2u(x): return struct.unpack('<I', struct.pack('<f', x))[0]
def R(b, n=4): return f'v[{b}:{b+n-1}]' if n > 1 else f'v{b}'
def S4(b): return f's[{b}:{b+3}]'
def stmod(): return OPT.get('stmod', '')


def srd(a, dst, ptr, size):
    a(f's_mov_b32 s{dst}, s{ptr}')
    a(f's_mov_b32 s{dst+1}, s{ptr+1}')
    a(f's_mov_b32 s{dst+2}, {size}')
    a(f's_mov_b32 s{dst+3}, 0x00020000')


TS = {'on': False, 'role': None, 'names': {}}


def tsl(a, p, name):
    if TS['on'] and OPT.get('tsp') == p.name: ts(a, name, True)


def ts(a, name, force=False):
    if not TS['on']: return
    if OPT.get('tsp') and not force and not name.startswith(OPT['tsp']) and name not in ('start', 'end'): return
    TS['names'].setdefault(TS['role'], []).append(name)
    a('s_waitcnt lgkmcnt(0)')
    a('s_memtime s[100:101]')
    a('s_waitcnt lgkmcnt(0)')
    a('s_mov_b32 s98, m0')
    a('s_mov_b32 m0, s99')
    a('s_nop 0')
    a('v_writelane_b32 v0, s100, m0')
    a('s_mov_b32 m0, s98')
    a('s_add_u32 s99, s99, 1')
    a('s_min_u32 s99, s99, 63')


def ts_flush(a):
    if not TS['on']: return
    ts(a, 'end')
    a('s_mov_b64 exec, -1')
    a(f's_lshl_b32 s4, s{S_VID}, 3')
    a('s_add_u32 s4, s4, s3')
    a('s_lshl_b32 s4, s4, 8')
    a(f's_add_u32 s4, s4, {WS_TS}')
    a('v_lshlrev_b32 v5, 2, v1')
    a(f'buffer_store_dword v0, v5, {S4(SRD_W)}, s4 offen')


def pk(op, d, s0, s1, s2=None, b0=None, b1=None, b2=None, neg0=False, neg1=False):
    def opnd(s, b):
        if b is None:
            assert s % 2 == 0, s
            return f'v[{s}:{s+1}]', 0, 1
        base = s & ~1; h = s & 1
        return f'v[{base}:{base+1}]', h, h
    srcs = [opnd(s0, b0), opnd(s1, b1)]
    if s2 is not None: srcs.append(opnd(s2, b2))
    assert d % 2 == 0
    t = f'{op} v[{d}:{d+1}], ' + ', '.join(s[0] for s in srcs)
    t += ' op_sel:[' + ','.join(str(s[1]) for s in srcs) + ']'
    t += ' op_sel_hi:[' + ','.join(str(s[2]) for s in srcs) + ']'
    if neg0 or neg1:
        n = [1 if neg0 else 0, 1 if neg1 else 0] + ([0] if s2 is not None else [])
        t += ' neg_lo:[' + ','.join(map(str, n)) + '] neg_hi:[' + ','.join(map(str, n)) + ']'
    return t


class Ph:
    def __init__(self, ph, L, opt):
        self.ph, self.L = ph, L
        self.name = f's{ph}l{L}'
        self.final = (ph == 4 and L == 1)
        self.padk = (ph == 4)
        self.NC = 22 if ph == 4 else 8
        self.NKreal = 43 if ph == 4 else 16
        self.RT = 8 if ph in (1, 3) else 4
        self.PB = {1: 6, 2: 4, 3: 12, 4: 4}[ph]
        self.sA = self.RT * KB; self.sB = self.PB * KB
        self.cA = 2 * self.sA; self.cB = 2 * self.sB
        ql = opt.get('qlate', 1)
        self.NCH = {1: 3, 2: 6 if ql else 5, 3: 3, 4: 6}[ph]
        self.lag = 2 if (ph in (2, 4) and opt.get('relax', 1)) else 1
        self.DC = opt.get(f's{ph}_dc', self.NCH - self.lag)
        self.KSA = 16 if ph in (1, 3) else 43
        self.amode = 'R' if (ph == 1 and L == 0) else 'F'
        self.bmap = 'S' if (ph == 1 and L == 0) else 'F'
        self.strideA = 64 if self.amode == 'R' else KB
        self.rowB = {1: 3072, 2: 1024, 3: 2752, 4: 1024}[ph]
        self.strideB = 32 * self.rowB
        self.nX = 1 if (ph == 1 or (ph == 3 and L == 0)) else 0
        if ql and ph == 1 and L == 0: self.nX = 1 if opt.get('cs1full', 0) else 2
        if ph == 3 and opt.get('cs3full', 0): self.nX = 0
        self.stats = (ph == 3) or (ph == 1 and L == 1)
        self.st2 = (ph == 1 and opt.get('g4', 1)) or ql
        self.STB = SCR + 9 * KB if ph == 1 else SCR
        self.vB = {(1, 0): 12, (1, 1): 15, (2, 0): 18, (2, 1): 18, (4, 0): 18, (4, 1): 18, (3, 0): 20, (3, 1): 20}[(ph, L)]
        self.b0 = None
        self.touch = []


def phase_map(a, p):
    if p.ph in (1, 3):
        a(f's_mov_b32 s12, s{S_TEAM}')
        a(f's_mov_b32 s13, s{S_MEM}')
        rx = OPT.get('rotx', 0)
        if rx:
            a(f's_lshr_b32 s14, s{S_TEAM}, 1')
            a(f's_mul_i32 s14, s14, {rx}')
            a(f's_add_u32 s14, s14, s{S_MEM}')
            a('s_and_b32 s14, s14, 15')
        elif p.amode == 'R' and OPT.get('evenrot', 1):
            a(f's_lshl_b32 s14, s{S_MEM}, 1')
            a('s_and_b32 s14, s14, 15')
        else:
            a(f's_mov_b32 s14, s{S_MEM}')
    else:
        a(f's_lshr_b32 s13, s{S_MEM}, 3')
        a(f's_lshl_b32 s12, s{S_TEAM}, 1')
        a('s_add_u32 s12, s12, s13')
        a(f's_and_b32 s13, s{S_MEM}, 7')
        if p.ph == 2: a('s_lshl_b32 s14, s13, 1')
        else: a('s_mul_i32 s14, s13, 5')


def stats_finish(a, vsum, vsq, vmean, vrstd, tmp):
    a(f'v_mul_f32 v{vmean}, {hex(f2u(1/512))}, v{vsum}')
    a(f'v_mul_f32 v{tmp}, {hex(f2u(1/512))}, v{vsq}')
    a(f'v_fma_f32 v{tmp}, -v{vmean}, v{vmean}, v{tmp}')
    a(f'v_max_f32 v{tmp}, 0, v{tmp}')
    a(f'v_add_f32 v{tmp}, {hex(f2u(1e-5))}, v{tmp}')
    a(f'v_rsq_f32 v{vrstd}, v{tmp}')


def xbase(a, vX, xoff_sgpr, amode):
    if amode == 'F':
        a(f'v_lshl_add_u32 v{vX}, v1, 4, s{xoff_sgpr}')
    else:
        a('v_lshrrev_b32 v4, 2, v3')
        a('v_sub_u32 v4, 4, v4')
        a('v_and_b32 v4, 3, v4')
        a('v_xor_b32 v4, v4, v2')
        a('v_lshlrev_b32 v4, 4, v4')
        a(f'v_lshl_add_u32 v{vX}, v3, 6, v4')
        a(f'v_add_u32 v{vX}, s{xoff_sgpr}, v{vX}')


def wpat(a, d0, d1):
    a('v_and_b32 v4, 1, v2')
    a('v_lshlrev_b32 v4, 5, v4')
    a('v_lshl_add_u32 v4, v2, 8, v4')
    a('v_bfe_u32 v5, v1, 2, 2')
    a('v_lshl_add_u32 v4, v5, 6, v4')
    a('v_and_b32 v5, 3, v1')
    a(f'v_lshl_add_u32 v{d0}, v5, 3, v4')
    a(f'v_xor_b32 v{d1}, 32, v{d0}')


def rd128(dst, base, off): return f'ds_read_b128 {R(dst)}, v{base} offset:{off}'
def rdtr(dst, base, off): return f'ds_read_b64_tr_b16 {R(dst,2)}, v{base} offset:{off}'


def interleave(a, mf, rd, per=1, first=0):
    ri = 0
    for i, m in enumerate(mf):
        if callable(m): m()
        else: a(m)
        if i >= first:
            for _ in range(per):
                if ri < len(rd):
                    a(rd[ri]); ri += 1
    while ri < len(rd):
        a(rd[ri]); ri += 1


def ring_init(a, p, fixed, cur):
    a(f's_mov_b32 s{S_RA}, 0')
    a(f's_mov_b32 s{S_RB}, {p.b0}')
    a('s_mov_b32 s9, 0')
    a(f'v_mov_b32 v{cur[0]}, v{fixed[0]}')
    for f, c in zip(fixed[1:], cur[1:]): a(f'v_add_u32 v{c}, s{S_RB}, v{f}')


def advance(a, p, fixed, cur):
    a(f's_add_u32 s{S_RA}, s{S_RA}, {p.cA}')
    a(f's_cmp_eq_u32 s{S_RA}, {p.NCH*p.cA}')
    a(f's_cselect_b32 s{S_RA}, 0, s{S_RA}')
    a(f's_add_u32 s{S_RB}, s{S_RB}, {p.cB}')
    a(f's_cmp_eq_u32 s{S_RB}, {RB_SZ}')
    a(f's_cselect_b32 s{S_RB}, 0, s{S_RB}')
    a(f'v_add_u32 v{cur[0]}, s{S_RA}, v{fixed[0]}')
    for f, c in zip(fixed[1:], cur[1:]):
        a(f'v_add_u32 v{c}, s{S_RB}, v{f}')


def loop_big(a, p, fixed, cur, reads, mfmas, per=1):
    ring_init(a, p, fixed, cur)
    ts(a, p.name + '.preP0')
    a('s_barrier')
    ts(a, p.name + '.P0')
    for t in reads(0, 0): a(t)
    for t in p.touch:
        if t == 'LATE':
            a('s_cmp_eq_u32 s3, 3')
            a('s_cbranch_scc0 L_nolt')
            a.begin_opt()
            late_touch(a, 22)
            a.end_opt()
            a.label('L_nolt')
            a.vm = []
        else: a(t)
    a.loop_begin(f'L_ml_{p.name}')
    if p.ph == 3 and OPT.get('s3adv', 1):
        class Rec(list):
            def __call__(self, t): self.append(t)
        rec = Rec(); advance(rec, p, fixed, cur); rec('s_add_u32 s9, s9, 1')
        m = mfmas(0); rd = reads(1, 1)
        interleave(a, m[:len(rd)], rd, per=1)
        interleave(a, m[len(rd):], rec, per=2)
    else:
        interleave(a, mfmas(0), reads(1, 1), per=per)
        advance(a, p, fixed, cur)
        a('s_add_u32 s9, s9, 1')
    a.wait_lds_all()
    tsl(a, p, 'pre')
    a('s_barrier')
    tsl(a, p, 'post')
    interleave(a, mfmas(1), reads(0, 0), per=per)
    a(f's_cmp_lt_u32 s9, {p.NC}')
    a(f's_cbranch_scc1 L_ml_{p.name}')
    a.loop_end_check()
    a.wait_lds_all()
    ts(a, p.name + '.loopend')


def end_phase(a, p):
    ts(a, p.name + '.epi')
    a('s_waitcnt vmcnt(0)')
    ts(a, p.name + '.vm0')
    a('s_barrier')
    a.vm = []


def poll(a, name, vdst, n, voff, soff, execmask, full=False):
    a(f's_mov_b32 s84, {SPIN}')
    if execmask == 0xffffffff: a('s_mov_b32 exec_hi, 0')
    elif execmask != -1: a(f's_mov_b64 exec, {execmask}')
    a.flush_hazards()
    a.label(f'L_poll_{name}')
    op = {1: 'buffer_load_dword', 4: 'buffer_load_dwordx4'}[n]
    a(f'{op} {R(vdst, n)}, v{voff}, {soff} offen sc1')
    a('s_waitcnt vmcnt(0)')
    if n == 4:
        a(f'v_min_u32 v{vdst}, v{vdst}, v{vdst+1}')
        a(f'v_min_u32 v{vdst+2}, v{vdst+2}, v{vdst+3}')
        a(f'v_min_u32 v{vdst}, v{vdst}, v{vdst+2}')
    if full: a(f'v_cmp_ne_u32 vcc, 0x01010101, v{vdst}')
    else: a(f'v_cmp_eq_u32 vcc, 0, v{vdst}')
    a('s_nop 1')
    a(f's_cbranch_vccz L_pok_{name}')
    a('s_sub_u32 s84, s84, 1')
    a(f's_cbranch_scc1 L_pok_{name}')
    a(f's_sleep {OPT.get("sleep", 1)}')
    a(f's_branch L_poll_{name}')
    a.label(f'L_pok_{name}')
    if execmask != -1: a('s_mov_b64 exec, -1')
    a.vm = []


def spoll(a, name, soff, n, vpoll):
    a(f's_cmp_eq_u32 s{S_HET}, 0')
    a(f's_cbranch_scc0 L_svp_{name}')
    a(f's_mov_b32 s84, {SPIN}')
    if n == 2: a(f's_add_u32 s85, {soff}, 64')
    a('s_waitcnt lgkmcnt(0)')
    a.flush_hazards()
    a.label(f'L_sp_{name}')
    a.raw(f'    s_buffer_load_dwordx16 s[64:79], {S4(SRD_W)}, {soff} glc')
    if n == 2: a.raw(f'    s_buffer_load_dwordx16 s[16:31], {S4(SRD_W)}, s85 glc')
    a.raw('    s_waitcnt lgkmcnt(0)')
    regs = list(range(64, 80, 2)) + (list(range(16, 32, 2)) if n == 2 else [])
    for r in regs[1:]:
        a.raw(f'    s_and_b64 s[64:65], s[64:65], s[{r}:{r+1}]')
    a.raw('    s_and_b32 s64, s64, s65')
    a.raw(f'    s_cbranch_scc1 L_sok_{name}')
    a.raw('    s_sub_u32 s84, s84, 1')
    a.raw(f'    s_cbranch_scc1 L_sok_{name}')
    if OPT.get('ssleep', 1): a.raw(f'    s_sleep {OPT.get("ssleep", 1)}')
    a.raw(f'    s_branch L_sp_{name}')
    a.label(f'L_svp_{name}')
    vpoll()
    a.label(f'L_sok_{name}')
    a.flush_hazards()
    a.vm = []


def load_counters(a, name, until_sum):
    a('v_lshlrev_b32 v4, 5, v1')
    a('s_mov_b64 exec, 0xff')
    a(f'buffer_load_dword v5, v4, {S4(SRD_M)}, 0 offen sc1')
    a('s_waitcnt vmcnt(0)')
    a('s_mov_b64 exec, -1')
    for i in range(8):
        a(f'v_readlane_b32 s{86+i}, v5, {i}')
    a('s_add_u32 s85, s86, s87')
    for i in range(2, 8):
        a(f's_add_u32 s85, s85, s{86+i}')


def stouch_setup(a, p, w, nw):
    if not OPT.get('stouch', 0): return []
    reuse = OPT.get('reuse', 1)
    out = []
    if p.ph == 1 and (p.L == 0 or not reuse):
        a('s_lshl_b32 s53, s12, 3')
        a('s_mul_i32 s53, s53, 43')
        a('s_add_u32 s53, s53, s13')
        a('s_lshl_b32 s53, s53, 10')
        a(f's_mul_i32 s54, s{w}, {KB//nw}')
        a('s_add_u32 s53, s53, s54')
        a(f's_add_u32 s53, s53, {WS_PQ[p.L]}')
        out.append((53, 7, 43 * KB, 8 // nw))
    if p.ph in (2, 4) and not p.final and ((p.ph == 2 and p.L == 0) or not reuse):
        a('s_lshl_b32 s53, s12, 16')
        a('s_lshl_b32 s54, s13, 11')
        a('s_add_u32 s53, s53, s54')
        a(f's_mul_i32 s54, s{w}, {2*KB//nw}')
        a('s_add_u32 s53, s53, s54')
        a(f's_add_u32 s53, s53, {WS_X1[p.L] if p.ph == 2 else WS_X2}')
        out.append((53, 3, 16 * KB, 16 // nw))
        a('s_lshl_b32 s55, s12, 12')
        a(f's_mul_i32 s54, s{w}, {KB//nw}')
        a('s_add_u32 s55, s55, s54')
        a(f's_add_u32 s55, s55, {WS_ST1[p.L] if p.ph == 2 else WS_ST2}')
        out.append((55, 3, KB, 8 // nw))
    if p.ph == 3:
        a('s_lshl_b32 s53, s12, 3')
        a('s_mul_i32 s53, s53, 43')
        a('s_mul_i32 s54, s13, 3')
        a('s_add_u32 s53, s53, s54')
        a('s_lshl_b32 s53, s53, 10')
        a(f's_mul_i32 s54, s{w}, {3*KB//nw}')
        a('s_add_u32 s53, s53, s54')
        a(f's_add_u32 s53, s53, {WS_H[p.L]}')
        out.append((53, 7, 43 * KB, 24 // nw))
    return out


def stouch(a, spec, it):
    for sb, mask, stride, n in spec:
        a(f's_and_b32 s56, s{it}, {mask}')
        a(f's_mul_i32 s56, s56, {stride}')
        a(f's_add_u32 s56, s56, s{sb}')
        for i in range(n):
            a.raw(f'    s_buffer_load_dword s52, {S4(SRD_W)}, s56 offset:{i*128}')


def init_flag(a):
    a('s_mov_b64 exec, 1')
    a('s_lshr_b32 s4, s2, 1')
    a('s_lshl_b32 s4, s4, 5')
    a('s_and_b32 s5, s2, 1')
    a('s_lshl_b32 s5, s5, 2')
    a('s_add_u32 s4, s4, s5')
    a('s_add_u32 s4, s4, 4')
    a('v_mov_b32 v22, s4')
    a('v_mov_b32 v23, 1')
    a('s_waitcnt vmcnt(0)')
    a(f'buffer_store_dword v23, v22, {S4(SRD_M)}, 0 offen sc1')
    a('s_mov_b64 exec, -1')


def late_touch(a, vl):
    a('s_mul_i32 s53, s2, 5504')
    a('s_lshl_b32 s54, s2, 11')
    a('s_mov_b64 exec, 0xffff')
    a(f'buffer_load_dword v31, v{vl}, {S4(SB_WO)}, s54 offen')
    a.vm = []
    a('s_mov_b32 exec_lo, -1')
    a('s_mov_b32 exec_hi, 0x7ff')
    for sb in (SB_WG, SB_WU, SB_WD):
        a(f'buffer_load_dword v31, v{vl}, {S4(sb)}, s53 offen')
        a.vm = []
    a('s_mov_b64 exec, -1')


def entry(a):
    TS['role'] = 'all'
    a('s_cmp_ge_u32 s2, 256')
    a('s_cbranch_scc1 L_end')
    a('v_and_b32 v1, 63, v0')
    a('v_lshrrev_b32 v2, 6, v0')
    if TS['on']:
        a('v_mov_b32 v0, 0')
        a('s_mov_b32 s99, 0')
        a('s_mov_b32 m0, 0')
        ts(a, 'start')
    a(f's_load_dwordx16 s[16:31], s[0:1], 0')
    a(f's_load_dwordx4 s[32:35], s[0:1], 64')
    fx = OPT.get('fakexcc', 0)
    if fx == 0:
        a(f's_getreg_b32 s{S_XCC}, hwreg(HW_REG_XCC_ID, 0, 4)')
        a(f's_and_b32 s{S_XCC}, s{S_XCC}, 7')
    elif fx == 1:
        a(f's_lshr_b32 s{S_XCC}, s2, 5')
    else:
        a(f's_and_b32 s{S_XCC}, s2, 7')
        a(f's_cmp_ge_u32 s{S_XCC}, 6')
        a(f's_cselect_b32 s{S_XCC}, 1, s{S_XCC}')
    a('v_readfirstlane_b32 s3, v2')
    a('v_lshrrev_b32 v2, 4, v1')
    a('v_and_b32 v3, 15, v1')
    a(f's_mov_b32 s{S_HET}, 0')
    a('s_waitcnt lgkmcnt(0)')
    ts(a, 'karg')
    srd(a, SRD_W, S_WS, WS_BYTES)
    srd(a, SRD_M, S_DBG, 256)
    srd(a, SB_QKV, S_PTR + 2, 512 * 3072)
    srd(a, SB_WO, S_PTR + 4, 512 * 1024)
    srd(a, SB_WG, S_PTR + 8, 512 * 2752)
    srd(a, SB_WU, S_PTR + 10, 512 * 2752)
    srd(a, SB_WD, S_PTR + 12, 1376 * 1024)
    srd(a, SRD_A, S_PTR + 0, 2048 * 1024)
    a('s_cmp_eq_u32 s3, 0')
    a('s_cbranch_scc0 L_e1')
    a(f's_lshl_b32 s4, s{S_XCC}, 5')
    a('v_mov_b32 v4, s4')
    a('v_mov_b32 v5, 1')
    a('s_mov_b64 exec, 1')
    a(f'buffer_atomic_add v5, v4, {S4(SRD_M)}, 0 offen sc0')
    a('s_mov_b64 exec, -1')
    pt = OPT.get('pretouch', 65)
    npt = 0
    a('v_lshlrev_b32 v6, 7, v1')
    if pt & 2:
        a('s_lshr_b32 s7, s2, 3')
        a('s_and_b32 s7, s7, 31')
        a(f's_lshl_b32 s5, s{S_XCC}, 18')
        a('s_lshl_b32 s6, s7, 13')
        a('s_add_u32 s5, s5, s6')
        a(f'buffer_load_dword v31, v6, {S4(SRD_A)}, s5 offen')
        a.vm = []
        a('s_mul_i32 s7, s7, 49152')
        for i in range(6):
            a(f'buffer_load_dword v31, v6, {S4(SB_QKV)}, s7 offen')
            a.vm = []
            if i < 5: a('s_add_u32 s7, s7, 8192')
        npt += 7
    if pt & 32:
        a('s_lshr_b32 s7, s2, 3')
        a('s_and_b32 s7, s7, 31')
        a(f's_lshl_b32 s5, s{S_XCC}, 18')
        a('s_lshl_b32 s6, s7, 13')
        a('s_add_u32 s5, s5, s6')
        a(f'buffer_load_dword v31, v6, {S4(SRD_A)}, s5 offen')
        a.vm = []
        a('v_and_b32 v7, 7, v1')
        a('v_bfe_u32 v8, v1, 3, 1')
        a('v_mul_u32_u24 v8, 3072, v8')
        a('v_lshl_add_u32 v8, v2, 10, v8')
        a('v_lshl_add_u32 v8, v7, 7, v8')
        a('v_and_b32 v7, 3, v7')
        a('v_lshlrev_b32 v7, 1, v7')
        a('s_mul_i32 s7, s7, 6144')
        a('s_mov_b32 exec_lo, -1')
        a('s_mov_b32 exec_hi, 0xffff')
        for tau in range(OPT.get('ntau', 3)):
            a(f'v_add_u32 v9, {tau}, v7')
            a('v_and_b32 v9, 7, v9')
            a(f'v_mov_b32 v10, {64*3072}')
            a('v_mad_u32_u24 v9, v9, v10, v8')
            a(f'buffer_load_dword v31, v9, {S4(SB_QKV)}, s7 offen')
            a.vm = []
        a('s_mov_b64 exec, -1')
        npt += 1 + OPT.get('ntau', 3)
    if pt & 128:
        a('s_lshr_b32 s7, s2, 3')
        a('s_and_b32 s7, s7, 31')
        a('s_mul_i32 s7, s7, 49152')
        a('v_lshlrev_b32 v7, 10, v1')
        a('s_mov_b32 exec_hi, 0xffff')
        a(f'buffer_load_dword v31, v7, {S4(SB_QKV)}, s7 offen offset:384')
        a.vm = []
        a('s_mov_b64 exec, -1')
        npt += 1
    if pt & 64:
        a('s_lshr_b32 s7, s2, 3')
        a('s_and_b32 s7, s7, 31')
        a(f's_lshl_b32 s5, s{S_XCC}, 18')
        a('s_lshl_b32 s6, s7, 13')
        a('s_add_u32 s5, s5, s6')
        a(f'buffer_load_dword v31, v6, {S4(SRD_A)}, s5 offen')
        a.vm = []
        a('s_mul_i32 s7, s2, 6144')
        a('s_mov_b32 exec_hi, 0xffff')
        a(f'buffer_load_dword v31, v6, {S4(SB_QKV)}, s7 offen')
        a.vm = []
        a('s_mov_b64 exec, -1')
        npt += 2
    if pt & 1:
        late_touch(a, 6)
        npt += 4
    if pt & 4:
        a('s_mov_b64 exec, 1')
        a('s_lshl_b32 s7, s2, 11')
        for sb in (SB_WO, SB_WG, SB_WU, SB_WD):
            a(f'buffer_load_dword v31, v6, {S4(sb)}, s7 offen')
            a.vm = []
        a('s_mov_b64 exec, -1')
        npt += 4
    a(f's_waitcnt vmcnt({npt})')
    if OPT.get('dbg2'):
        TS['role'] = 'W0'
        for k in range(npt, -1, -1):
            a(f's_waitcnt vmcnt({k})')
            ts(a, f'w{k}', True)
        TS['role'] = 'all'
    a('v_readfirstlane_b32 s5, v5')
    a(f's_add_u32 s{S_VID}, s4, s5')
    a('s_cmp_lt_u32 s5, 32')
    a('s_cbranch_scc1 L_tk_ok')
    a(f's_mov_b32 s84, {SPIN}')
    a.flush_hazards()
    a.label('L_tk_wait')
    load_counters(a, 'tk', True)
    a('s_cmp_ge_u32 s85, 256')
    a('s_cbranch_scc1 L_tk_all')
    a('s_sub_u32 s84, s84, 1')
    a('s_cbranch_scc1 L_tk_all')
    a('s_sleep 2')
    a('s_branch L_tk_wait')
    a.label('L_tk_all')
    a('s_sub_u32 s5, s5, 32')
    for i in range(7):
        a(f's_max_u32 s6, s{86+i}, 32')
        a('s_sub_u32 s6, s6, 32')
        a(f's_cmp_gt_u32 s{S_XCC}, {i}')
        a('s_cselect_b32 s6, s6, 0')
        a('s_add_u32 s5, s5, s6')
    a(f's_mov_b32 s{S_VID}, 0')
    a('s_mov_b32 s7, 0')
    for i in range(8):
        a(f's_min_u32 s6, s{86+i}, 32')
        a('s_sub_u32 s8, 32, s6')
        a(f's_add_u32 s6, s6, {32*i}')
        a('s_add_u32 s6, s6, s5')
        a('s_cmp_lt_u32 s5, s8')
        a('s_cselect_b32 s10, 1, 0')
        a('s_andn2_b32 s10, s10, s7')
        a('s_or_b32 s7, s7, s10')
        a('s_cmp_lg_u32 s10, 0')
        a(f's_cselect_b32 s{S_VID}, s6, s{S_VID}')
        a('s_sub_u32 s5, s5, s8')
    a.label('L_tk_ok')
    a(f'v_mov_b32 v4, {VIDL}')
    a(f'v_mov_b32 v5, s{S_VID}')
    a('ds_write_b32 v4, v5')
    a('s_waitcnt lgkmcnt(0)')
    a('s_branch L_eT')
    a.fresh()
    a.label('L_e1')
    a('s_cmp_eq_u32 s3, 1')
    a('s_cbranch_scc0 L_eT')
    a('s_cmp_lt_u32 s2, 16')
    a('s_cbranch_scc0 L_eT')
    for i in range(4): a(f'v_mov_b32 v{4+i}, 0')
    a('v_lshlrev_b32 v8, 4, v1')
    a('s_lshl_b32 s4, s2, 11')
    for L in range(2):
        a(f's_add_u32 s5, s4, {WS_KV + L*65536}')
        for i in range(2):
            a(f'buffer_store_dwordx4 v[4:7], v8, {S4(SRD_W)}, s5 offen offset:{i*KB} sc1')
    a('s_lshl_b32 s4, s2, 7')
    a('s_mov_b64 exec, 0xff')
    for L in range(2):
        a(f's_add_u32 s5, s4, {WS_KV + L*65536 + 32768}')
        a(f'buffer_store_dwordx4 v[4:7], v8, {S4(SRD_W)}, s5 offen sc1')
    if OPT.get('nrep', 0): a('s_mov_b64 exec, -1')
    a(f's_mul_i32 s4, s2, {2048 if OPT.get("nrep", 0) else 1152}')
    a(f's_add_u32 s4, s4, {WS_SYNC}')
    a(f'buffer_store_dwordx4 v[4:7], v8, {S4(SRD_W)}, s4 offen offset:1024 sc1')
    a('s_mov_b64 exec, -1')
    a(f'buffer_store_dwordx4 v[4:7], v8, {S4(SRD_W)}, s4 offen sc1')
    if not OPT.get('lateinit', 1): init_flag(a)
    a('s_mov_b64 exec, -1')
    a.label('L_eT')
    a.fresh()
    a('s_nop 4')
    a('s_barrier')
    a(f'v_mov_b32 v4, {VIDL}')
    a('ds_read_b32 v5, v4')
    a('s_waitcnt lgkmcnt(0)')
    a(f'v_readfirstlane_b32 s{S_VID}, v5')
    a(f's_lshr_b32 s{S_TEAM}, s{S_VID}, 4')
    a(f's_and_b32 s{S_MEM}, s{S_VID}, 15')
    ts(a, 'T')
    a('s_cmp_lt_u32 s3, 4')
    a('s_cbranch_scc1 L_comp')
    a('s_cmp_lt_u32 s3, 6')
    a('s_cbranch_scc1 L_aload')


def bloader(a, phases, bars):
    TS['role'] = 'B'
    a('s_and_b32 s4, s3, 1')
    if OPT.get('ft', 0) or OPT.get('lt'):
        srd(a, SRD_A, S_PTR + 8, 512 * 2752)
        srd(a, SRD_B, S_PTR + 10, 512 * 2752)
    a(f's_cmp_eq_u32 s{S_MEM}, 15')
    a(f's_cselect_b32 s{SB_WG+2}, 0, s{SB_WG+2}')
    a(f's_cselect_b32 s{SB_WU+2}, 0, s{SB_WU+2}')
    a('v_bfe_u32 v4, v1, 2, 2')
    a('v_bfe_u32 v5, v1, 1, 1')
    a('v_and_b32 v6, 1, v2')
    a('v_xor_b32 v5, v5, v6')
    a('v_and_b32 v6, 1, v1')
    a('v_lshlrev_b32 v5, 5, v5')
    a('v_lshl_add_u32 v5, v6, 4, v5')
    a('v_lshl_add_u32 v6, v2, 3, v4')
    a('v_lshl_add_u32 v7, v2, 2, v4')
    done = set()
    for p in phases:
        if p.vB in done: continue
        done.add(p.vB)
        hstep = 16 if p.bmap == 'F' else 4
        if p.ph == 1: a(f's_lshl_b32 s9, s{S_MEM}, 6'); n, step = 3, 1024
        elif p.ph == 3: a(f's_mul_i32 s9, s{S_MEM}, 192'); n, step = 3, 64
        else:
            a(f's_and_b32 s9, s{S_MEM}, 7'); a('s_lshl_b32 s9, s9, 7'); n, step = 2, 64
        a(f's_mul_i32 s10, s4, {hstep*p.rowB}')
        a('s_add_u32 s10, s10, s9')
        a(f'v_mul_u32_u24 v8, {p.rowB}, v{7 if p.bmap == "F" else 6}')
        a(f'v_add3_u32 v{p.vB}, v8, v5, s10')
        for i in range(1, n):
            a(f'v_add_u32 v{p.vB+i}, {i*step}, v{p.vB}')
        if p is phases[0]:
            pass
    a('s_lshl_b32 s11, s4, 10')
    chunks = []
    pos = 0
    streams = []
    for p in phases:
        if p.ph == 1 and OPT.get('qlate', 1):
            streams.append(dict(name=p.name, p=p, pieces=[(p.vB + 1, SB_QKV), (p.vB + 2, SB_QKV)], uk=2, n=8, sB=4 * KB, al=8 * KB,
                                pub=lambda c, p=p: bars.index((p.name, 'P', c)), fr=lambda c, p=p: bars.index((p.name, 'P', c)) + 1))
            streams.append(dict(name=p.name + 'q', p=p, pieces=[(p.vB, SB_QKV)], uk=4, n=4, sB=2 * KB, al=8 * KB,
                                pub=lambda c, p=p: bars.index((p.name, 'E', 0)), fr=lambda c, p=p: bars.index((p.name, 'F', 0))))
            continue
        uk = 1 if (p.ph == 4 and OPT.get('half4', 1)) else 2
        if p.ph == 3: pcs = [(p.vB + i, sb) for i in range(3) for sb in (SB_WG, SB_WU)]
        else: pcs = [(p.vB + i, {1: SB_QKV, 2: SB_WO, 4: SB_WD}[p.ph]) for i in range(p.PB // 2)]
        streams.append(dict(name=p.name, p=p, pieces=pcs, uk=uk, n=p.NC * 2 // uk, sB=p.sB,
                            al=2 * p.cB if (p.ph == 4 or (p.ph == 2 and OPT.get('qlate', 1))) else p.cB,
                            pub=lambda c, p=p, uk=uk: bars.index((p.name, 'P', c * uk // 2)),
                            fr=lambda c, p=p, uk=uk: bars.index((p.name, 'P', c * uk // 2)) + p.lag))
    for st in streams:
        al = st['al']
        pos = (pos + al - 1) // al * al
        if pos >= RB_SZ: pos = 0
        if st['name'] == 's2l1' and not OPT.get('qlate', 1): pos = 72 * KB
        st['b0'] = pos
        if st['name'].endswith('q'): st['p'].b0q = pos
        else: st['p'].b0 = pos
        for c in range(st['n']):
            chunks.append(dict(p=st, c=c, off=pos, sz=st['uk'] * st['sB'], pub=st['pub'](c), fr=st['fr'](c)))
            pos += st['uk'] * st['sB']
            if pos >= RB_SZ: pos = 0
    for i, q in enumerate(chunks):
        e = 0
        for q2 in chunks[:i]:
            if q2['off'] < q['off'] + q['sz'] and q['off'] < q2['off'] + q2['sz']:
                e = max(e, q2['fr'])
        q['e'] = e
    maxahead = OPT.get('bahead', RB_SZ)
    steps = []
    nxt = 0
    issued = []
    last = max(q['pub'] for q in chunks)
    for j in range(1, last + 1):
        iss = []
        while nxt < len(chunks) and chunks[nxt]['e'] <= j - 1:
            ahead = sum(chunks[k]['sz'] for k, _ in issued if k >= 0 and chunks[k]['pub'] >= j)
            if ahead + chunks[nxt]['sz'] > maxahead and chunks[nxt]['pub'] > j: break
            cap = OPT.get('b0n', 3) if j == 1 else OPT.get('bcap', 2)
            q = chunks[nxt]
            if q['p']['uk'] == 1:
                cap *= 2
                if bars[j][0] == q['p']['name'] and bars[j][1] == 'P' and bars[j][2] >= 2 and q['pub'] > j + OPT.get('h4m', 3): cap = 1
            bj = bars[j]
            key = bj[0][:2] + bj[1] + (str(bj[2]) if bj[1] == 'P' else '')
            if j > 1 and key in OPT.get('quiet', ()): cap = 0
            if OPT.get('wolate', 1) and q['p']['name'][:2] == 's2' and bj[0][:2] == 's1':
                cap = 99 if bj[1] in 'FG' else 0
                cap = OPT.get('wcap', {}).get(bj[0] + bj[1] + str(bj[2]), cap)
            if len(iss) >= cap and chunks[nxt]['pub'] > j + 1: break
            iss.append((q['p']['name'], q['c'] == 0))
            issued.append((nxt, len(q['p']['pieces']) * q['p']['uk']))
            nxt += 1
        for (bar, mat) in OPT.get('sl', ()):
            if bars[j] == bar:
                iss.append(('S' + mat, True))
                issued.append((-1, 1))
        if OPT.get('lt') and bars[j] == OPT['lt']:
            iss.append(('LT', True))
            issued.append((-1, 3))
        for (tph, t0, t1, mat) in OPT.get('ft', ()):
            bj = bars[j]
            if bj[0] == tph and bj[1] == 'P' and t0 <= bj[2] < t1:
                iss.append((f'F{mat}{t1-t0}', bj[2] == t0))
                issued.append((-1, 1))
        for tk, (tkey, tn) in OPT.get('l2t', {}).items():
            bj = bars[j]
            if tkey == bj[0][:2] + bj[1] + (str(bj[2]) if bj[1] == 'P' else '') and not (tk[0] == 'q' and bj[0][3] == '1') and bj[0][3] in OPT.get('l2tl', '01'):
                iss.append(('T' + tk, True))
                issued.append((-1, tn))
        w = None
        for k, (ci, n) in enumerate(issued):
            if ci >= 0 and chunks[ci]['pub'] == j:
                w = min(63, sum(x[1] for x in issued[k+1:]))
        if any(q['pub'] == j for q in chunks): assert w is not None, ('chunk not issued in time', j, bars[j])
        steps.append((tuple(iss), w, bars[j]))
    byname = {p.name: p for p in phases}
    bystream = {st['name']: st for st in streams}
    for tk, (tkey, tn) in OPT.get('l2t', {}).items(): bystream['T' + tk] = (tk, tn)

    for (tph, t0, t1, mat) in OPT.get('ft', ()): bystream[f'F{mat}{t1-t0}'] = [mat, t1 - t0]

    def ftouch(mat, n, first):
        tot = {'q': 512 * 3072, 'd': 1376 * 1024, 'o': 512 * 1024, 'g': 512 * 2752, 'u': 512 * 2752}[mat]
        sb = {'q': SB_QKV, 'd': SB_WD, 'o': SB_WO, 'g': SRD_A, 'u': SRD_B}[mat]
        sr = {'q': 56, 'd': 57, 'o': 56, 'g': 56, 'u': 57}[mat]
        lanes = -(-tot // (128 * 64 * n))
        assert lanes <= 64
        if first:
            a(f's_and_b32 s{sr}, s{S_VID}, 31')
            a(f's_mul_i32 s{sr}, s{sr}, {2*n*lanes*128}')
            a(f's_mul_i32 s54, s4, {lanes*128}')
            a(f's_add_u32 s{sr}, s{sr}, s54')
            a('v_lshlrev_b32 v32, 7, v1')
        m = (1 << lanes) - 1
        a(f's_mov_b32 exec_lo, {hex(m & 0xffffffff)}')
        a(f's_mov_b32 exec_hi, {hex(m >> 32)}')
        a(f'buffer_load_dword v31, v32, {S4(sb)}, s{sr} offen')
        a.vm = []
        a('s_mov_b64 exec, -1')
        a(f's_add_u32 s{sr}, s{sr}, {2*lanes*128}')

    bystream['LT'] = 'LT'
    for m_ in 'qdoOT': bystream['S' + m_] = 'S' + m_

    def stouch1(mat):
        if mat == 'T':
            srd(a, SRD_M, S_PTR + 14, 2048 * 1024)
            a(f's_cmp_eq_u32 s{S_MEM}, 15')
            a(f's_cselect_b32 s{SRD_M+2}, s{SRD_M+2}, 0')
            a('v_lshlrev_b32 v32, 16, v1')
            a('s_mov_b32 exec_hi, 0')
            a(f'buffer_load_dword v31, v32, {S4(SRD_M)}, 0 offen offset:4092')
            a.vm = []
            a('s_mov_b64 exec, -1')
            return
        if mat == 'O':
            a(f's_lshl_b32 s53, s{S_VID}, 1')
            a('s_add_u32 s53, s53, s4')
            a('s_lshl_b32 s53, s53, 10')
            a('v_lshlrev_b32 v32, 7, v1')
            a('s_mov_b64 exec, 0xff')
            a(f'buffer_load_dword v31, v32, {S4(SB_WO)}, s53 offen')
            a.vm = []
            a('s_mov_b64 exec, -1')
            return
        n = {'q': 24, 'd': 22, 'o': 8}[mat]
        a(f's_and_b32 s53, s{S_VID}, 31')
        a('s_lshl_b32 s53, s53, 1')
        a('s_add_u32 s53, s53, s4')
        a(f's_mul_i32 s53, s53, {n*KB}')
        a('v_lshlrev_b32 v32, 10, v1')
        a(f's_mov_b64 exec, {hex((1 << n) - 1)}')
        a(f'buffer_load_dword v31, v32, {S4({"q": SB_QKV, "d": SB_WD, "o": SB_WO}[mat])}, s53 offen offset:384')
        a.vm = []
        a('s_mov_b64 exec, -1')

    def ltouch():
        a('v_lshlrev_b32 v32, 8, v1')
        a('s_lshl_b32 s55, s4, 7')
        a('s_mul_i32 s53, s2, 5504')
        a('s_add_u32 s53, s53, s55')
        a('s_mov_b64 exec, 0x3fffff')
        for sb in (SRD_A, SRD_B, SB_WD):
            a(f'buffer_load_dword v31, v32, {S4(sb)}, s53 offen')
            a.vm = []
        a('s_mov_b64 exec, -1')

    def l2touch(tk, tn):
        if tk[0] == 'g':
            f0 = int(tk[1:])
            a(f's_mul_i32 s53, s{S_MEM}, 192')
            a('s_mul_i32 s54, s4, 188')
            a('s_add_u32 s53, s53, s54')
            a(f's_and_b32 s54, s{S_TEAM}, 1')
            a('s_lshl_b32 s54, s54, 2')
            a(f's_add_u32 s54, s54, s{S_MEM}')
            a('s_lshl_b32 s54, s54, 5')
            a('v_mov_b32 v33, 2752')
            for i in range(f0, f0 + tn):
                if i % 2 == 0 or i == f0:
                    a(f's_add_u32 s55, s54, {256 + 64*(i//2)}')
                    a('v_add_u32 v32, s55, v1')
                    a('v_and_b32 v32, 511, v32')
                    a('v_mul_u32_u24 v32, v32, v33')
                a(f'buffer_load_dword v31, v32, {S4(SB_WU if i % 2 else SB_WG)}, s53 offen')
                a.vm = []
        else:
            f0 = int(tk[1:])
            per = {'d': 44032, 'q': 49152}[tk[0]]
            a(f's_and_b32 s53, s{S_VID}, 31')
            a(f's_mul_i32 s53, s53, {per}')
            a('s_lshl_b32 s54, s4, 13')
            a('s_add_u32 s53, s53, s54')
            a('v_lshlrev_b32 v32, 7, v1')
            for i in range(f0, f0 + tn):
                a(f's_add_u32 s55, s53, {i*16384}')
                a(f'buffer_load_dword v31, v32, {S4(SB_WD if tk[0] == "d" else SB_QKV)}, s55 offen')
                a.vm = []

    byname['TOUCH'] = None

    def btouch():
        a('s_lshr_b32 s53, s2, 3')
        a('s_and_b32 s53, s53, 31')
        a('s_mul_i32 s53, s53, 6144')
        a('s_mul_i32 s54, s4, 3072')
        a('s_add_u32 s53, s53, s54')
        a('v_and_b32 v30, 7, v1')
        a('v_lshrrev_b32 v31, 3, v1')
        a('v_lshlrev_b32 v31, 10, v31')
        a('v_lshl_add_u32 v31, v30, 7, v31')
        a('v_and_b32 v30, 3, v30')
        a('v_lshlrev_b32 v30, 1, v30')
        a(f'v_mov_b32 v33, {64*3072}')
        a('s_mov_b64 exec, 0xffffff')
        for tau in range(OPT.get('ntau', 3), 8):
            a(f'v_add_u32 v32, {tau}, v30')
            a('v_and_b32 v32, 7, v32')
            a('v_mad_u32_u24 v32, v32, v33, v31')
            a(f'buffer_load_dword v31, v32, {S4(SB_QKV)}, s53 offen')
            a.vm = []
        a('s_mov_b64 exec, -1')
        a('v_lshlrev_b32 v30, 8, v1')
        a('s_lshl_b32 s55, s4, 7')
        a('s_mul_i32 s53, s2, 5504')
        a('s_add_u32 s53, s53, s55')
        a('s_lshl_b32 s54, s2, 11')
        a('s_add_u32 s54, s54, s55')
        a('s_mov_b64 exec, 0xff')
        a(f'buffer_load_dword v31, v30, {S4(SB_WO)}, s54 offen')
        a.vm = []
        a('s_mov_b64 exec, 0x3fffff')
        for sb in (SRD_A, SRD_B, SB_WD):
            a(f'buffer_load_dword v31, v30, {S4(sb)}, s53 offen')
            a.vm = []
        a('s_mov_b64 exec, -1')

    PACE = [0]

    def issue(st, first):
        if st == 'LT': return ltouch()
        if isinstance(st, str): return stouch1(st[1])
        if isinstance(st, tuple): return l2touch(*st)
        if isinstance(st, list): return ftouch(st[0], st[1], first)
        p = st['p']
        if first:
            phase_map(a, p)
            a(f's_mul_i32 s7, s14, {p.strideB}')
            a(f's_add_u32 s5, s11, {st["b0"]}')
        for kk in range(st['uk']):
            for i, (vr, sb) in enumerate(st['pieces']):
                a(f's_add_u32 m0, s5, {kk*st["sB"] + 2*i*KB}')
                nt = st['name'] in OPT.get('bnt', ()) or (sb == SB_WU and 'wu' in OPT.get('bnt', ()))
                a(f'buffer_load_dwordx4 v{vr}, {S4(sb)}, s7 offen {OPT.get("bntm", "nt") if nt else ""} lds')
                if PACE[0]: a(f's_sleep {PACE[0]}')
            a(f's_add_u32 s7, s7, {p.strideB}')
            a(f's_cmp_eq_u32 s7, {2*p.NC*p.strideB}')
            a('s_cselect_b32 s7, 0, s7')
        a(f's_add_u32 s5, s5, {st["uk"]*st["sB"]}')
        a(f's_cmp_ge_u32 s5, {RB_SZ}')
        a('s_cselect_b32 s5, s11, s5')

    def emit_iss(iss, tag):
        k = 0
        while k < len(iss):
            m = k
            while m < len(iss) and iss[m] == iss[k]: m += 1
            n = m - k
            if n >= 3 and not iss[k][1]:
                a(f's_mov_b32 s8, {n}')
                a.flush_hazards()
                a.loop_begin(f'L_bi_{tag}_{k}')
                issue(bystream[iss[k][0]], False)
                a('s_sub_u32 s8, s8, 1')
                a('s_cmp_lg_u32 s8, 0')
                a(f's_cbranch_scc1 L_bi_{tag}_{k}')
                a.loop_end_check()
            else:
                for x in iss[k:m]: issue(bystream[x[0]], x[1])
            k = m

    i = 0
    while i < len(steps):
        m = i
        while m < len(steps) and steps[m][:2] == steps[i][:2] and not (TS['on'] and m > i and steps[m][2][1] != 'P'): m += 1
        n = m - i
        iss, w, bar = steps[i]
        if TS['on'] and bar[1] != 'P': n = 1; m = i + 1
        if n >= 2 and len(iss) <= 2:
            a(f's_mov_b32 s9, {n}')
            a.flush_hazards()
            a.loop_begin(f'L_bs_{i}')
            for x in iss: issue(bystream[x[0]], x[1])
            if w is not None: a(f's_waitcnt vmcnt({w})')
            tsl(a, byname[bar[0]], 'pre')
            a('s_barrier')
            a('s_sub_u32 s9, s9, 1')
            a('s_cmp_lg_u32 s9, 0')
            a(f's_cbranch_scc1 L_bs_{i}')
            a.loop_end_check()
            i = m
        else:
            PACE[0] = OPT.get('pace', {}).get(bar[0] + bar[1] + str(bar[2]), 0)
            pre = OPT.get('presl', {}).get(bar[0] + bar[1] + str(bar[2]), 0)
            if pre: a(f's_sleep {pre}')
            emit_iss(iss, i)
            PACE[0] = 0
            if w is not None: a(f's_waitcnt vmcnt({w})')
            if bar[1] != 'P' or bar[2] == 0: ts(a, f'{bar[0]}.pre{bar[1]}')
            else: tsl(a, byname[bar[0]], 'pre')
            a('s_barrier')
            i += 1
        a.vm = []
    ts_flush(a)
    a('s_endpgm')
    a.fresh()
    return steps


def aloader(a, phases):
    TS['role'] = 'A'
    a.label('L_aload')
    a('s_and_b32 s4, s3, 1')
    a('v_mov_b32 v40, 1')
    a(f's_lshl_b32 s5, s{S_MEM}, 2')
    a('v_mov_b32 v41, s5')
    a('v_lshlrev_b32 v42, 2, v1')
    a(f's_and_b32 s5, s{S_VID}, 31')
    a('s_lshl_b32 s5, s5, 2')
    a('v_mov_b32 v43, s5')
    a(f's_lshr_b32 s5, s{S_VID}, 5')
    a('s_lshl_b32 s5, s5, 2')
    nrep = OPT.get('nrep', 0)
    rsh = {0: 7, 8: 9, 16: 8, 32: 7, 64: 6}[nrep]
    a(f'v_lshl_add_u32 v48, v1, {rsh}, s5')
    a(f'v_lshl_add_u32 v47, v1, 8, s{S_VID}')
    a('v_lshlrev_b32 v16, 4, v1')
    a('v_lshrrev_b32 v4, 3, v1')
    a('v_and_b32 v5, 7, v1')
    a(f'v_mul_u32_u24 v4, {43*KB}, v4')
    a('v_lshl_add_u32 v49, v5, 7, v4')
    a('v_lshlrev_b32 v50, 7, v1')
    a('v_and_b32 v4, 3, v1')
    a('v_lshlrev_b32 v4, 6, v4')
    a('v_and_b32 v5, 60, v1')
    a('v_add_u32 v55, v4, v5')
    ksync = 0
    for pi, p in enumerate(phases):
        nA = p.RT // 2
        per2 = 2 * nA
        NC, DC = p.NC, p.DC
        assert p.NCH >= DC + p.lag and (DC - 1) * per2 <= 63
        phase_map(a, p)
        if p.ph == 1:
            a('s_lshl_b32 s8, s12, 17')
            if p.L: a(f's_add_u32 s8, s8, {WS_X2}')
        elif p.ph == 3:
            a('s_lshl_b32 s8, s12, 17')
            a(f's_add_u32 s8, s8, {WS_X1[p.L]}')
        else:
            a(f's_mul_i32 s8, s12, {4*p.KSA*KB}')
            a(f's_add_u32 s8, s8, {WS_PQ[p.L] if p.ph == 2 else WS_H[p.L]}')
        if p.amode == 'F':
            a(f's_mul_i32 s10, s4, {p.KSA*KB}')
            a('s_add_u32 s10, s10, s8')
            a('v_lshl_add_u32 v8, v1, 4, s10')
            astep = 2 * p.KSA * KB
        else:
            a('v_lshrrev_b32 v4, 2, v1')
            a('v_and_b32 v5, 3, v1')
            a('v_sub_u32 v6, 4, v2')
            a('v_and_b32 v6, 3, v6')
            a('v_xor_b32 v5, v5, v6')
            a('v_lshlrev_b32 v4, 10, v4')
            a('v_lshl_add_u32 v8, v5, 4, v4')
            a('s_lshl_b32 s10, s4, 14')
            a('s_add_u32 s10, s10, s8')
            a('v_add_u32 v8, s10, v8')
            astep = 2 * 16 * KB
        for i in range(1, nA):
            a(f'v_add_u32 v{8+i}, {i*astep}, v8')
        a(f's_mul_i32 s6, s14, {p.strideA}')
        a('s_lshl_b32 s10, s4, 10')
        a(f's_add_u32 s10, s10, {RA0}')
        a('s_mov_b32 s5, s10')
        a(f's_add_u32 s11, s10, {p.NCH*p.cA}')
        a('s_mov_b32 s9, 0')
        spec = stouch_setup(a, p, 4, 2)
        if pi == 1: srd(a, SRD_A, S_WS, WS_BYTES)
        if p.ph == 3:
            a(f's_cmp_eq_u32 s{S_MEM}, 15')
            a(f's_cselect_b32 s{SRD_A+2}, 0, s{SRD_A+2}')
        if p.ph == 4:
            a(f's_mov_b32 s{SRD_A+2}, {WS_BYTES}')
        if p.stats:
            a('s_lshl_b32 s7, s12, 1')
            a('s_add_u32 s7, s7, s4')
            a('s_lshl_b32 s7, s7, 12')
            a(f's_add_u32 s7, s7, {WS_ST1[p.L] if p.ph == 3 else WS_ST2}')
        if pi > 0:
            prev = phases[pi - 1]
            kinds = ['t']
            if prev.ph == 1: kinds = ['g', 't'] if OPT.get('qlate', 1) else ['g']
            for kind in kinds:
                glob = (kind == 'g')
                tag = p.name + kind
                if glob:
                    a(f's_lshr_b32 s15, s{S_VID}, 5')
                    a('s_lshl_b32 s15, s15, 7')
                    a(f's_add_u32 s15, s15, {WS_SYNC + 14336 + prev.L*2048}')
                    a(f's_add_u32 s97, s15, 1024')
                    if nrep:
                        a(f's_lshr_b32 s97, s{S_VID}, {rsh - 4}')
                        a(f's_lshl_b32 s97, s97, {rsh}')
                        a(f's_add_u32 s97, s97, {WS_SYNC + 18432 + prev.L*4096}')
                else:
                    a(f's_lshl_b32 s15, s{S_TEAM}, 7')
                    a(f's_add_u32 s15, s15, {WS_SYNC + ksync*2048}')
                    ksync += 1
                gb = OPT.get('gb', 0) if glob else 0
                if gb:
                    a(f's_mov_b32 s15, {WS_SYNC + 14336 + prev.L*2048}')
                    a(f's_lshr_b32 s97, s{S_VID}, 5')
                    a('s_lshl_b32 s97, s97, 8')
                    a('s_add_u32 s97, s97, s15')
                ts(a, prev.name + '.preE' + kind)
                a('s_barrier')
                ts(a, prev.name + '.E' + kind)
                if gb:
                    a('s_cmp_eq_u32 s3, 4')
                    a(f's_cbranch_scc0 L_ns_{tag}')
                    a.begin_opt()
                    a('s_mov_b64 exec, 0xff')
                    a(f's_cmp_eq_u32 s{S_HET}, 0')
                    a(f's_cbranch_scc1 L_hom_{tag}')
                    a.raw('    buffer_wbl2 sc1')
                    a('s_waitcnt vmcnt(0)')
                    a.label(f'L_hom_{tag}')
                    a(f'buffer_store_byte v40, v47, {S4(SRD_W)}, s15 offen sc1')
                    a('s_mov_b64 exec, -1')
                    if gb == 1: poll(a, tag, 44, 1, 42, f'{S4(SRD_W)}, s97', -1, full=True)
                    a.end_opt()
                    a.label(f'L_ns_{tag}')
                    a.vm = []
                    if gb == 2: poll(a, tag, 44, 1, 42, f'{S4(SRD_W)}, s97', -1, full=True)
                    ts(a, p.name + '.flag' + kind)
                    a('s_barrier')
                    continue
                a('s_cmp_eq_u32 s3, 4')
                a(f's_cbranch_scc0 L_ns_{tag}')
                a.begin_opt()
                a('s_mov_b64 exec, 1')
                a(f's_cmp_eq_u32 s{S_HET}, 0')
                a(f's_cbranch_scc1 L_hom_{tag}')
                a.raw('    buffer_wbl2 sc1')
                a('s_waitcnt vmcnt(0)')
                vo = 43 if glob else 41
                a(f'buffer_store_dword v40, v{vo}, {S4(SRD_W)}, s15 offen sc1')
                a(f's_branch L_sg_{tag}')
                a.label(f'L_hom_{tag}')
                a(f'buffer_store_dword v40, v{vo}, {S4(SRD_W)}, s15 offen')
                a.label(f'L_sg_{tag}')
                a('s_mov_b64 exec, -1')
                if glob:
                    a(f's_and_b32 s85, s{S_VID}, 31')
                    a('s_cmp_eq_u32 s85, 0')
                    a(f's_cbranch_scc0 L_nl_{tag}')
                    vp = lambda: poll(a, 'g' + tag, 44, 1, 42, f'{S4(SRD_W)}, s15', 0xffffffff)
                    if OPT.get('spoll', 0) & 2: spoll(a, 'g' + tag, 's15', 2, vp)
                    else: vp()
                    a(f's_mov_b32 s85, {WS_SYNC + 18432 + prev.L*4096 if nrep else WS_SYNC + 14336 + prev.L*2048 + 1024}')
                    if nrep == 32: a('s_mov_b32 exec_hi, 0')
                    elif nrep != 64: a(f's_mov_b64 exec, {hex((1 << (nrep or 8)) - 1)}')
                    a(f'buffer_store_dword v40, v48, {S4(SRD_W)}, s85 offen sc1')
                    a('s_mov_b64 exec, -1')
                    if OPT.get('gsl', 0):
                        a(f's_branch L_nl2_{tag}')
                        a.label(f'L_nl_{tag}')
                        a(f's_sleep {OPT["gsl"]}')
                        a.label(f'L_nl2_{tag}')
                    else: a.label(f'L_nl_{tag}')
                    if OPT.get('gp', 0): poll(a, tag, 44, 1, 42, f'{S4(SRD_W)}, s97', 0xff)
                a.end_opt()
                a.label(f'L_ns_{tag}')
                a.vm = []
                if glob and OPT.get('gp', 0): pass
                elif glob: poll(a, tag, 44, 1, 42, f'{S4(SRD_W)}, s97', 0xff)
                elif OPT.get('spoll', 0) & 1:
                    spoll(a, tag, 's15', 1, lambda: poll(a, tag, 44, 1, 42, f'{S4(SRD_W)}, s15', 0xffff))
                else: poll(a, tag, 44, 1, 42, f'{S4(SRD_W)}, s15', 0xffff)
                ts(a, p.name + '.flag' + kind)
                if glob: a('s_barrier')
        if p.stats:
            for t in range(4):
                a(f'buffer_load_dwordx4 {R(20+4*t)}, v16, {S4(SRD_W)}, s7 offen offset:{t*KB} sc1')
            if p.st2:
                a(f's_add_u32 s7, s7, {128*KB}')
                for t in range(4):
                    a(f'buffer_load_dwordx4 {R(56+4*t)}, v16, {S4(SRD_W)}, s7 offen offset:{t*KB} sc1')
            if OPT.get('dbg1') and OPT.get('tsp') == p.name:
                tsl(a, p, 'iss')
                a('s_waitcnt vmcnt(0)')
                tsl(a, p, 'stl')
                a(f's_add_u32 m0, s5, 0')
                a(f'buffer_load_dwordx4 v8, {S4(SRD_A)}, s6 offen lds')
                a('s_waitcnt vmcnt(0)')
                tsl(a, p, 'a1')
                a(f'buffer_load_dwordx4 v9, {S4(SRD_A)}, s6 offen lds')
                a('s_waitcnt vmcnt(0)')
                tsl(a, p, 'a2')
        a.flush_hazards()
        a.loop_begin(f'L_li_{p.name}')
        if p.amode == 'R' and OPT.get('evenrot', 1):
            for i in range(nA):
                for kk in range(2):
                    a(f's_add_u32 m0, s5, {kk*p.sA + i*2*KB - kk*64}')
                    a(f'buffer_load_dwordx4 v{8+i}, {S4(SRD_A)}, s6 offen offset:{kk*64} lds')
            a(f's_add_u32 s6, s6, {2*p.strideA}')
            a(f's_cmp_eq_u32 s6, {2*NC*p.strideA}')
            a('s_cselect_b32 s6, 0, s6')
        for kk in range(0 if (p.amode == 'R' and OPT.get('evenrot', 1)) else 2):
            sa = 's6'
            if p.padk:
                a(f's_cmp_eq_u32 s6, {p.NKreal*p.strideA}')
                a(f's_cselect_b32 s8, 0x10000000, s6')
                sa = 's8'
            for i in range(nA):
                a(f's_add_u32 m0, s5, {kk*p.sA + i*2*KB}')
                a(f'buffer_load_dwordx4 v{8+i}, {S4(SRD_A)}, {sa} offen {OPT.get("amod", "")} lds')
            a(f's_add_u32 s6, s6, {p.strideA}')
            a(f's_cmp_eq_u32 s6, {2*NC*p.strideA}')
            a('s_cselect_b32 s6, 0, s6')
        a(f's_add_u32 s5, s5, {p.cA}')
        a('s_cmp_eq_u32 s5, s11')
        a('s_cselect_b32 s5, s10, s5')
        a('s_add_u32 s9, s9, 1')
        apro = p.lag if OPT.get('apro', 0) & (1 << pi) else 0
        assert (DC + apro - 1) * per2 <= 63
        a(f's_cmp_lt_u32 s9, {DC + apro}')
        a(f's_cbranch_scc1 L_li_{p.name}')
        if apro:
            a(f's_cmp_eq_u32 s9, {DC+apro}')
            a(f's_cbranch_scc0 L_lp_{p.name}')
            for x in range(apro):
                a(f's_waitcnt vmcnt({(DC+apro-1-x)*per2})')
                tsl(a, p, 'pre')
                a('s_barrier')
            a.label(f'L_lp_{p.name}')
        stouch(a, spec, 9)
        a(f's_waitcnt vmcnt({(DC-1)*per2})')
        tsl(a, p, 'pre')
        a('s_barrier')
        a(f's_cmp_lt_u32 s9, {NC}')
        a(f's_cbranch_scc1 L_li_{p.name}')
        a.loop_end_check()
        a.vm = []
        nt = 0
        vt = OPT.get('vtouch', 7)
        if p.name == 's1l0' and vt & 1:
            a(f's_mul_i32 s53, s12, {8*43*KB}')
            a('s_lshl_b32 s54, s13, 10')
            a('s_add_u32 s53, s53, s54')
            a(f's_add_u32 s53, s53, {WS_PQ[0]}')
            a(f's_lshl_b32 s54, s{S_VID}, 13')
            a(f's_add_u32 s54, s54, {WS_X1[0]}')
            a('s_cmp_eq_u32 s4, 0')
            a('s_cselect_b32 s53, s53, s54')
            a('s_cselect_b64 vcc, -1, 0')
            a('v_cndmask_b32 v51, v50, v49, vcc')
            a(f'buffer_load_dword v52, v51, {S4(SRD_W)}, s53 offen sc1')
            a(f's_lshl_b32 s54, s{S_VID}, 9')
            a(f's_add_u32 s54, s54, {WS_ST1[0]}')
            a('s_lshl_b32 s53, s4, 17')
            a('s_add_u32 s54, s54, s53')
            a('s_mov_b64 exec, 15')
            a(f'buffer_load_dword v53, v50, {S4(SRD_W)}, s54 offen sc1')
            a('s_mov_b64 exec, -1')
            nt = 2
        if pi == 0:
            a(f'buffer_load_dword v54, v42, {S4(SRD_M)}, 0 offen sc1')
            nt += 1
        if p.name == 's1l0' and OPT.get('pretouch', 65) & 8:
            a('s_cmp_eq_u32 s4, 0')
            a('s_cselect_b32 s%d, s%d, 0' % (SB_WO + 2, SB_WO + 2))
            a('s_cselect_b32 s%d, s%d, 0' % (SB_WG + 2, SB_WG + 2))
            a('s_cselect_b32 s%d, 0, s%d' % (SB_WU + 2, SB_WU + 2))
            a('s_cselect_b32 s%d, 0, s%d' % (SB_WD + 2, SB_WD + 2))
            late_touch(a, 50)
            nt += 4
        if p.ph == 3 and vt & (2 << p.L):
            a(f's_mul_i32 s53, s12, {8*43*KB}')
            a(f's_mul_i32 s54, s13, {3*KB}')
            a('s_add_u32 s53, s53, s54')
            a(f's_add_u32 s53, s53, {WS_H[p.L]}')
            a('s_lshl_b32 s54, s4, 10')
            a('s_add_u32 s54, s54, s53')
            a(f'buffer_load_dword v52, v49, {S4(SRD_W)}, s54 offen sc1')
            a('s_cmp_eq_u32 s4, 0')
            a('s_cselect_b32 exec_lo, -1, 0')
            a('s_cselect_b32 exec_hi, 0, -1')
            a(f'buffer_load_dword v53, v49, {S4(SRD_W)}, s53 offen offset:2048 sc1')
            a('s_mov_b64 exec, -1')
            nt = 2
        a.vm = []
        if p.stats:
            if p.st2:
                for t in range(8):
                    a(pk('v_pk_add_f32', 20 + 2 * t, 20 + 2 * t, 56 + 2 * t))
            for t in range(4):
                a(pk('v_pk_add_f32', 20 + 4 * t, 20 + 4 * t, 22 + 4 * t))
            a('v_and_b32 v17, 1, v1')
            a('v_cmp_eq_u32 vcc, 1, v17')
            for t in range(4):
                for e in range(2):
                    r = 20 + 4 * t + e
                    a(f'v_add_f32_dpp v{r}, v{r}, v{r} quad_perm:[1,0,3,2] row_mask:0xf bank_mask:0xf')
            for h in range(2):
                for e in range(2):
                    a(f'v_cndmask_b32 v{20+8*h+e}, v{20+8*h+e}, v{24+8*h+e}, vcc')

            def stats2():
                a('v_and_b32 v17, 2, v1')
                a('v_cmp_eq_u32 vcc, 2, v17')
                for h in range(2):
                    for e in range(2):
                        r = 20 + 8 * h + e
                        a(f'v_add_f32_dpp v{r}, v{r}, v{r} quad_perm:[2,3,0,1] row_mask:0xf bank_mask:0xf')
                for e in range(2):
                    a(f'v_cndmask_b32 v{20+e}, v{20+e}, v{28+e}, vcc')
                stats_finish(a, 20, 21, 22, 23, 17)
                a('s_lshl_b32 s8, s4, 8')
                a(f's_add_u32 s8, s8, {p.STB}')
                a('v_add_u32 v18, s8, v55')
                a(f'ds_write_b32 v18, v22')
                a(f'ds_write_b32 v18, v23 offset:512')
                a('s_waitcnt lgkmcnt(0)')
        for r in range(1, DC):
            if spec and max(x[1] for x in spec) + 1 >= NC - DC + 1 + r:
                a('s_add_u32 s9, s9, 1')
                stouch(a, spec, 9)
            a(f's_waitcnt vmcnt({(DC-1-r)*per2 + nt})')
            tsl(a, p, 'pre')
            a('s_barrier')
        a.vm = []
        if p.final: break
        if p.stats: stats2()
        a('s_barrier')
        if pi == 0:
            a(f's_mov_b32 s84, {SPIN}')
            a('s_mov_b32 s52, 0x06060606')
            a('s_mov_b32 s53, 0x06060606')
            a(f's_lshr_b32 s94, s{S_TEAM}, 1')
            a('s_lshl_b32 s94, s94, 3')
            a('s_waitcnt vmcnt(0)')
            a('s_branch L_het1')
            a.label('L_het')
            a('s_sleep 2')
            a(f'buffer_load_dword v54, v42, {S4(SRD_M)}, 0 offen sc1')
            a('s_waitcnt vmcnt(0)')
            a.label('L_het1')
            a('s_sub_u32 s84, s84, 1')
            a(f's_mov_b32 s{S_HET}, 1')
            a('s_cbranch_scc1 L_het_done')
            a('v_cmp_eq_u32 vcc, 0, v54')
            a('v_readlane_b32 s95, v54, s94')
            a('s_nop 0')
            a('s_and_b64 s[54:55], vcc, s[52:53]')
            a('s_cbranch_scc1 L_het')
            if not OPT.get('fakexcc', 0):
                a(f's_mov_b32 s{S_HET}, 0')
                a('s_cmp_ge_u32 s95, 32')
                a('s_cbranch_scc1 L_het_done')
                a(f's_mov_b32 s{S_HET}, 1')
                for i in range(8):
                    a(f'v_readlane_b32 s{86+i}, v54, {8*i}')
                a('s_add_u32 s85, s86, s87')
                for i in range(2, 8):
                    a(f's_add_u32 s85, s85, s{86+i}')
                a('s_cmp_ge_u32 s85, 256')
                a('s_cbranch_scc0 L_het')
            a.label('L_het_done')
            a.vm = []
        for _ in range(p.nX): a('s_barrier')
    ts_flush(a)
    a('s_endpgm')
    a.fresh()


def comp_s1(a, p):
    name = p.name; L = p.L
    STB = p.STB
    ZB = SCR + 8 * KB
    first = (L == 0)
    KVB = WS_KV + L * 65536
    ACQ, ACK, ACV = 64, 80, 96
    SS, SG, CS = 112, 120, 128
    FR = 152
    ONES = 216
    fixed = [8, 9, 10]; cur = [11, 12, 13]
    vX, vW0, vW1 = cur
    vKVa, vZa, vT, vDb = 17, 18, 20, 21
    phase_map(a, p)
    a('s_lshl_b32 s4, s3, 11')
    a(f's_add_u32 s4, s4, {RA0}')
    xbase(a, 8, 4, p.amode)
    wpat(a, 9, 10)
    a('s_lshl_b32 s5, s13, 11')
    a('s_lshl_b32 s6, s3, 9')
    a('s_add_u32 s5, s5, s6')
    a(f's_add_u32 s5, s5, {KVB}')
    a(f'v_lshl_add_u32 v{vKVa}, v1, 2, s5')
    a('s_lshl_b32 s5, s13, 7')
    a(f's_add_u32 s5, s5, {KVB + 32768}')
    a(f'v_lshl_add_u32 v{vZa}, v1, 2, s5')
    a('v_lshlrev_b32 v14, 4, v2')
    a(f'v_add_u32 v14, {CS1L}, v14')
    a('v_lshlrev_b32 v15, 2, v3')
    a(f'v_add_u32 v15, {CS1L}, v15')
    if first:
        a('v_lshrrev_b32 v4, 1, v1')
        a('v_and_b32 v5, 1, v1')
        a('v_lshlrev_b32 v4, 5, v4')
        a('v_lshl_add_u32 v4, v5, 2, v4')
        a(f'v_add_u32 v{vDb}, 4, v4')
    a('s_lshl_b32 s7, s12, 3')
    a('s_lshl_b32 s5, s3, 1')
    a('s_add_u32 s7, s7, s5')
    a('s_mul_i32 s7, s7, 43')
    a('s_add_u32 s7, s7, s13')
    a('s_lshl_b32 s7, s7, 10')
    a(f's_add_u32 s7, s7, {WS_PQ[L]}')
    if OPT.get('otouch', 0):
        a('v_lshrrev_b32 v4, 3, v1')
        a('v_and_b32 v5, 7, v1')
        a(f'v_mul_u32_u24 v4, {43*KB}, v4')
        a('v_lshl_add_u32 v252, v5, 7, v4')
        p.touch = ['s_mov_b64 exec, 0xffff', f'buffer_load_dword v254, v252, {S4(SRD_W)}, s7 offen sc1', 's_mov_b64 exec, -1']
    for i in range(4): a(f'v_mov_b32 v{ONES+i}, 0x3f803f80')
    for r in range(64, 152 if first else 112): a(f'v_mov_b32 v{r}, 0')
    if first and OPT.get('lateinit', 1):
        a('s_cmp_eq_u32 s3, 1')
        a('s_cbranch_scc0 L_noif')
        a('s_cmp_lt_u32 s2, 16')
        a('s_cbranch_scc0 L_noif')
        a.begin_opt()
        init_flag(a)
        a.end_opt()
        a.label('L_noif')
        a.vm = []
    if first and OPT.get('pretouch', 65) & 16:
        a('v_lshlrev_b32 v22, 7, v1')
        p.touch = ['LATE']

    def fx(s, t): return FR + 32 * s + 4 * t
    def fw(s, q, u): return FR + 32 * s + 8 + 4 * (2 * q + u)

    def reads(s, kk):
        l = [rd128(fx(s, 0), vX, kk * p.sA), rd128(fx(s, 1), vX, kk * p.sA + KB)]
        for q in range(3):
            for u in range(2):
                for h in range(2):
                    l.append(rdtr(fw(s, q, u) + 2 * h, vW1 if u else vW0, kk * p.sB + (2 * q + h) * KB))
        return l

    def mfmas(s):
        l = []
        if first:
            for t in range(2):
                l.append(f'{MF} {R(SS+4*t)}, {R(ONES)}, {R(fx(s,t))}, {R(SS+4*t)}')
                l.append(f'{MF} {R(SG+4*t)}, {R(fx(s,t))}, {R(fx(s,t))}, {R(SG+4*t)}')
        for u in range(2):
            for t in range(2):
                d = ACQ + 8 * t + 4 * u
                l.append(f'{MF} {R(d)}, {R(fw(s,0,u))}, {R(fx(s,t))}, {R(d)}')
            if first:
                l.append(f'{MF} {R(CS+4*u)}, {R(fw(s,0,u))}, {R(ONES)}, {R(CS+4*u)}')
        for q, AC in ((1, ACK), (2, ACV)):
            for u in range(2):
                for t in range(2):
                    d = AC + 8 * u + 4 * t
                    l.append(f'{MF} {R(d)}, {R(fx(s,t))}, {R(fw(s,q,u))}, {R(d)}')
                if first:
                    l.append(f'{MF} {R(CS+8*q+4*u)}, {R(ONES)}, {R(fw(s,q,u))}, {R(CS+8*q+4*u)}')
        return l

    loop_big(a, p, fixed, cur, reads, mfmas, per=1 if first else 2)
    MEAN, RSTD = 32, 34
    MT, RT_, RTL = 36, 44, 52
    a('s_lshl_b32 s4, s3, 7')
    a(f's_add_u32 s4, s4, {STB}')
    a(f'v_lshl_add_u32 v6, v3, 2, s4')
    a(f'v_lshl_add_u32 v7, v2, 4, s4')
    if first:
        a('v_and_b32 v4, 3, v3')
        a('v_cmp_eq_u32 s[52:53], 1, v4')
        a('v_cmp_eq_u32 s[54:55], 2, v4')
        a('v_cmp_eq_u32 s[56:57], 3, v4')
        a('v_lshrrev_b32 v4, 2, v3')
        a('v_cmp_eq_u32 vcc, v4, v2')
        for t in range(2):
            a(f'v_cndmask_b32 v{SG+4*t}, v{SG+4*t}, v{SG+4*t+1}, s[52:53]')
            a(f'v_cndmask_b32 v{SG+4*t}, v{SG+4*t}, v{SG+4*t+2}, s[54:55]')
            a(f'v_cndmask_b32 v{SG+4*t}, v{SG+4*t}, v{SG+4*t+3}, s[56:57]')
        for t in range(2):
            stats_finish(a, SS + 4 * t, SG + 4 * t, MEAN + t, RSTD + t, 4 + t)
        a('s_mov_b64 exec, vcc')
        for t in range(2):
            a(f'ds_write_b32 v6, v{MEAN+t} offset:{64*t}')
            a(f'ds_write_b32 v6, v{RSTD+t} offset:{512+64*t}')
        a('s_mov_b64 exec, -1')
        for u in range(2):
            a(f'ds_write_b128 v14, {R(CS+4*u)} offset:{64*u}')
            a(f'ds_write_b32 v15, v{CS+8+4*u} offset:{128+64*u}')
            a(f'ds_write_b32 v15, v{CS+16+4*u} offset:{256+64*u}')
        a('s_waitcnt lgkmcnt(0)')
    else:
        for u in range(2):
            a(f'ds_read_b32 v{CS+8+4*u}, v15 offset:{128+64*u}')
            a(f'ds_read_b32 v{CS+16+4*u}, v15 offset:{256+64*u}')
    for t in range(2):
        a(f'ds_read_b128 {R(MT+4*t)}, v7 offset:{64*t}')
        a(f'ds_read_b128 {R(RT_+4*t)}, v7 offset:{512+64*t}')
    for t in range(2):
        a(f'ds_read_b32 v{MEAN+t}, v6 offset:{64*t}')
        a(f'ds_read_b32 v{RSTD+t}, v6 offset:{512+64*t}')
    if not first:
        for u in range(2):
            a(f'ds_read_b128 {R(CS+4*u)}, v14 offset:{64*u}')
    CONE, CEPS, CL2E = 60, 61, 62
    a(f'v_mov_b32 v{CONE}, 1.0')
    a(f'v_mov_b32 v{CEPS}, {hex(f2u(1e-6))}')
    a(f'v_mov_b32 v{CL2E}, {hex(f2u(LOG2E))}')
    RFL = 24
    for i in range(0, 8, 2):
        a(pk('v_pk_mul_f32', RTL + i, RT_ + i, CL2E, b1=0))
    T = FR

    def phi_pairs(items):
        for i, (ac, m, cs, r, rl, dst) in enumerate(items):
            a(pk('v_pk_fma_f32', ac, m[0], cs[0], ac, b0=m[1], b1=cs[1], neg0=True))
        for i, (ac, m, cs, r, rl, dst) in enumerate(items):
            a(pk('v_pk_mul_f32', T + 2 * i, ac, rl[0], b1=rl[1]))
        for i, (ac, m, cs, r, rl, dst) in enumerate(items):
            a(f'v_exp_f32 v{T+2*i}, v{T+2*i} clamp')
            a(f'v_exp_f32 v{T+2*i+1}, v{T+2*i+1} clamp')
            a(pk('v_pk_fma_f32', ac, ac, r[0], CONE, b1=r[1], b2=0))
        for i, (ac, m, cs, r, rl, dst) in enumerate(items):
            a(f'v_max_f32 v{ac}, v{ac}, v{T+2*i}')
            a(f'v_max_f32 v{ac+1}, v{ac+1}, v{T+2*i+1}')
        for i, (ac, m, cs, r, rl, dst) in enumerate(items):
            a(pk('v_pk_add_f32', ac, ac, CEPS, b1=0))
        for i, (ac, m, cs, r, rl, dst) in enumerate(items):
            a(f'v_cvt_pk_bf16_f32 v{dst}, v{ac}, v{ac+1}')

    PK_, PV, PQ = FR + 16, FR + 24, FR + 32
    items = []
    for u in range(2):
        for t in range(2):
            for hh in range(2):
                items.append((ACK + 8 * u + 4 * t + 2 * hh, (MT + 4 * t + 2 * hh, None), (CS + 8 + 4 * u, 0),
                              (RT_ + 4 * t + 2 * hh, None), (RTL + 4 * t + 2 * hh, None), PK_ + 4 * u + 2 * t + hh))
    phi_pairs(items)
    vi = [(u, t, hh) for u in range(2) for t in range(2) for hh in range(2)]
    for u, t, hh in vi:
        ac = ACV + 8 * u + 4 * t + 2 * hh
        a(pk('v_pk_fma_f32', ac, MT + 4 * t + 2 * hh, CS + 16 + 4 * u, ac, b1=0, neg0=True))
    for u, t, hh in vi:
        ac = ACV + 8 * u + 4 * t + 2 * hh
        a(pk('v_pk_mul_f32', ac, ac, RT_ + 4 * t + 2 * hh))
    for u, t, hh in vi:
        ac = ACV + 8 * u + 4 * t + 2 * hh
        a(f'v_cvt_pk_bf16_f32 v{PV+4*u+2*t+hh}, v{ac}, v{ac+1}')
    KD, ZD = FR + 40, FR + 48
    for u in range(2):
        a(f'{MF} {R(KD+4*u)}, {R(PK_+4*u)}, {R(PV+4*u)}, 0')
        a(f'{MF} {R(ZD+4*u)}, {R(PK_+4*u)}, {R(ONES)}, 0')
    for t in range(2):
        a(f'v_mul_f32 v{RFL+t}, v{CL2E}, v{RSTD+t}')
    a('s_lshl_b32 s4, s3, 11')
    a(f's_add_u32 s4, s4, {SCR}')
    a(f'v_lshl_add_u32 v6, v1, 4, s4')
    a('s_lshl_b32 s4, s3, 7')
    a(f's_add_u32 s4, s4, {ZB}')
    a(f'v_lshl_add_u32 v7, v2, 4, s4')
    for u in range(2):
        a(f'ds_write_b128 v6, {R(KD+4*u)} offset:{u*KB}')
    a('s_mov_b32 exec_lo, 0x00010001')
    a('s_mov_b32 exec_hi, 0x00010001')
    for u in range(2):
        a(f'ds_write_b128 v7, {R(ZD+4*u)} offset:{u*64}')
    a('s_mov_b64 exec, -1')
    a('s_lshl_b32 s4, s3, 9')
    a(f's_add_u32 s4, s4, {SCR}')
    a(f'v_lshl_add_u32 v6, v1, 2, s4')
    a(f'v_and_b32 v7, 31, v1')
    a(f'v_lshlrev_b32 v7, 2, v7')
    a(f'v_add_u32 v7, {ZB}, v7')
    if first:
        a('s_cmp_eq_u32 s3, 0')
        a(f's_cbranch_scc0 L_go_{name}')
        sv = list(a.lds)
        poll(a, 'init', vT, 1, vDb, f'{S4(SRD_M)}, 0', 0xffff)
        a.label(f'L_go_{name}')
    a('s_waitcnt lgkmcnt(0)')
    a('s_barrier')
    RD = FR + 40
    for i in range(2):
        for w in range(4):
            a(f'ds_read_b32 v{RD+4*i+w}, v6 offset:{w*2048+i*256}')
    for w in range(4):
        a(f'ds_read_b32 v{RD+8+w}, v7 offset:{w*128}')
    items = []
    for t in range(2):
        for u in range(2):
            for hh in range(2):
                items.append((ACQ + 8 * t + 4 * u + 2 * hh, (MEAN + t, 0), (CS + 4 * u + 2 * hh, None),
                              (RSTD + t, 0), (RFL + t, 0), PQ + 4 * t + 2 * u + hh))
    for i in range(3):
        a(f'v_add_f32 v{RD+4*i}, v{RD+4*i}, v{RD+4*i+1}')
        a(f'v_add_f32 v{RD+4*i+2}, v{RD+4*i+2}, v{RD+4*i+3}')
    for i in range(3):
        a(f'v_add_f32 v{RD+4*i}, v{RD+4*i}, v{RD+4*i+2}')
    for i in range(2):
        a(f'buffer_atomic_add_f32 v{RD+4*i}, v{vKVa}, {S4(SRD_W)}, 0 offen offset:{i*256}')
    a('s_cmp_eq_u32 s3, 0')
    a(f's_cbranch_scc0 L_nz_{name}')
    a.begin_opt()
    a('s_mov_b32 exec_hi, 0')
    a(f'buffer_atomic_add_f32 v{RD+8}, v{vZa}, {S4(SRD_W)}, 0 offen')
    a('s_mov_b64 exec, -1')
    a.end_opt()
    a.label(f'L_nz_{name}')
    a.vm = []
    phi_pairs(items[:4])
    a(f's_add_u32 s5, s7, {43*KB}')
    a('v_lshlrev_b32 v6, 4, v1')
    a(f'buffer_store_dwordx4 {R(PQ)}, v6, {S4(SRD_W)}, s7 offen {stmod()}')
    phi_pairs(items[4:])
    a(f'buffer_store_dwordx4 {R(PQ+4)}, v6, {S4(SRD_W)}, s5 offen {stmod()}')
    end_phase(a, p)


def comp_s1q(a, p):
    name = p.name; L = p.L
    STB = p.STB
    ZB = SCR + 8 * KB
    CSX = RA0
    first = (L == 0)
    KVB = WS_KV + L * 65536
    ONES = 24
    MEAN, RSTD = 28, 26 + 64 + 4
    ACK, ACV, BF = 32, 48, 64
    SS, SG, CS = 96, 104, 112
    AF = 128
    vKVa, vZa, vT, vDb = 17, 18, 20, 21
    phase_map(a, p)
    a('s_lshl_b32 s4, s3, 11')
    a(f's_add_u32 s4, s4, {RA0}')
    xbase(a, 8, 4, p.amode)
    wpat(a, 9, 10)
    a(f'v_add_u32 v11, {48*KB}, v9')
    a(f'v_add_u32 v12, {48*KB}, v10')
    a('s_lshl_b32 s10, s13, 11')
    a(f's_add_u32 s10, s10, {KVB}')
    a('s_lshl_b32 s6, s3, 9')
    a('s_add_u32 s5, s10, s6')
    a(f'v_lshl_add_u32 v{vKVa}, v1, 2, s5')
    a('s_lshl_b32 s11, s13, 7')
    a(f's_add_u32 s11, s11, {KVB + 32768}')
    a(f'v_lshl_add_u32 v{vZa}, v1, 2, s11')
    a('v_lshlrev_b32 v14, 4, v2')
    a(f'v_add_u32 v14, {CS1L}, v14')
    a('v_lshlrev_b32 v15, 2, v3')
    a(f'v_add_u32 v15, {CS1L}, v15')
    if first:
        a('v_lshrrev_b32 v4, 1, v1')
        a('v_and_b32 v5, 1, v1')
        a('v_lshlrev_b32 v4, 5, v4')
        a('v_lshl_add_u32 v4, v5, 2, v4')
        a(f'v_add_u32 v{vDb}, 4, v4')
    a('s_lshl_b32 s7, s12, 3')
    a('s_lshl_b32 s5, s3, 1')
    a('s_add_u32 s7, s7, s5')
    a('s_mul_i32 s7, s7, 43')
    a('s_add_u32 s7, s7, s13')
    a('s_lshl_b32 s7, s7, 10')
    a(f's_add_u32 s7, s7, {WS_PQ[L]}')
    for i in range(4): a(f'v_mov_b32 v{ONES+i}, 0x3f803f80')
    if first:
        for r in range(CS, CS + 16): a(f'v_mov_b32 v{r}, 0')
        a('s_cmp_eq_u32 s3, 1')
        a('s_cbranch_scc0 L_noif')
        a('s_cmp_lt_u32 s2, 16')
        a('s_cbranch_scc0 L_noif')
        a.begin_opt()
        init_flag(a)
        a.end_opt()
        a.label('L_noif')
        a.vm = []

    def af(ks, t): return AF + 8 * ks + 4 * t
    def fw(ks, q, u): return BF + 16 * (ks & 1) + 8 * q + 4 * u
    def wr(dst, u, pos):
        pos %= RB_SZ
        return rdtr(dst, (9 + u) if pos < 48 * KB else (11 + u), pos if pos < 48 * KB else pos - 48 * KB)

    def reads(ks):
        oa = ((ks >> 1) % 3) * p.cA + (ks & 1) * p.sA
        l = [rd128(af(ks, 0), 8, oa)]
        for q in range(2):
            for u in range(2):
                for h in range(2):
                    l.append(wr(fw(ks, q, u) + 2 * h, u, p.b0 + ks * 4 * KB + (2 * q + h) * KB))
                if q == 0 and u == 0: l.append(rd128(af(ks, 1), 8, oa + KB))
        return l

    def mfmas(ks):
        l = []
        def c(d): return R(d) if ks else '0'
        for q, AC in ((0, ACK), (1, ACV)):
            for u in range(2):
                for t in range(2):
                    d = AC + 8 * u + 4 * t
                    l.append(f'{MF} {R(d)}, {R(af(ks,t))}, {R(fw(ks,q,u))}, {c(d)}')
            if first:
                t = q
                l.append(f'{MF} {R(SS+4*t)}, {R(ONES)}, {R(af(ks,t))}, {c(SS+4*t)}')
                l.append(f'{MF} {R(SG+4*t)}, {R(af(ks,t))}, {R(af(ks,t))}, {c(SG+4*t)}')
        if first:
            def csblk():
                lab = f'L_cs{ks}_{name}'
                a(f's_cmp_eq_u32 s3, {ks & 3}')
                a(f's_cbranch_scc0 {lab}')
                a.begin_opt()
                for q in range(2):
                    for u in range(2):
                        d = CS + 8 * q + 4 * u
                        a(f'{MF} {R(d)}, {R(ONES)}, {R(fw(ks,q,u))}, {R(d)}')
                a.end_opt()
                a.label(lab)
            if OPT.get('cs1full', 0):
                for q in range(2):
                    for u in range(2):
                        d = CS + 8 * q + 4 * u
                        l.append(f'{MF} {R(d)}, {R(ONES)}, {R(fw(ks,q,u))}, {R(d)}')
            else: l.append(csblk)
        return l

    ts(a, name + '.preP0')
    a('s_barrier')
    ts(a, name + '.P0')
    for t in reads(0): a(t)
    per = 1 if first else 2
    for c in range(8):
        interleave(a, mfmas(2 * c), reads(2 * c + 1), per=per)
        a.wait_lds_all()
        tsl(a, p, 'pre')
        a('s_barrier')
        tsl(a, p, 'post')
        interleave(a, mfmas(2 * c + 1), reads(2 * c + 2) if c < 7 else [], per=per)
    ts(a, name + '.loopend')
    MT, RT_, RTL = 64, 72, 80
    CONE, CEPS, CL2E = 88, 89, 90
    RFL = 92
    T = 96
    CK = [CS, CS + 4]; CV = [CS + 8, CS + 12]
    a('s_lshl_b32 s4, s3, 7')
    a(f's_add_u32 s4, s4, {STB}')
    a(f'v_lshl_add_u32 v6, v3, 2, s4')
    a(f'v_lshl_add_u32 v7, v2, 4, s4')
    if first:
        a('s_lshl_b32 s5, s3, 2')
        a(f's_add_u32 s5, s5, {CSX}')
        a('v_lshl_add_u32 v13, v3, 4, s5')
        a('v_and_b32 v4, 3, v3')
        a('v_cmp_eq_u32 s[52:53], 1, v4')
        a('v_cmp_eq_u32 s[54:55], 2, v4')
        a('v_cmp_eq_u32 s[56:57], 3, v4')
        a('v_lshrrev_b32 v4, 2, v3')
        a('v_cmp_eq_u32 vcc, v4, v2')
        for i in range(0 if OPT.get('cs1full', 0) else 4):
            a(f'ds_write_b32 v13, v{CS+4*i} offset:{256*i}')
        for t in range(2):
            a(f'v_cndmask_b32 v{SG+4*t}, v{SG+4*t}, v{SG+4*t+1}, s[52:53]')
            a(f'v_cndmask_b32 v{SG+4*t}, v{SG+4*t}, v{SG+4*t+2}, s[54:55]')
            a(f'v_cndmask_b32 v{SG+4*t}, v{SG+4*t}, v{SG+4*t+3}, s[56:57]')
        for t in range(2):
            stats_finish(a, SS + 4 * t, SG + 4 * t, MEAN + t, RSTD + t, 4 + t)
        a('s_mov_b64 exec, vcc')
        for t in range(2):
            a(f'ds_write_b32 v6, v{MEAN+t} offset:{64*t}')
            a(f'ds_write_b32 v6, v{RSTD+t} offset:{512+64*t}')
        a('s_mov_b64 exec, -1')
        a('v_lshlrev_b32 v13, 4, v3')
        a(f'v_add_u32 v13, {CSX}, v13')
        a('s_waitcnt lgkmcnt(0)')
        if not OPT.get('cs1full', 0):
            a('s_barrier')
            for i in range(4):
                a(f'ds_read_b128 {R(CS+4*i)}, v13 offset:{256*i}')
    else:
        for u in range(2):
            a(f'ds_read_b32 v{CK[u]}, v15 offset:{128+64*u}')
            a(f'ds_read_b32 v{CV[u]}, v15 offset:{256+64*u}')
    for t in range(2):
        a(f'ds_read_b128 {R(MT+4*t)}, v7 offset:{64*t}')
        a(f'ds_read_b128 {R(RT_+4*t)}, v7 offset:{512+64*t}')
    for t in range(2):
        a(f'ds_read_b32 v{MEAN+t}, v6 offset:{64*t}')
        a(f'ds_read_b32 v{RSTD+t}, v6 offset:{512+64*t}')
    a(f'v_mov_b32 v{CONE}, 1.0')
    a(f'v_mov_b32 v{CEPS}, {hex(f2u(1e-6))}')
    a(f'v_mov_b32 v{CL2E}, {hex(f2u(LOG2E))}')
    if first:
        for i in range(0 if OPT.get('cs1full', 0) else 4):
            a(pk('v_pk_add_f32', CS + 4 * i, CS + 4 * i, CS + 4 * i + 2))
        for i in range(0 if OPT.get('cs1full', 0) else 4):
            a(f'v_add_f32 v{CS+4*i}, v{CS+4*i}, v{CS+4*i+1}')
        for u in range(2):
            a(f'ds_write_b32 v15, v{CK[u]} offset:{128+64*u}')
            a(f'ds_write_b32 v15, v{CV[u]} offset:{256+64*u}')
    for i in range(0, 8, 2):
        a(pk('v_pk_mul_f32', RTL + i, RT_ + i, CL2E, b1=0))

    def phi_pairs(items, T):
        for i, (ac, m, cs, r, rl, dst) in enumerate(items):
            a(pk('v_pk_fma_f32', ac, m[0], cs[0], ac, b0=m[1], b1=cs[1], neg0=True))
        for i, (ac, m, cs, r, rl, dst) in enumerate(items):
            a(pk('v_pk_mul_f32', T + 2 * i, ac, rl[0], b1=rl[1]))
        for i, (ac, m, cs, r, rl, dst) in enumerate(items):
            a(f'v_exp_f32 v{T+2*i}, v{T+2*i} clamp')
            a(f'v_exp_f32 v{T+2*i+1}, v{T+2*i+1} clamp')
            a(pk('v_pk_fma_f32', ac, ac, r[0], CONE, b1=r[1], b2=0))
        for i, (ac, m, cs, r, rl, dst) in enumerate(items):
            a(f'v_max_f32 v{ac}, v{ac}, v{T+2*i}')
            a(f'v_max_f32 v{ac+1}, v{ac+1}, v{T+2*i+1}')
        for i, (ac, m, cs, r, rl, dst) in enumerate(items):
            a(pk('v_pk_add_f32', ac, ac, CEPS, b1=0))
        for i, (ac, m, cs, r, rl, dst) in enumerate(items):
            a(f'v_cvt_pk_bf16_f32 v{dst}, v{ac}, v{ac+1}')

    PK_, PV = ACK, ACV
    vi = [(u, t, hh) for u in range(2) for t in range(2) for hh in range(2)]
    phi_pairs([(ACK + 8 * u + 4 * t + 2 * hh, (MT + 4 * t + 2 * hh, None), (CK[u], 0), (RT_ + 4 * t + 2 * hh, None),
                (RTL + 4 * t + 2 * hh, None), PK_ + 4 * u + 2 * t + hh) for u, t, hh in vi], T)
    for u, t, hh in vi:
        ac = ACV + 8 * u + 4 * t + 2 * hh
        a(pk('v_pk_fma_f32', ac, MT + 4 * t + 2 * hh, CV[u], ac, b1=0, neg0=True))
    for u, t, hh in vi:
        ac = ACV + 8 * u + 4 * t + 2 * hh
        a(pk('v_pk_mul_f32', ac, ac, RT_ + 4 * t + 2 * hh))
    for u, t, hh in vi:
        ac = ACV + 8 * u + 4 * t + 2 * hh
        a(f'v_cvt_pk_bf16_f32 v{PV+4*u+2*t+hh}, v{ac}, v{ac+1}')
    KD, ZD = T, T + 8
    for u in range(2):
        a(f'{MF} {R(KD+4*u)}, {R(PK_+4*u)}, {R(PV+4*u)}, 0')
        a(f'{MF} {R(ZD+4*u)}, {R(PK_+4*u)}, {R(ONES)}, 0')
    for t in range(2):
        a(f'v_mul_f32 v{RFL+t}, v{CL2E}, v{RSTD+t}')
    a('s_lshl_b32 s4, s3, 11')
    a(f's_add_u32 s4, s4, {SCR}')
    a(f'v_lshl_add_u32 v6, v1, 4, s4')
    a('s_lshl_b32 s4, s3, 7')
    a(f's_add_u32 s4, s4, {ZB}')
    a(f'v_lshl_add_u32 v7, v2, 4, s4')
    for u in range(2):
        a(f'ds_write_b128 v6, {R(KD+4*u)} offset:{u*KB}')
    a('s_mov_b32 exec_lo, 0x00010001')
    a('s_mov_b32 exec_hi, 0x00010001')
    for u in range(2):
        a(f'ds_write_b128 v7, {R(ZD+4*u)} offset:{u*64}')
    a('s_mov_b64 exec, -1')
    a('s_lshl_b32 s4, s3, 9')
    a(f's_add_u32 s4, s4, {SCR}')
    a(f'v_lshl_add_u32 v6, v1, 2, s4')
    a(f'v_and_b32 v7, 31, v1')
    a(f'v_lshlrev_b32 v7, 2, v7')
    a(f'v_add_u32 v7, {ZB}, v7')
    a('s_waitcnt lgkmcnt(0)')
    a('s_barrier')
    RD = 112
    for i in range(2):
        for w in range(4):
            a(f'ds_read_b32 v{RD+4*i+w}, v6 offset:{w*2048+i*256}')
    for w in range(4):
        a(f'ds_read_b32 v{RD+8+w}, v7 offset:{w*128}')
    for i in range(3):
        a(f'v_add_f32 v{RD+4*i}, v{RD+4*i}, v{RD+4*i+1}')
        a(f'v_add_f32 v{RD+4*i+2}, v{RD+4*i+2}, v{RD+4*i+3}')
    for i in range(3):
        a(f'v_add_f32 v{RD+4*i}, v{RD+4*i}, v{RD+4*i+2}')
    for i in range(2):
        a(f'buffer_atomic_add_f32 v{RD+4*i}, v{vKVa}, {S4(SRD_W)}, 0 offen offset:{i*256}')
    a('s_cmp_eq_u32 s3, 0')
    a(f's_cbranch_scc0 L_nz_{name}')
    a.begin_opt()
    a('s_mov_b32 exec_hi, 0')
    a(f'buffer_atomic_add_f32 v{RD+8}, v{vZa}, {S4(SRD_W)}, 0 offen')
    a('s_mov_b64 exec, -1')
    a.end_opt()
    a.label(f'L_nz_{name}')
    end_phase(a, p)
    ACQ, CQ = 32, 96
    def fq(ks, u): return BF + 8 * (ks & 1) + 4 * u
    def qreads(ks):
        return [wr(fq(ks, u) + 2 * h, u, p.b0q + ks * 2 * KB + h * KB) for u in range(2) for h in range(2)]
    def qm(ks):
        l = []
        def c(d): return R(d) if ks else '0'
        for u in range(2):
            for t in range(2):
                d = ACQ + 8 * t + 4 * u
                l.append(f'{MF} {R(d)}, {R(fq(ks,u))}, {R(af(ks,t))}, {c(d)}')
            if first: l.append(f'{MF} {R(CQ+4*u)}, {R(fq(ks,u))}, {R(ONES)}, {c(CQ+4*u)}')
        return l
    for t in qreads(0): a(t)
    if not first:
        for u in range(2):
            a(f'ds_read_b128 {R(CQ+4*u)}, v14 offset:{64*u}')
    for ks in range(16):
        interleave(a, qm(ks), qreads(ks + 1) if ks < 15 else [], per=1)
    if first:
        for u in range(2):
            a(f'ds_write_b128 v14, {R(CQ+4*u)} offset:{64*u}')
    PQ = ACQ
    phi_pairs([(ACQ + 8 * t + 4 * u + 2 * hh, (MEAN + t, 0), (CQ + 4 * u + 2 * hh, None), (RSTD + t, 0), (RFL + t, 0),
                PQ + 4 * t + 2 * u + hh) for t in range(2) for u in range(2) for hh in range(2)], 64)
    KVF, ZF, EPS4, N, OF = 128, 136, 140, 144, 176
    a('v_lshlrev_b32 v6, 4, v1')
    a('v_and_b32 v4, 1, v1')
    a('v_cmp_eq_u32 vcc, 1, v4')
    a('v_lshlrev_b32 v4, 6, v4')
    a('v_lshl_add_u32 v7, v2, 4, v4')
    for i in range(4): a(f'v_mov_b32 v{EPS4+i}, {hex(f2u(1e-6))}')
    a(f's_add_u32 s5, s7, {43*KB}')
    a.wait_lds_all()
    ts(a, name + '.preF')
    a('s_barrier')
    ts(a, name + '.F')
    a(f'buffer_load_dwordx4 {R(ZF)}, v7, {S4(SRD_W)}, s11 offen')
    for u in range(2):
        a(f'buffer_load_dwordx4 {R(KVF+4*u)}, v6, {S4(SRD_W)}, s10 offen offset:{u*KB}')
    a(f'v_cvt_pk_bf16_f32 v4, v{ZF}, v{ZF+1}')
    a(f'v_cvt_pk_bf16_f32 v5, v{ZF+2}, v{ZF+3}')
    a(f'v_cndmask_b32 v{ZF}, v4, 0, vcc')
    a(f'v_cndmask_b32 v{ZF+1}, v5, 0, vcc')
    a(f'v_cndmask_b32 v{ZF+2}, 0, v4, vcc')
    a(f'v_cndmask_b32 v{ZF+3}, 0, v5, vcc')
    for t in range(2):
        a(f'{MF} {R(N+12*t+8)}, {R(ZF)}, {R(PQ+4*t)}, {R(EPS4)}')
    for i in range(4):
        a(f'v_cvt_pk_bf16_f32 v{KVF+i}, v{KVF+2*i}, v{KVF+2*i+1}')
    for t in range(2):
        for u in range(2):
            a(f'{MF16} {R(N+12*t+4*u)}, {R(KVF+2*u,2)}, {R(PQ+4*t+2*u,2)}, 0')
    for t in range(2):
        dn = N + 12 * t + 8
        a(f'v_rcp_f32 v{dn}, v{dn}')
        a(f'v_rcp_f32 v{dn+1}, v{dn+1}')
    for t in range(2):
        n = N + 12 * t; o = OF + 4 * t; dn = n + 8
        for i in range(4): a(pk('v_pk_mul_f32', n + 2 * i, n + 2 * i, dn + (i >> 1), b1=0))
        for i in range(4): a(f'v_cvt_pk_bf16_f32 v{o+i}, v{n+2*i}, v{n+2*i+1}')
        a(f'buffer_store_dwordx4 {R(o)}, v6, {S4(SRD_W)}, s{5 if t else 7} offen {stmod()}')
    ts(a, name + '.o')
    a('s_waitcnt vmcnt(0)')
    ts(a, name + '.ovm')
    a('s_barrier')
    a.vm = []


def comp_s24(a, p):
    name = p.name; L = p.L
    att = (p.ph == 2)
    KVL, ZL, OUTL = 136 * KB, 152 * KB, SCR
    final = p.final
    res_rowmajor = (att and L == 0)
    res_off = (WS_X2 if att else WS_X1[L])
    out_off = (WS_X1[L] if att else WS_X2)
    st_off = WS_ST1[L] if att else WS_ST2
    ACC = 32
    FR = 48
    SETSZ = 56
    N = 160
    OF = 184
    EPS4, ONES = 192, 196
    RES = 24
    KVT = 200
    fixed = [8, 9, 10]; cur = [11, 12, 13]
    vX, vW0, vW1 = cur
    vKV, vZ = 14, 15
    phase_map(a, p)
    a('s_lshl_b32 s15, s12, 2')
    a('s_add_u32 s15, s15, s3')
    a('v_lshlrev_b32 v16, 4, v1')
    a('s_lshl_b32 s6, s15, 4')
    a('s_lshl_b32 s5, s13, 1')
    a('s_add_u32 s6, s6, s5')
    a('s_lshl_b32 s6, s6, 10')
    a(f's_add_u32 s7, s6, {res_off}')
    a(f's_add_u32 s6, s6, {out_off}')
    a('s_lshl_b32 s8, s15, 14')
    a('s_lshl_b32 s5, s13, 7')
    a('s_add_u32 s8, s8, s5')
    if final: srd(a, SRD_M, S_PTR + 14, 2048 * 1024)
    if res_rowmajor:
        a('v_lshlrev_b32 v4, 10, v3')
        a('v_lshl_add_u32 v17, v2, 3, v4')
        for T in range(4):
            a(f'buffer_load_dwordx2 {R(RES+2*T,2)}, v17, {S4(SRD_A)}, s8 offen offset:{32*T}')
    else:
        for i in range(2):
            a(f'buffer_load_dwordx4 {R(RES+4*i)}, v16, {S4(SRD_W)}, s7 offen offset:{i*KB}')
    if OPT.get('otouch', 0) and not final:
        a('v_lshlrev_b32 v252, 7, v1')
        p.touch = ['s_lshl_b32 s4, s15, 10', f's_add_u32 s4, s4, {st_off}', 's_mov_b64 exec, 0xffff',
                   f'buffer_load_dword v254, v252, {S4(SRD_W)}, s6 offen sc1', 's_mov_b64 exec, 0xff',
                   f'buffer_load_dword v253, v252, {S4(SRD_W)}, s4 offen sc1', 's_mov_b64 exec, -1']
    a('s_lshl_b32 s4, s3, 10')
    a(f's_add_u32 s4, s4, {RA0}')
    xbase(a, 8, 4, 'F')
    wpat(a, 9, 10)
    for i in range(4): a(f'v_mov_b32 v{ONES+i}, 0x3f803f80')
    if att:
        KVB = WS_KV + L * 65536
        a('v_and_b32 v18, 31, v1')
        a('s_lshl_b32 s11, s3, 9')
        a(f's_add_u32 s11, s11, {KVB + 32768}')
        a('v_lshlrev_b32 v18, 4, v18')
        for i in range(4): a(f'v_mov_b32 v{EPS4+i}, {hex(f2u(1e-6))}')
        a(f'v_add_u32 v{vKV}, {KVL}, v16')
        a(f'v_and_b32 v4, 1, v1')
        a(f'v_lshl_add_u32 v4, v2, 1, v4')
        a(f'v_lshlrev_b32 v4, 4, v4')
        a(f'v_add_u32 v{vZ}, {ZL}, v4')
        a('v_bfe_u32 v5, v1, 2, 1')
        a('v_cmp_eq_u32 vcc, 1, v5')
        a('v_bfe_u32 v6, v1, 3, 2')
        a('s_lshl_b32 s10, s3, 2')
        a('s_add_u32 s10, s10, 16')
        a('s_sub_u32 s10, s10, s14')
        a('v_add_u32 v6, s10, v6')
        a('v_and_b32 v6, 15, v6')
        a('v_lshlrev_b32 v6, 7, v6')
        a('v_and_b32 v7, 3, v1')
        a('v_lshl_add_u32 v7, v7, 1, v5')
        a('v_lshl_add_u32 v6, v7, 4, v6')
        a(f'v_add_u32 v6, {ZL}, v6')
        a('s_lshl_b32 s4, s3, 13')
        a(f's_add_u32 s4, s4, {KVB}')
        a(f's_add_u32 s5, s4, 4096')
    for T in range(4):
        for hh in range(2):
            a(f'v_lshlrev_b32 v{ACC+4*T+2*hh}, 16, v{RES+2*T+hh}')
            a(f'v_and_b32 v{ACC+4*T+2*hh+1}, 0xffff0000, v{RES+2*T+hh}')
    if att:
        ts(a, name + '.preF')
        a('s_barrier')
        ts(a, name + '.F')
        for i in range(8):
            a(f'buffer_load_dwordx4 {R(KVT+4*i)}, v16, {S4(SRD_W)}, s{4+i//4} offen offset:{(i%4)*KB}')
        a(f'buffer_load_dwordx4 {R(N)}, v18, {S4(SRD_W)}, s11 offen')
        for i in range(4):
            for hh in range(2):
                src = KVT + 8 * i + 4 * hh
                a(f'v_cvt_pk_bf16_f32 v{KVT+8*i+2*hh}, v{src}, v{src+1}')
                a(f'v_cvt_pk_bf16_f32 v{KVT+8*i+2*hh+1}, v{src+2}, v{src+3}')
            a(f's_add_u32 s5, s10, {i}')
            a('s_and_b32 s5, s5, 15')
            a('s_lshl_b32 s5, s5, 10')
            a(f'v_add_u32 v4, s5, v{vKV}')
            a(f'ds_write_b128 v4, {R(KVT+8*i)}')
        a(f'v_cvt_pk_bf16_f32 v{N+4}, v{N}, v{N+1}')
        a(f'v_cvt_pk_bf16_f32 v{N+5}, v{N+2}, v{N+3}')
        a(f'v_cndmask_b32 v{N+8}, v{N+4}, 0, vcc')
        a(f'v_cndmask_b32 v{N+9}, v{N+5}, 0, vcc')
        a(f'v_cndmask_b32 v{N+10}, 0, v{N+4}, vcc')
        a(f'v_cndmask_b32 v{N+11}, 0, v{N+5}, vcc')
        a(f'ds_write_b128 v6, {R(N+8)}')

    def fx(s, kk): return FR + SETSZ * s + 4 * kk
    def fkv(s, kk): return FR + SETSZ * s + 8 + 4 * kk
    def fz(s, kk): return FR + SETSZ * s + 16 + 4 * kk
    def fw(s, kk, T): return FR + SETSZ * s + 24 + 16 * kk + 4 * T

    def reads(s):
        l = []
        for kk in range(2):
            l.append(rd128(fx(s, kk), vX, kk * p.sA))
            if att:
                l.append(rd128(fz(s, kk), vZ, kk * 128))
                l.append(rd128(fkv(s, kk), vKV, kk * KB))
        for kk in range(2):
            for T in range(4):
                q, u = T >> 1, T & 1
                for h in range(2):
                    l.append(rdtr(fw(s, kk, T) + 2 * h, vW1 if u else vW0, kk * p.sB + (2 * q + h) * KB))
        return l

    def adv():
        advance(a, p, fixed, cur)
        if att:
            a(f'v_add_u32 v{vKV}, {2*KB}, v{vKV}')
            a(f'v_add_u32 v{vZ}, 256, v{vZ}')

    def mainm(s, kk, xf):
        return [f'{MF} {R(ACC+4*T)}, {R(fw(s,kk,T))}, {R(xf)}, {R(ACC+4*T)}' for T in range(4)]

    def amf(s, kk):
        x, kv, z = fx(s, kk), fkv(s, kk), fz(s, kk)
        n = N + 12 * kk
        return [f'{MF} {R(n+8)}, {R(z)}, {R(x)}, {R(EPS4)}',
                f'{MF16} {R(n)}, {R(kv,2)}, {R(x,2)}, 0',
                f'{MF16} {R(n+4)}, {R(kv+2,2)}, {R(x+2,2)}, 0']

    def avalu(kk):
        n = N + 12 * kk; o = OF + 4 * kk; dn = n + 8
        return [f'v_rcp_f32 v{dn}, v{dn}', f'v_rcp_f32 v{dn+1}, v{dn+1}',
                pk('v_pk_mul_f32', n, n, dn, b1=0), pk('v_pk_mul_f32', n + 2, n + 2, dn, b1=0),
                pk('v_pk_mul_f32', n + 4, n + 4, dn + 1, b1=0), pk('v_pk_mul_f32', n + 6, n + 6, dn + 1, b1=0),
                f'v_cvt_pk_bf16_f32 v{o}, v{n}, v{n+1}', f'v_cvt_pk_bf16_f32 v{o+1}, v{n+2}, v{n+3}',
                f'v_cvt_pk_bf16_f32 v{o+2}, v{n+4}, v{n+5}', f'v_cvt_pk_bf16_f32 v{o+3}, v{n+6}, v{n+7}']

    def period(s):
        if p.lag == 1: a.wait_lds_all()
        tsl(a, p, 'pre')
        a('s_barrier')
        tsl(a, p, 'post')
        rd = reads(1 - s)
        if not att:
            interleave(a, mainm(s, 0, fx(s, 0)) + mainm(s, 1, fx(s, 1)), rd, per=3)
        elif OPT.get('s2sched', 1) == 0:
            interleave(a, amf(s, 0) + amf(s, 1), rd[:14], per=3)
            for t in avalu(0): a(t)
            interleave(a, mainm(s, 0, OF), avalu(1), per=3)
            interleave(a, mainm(s, 1, OF + 4), rd[14:], per=2)
        else:
            ops = amf(s, 0) + amf(s, 1) + avalu(0)
            m0 = mainm(s, 0, OF); v1_ = avalu(1)
            for i in range(4):
                ops.append(m0[i]); ops += v1_[3*i:3*i+3]
            ops += mainm(s, 1, OF + 4)
            def cost(t): return 16 if t.startswith(MF) else 8 if ('mfma' in t or 'rcp' in t) else 4
            tot = sum(cost(t) for t in ops)
            rc = [16 if 'b128' in r else 11 for r in rd]
            rtot = sum(rc)
            acc = 0; racc = 0; ri = 0
            for t in ops:
                a(t); acc += cost(t)
                while ri < len(rd) and racc * tot <= acc * rtot * OPT.get('s2f', 1.0):
                    a(rd[ri]); racc += rc[ri]; ri += 1
            while ri < len(rd):
                a(rd[ri]); ri += 1
        adv()

    ring_init(a, p, fixed, cur)
    a.wait_lds_all()
    ts(a, name + '.preP0')
    a('s_barrier')
    ts(a, name + '.P0')
    for t in reads(0): a(t)
    for t in p.touch: a(t)
    adv()
    a.loop_begin(f'L_ml_{name}')
    period(0)
    period(1)
    a('s_add_u32 s9, s9, 1')
    a(f's_cmp_lt_u32 s9, {p.NC//2}')
    a(f's_cbranch_scc1 L_ml_{name}')
    a.loop_end_check()
    a.wait_lds_all()
    ts(a, name + '.loopend')
    OUT = 24
    for T in range(4):
        for hh in range(2):
            a(f'v_cvt_pk_bf16_f32 v{OUT+2*T+hh}, v{ACC+4*T+2*hh}, v{ACC+4*T+2*hh+1}')
    if not final:
        SS, SG = N, N + 4
        a(f'{MF} {R(SS)}, {R(ONES)}, {R(OUT)}, 0')
        a(f'{MF} {R(SG)}, {R(OUT)}, {R(OUT)}, 0')
        a(f'{MF} {R(SS)}, {R(ONES)}, {R(OUT+4)}, {R(SS)}')
        a(f'{MF} {R(SG)}, {R(OUT+4)}, {R(OUT+4)}, {R(SG)}')
        for i in range(2):
            a(f'buffer_store_dwordx4 {R(OUT+4*i)}, v16, {S4(SRD_W)}, s6 offen offset:{i*KB} {stmod()}')
        a('s_lshl_b32 s4, s15, 10')
        a('s_lshl_b32 s5, s13, 3')
        a('s_add_u32 s4, s4, s5')
        a(f's_add_u32 s4, s4, {st_off}')
        a('v_lshlrev_b32 v5, 6, v3')
        a('v_and_b32 v6, 3, v3')
        a('v_cmp_eq_u32 s[52:53], 1, v6')
        a('v_cmp_eq_u32 s[54:55], 2, v6')
        a('v_cmp_eq_u32 s[56:57], 3, v6')
        a('v_lshrrev_b32 v6, 2, v3')
        a('v_cmp_eq_u32 vcc, v6, v2')
        a(f'v_cndmask_b32 v{SS+1}, v{SG}, v{SG+1}, s[52:53]')
        a(f'v_cndmask_b32 v{SS+1}, v{SS+1}, v{SG+2}, s[54:55]')
        a(f'v_cndmask_b32 v{SS+1}, v{SS+1}, v{SG+3}, s[56:57]')
        a('s_mov_b64 exec, vcc')
        a(f'buffer_store_dwordx2 {R(SS,2)}, v5, {S4(SRD_W)}, s4 offen {stmod()}')
        a('s_mov_b64 exec, -1')
        end_phase(a, p)
    else:
        a(f's_mul_i32 s4, s3, {16*144}')
        a(f's_add_u32 s4, s4, {OUTL}')
        a(f'v_mul_u32_u24 v4, 144, v3')
        a('v_lshl_add_u32 v4, v2, 3, v4')
        a('v_add_u32 v4, s4, v4')
        for T in range(4):
            a(f'ds_write_b64 v4, {R(OUT+2*T,2)} offset:{32*T}')
        a('v_lshrrev_b32 v5, 3, v1')
        a('v_and_b32 v6, 7, v1')
        a('v_mul_u32_u24 v7, 144, v5')
        a('v_lshl_add_u32 v7, v6, 4, v7')
        a('v_add_u32 v7, s4, v7')
        a('s_waitcnt lgkmcnt(0)')
        for i in range(2):
            a(f'ds_read_b128 {R(ACC+4*i)}, v7 offset:{i*8*144}')
        a('v_lshlrev_b32 v5, 10, v5')
        a('v_lshl_add_u32 v5, v6, 4, v5')
        a(f's_add_u32 s9, s8, {8*KB}')
        for i in range(2):
            a(f'buffer_store_dwordx4 {R(ACC+4*i)}, v5, {S4(SRD_M)}, s{8+i} offen {OPT.get("outmod", "")}')


def comp_g(a, p):
    name = p.name; L = p.L
    s2 = (p.ph == 2)
    final = p.final
    res_rowmajor = (s2 and L == 0)
    res_off = (WS_X2 if s2 else WS_X1[L])
    out_off = (WS_X1[L] if s2 else WS_X2)
    st_off = WS_ST1[L] if s2 else WS_ST2
    ACC, FR, SETSZ, N, ONES, RES = 32, 48, 32, 112, 128, 24
    fixed = [8, 9, 10]; cur = [11, 12, 13]
    vX, vW0, vW1 = cur
    assert p.b0 % (2 * p.cB) == 0 and p.NCH % 2 == 0
    phase_map(a, p)
    a('s_lshr_b32 s10, s3, 1')
    a('s_and_b32 s11, s3, 1')
    a('s_lshl_b32 s15, s12, 2')
    a('s_lshl_b32 s5, s10, 1')
    a('s_add_u32 s15, s15, s5')
    a('v_lshlrev_b32 v16, 4, v1')
    a('s_lshl_b32 s6, s15, 4')
    a('s_lshl_b32 s5, s13, 1')
    a('s_add_u32 s6, s6, s5')
    a('s_add_u32 s6, s6, s11')
    a('s_lshl_b32 s6, s6, 10')
    a(f's_add_u32 s7, s6, {res_off}')
    a(f's_add_u32 s6, s6, {out_off}')
    a('s_lshl_b32 s8, s15, 14')
    a('s_lshl_b32 s5, s13, 7')
    a('s_add_u32 s8, s8, s5')
    a('s_lshl_b32 s5, s11, 6')
    a('s_add_u32 s8, s8, s5')
    if final: srd(a, SRD_M, S_PTR + 14, 2048 * 1024)
    if res_rowmajor:
        a('v_lshlrev_b32 v4, 10, v3')
        a('v_lshl_add_u32 v17, v2, 3, v4')
        a(f's_add_u32 s5, s8, {16*KB}')
        for t in range(2):
            for u in range(2):
                a(f'buffer_load_dwordx2 {R(RES+4*t+2*u,2)}, v17, {S4(SRD_A)}, s{5 if t else 8} offen offset:{32*u}')
    else:
        a(f's_add_u32 s5, s7, {16*KB}')
        for t in range(2):
            a(f'buffer_load_dwordx4 {R(RES+4*t)}, v16, {S4(SRD_W)}, s{5 if t else 7} offen')
    a('s_lshl_b32 s4, s10, 11')
    a(f's_add_u32 s4, s4, {RA0}')
    xbase(a, 8, 4, 'F')
    wpat(a, 9, 10)
    a('s_lshl_b32 s4, s11, 11')
    a('v_add_u32 v9, s4, v9')
    a('v_add_u32 v10, s4, v10')
    if not final:
        for i in range(4): a(f'v_mov_b32 v{ONES+i}, 0x3f803f80')
    for i in range(8):
        a(f'v_lshlrev_b32 v{ACC+2*i}, 16, v{RES+i}')
        a(f'v_and_b32 v{ACC+2*i+1}, 0xffff0000, v{RES+i}')

    def fx(s, kk, t): return FR + SETSZ * s + 8 * kk + 4 * t
    def fw(s, kk, u): return FR + SETSZ * s + 16 + 8 * kk + 4 * u

    def reads(s, odd):
        l = []
        for kk in range(2):
            oa = odd * p.cA + kk * p.sA; ob = odd * p.cB + kk * p.sB
            l.append(rd128(fx(s, kk, 0), vX, oa))
            l += [rdtr(fw(s, kk, 0) + 2 * h, vW0, ob + h * KB) for h in range(2)]
            l.append(rd128(fx(s, kk, 1), vX, oa + KB))
            l += [rdtr(fw(s, kk, 1) + 2 * h, vW1, ob + h * KB) for h in range(2)]
        return l

    def mainm(s):
        return [f'{MF} {R(ACC+8*t+4*u)}, {R(fw(s,kk,u))}, {R(fx(s,kk,t))}, {R(ACC+8*t+4*u)}'
                for kk in range(2) for u in range(2) for t in range(2)]

    sadv = [f's_add_u32 s{S_RA}, s{S_RA}, {2*p.cA}', f's_cmp_eq_u32 s{S_RA}, {p.NCH*p.cA}', f's_cselect_b32 s{S_RA}, 0, s{S_RA}',
            f's_add_u32 s{S_RB}, s{S_RB}, {2*p.cB}', f's_cmp_eq_u32 s{S_RB}, {RB_SZ}', f's_cselect_b32 s{S_RB}, 0, s{S_RB}']
    vadv = [f'v_add_u32 v{cur[0]}, s{S_RA}, v{fixed[0]}'] + [f'v_add_u32 v{c}, s{S_RB}, v{f}' for f, c in zip(fixed[1:], cur[1:])]

    def period(s):
        if p.lag == 1: a.wait_lds_all()
        tsl(a, p, 'pre')
        a('s_barrier')
        tsl(a, p, 'post')
        rd = reads(1 - s, 1 - s)
        if s == 0: rd = rd + sadv + vadv
        else: rd = rd + ['s_add_u32 s9, s9, 1', f's_cmp_lt_u32 s9, {p.NC//2}']
        m = mainm(s)
        per = [2, 2, 2, 2, 2, 2, 5, 4] if s == 0 else [2, 2, 2, 2, 2, 2, 1, 1]
        ri = 0
        for mm, n in zip(m, per):
            a(mm)
            for t in rd[ri:ri+n]: a(t)
            ri += n
        assert ri == len(rd)

    ring_init(a, p, fixed, cur)
    a.wait_lds_all()
    ts(a, name + '.preP0')
    a('s_barrier')
    ts(a, name + '.P0')
    for t in reads(0, 0): a(t)
    a.loop_begin(f'L_ml_{name}')
    period(0)
    period(1)
    a(f's_cbranch_scc1 L_ml_{name}')
    a.loop_end_check()
    a.wait_lds_all()
    ts(a, name + '.loopend')
    OUT = 24
    for i in range(8):
        a(f'v_cvt_pk_bf16_f32 v{OUT+i}, v{ACC+2*i}, v{ACC+2*i+1}')
    if not final:
        for t in range(2):
            a(f'{MF} {R(N+8*t)}, {R(ONES)}, {R(OUT+4*t)}, 0')
            a(f'{MF} {R(N+8*t+4)}, {R(OUT+4*t)}, {R(OUT+4*t)}, 0')
        a(f's_add_u32 s5, s6, {16*KB}')
        for t in range(2):
            a(f'buffer_store_dwordx4 {R(OUT+4*t)}, v16, {S4(SRD_W)}, s{5 if t else 6} offen {stmod()}')
        a('s_lshl_b32 s4, s15, 10')
        a('s_lshl_b32 s5, s13, 3')
        a('s_add_u32 s4, s4, s5')
        a('s_lshl_b32 s5, s11, 17')
        a('s_add_u32 s4, s4, s5')
        a(f's_add_u32 s4, s4, {st_off}')
        a('v_lshlrev_b32 v5, 6, v3')
        a('v_and_b32 v6, 3, v3')
        a('v_cmp_eq_u32 s[52:53], 1, v6')
        a('v_cmp_eq_u32 s[54:55], 2, v6')
        a('v_cmp_eq_u32 s[56:57], 3, v6')
        a('v_lshrrev_b32 v6, 2, v3')
        a('v_cmp_eq_u32 vcc, v6, v2')
        for t in range(2):
            SS, SG = N + 8 * t, N + 8 * t + 4
            a(f'v_cndmask_b32 v{SS+1}, v{SG}, v{SG+1}, s[52:53]')
            a(f'v_cndmask_b32 v{SS+1}, v{SS+1}, v{SG+2}, s[54:55]')
            a(f'v_cndmask_b32 v{SS+1}, v{SS+1}, v{SG+3}, s[56:57]')
        a('s_mov_b64 exec, vcc')
        for t in range(2):
            a(f'buffer_store_dwordx2 {R(N+8*t,2)}, v5, {S4(SRD_W)}, s4 offen offset:{t*KB} {stmod()}')
        a('s_mov_b64 exec, -1')
        end_phase(a, p)
    else:
        a(f's_mul_i32 s4, s3, {32*80}')
        a(f's_add_u32 s4, s4, {SCR}')
        a(f'v_mul_u32_u24 v4, 80, v3')
        a('v_lshl_add_u32 v4, v2, 3, v4')
        a('v_add_u32 v4, s4, v4')
        for t in range(2):
            for u in range(2):
                a(f'ds_write_b64 v4, {R(OUT+4*t+2*u,2)} offset:{t*16*80 + 32*u}')
        a('v_lshrrev_b32 v5, 2, v1')
        a('v_and_b32 v6, 3, v1')
        a('v_mul_u32_u24 v7, 80, v5')
        a('v_lshl_add_u32 v7, v6, 4, v7')
        a('v_add_u32 v7, s4, v7')
        a('s_waitcnt lgkmcnt(0)')
        for t in range(2):
            a(f'ds_read_b128 {R(ACC+4*t)}, v7 offset:{t*16*80}')
        a('v_lshlrev_b32 v5, 10, v5')
        a('v_lshl_add_u32 v5, v6, 4, v5')
        a(f's_add_u32 s9, s8, {16*KB}')
        for t in range(2):
            a(f'buffer_store_dwordx4 {R(ACC+4*t)}, v5, {S4(SRD_M)}, s{8+t} offen {OPT.get("outmod", "")}')


def comp_s3(a, p):
    name = p.name; L = p.L
    STB = p.STB
    CSX = SCR + KB
    first = (L == 0)
    ACG, ACU = 40, 88
    CS = 136
    FR = 160
    ONES = 240
    fixed = [8, 9, 10, 11]; cur = [12, 13, 14, 15]
    vX = 12; vW = 13
    MEAN, RSTD, R2 = 24, 28, 32
    phase_map(a, p)
    a('s_lshr_b32 s6, s3, 1')
    a('s_and_b32 s11, s3, 1')
    a('s_lshl_b32 s15, s12, 3')
    a('s_lshl_b32 s5, s6, 2')
    a('s_add_u32 s15, s15, s5')
    a('s_lshl_b32 s4, s6, 12')
    a(f's_add_u32 s4, s4, {RA0}')
    xbase(a, 8, 4, 'F')
    wpat(a, 9, 10)
    a('s_lshl_b32 s4, s11, 5')
    a('v_xor_b32 v11, s4, v9')
    a('v_add_u32 v11, 4096, v11')
    a('s_lshl_b32 s4, s11, 13')
    a('v_add_u32 v9, s4, v9')
    a('v_add_u32 v10, s4, v10')
    a(f's_mul_i32 s4, s15, 43')
    a(f's_mul_i32 s5, s13, 3')
    a('s_add_u32 s4, s4, s5')
    a('s_lshl_b32 s4, s4, 10')
    a(f's_add_u32 s4, s4, {WS_H[L]}')
    a('s_lshl_b32 s7, s11, 11')
    a('s_add_u32 s7, s7, s4')
    a('s_lshl_b32 s8, s11, 3')
    a('s_add_u32 s8, s8, s4')
    a('s_add_u32 s8, s8, 1024')
    a('s_cmp_ge_u32 s13, 14')
    a(f's_cselect_b32 s8, {WS_DUMP}, s8')
    a('s_cselect_b32 s5, s11, 0')
    a('s_cmp_eq_u32 s13, 15')
    a('s_cselect_b32 s5, 1, s5')
    a('s_cmp_lg_u32 s5, 0')
    a(f's_cselect_b32 s7, {WS_DUMP}, s7')
    if OPT.get('otouch', 0):
        a('v_lshrrev_b32 v4, 3, v1')
        a('v_and_b32 v5, 7, v1')
        a(f'v_mul_u32_u24 v4, {43*KB}, v4')
        a('v_lshl_add_u32 v252, v5, 7, v4')
        p.touch = ['s_mov_b32 exec_hi, 0', f'buffer_load_dword v254, v252, {S4(SRD_W)}, s7 offen sc1',
                   f'buffer_load_dword v253, v252, {S4(SRD_W)}, s8 offen sc1', 's_mov_b64 exec, -1']
    a('s_mul_i32 s4, s11, 384')
    a(f's_add_u32 s4, s4, {CS3L}')
    a('v_lshl_add_u32 v16, v2, 4, s4')
    for i in range(4): a(f'v_mov_b32 v{ONES+i}, 0x3f803f80')
    for r in range(40, 160 if first else 136): a(f'v_mov_b32 v{r}, 0')

    def fx(s, t): return FR + 40 * s + 4 * t
    def fw(s, gs, i): return FR + 40 * s + 16 + 4 * (2 * i + gs)

    def reads(s, kk):
        wl = []
        for i in range(3):
            for gs in range(2):
                for h in range(2):
                    wl.append(rdtr(fw(s, gs, i) + 2 * h, vW + i, kk * p.sB + (2 * gs + h) * KB))
        xl = [rd128(fx(s, t), vX, kk * p.sA + t * KB) for t in range(4)]
        return wl[:2] + xl + wl[2:]

    cnt = [0]

    def mfmas(s):
        l = []
        for i in range(3):
            for gs, AC in ((0, ACG), (1, ACU)):
                for t in range(4):
                    d = AC + 12 * t + 4 * i
                    l.append(f'{MF} {R(d)}, {R(fw(s,gs,i))}, {R(fx(s,t))}, {R(d)}')
        if first:
            def csblk():
                cnt[0] += 1
                lab = f'L_cs{cnt[0]}_{name}'
                a(f's_cmp_eq_u32 s6, {s}')
                a(f's_cbranch_scc0 {lab}')
                a.begin_opt()
                for i in range(3):
                    for gs in range(2):
                        d = CS + 12 * gs + 4 * i
                        a(f'{MF} {R(d)}, {R(fw(s,gs,i))}, {R(ONES)}, {R(d)}')
                a.end_opt()
                a.label(lab)
            if OPT.get('cs3full', 0):
                for i in range(3):
                    for gs in range(2):
                        d = CS + 12 * gs + 4 * i
                        l.append(f'{MF} {R(d)}, {R(fw(s,gs,i))}, {R(ONES)}, {R(d)}')
            else: l.append(csblk)
        return l

    loop_big(a, p, fixed, cur, reads, mfmas, per=1)
    a('s_lshl_b32 s4, s6, 8')
    a(f's_add_u32 s4, s4, {STB}')
    a(f'v_lshl_add_u32 v6, v3, 2, s4')
    for t in range(4):
        a(f'ds_read_b32 v{MEAN+t}, v6 offset:{64*t}')
        a(f'ds_read_b32 v{RSTD+t}, v6 offset:{512+64*t}')
    if first and OPT.get('cs3full', 0):
        a('s_mov_b32 exec_lo, 0x00010001')
        a('s_mov_b32 exec_hi, 0x00010001')
        for i in range(6):
            a(f'ds_write_b128 v16, {R(CS+4*i)} offset:{64*i}')
        a('s_mov_b64 exec, -1')
    elif first:
        a(f's_mul_i32 s4, s3, 384')
        a(f's_add_u32 s4, s4, {CSX}')
        a('v_lshl_add_u32 v4, v2, 4, s4')
        a('s_xor_b32 s5, s3, 2')
        a(f's_mul_i32 s5, s5, 384')
        a(f's_add_u32 s5, s5, {CSX}')
        a('v_lshl_add_u32 v5, v2, 4, s5')
        a('s_mov_b32 exec_lo, 0x00010001')
        a('s_mov_b32 exec_hi, 0x00010001')
        for i in range(6):
            a(f'ds_write_b128 v4, {R(CS+4*i)} offset:{64*i}')
        a('s_mov_b64 exec, -1')
        a('s_waitcnt lgkmcnt(0)')
        a('s_barrier')
        for i in range(6):
            a(f'ds_read_b128 {R(FR+4*i)}, v5 offset:{64*i}')
        for i in range(12):
            a(pk('v_pk_add_f32', CS + 2 * i, CS + 2 * i, FR + 2 * i))
        a('s_mov_b32 exec_lo, 0x00010001')
        a('s_mov_b32 exec_hi, 0x00010001')
        for i in range(6):
            a(f'ds_write_b128 v16, {R(CS+4*i)} offset:{64*i}')
        a('s_mov_b64 exec, -1')
    else:
        for i in range(6):
            a(f'ds_read_b128 {R(CS+4*i)}, v16 offset:{64*i}')
    for t in range(4):
        a(f'v_mul_f32 v{R2+t}, v{RSTD+t}, v{RSTD+t}')
    a('v_lshlrev_b32 v4, 4, v1')
    a('s_mov_b32 s5, s7')
    a('s_mov_b32 s6, s8')
    OUT = FR
    for t in range(4):
        idx = [(i, hh) for i in range(3) for hh in range(2)]
        for i, hh in idx:
            g = ACG + 12 * t + 4 * i + 2 * hh; u = ACU + 12 * t + 4 * i + 2 * hh
            a(pk('v_pk_fma_f32', g, MEAN + t, CS + 4 * i + 2 * hh, g, b0=0, neg0=True))
            a(pk('v_pk_fma_f32', u, MEAN + t, CS + 12 + 4 * i + 2 * hh, u, b0=0, neg0=True))
        for i, hh in idx:
            g = ACG + 12 * t + 4 * i + 2 * hh; u = ACU + 12 * t + 4 * i + 2 * hh
            a(f'v_max_f32 v{g}, 0, v{g}')
            a(f'v_max_f32 v{g+1}, 0, v{g+1}')
            a(pk('v_pk_mul_f32', u, u, R2 + t, b1=0))
        for i, hh in idx:
            g = ACG + 12 * t + 4 * i + 2 * hh; u = ACU + 12 * t + 4 * i + 2 * hh
            a(pk('v_pk_mul_f32', g, g, u))
        for i, hh in idx:
            g = ACG + 12 * t + 4 * i + 2 * hh
            a(f'v_cvt_pk_bf16_f32 v{OUT+8*t+2*i+hh}, v{g}, v{g+1}')
        a(f'buffer_store_dwordx4 {R(OUT+8*t)}, v4, {S4(SRD_W)}, s5 offen {stmod()}')
        a(f'buffer_store_dwordx2 {R(OUT+8*t+4,2)}, v4, {S4(SRD_W)}, s6 offen {stmod()}')
        if t < 3:
            a(f's_add_u32 s5, s5, {43*KB}')
            a(f's_add_u32 s6, s6, {43*KB}')
    a.wait_lds_all()
    end_phase(a, p)


def build(opt=None, fn=None):
    global WS_X2, WS_ST2
    o = dict(opt or {})
    o.setdefault("sl", ((("s4l0","P",4),"q"),(("s3l0","P",2),"d"),(("s3l1","P",2),"d"),(("s1l0","E",0),"o"),(("s1l1","E",0),"o"),(("s1l0","P",4),"O")))
    o.setdefault('pretouch', 192)
    o.setdefault('gp', 1)
    o.setdefault('wcap', {'s1l0P8': 2, 's1l0X0': 2})
    o.setdefault('cs1full', 1)
    o.setdefault('cs3full', 1)
    o.setdefault('nrep', 16)
    o.setdefault('gsl', 16)
    o.setdefault('lt', ("s1l0","F",0))
    OPT.clear(); OPT.update(o)
    OPT.setdefault('amod', 'sc1')
    if o.get('reuse', 1):
        WS_PQ[0] = WS_PQ[1] = WS_H[0] = WS_H[1] = 8 * MB
        WS_X1[0] = WS_X1[1] = WS_X2 = 4 * MB
        WS_ST1[0] = WS_ST1[1] = WS_ST2
    else:
        WS_PQ[0], WS_PQ[1] = 26 * MB, 32 * MB
    TS['on'] = o.get('ts', False); TS['names'] = {}
    phases = [Ph(ph, L, o) for L in range(2) for ph in (1, 2, 3, 4)]
    bars = ['T']
    for p in phases:
        ql = o.get('qlate', 1)
        if p.ph == 2 and not ql: bars.append((p.name, 'F', 0))
        for c in range(p.NC + 1): bars.append((p.name, 'P', c))
        for x in range(p.nX): bars.append((p.name, 'X', x))
        if not p.final: bars.append((p.name, 'E', 0))
        if p.ph == 1 and ql: bars += [(p.name, 'F', 0), (p.name, 'G', 0)]
    a = Asm()
    entry(a)
    hist = list(a.hist)
    steps = bloader(a, phases, bars)
    a.hist = list(hist)
    aloader(a, phases)
    a.hist = list(hist)
    TS['role'] = 'C'
    a.label('L_comp')
    for p in phases:
        {1: comp_s1q if OPT.get('qlate', 1) else comp_s1, 2: comp_g if OPT.get('qlate', 1) else comp_s24, 3: comp_s3,
         4: comp_g if OPT.get('g4', 1) else comp_s24}[p.ph](a, p)
    ts_flush(a)
    a.label('L_end')
    a('s_endpgm')
    name = 'interleave_layers__linear_attn_block__glu_gated_reglu__prompt_kernel'
    s = '; interleaved linear-attention / ReGLU layers: one persistent kernel (generated)\n'
    s += f'; @launch grid=(256,1,1) block=(512,1,1) lds={LDS_BYTES}\n'
    s += '.amdgcn_target "amdgcn-amd-amdhsa--gfx950"\n'
    s += kernel_text(name, a.text(), 256)
    if fn:
        open(fn, 'w').write(s)
        if TS['on']: json.dump(TS['names'], open(fn + '.ts.json', 'w'))
    if o.get('verbose'):
        for st in steps: print(st)
    return s


if __name__ == '__main__':
    fn = sys.argv[1]
    opt = {}
    for kv in sys.argv[2:]:
        k, v = kv.split('=', 1)
        opt[k] = eval(v)
    s = build(opt, fn=fn)
    print('bytes', len(s), 'lines', s.count('\n'))
```

```python
import sys, struct, json
from asmlib import Asm, kernel_text

KB = 1024
MB = 1 << 20
WS_PQ = [0, 2 * MB]
WS_X1 = [4 * MB, 6 * MB]
WS_H = [8 * MB, 14 * MB]
WS_X2 = 20 * MB
WS_KV = 22 * MB
WS_SYNC = 22 * MB + 128 * KB
WS_ST1 = [21 * MB + 0 * KB + 38 * MB, 21 * MB + 256 * KB + 38 * MB]
WS_ST2 = 22 * MB + 512 * KB
WS_DUMP = 23 * MB
WS_TS = 24 * MB
WS_BYTES = 268435456
S_PTR, S_DBG, S_WS = 16, 32, 34
SRD_A, SRD_B, SRD_W, SRD_M = 36, 40, 44, 48
S_RA, S_RB = 58, 59
S_TEAM, S_MEM, S_XCC, S_HET, S_VID = 60, 61, 62, 63, 96
SB_QKV, SB_WO, SB_WG, SB_WU, SB_WD = 64, 68, 72, 76, 80
LOG2E = 1.4426950408889634
MF = 'v_mfma_f32_16x16x32_bf16'
MF16 = 'v_mfma_f32_16x16x16_bf16'
OPT = {}
RB_SZ = 96 * KB
RA0 = 96 * KB
SCR = 144 * KB
CS1L = 154 * KB
CS3L = 155 * KB
VIDL = 156 * KB
LDS_BYTES = 157 * KB
SPIN = 1 << 17


def f2u(x): return struct.unpack('<I', struct.pack('<f', x))[0]
def R(b, n=4): return f'v[{b}:{b+n-1}]' if n > 1 else f'v{b}'
def S4(b): return f's[{b}:{b+3}]'
def stmod(): return OPT.get('stmod', '')


def srd(a, dst, ptr, size):
    a(f's_mov_b32 s{dst}, s{ptr}')
    a(f's_mov_b32 s{dst+1}, s{ptr+1}')
    a(f's_mov_b32 s{dst+2}, {size}')
    a(f's_mov_b32 s{dst+3}, 0x00020000')


TS = {'on': False, 'role': None, 'names': {}}


def tsl(a, p, name):
    if TS['on'] and OPT.get('tsp') == p.name: ts(a, name, True)


def ts(a, name, force=False):
    if not TS['on']: return
    if OPT.get('tsp') and not force and not name.startswith(OPT['tsp']) and name not in ('start', 'end'): return
    TS['names'].setdefault(TS['role'], []).append(name)
    a('s_waitcnt lgkmcnt(0)')
    a('s_memtime s[100:101]')
    a('s_waitcnt lgkmcnt(0)')
    a('s_mov_b32 s98, m0')
    a('s_mov_b32 m0, s99')
    a('s_nop 0')
    a('v_writelane_b32 v0, s100, m0')
    a('s_mov_b32 m0, s98')
    a('s_add_u32 s99, s99, 1')
    a('s_min_u32 s99, s99, 63')


def ts_flush(a):
    if not TS['on']: return
    ts(a, 'end')
    a('s_mov_b64 exec, -1')
    a(f's_lshl_b32 s4, s{S_VID}, 3')
    a('s_add_u32 s4, s4, s3')
    a('s_lshl_b32 s4, s4, 8')
    a(f's_add_u32 s4, s4, {WS_TS}')
    a('v_lshlrev_b32 v5, 2, v1')
    a(f'buffer_store_dword v0, v5, {S4(SRD_W)}, s4 offen')


def pk(op, d, s0, s1, s2=None, b0=None, b1=None, b2=None, neg0=False, neg1=False):
    def opnd(s, b):
        if b is None:
            assert s % 2 == 0, s
            return f'v[{s}:{s+1}]', 0, 1
        base = s & ~1; h = s & 1
        return f'v[{base}:{base+1}]', h, h
    srcs = [opnd(s0, b0), opnd(s1, b1)]
    if s2 is not None: srcs.append(opnd(s2, b2))
    assert d % 2 == 0
    t = f'{op} v[{d}:{d+1}], ' + ', '.join(s[0] for s in srcs)
    t += ' op_sel:[' + ','.join(str(s[1]) for s in srcs) + ']'
    t += ' op_sel_hi:[' + ','.join(str(s[2]) for s in srcs) + ']'
    if neg0 or neg1:
        n = [1 if neg0 else 0, 1 if neg1 else 0] + ([0] if s2 is not None else [])
        t += ' neg_lo:[' + ','.join(map(str, n)) + '] neg_hi:[' + ','.join(map(str, n)) + ']'
    return t


class Ph:
    def __init__(self, ph, L, opt):
        self.ph, self.L = ph, L
        self.name = f's{ph}l{L}'
        self.final = (ph == 4 and L == 1)
        self.padk = (ph == 4)
        self.NC = 22 if ph == 4 else 8
        self.NKreal = 43 if ph == 4 else 16
        self.RT = 8 if ph in (1, 3) else 4
        self.PB = {1: 6, 2: 4, 3: 12, 4: 4}[ph]
        self.sA = self.RT * KB; self.sB = self.PB * KB
        self.cA = 2 * self.sA; self.cB = 2 * self.sB
        ql = opt.get('qlate', 1)
        self.NCH = {1: 3, 2: 6 if ql else 5, 3: 3, 4: 6}[ph]
        self.lag = 2 if (ph in (2, 4) and opt.get('relax', 1)) else 1
        self.DC = opt.get(f's{ph}_dc', self.NCH - self.lag)
        self.KSA = 16 if ph in (1, 3) else 43
        self.amode = 'R' if (ph == 1 and L == 0) else 'F'
        self.bmap = 'S' if (ph == 1 and L == 0) else 'F'
        self.strideA = 64 if self.amode == 'R' else KB
        self.rowB = {1: 3072, 2: 1024, 3: 2752, 4: 1024}[ph]
        self.strideB = 32 * self.rowB
        self.nX = 1 if (ph == 1 or (ph == 3 and L == 0)) else 0
        if ql and ph == 1 and L == 0: self.nX = 1 if opt.get('cs1full', 0) else 2
        if ph == 3 and opt.get('cs3full', 0): self.nX = 0
        self.stats = (ph == 3) or (ph == 1 and L == 1)
        self.st2 = (ph == 1 and opt.get('g4', 1)) or ql
        self.STB = SCR + 9 * KB if ph == 1 else SCR
        self.vB = {(1, 0): 12, (1, 1): 15, (2, 0): 18, (2, 1): 18, (4, 0): 18, (4, 1): 18, (3, 0): 20, (3, 1): 20}[(ph, L)]
        self.b0 = None
        self.touch = []


def phase_map(a, p):
    if p.ph in (1, 3):
        a(f's_mov_b32 s12, s{S_TEAM}')
        a(f's_mov_b32 s13, s{S_MEM}')
        rx = OPT.get('rotx', 0)
        if rx:
            a(f's_lshr_b32 s14, s{S_TEAM}, 1')
            a(f's_mul_i32 s14, s14, {rx}')
            a(f's_add_u32 s14, s14, s{S_MEM}')
            a('s_and_b32 s14, s14, 15')
        elif p.amode == 'R' and OPT.get('evenrot', 1):
            a(f's_lshl_b32 s14, s{S_MEM}, 1')
            a('s_and_b32 s14, s14, 15')
        else:
            a(f's_mov_b32 s14, s{S_MEM}')
    else:
        a(f's_lshr_b32 s13, s{S_MEM}, 3')
        a(f's_lshl_b32 s12, s{S_TEAM}, 1')
        a('s_add_u32 s12, s12, s13')
        a(f's_and_b32 s13, s{S_MEM}, 7')
        if p.ph == 2: a('s_lshl_b32 s14, s13, 1')
        else: a('s_mul_i32 s14, s13, 5')


def stats_finish(a, vsum, vsq, vmean, vrstd, tmp):
    a(f'v_mul_f32 v{vmean}, {hex(f2u(1/512))}, v{vsum}')
    a(f'v_mul_f32 v{tmp}, {hex(f2u(1/512))}, v{vsq}')
    a(f'v_fma_f32 v{tmp}, -v{vmean}, v{vmean}, v{tmp}')
    a(f'v_max_f32 v{tmp}, 0, v{tmp}')
    a(f'v_add_f32 v{tmp}, {hex(f2u(1e-5))}, v{tmp}')
    a(f'v_rsq_f32 v{vrstd}, v{tmp}')


def xbase(a, vX, xoff_sgpr, amode):
    if amode == 'F':
        a(f'v_lshl_add_u32 v{vX}, v1, 4, s{xoff_sgpr}')
    else:
        a('v_lshrrev_b32 v4, 2, v3')
        a('v_sub_u32 v4, 4, v4')
        a('v_and_b32 v4, 3, v4')
        a('v_xor_b32 v4, v4, v2')
        a('v_lshlrev_b32 v4, 4, v4')
        a(f'v_lshl_add_u32 v{vX}, v3, 6, v4')
        a(f'v_add_u32 v{vX}, s{xoff_sgpr}, v{vX}')


def wpat(a, d0, d1):
    a('v_and_b32 v4, 1, v2')
    a('v_lshlrev_b32 v4, 5, v4')
    a('v_lshl_add_u32 v4, v2, 8, v4')
    a('v_bfe_u32 v5, v1, 2, 2')
    a('v_lshl_add_u32 v4, v5, 6, v4')
    a('v_and_b32 v5, 3, v1')
    a(f'v_lshl_add_u32 v{d0}, v5, 3, v4')
    a(f'v_xor_b32 v{d1}, 32, v{d0}')


def rd128(dst, base, off): return f'ds_read_b128 {R(dst)}, v{base} offset:{off}'
def rdtr(dst, base, off): return f'ds_read_b64_tr_b16 {R(dst,2)}, v{base} offset:{off}'


def interleave(a, mf, rd, per=1, first=0):
    ri = 0
    for i, m in enumerate(mf):
        if callable(m): m()
        else: a(m)
        if i >= first:
            for _ in range(per):
                if ri < len(rd):
                    a(rd[ri]); ri += 1
    while ri < len(rd):
        a(rd[ri]); ri += 1


def ring_init(a, p, fixed, cur):
    a(f's_mov_b32 s{S_RA}, 0')
    a(f's_mov_b32 s{S_RB}, {p.b0}')
    a('s_mov_b32 s9, 0')
    a(f'v_mov_b32 v{cur[0]}, v{fixed[0]}')
    for f, c in zip(fixed[1:], cur[1:]): a(f'v_add_u32 v{c}, s{S_RB}, v{f}')


def advance(a, p, fixed, cur):
    a(f's_add_u32 s{S_RA}, s{S_RA}, {p.cA}')
    a(f's_cmp_eq_u32 s{S_RA}, {p.NCH*p.cA}')
    a(f's_cselect_b32 s{S_RA}, 0, s{S_RA}')
    a(f's_add_u32 s{S_RB}, s{S_RB}, {p.cB}')
    a(f's_cmp_eq_u32 s{S_RB}, {RB_SZ}')
    a(f's_cselect_b32 s{S_RB}, 0, s{S_RB}')
    a(f'v_add_u32 v{cur[0]}, s{S_RA}, v{fixed[0]}')
    for f, c in zip(fixed[1:], cur[1:]):
        a(f'v_add_u32 v{c}, s{S_RB}, v{f}')


def loop_big(a, p, fixed, cur, reads, mfmas, per=1, peel=False):
    ring_init(a, p, fixed, cur)
    ts(a, p.name + '.preP0')
    a('s_barrier')
    ts(a, p.name + '.P0')
    for t in reads(0, 0): a(t)
    for t in p.touch:
        if t == 'LATE':
            a('s_cmp_eq_u32 s3, 3')
            a('s_cbranch_scc0 L_nolt')
            a.begin_opt()
            late_touch(a, 22)
            a.end_opt()
            a.label('L_nolt')
            a.vm = []
        else: a(t)
    a.loop_begin(f'L_ml_{p.name}')
    if p.ph == 3 and OPT.get('s3adv', 1):
        class Rec(list):
            def __call__(self, t): self.append(t)
        rec = Rec(); advance(rec, p, fixed, cur); rec('s_add_u32 s9, s9, 1')
        m = mfmas(0); rd = reads(1, 1)
        interleave(a, m[:len(rd)], rd, per=1)
        interleave(a, m[len(rd):], rec, per=2)
    else:
        interleave(a, mfmas(0), reads(1, 1), per=per)
        advance(a, p, fixed, cur)
        a('s_add_u32 s9, s9, 1')
    a.wait_lds_all()
    tsl(a, p, 'pre')
    a('s_barrier')
    tsl(a, p, 'post')
    if peel:
        a(f's_cmp_lt_u32 s9, {p.NC}')
        a(f's_cbranch_scc0 L_mx_{p.name}')
        st = (list(a.hist), list(a.lds), list(a.vm))
        interleave(a, mfmas(1), reads(0, 0), per=per)
        a(f's_branch L_ml_{p.name}')
        a.loop_end_check()
        a.label(f'L_mx_{p.name}')
        a.hist, a.lds, a.vm = st
        ts(a, p.name + '.loopend')
        return
    interleave(a, mfmas(1), reads(0, 0), per=per)
    a(f's_cmp_lt_u32 s9, {p.NC}')
    a(f's_cbranch_scc1 L_ml_{p.name}')
    a.loop_end_check()
    a.wait_lds_all()
    ts(a, p.name + '.loopend')


def end_phase(a, p):
    ts(a, p.name + '.epi')
    a('s_waitcnt vmcnt(0)')
    ts(a, p.name + '.vm0')
    a('s_barrier')
    a.vm = []


def poll(a, name, vdst, n, voff, soff, execmask, full=False):
    a(f's_mov_b32 s84, {SPIN}')
    if execmask == 0xffffffff: a('s_mov_b32 exec_hi, 0')
    elif execmask != -1: a(f's_mov_b64 exec, {execmask}')
    a.flush_hazards()
    a.label(f'L_poll_{name}')
    op = {1: 'buffer_load_dword', 4: 'buffer_load_dwordx4'}[n]
    a(f'{op} {R(vdst, n)}, v{voff}, {soff} offen sc1')
    a('s_waitcnt vmcnt(0)')
    if n == 4:
        a(f'v_min_u32 v{vdst}, v{vdst}, v{vdst+1}')
        a(f'v_min_u32 v{vdst+2}, v{vdst+2}, v{vdst+3}')
        a(f'v_min_u32 v{vdst}, v{vdst}, v{vdst+2}')
    if full: a(f'v_cmp_ne_u32 vcc, 0x01010101, v{vdst}')
    else: a(f'v_cmp_eq_u32 vcc, 0, v{vdst}')
    a('s_nop 1')
    a(f's_cbranch_vccz L_pok_{name}')
    a('s_sub_u32 s84, s84, 1')
    a(f's_cbranch_scc1 L_pok_{name}')
    a(f's_sleep {OPT.get("sleep", 1)}')
    a(f's_branch L_poll_{name}')
    a.label(f'L_pok_{name}')
    if execmask != -1: a('s_mov_b64 exec, -1')
    a.vm = []


def spoll(a, name, soff, n, vpoll):
    a(f's_cmp_eq_u32 s{S_HET}, 0')
    a(f's_cbranch_scc0 L_svp_{name}')
    a(f's_mov_b32 s84, {SPIN}')
    if n == 2: a(f's_add_u32 s85, {soff}, 64')
    a('s_waitcnt lgkmcnt(0)')
    a.flush_hazards()
    a.label(f'L_sp_{name}')
    a.raw(f'    s_buffer_load_dwordx16 s[64:79], {S4(SRD_W)}, {soff} glc')
    if n == 2: a.raw(f'    s_buffer_load_dwordx16 s[16:31], {S4(SRD_W)}, s85 glc')
    a.raw('    s_waitcnt lgkmcnt(0)')
    regs = list(range(64, 80, 2)) + (list(range(16, 32, 2)) if n == 2 else [])
    for r in regs[1:]:
        a.raw(f'    s_and_b64 s[64:65], s[64:65], s[{r}:{r+1}]')
    a.raw('    s_and_b32 s64, s64, s65')
    a.raw(f'    s_cbranch_scc1 L_sok_{name}')
    a.raw('    s_sub_u32 s84, s84, 1')
    a.raw(f'    s_cbranch_scc1 L_sok_{name}')
    if OPT.get('ssleep', 1): a.raw(f'    s_sleep {OPT.get("ssleep", 1)}')
    a.raw(f'    s_branch L_sp_{name}')
    a.label(f'L_svp_{name}')
    vpoll()
    a.label(f'L_sok_{name}')
    a.flush_hazards()
    a.vm = []


def load_counters(a, name, until_sum):
    a('v_lshlrev_b32 v4, 5, v1')
    a('s_mov_b64 exec, 0xff')
    a(f'buffer_load_dword v5, v4, {S4(SRD_M)}, 0 offen sc1')
    a('s_waitcnt vmcnt(0)')
    a('s_mov_b64 exec, -1')
    for i in range(8):
        a(f'v_readlane_b32 s{86+i}, v5, {i}')
    a('s_add_u32 s85, s86, s87')
    for i in range(2, 8):
        a(f's_add_u32 s85, s85, s{86+i}')


def stouch_setup(a, p, w, nw):
    if not OPT.get('stouch', 0): return []
    reuse = OPT.get('reuse', 1)
    out = []
    if p.ph == 1 and (p.L == 0 or not reuse):
        a('s_lshl_b32 s53, s12, 3')
        a('s_mul_i32 s53, s53, 43')
        a('s_add_u32 s53, s53, s13')
        a('s_lshl_b32 s53, s53, 10')
        a(f's_mul_i32 s54, s{w}, {KB//nw}')
        a('s_add_u32 s53, s53, s54')
        a(f's_add_u32 s53, s53, {WS_PQ[p.L]}')
        out.append((53, 7, 43 * KB, 8 // nw))
    if p.ph in (2, 4) and not p.final and ((p.ph == 2 and p.L == 0) or not reuse):
        a('s_lshl_b32 s53, s12, 16')
        a('s_lshl_b32 s54, s13, 11')
        a('s_add_u32 s53, s53, s54')
        a(f's_mul_i32 s54, s{w}, {2*KB//nw}')
        a('s_add_u32 s53, s53, s54')
        a(f's_add_u32 s53, s53, {WS_X1[p.L] if p.ph == 2 else WS_X2}')
        out.append((53, 3, 16 * KB, 16 // nw))
        a('s_lshl_b32 s55, s12, 12')
        a(f's_mul_i32 s54, s{w}, {KB//nw}')
        a('s_add_u32 s55, s55, s54')
        a(f's_add_u32 s55, s55, {WS_ST1[p.L] if p.ph == 2 else WS_ST2}')
        out.append((55, 3, KB, 8 // nw))
    if p.ph == 3:
        a('s_lshl_b32 s53, s12, 3')
        a('s_mul_i32 s53, s53, 43')
        a('s_mul_i32 s54, s13, 3')
        a('s_add_u32 s53, s53, s54')
        a('s_lshl_b32 s53, s53, 10')
        a(f's_mul_i32 s54, s{w}, {3*KB//nw}')
        a('s_add_u32 s53, s53, s54')
        a(f's_add_u32 s53, s53, {WS_H[p.L]}')
        out.append((53, 7, 43 * KB, 24 // nw))
    return out


def stouch(a, spec, it):
    for sb, mask, stride, n in spec:
        a(f's_and_b32 s56, s{it}, {mask}')
        a(f's_mul_i32 s56, s56, {stride}')
        a(f's_add_u32 s56, s56, s{sb}')
        for i in range(n):
            a.raw(f'    s_buffer_load_dword s52, {S4(SRD_W)}, s56 offset:{i*128}')


def init_flag(a):
    a('s_mov_b64 exec, 1')
    a('s_lshr_b32 s4, s2, 1')
    a('s_lshl_b32 s4, s4, 5')
    a('s_and_b32 s5, s2, 1')
    a('s_lshl_b32 s5, s5, 2')
    a('s_add_u32 s4, s4, s5')
    a('s_add_u32 s4, s4, 4')
    a('v_mov_b32 v22, s4')
    a('v_mov_b32 v23, 1')
    a('s_waitcnt vmcnt(0)')
    a(f'buffer_store_dword v23, v22, {S4(SRD_M)}, 0 offen sc1')
    a('s_mov_b64 exec, -1')


def late_touch(a, vl):
    a('s_mul_i32 s53, s2, 5504')
    a('s_lshl_b32 s54, s2, 11')
    a('s_mov_b64 exec, 0xffff')
    a(f'buffer_load_dword v31, v{vl}, {S4(SB_WO)}, s54 offen')
    a.vm = []
    a('s_mov_b32 exec_lo, -1')
    a('s_mov_b32 exec_hi, 0x7ff')
    for sb in (SB_WG, SB_WU, SB_WD):
        a(f'buffer_load_dword v31, v{vl}, {S4(sb)}, s53 offen')
        a.vm = []
    a('s_mov_b64 exec, -1')


def entry(a):
    TS['role'] = 'all'
    a('s_cmp_ge_u32 s2, 256')
    a('s_cbranch_scc1 L_end')
    a('v_and_b32 v1, 63, v0')
    a('v_lshrrev_b32 v2, 6, v0')
    if TS['on']:
        a('v_mov_b32 v0, 0')
        a('s_mov_b32 s99, 0')
        a('s_mov_b32 m0, 0')
        ts(a, 'start')
    a(f's_load_dwordx16 s[16:31], s[0:1], 0')
    a(f's_load_dwordx4 s[32:35], s[0:1], 64')
    fx = OPT.get('fakexcc', 0)
    if fx == 0:
        a(f's_getreg_b32 s{S_XCC}, hwreg(HW_REG_XCC_ID, 0, 4)')
        a(f's_and_b32 s{S_XCC}, s{S_XCC}, 7')
    elif fx == 1:
        a(f's_lshr_b32 s{S_XCC}, s2, 5')
    else:
        a(f's_and_b32 s{S_XCC}, s2, 7')
        a(f's_cmp_ge_u32 s{S_XCC}, 6')
        a(f's_cselect_b32 s{S_XCC}, 1, s{S_XCC}')
    a('v_readfirstlane_b32 s3, v2')
    a('v_lshrrev_b32 v2, 4, v1')
    a('v_and_b32 v3, 15, v1')
    a(f's_mov_b32 s{S_HET}, 0')
    a('s_waitcnt lgkmcnt(0)')
    ts(a, 'karg')
    srd(a, SRD_W, S_WS, WS_BYTES)
    srd(a, SRD_M, S_DBG, 256)
    srd(a, SB_QKV, S_PTR + 2, 512 * 3072)
    srd(a, SB_WO, S_PTR + 4, 512 * 1024)
    srd(a, SB_WG, S_PTR + 8, 512 * 2752)
    srd(a, SB_WU, S_PTR + 10, 512 * 2752)
    srd(a, SB_WD, S_PTR + 12, 1376 * 1024)
    srd(a, SRD_A, S_PTR + 0, 2048 * 1024)
    a('s_cmp_eq_u32 s3, 0')
    a('s_cbranch_scc0 L_e1')
    a(f's_lshl_b32 s4, s{S_XCC}, 5')
    a('v_mov_b32 v4, s4')
    a('v_mov_b32 v5, 1')
    a('s_mov_b64 exec, 1')
    a(f'buffer_atomic_add v5, v4, {S4(SRD_M)}, 0 offen sc0')
    a('s_mov_b64 exec, -1')
    pt = OPT.get('pretouch', 65)
    npt = 0
    a('v_lshlrev_b32 v6, 7, v1')
    if pt & 2:
        a('s_lshr_b32 s7, s2, 3')
        a('s_and_b32 s7, s7, 31')
        a(f's_lshl_b32 s5, s{S_XCC}, 18')
        a('s_lshl_b32 s6, s7, 13')
        a('s_add_u32 s5, s5, s6')
        a(f'buffer_load_dword v31, v6, {S4(SRD_A)}, s5 offen')
        a.vm = []
        a('s_mul_i32 s7, s7, 49152')
        for i in range(6):
            a(f'buffer_load_dword v31, v6, {S4(SB_QKV)}, s7 offen')
            a.vm = []
            if i < 5: a('s_add_u32 s7, s7, 8192')
        npt += 7
    if pt & 32:
        a('s_lshr_b32 s7, s2, 3')
        a('s_and_b32 s7, s7, 31')
        a(f's_lshl_b32 s5, s{S_XCC}, 18')
        a('s_lshl_b32 s6, s7, 13')
        a('s_add_u32 s5, s5, s6')
        a(f'buffer_load_dword v31, v6, {S4(SRD_A)}, s5 offen')
        a.vm = []
        a('v_and_b32 v7, 7, v1')
        a('v_bfe_u32 v8, v1, 3, 1')
        a('v_mul_u32_u24 v8, 3072, v8')
        a('v_lshl_add_u32 v8, v2, 10, v8')
        a('v_lshl_add_u32 v8, v7, 7, v8')
        a('v_and_b32 v7, 3, v7')
        a('v_lshlrev_b32 v7, 1, v7')
        a('s_mul_i32 s7, s7, 6144')
        a('s_mov_b32 exec_lo, -1')
        a('s_mov_b32 exec_hi, 0xffff')
        for tau in range(OPT.get('ntau', 3)):
            a(f'v_add_u32 v9, {tau}, v7')
            a('v_and_b32 v9, 7, v9')
            a(f'v_mov_b32 v10, {64*3072}')
            a('v_mad_u32_u24 v9, v9, v10, v8')
            a(f'buffer_load_dword v31, v9, {S4(SB_QKV)}, s7 offen')
            a.vm = []
        a('s_mov_b64 exec, -1')
        npt += 1 + OPT.get('ntau', 3)
    if pt & 128:
        a('s_lshr_b32 s7, s2, 3')
        a('s_and_b32 s7, s7, 31')
        a('s_mul_i32 s7, s7, 49152')
        a('v_lshlrev_b32 v7, 10, v1')
        a('s_mov_b32 exec_hi, 0xffff')
        a(f'buffer_load_dword v31, v7, {S4(SB_QKV)}, s7 offen offset:384')
        a.vm = []
        a('s_mov_b64 exec, -1')
        npt += 1
    if pt & 64:
        a('s_lshr_b32 s7, s2, 3')
        a('s_and_b32 s7, s7, 31')
        a(f's_lshl_b32 s5, s{S_XCC}, 18')
        a('s_lshl_b32 s6, s7, 13')
        a('s_add_u32 s5, s5, s6')
        a(f'buffer_load_dword v31, v6, {S4(SRD_A)}, s5 offen')
        a.vm = []
        a('s_mul_i32 s7, s2, 6144')
        a('s_mov_b32 exec_hi, 0xffff')
        a(f'buffer_load_dword v31, v6, {S4(SB_QKV)}, s7 offen')
        a.vm = []
        a('s_mov_b64 exec, -1')
        npt += 2
    if pt & 1:
        late_touch(a, 6)
        npt += 4
    if pt & 4:
        a('s_mov_b64 exec, 1')
        a('s_lshl_b32 s7, s2, 11')
        for sb in (SB_WO, SB_WG, SB_WU, SB_WD):
            a(f'buffer_load_dword v31, v6, {S4(sb)}, s7 offen')
            a.vm = []
        a('s_mov_b64 exec, -1')
        npt += 4
    a(f's_waitcnt vmcnt({npt})')
    if OPT.get('dbg2'):
        TS['role'] = 'W0'
        for k in range(npt, -1, -1):
            a(f's_waitcnt vmcnt({k})')
            ts(a, f'w{k}', True)
        TS['role'] = 'all'
    a('v_readfirstlane_b32 s5, v5')
    a(f's_add_u32 s{S_VID}, s4, s5')
    a('s_cmp_lt_u32 s5, 32')
    a('s_cbranch_scc1 L_tk_ok')
    a(f's_mov_b32 s84, {SPIN}')
    a.flush_hazards()
    a.label('L_tk_wait')
    load_counters(a, 'tk', True)
    a('s_cmp_ge_u32 s85, 256')
    a('s_cbranch_scc1 L_tk_all')
    a('s_sub_u32 s84, s84, 1')
    a('s_cbranch_scc1 L_tk_all')
    a('s_sleep 2')
    a('s_branch L_tk_wait')
    a.label('L_tk_all')
    a('s_sub_u32 s5, s5, 32')
    for i in range(7):
        a(f's_max_u32 s6, s{86+i}, 32')
        a('s_sub_u32 s6, s6, 32')
        a(f's_cmp_gt_u32 s{S_XCC}, {i}')
        a('s_cselect_b32 s6, s6, 0')
        a('s_add_u32 s5, s5, s6')
    a(f's_mov_b32 s{S_VID}, 0')
    a('s_mov_b32 s7, 0')
    for i in range(8):
        a(f's_min_u32 s6, s{86+i}, 32')
        a('s_sub_u32 s8, 32, s6')
        a(f's_add_u32 s6, s6, {32*i}')
        a('s_add_u32 s6, s6, s5')
        a('s_cmp_lt_u32 s5, s8')
        a('s_cselect_b32 s10, 1, 0')
        a('s_andn2_b32 s10, s10, s7')
        a('s_or_b32 s7, s7, s10')
        a('s_cmp_lg_u32 s10, 0')
        a(f's_cselect_b32 s{S_VID}, s6, s{S_VID}')
        a('s_sub_u32 s5, s5, s8')
    a.label('L_tk_ok')
    a(f'v_mov_b32 v4, {VIDL}')
    a(f'v_mov_b32 v5, s{S_VID}')
    a('ds_write_b32 v4, v5')
    a('s_waitcnt lgkmcnt(0)')
    a('s_branch L_eT')
    a.fresh()
    a.label('L_e1')
    a('s_cmp_eq_u32 s3, 1')
    a('s_cbranch_scc0 L_eT')
    a('s_cmp_lt_u32 s2, 16')
    a('s_cbranch_scc0 L_eT')
    for i in range(4): a(f'v_mov_b32 v{4+i}, 0')
    a('v_lshlrev_b32 v8, 4, v1')
    a('s_lshl_b32 s4, s2, 11')
    for L in range(2):
        a(f's_add_u32 s5, s4, {WS_KV + L*65536}')
        for i in range(2):
            a(f'buffer_store_dwordx4 v[4:7], v8, {S4(SRD_W)}, s5 offen offset:{i*KB} sc1')
    a('s_lshl_b32 s4, s2, 7')
    a('s_mov_b64 exec, 0xff')
    for L in range(2):
        a(f's_add_u32 s5, s4, {WS_KV + L*65536 + 32768}')
        a(f'buffer_store_dwordx4 v[4:7], v8, {S4(SRD_W)}, s5 offen sc1')
    if OPT.get('nrep', 0): a('s_mov_b64 exec, -1')
    a(f's_mul_i32 s4, s2, {2048 if OPT.get("nrep", 0) else 1152}')
    a(f's_add_u32 s4, s4, {WS_SYNC}')
    a(f'buffer_store_dwordx4 v[4:7], v8, {S4(SRD_W)}, s4 offen offset:1024 sc1')
    a('s_mov_b64 exec, -1')
    a(f'buffer_store_dwordx4 v[4:7], v8, {S4(SRD_W)}, s4 offen sc1')
    if not OPT.get('lateinit', 1): init_flag(a)
    a('s_mov_b64 exec, -1')
    a.label('L_eT')
    a.fresh()
    a('s_nop 4')
    a('s_barrier')
    a(f'v_mov_b32 v4, {VIDL}')
    a('ds_read_b32 v5, v4')
    a('s_waitcnt lgkmcnt(0)')
    a(f'v_readfirstlane_b32 s{S_VID}, v5')
    a(f's_lshr_b32 s{S_TEAM}, s{S_VID}, 4')
    a(f's_and_b32 s{S_MEM}, s{S_VID}, 15')
    ts(a, 'T')
    pr = OPT.get('prio', (0, 0, 0))
    if pr[0]: a.raw(f'    s_setprio {pr[0]}')
    a('s_cmp_lt_u32 s3, 4')
    a('s_cbranch_scc1 L_comp')
    if pr[1] != pr[0]: a.raw(f'    s_setprio {pr[1]}')
    a('s_cmp_lt_u32 s3, 6')
    a('s_cbranch_scc1 L_aload')
    if pr[2] != pr[1]: a.raw(f'    s_setprio {pr[2]}')


def bloader(a, phases, bars):
    TS['role'] = 'B'
    a('s_and_b32 s4, s3, 1')
    if OPT.get('ft', 0) or OPT.get('lt'):
        srd(a, SRD_A, S_PTR + 8, 512 * 2752)
        srd(a, SRD_B, S_PTR + 10, 512 * 2752)
    a(f's_cmp_eq_u32 s{S_MEM}, 15')
    a(f's_cselect_b32 s{SB_WG+2}, 0, s{SB_WG+2}')
    a(f's_cselect_b32 s{SB_WU+2}, 0, s{SB_WU+2}')
    a('v_bfe_u32 v4, v1, 2, 2')
    a('v_bfe_u32 v5, v1, 1, 1')
    a('v_and_b32 v6, 1, v2')
    a('v_xor_b32 v5, v5, v6')
    a('v_and_b32 v6, 1, v1')
    a('v_lshlrev_b32 v5, 5, v5')
    a('v_lshl_add_u32 v5, v6, 4, v5')
    a('v_lshl_add_u32 v6, v2, 3, v4')
    a('v_lshl_add_u32 v7, v2, 2, v4')
    done = set()
    for p in phases:
        if p.vB in done: continue
        done.add(p.vB)
        hstep = 16 if p.bmap == 'F' else 4
        if p.ph == 1: a(f's_lshl_b32 s9, s{S_MEM}, 6'); n, step = 3, 1024
        elif p.ph == 3: a(f's_mul_i32 s9, s{S_MEM}, 192'); n, step = 3, 64
        else:
            a(f's_and_b32 s9, s{S_MEM}, 7'); a('s_lshl_b32 s9, s9, 7'); n, step = 2, 64
        a(f's_mul_i32 s10, s4, {hstep*p.rowB}')
        a('s_add_u32 s10, s10, s9')
        a(f'v_mul_u32_u24 v8, {p.rowB}, v{7 if p.bmap == "F" else 6}')
        a(f'v_add3_u32 v{p.vB}, v8, v5, s10')
        for i in range(1, n):
            a(f'v_add_u32 v{p.vB+i}, {i*step}, v{p.vB}')
        if p is phases[0]:
            pass
    a('s_lshl_b32 s11, s4, 10')
    chunks = []
    pos = 0
    streams = []
    for p in phases:
        if p.ph == 1 and OPT.get('qlate', 1):
            streams.append(dict(name=p.name, p=p, pieces=[(p.vB + 1, SB_QKV), (p.vB + 2, SB_QKV)], uk=2, n=8, sB=4 * KB, al=8 * KB,
                                pub=lambda c, p=p: bars.index((p.name, 'P', c)), fr=lambda c, p=p: bars.index((p.name, 'P', c)) + 1))
            streams.append(dict(name=p.name + 'q', p=p, pieces=[(p.vB, SB_QKV)], uk=4, n=4, sB=2 * KB, al=8 * KB,
                                pub=lambda c, p=p: bars.index((p.name, 'E', 0)), fr=lambda c, p=p: bars.index((p.name, 'F', 0))))
            continue
        uk = 1 if (p.ph == 4 and OPT.get('half4', 1)) else 2
        if p.ph == 3: pcs = [(p.vB + i, sb) for i in range(3) for sb in (SB_WG, SB_WU)]
        else: pcs = [(p.vB + i, {1: SB_QKV, 2: SB_WO, 4: SB_WD}[p.ph]) for i in range(p.PB // 2)]
        streams.append(dict(name=p.name, p=p, pieces=pcs, uk=uk, n=p.NC * 2 // uk, sB=p.sB,
                            al=2 * p.cB if (p.ph == 4 or (p.ph == 2 and OPT.get('qlate', 1))) else p.cB,
                            pub=lambda c, p=p, uk=uk: bars.index((p.name, 'P', c * uk // 2)),
                            fr=lambda c, p=p, uk=uk: bars.index((p.name, 'P', c * uk // 2)) + p.lag))
    for st in streams:
        al = st['al']
        pos = (pos + al - 1) // al * al
        if pos >= RB_SZ: pos = 0
        if st['name'] == 's2l1' and not OPT.get('qlate', 1): pos = 72 * KB
        pos = OPT.get('posmap', {}).get(st['name'], pos // KB) * KB
        st['b0'] = pos
        if OPT.get('verbose'): print('b0', st['name'], pos // KB)
        if st['name'].endswith('q'): st['p'].b0q = pos
        else: st['p'].b0 = pos
        for c in range(st['n']):
            chunks.append(dict(p=st, c=c, off=pos, sz=st['uk'] * st['sB'], pub=st['pub'](c), fr=st['fr'](c)))
            pos += st['uk'] * st['sB']
            if pos >= RB_SZ: pos = 0
    for i, q in enumerate(chunks):
        e = 0
        for q2 in chunks[:i]:
            if q2['off'] < q['off'] + q['sz'] and q['off'] < q2['off'] + q2['sz']:
                e = max(e, q2['fr'])
        q['e'] = e
    maxahead = OPT.get('bahead', RB_SZ)
    steps = []
    nxt = 0
    issued = []
    last = max(q['pub'] for q in chunks)
    for j in range(1, last + 1):
        iss = []
        while nxt < len(chunks) and chunks[nxt]['e'] <= j - 1:
            ahead = sum(chunks[k]['sz'] for k, _ in issued if k >= 0 and chunks[k]['pub'] >= j)
            if ahead + chunks[nxt]['sz'] > maxahead and chunks[nxt]['pub'] > j: break
            cap = OPT.get('b0n', 3) if j == 1 else OPT.get('bcap', 2)
            q = chunks[nxt]
            if q['p']['uk'] == 1:
                cap *= 2
                if bars[j][0] == q['p']['name'] and bars[j][1] == 'P' and bars[j][2] >= 2 and q['pub'] > j + OPT.get('h4m', 3) and (bars[j][0][3] == '1' or bars[j][2] < OPT.get('p4end', 99)): cap = 1
            if q['p']['name'][:4] == 's1l1' and bars[j][0] == 's4l0' and bars[j][1] == 'P': cap = OPT.get('c1cap', cap)
            bj = bars[j]
            if OPT.get('qhold') and q['p']['name'] == 's1l1q': cap = 1 if (bj[0] == 's1l1' and bj[2] >= OPT['qhold']) else 0
            key = bj[0][:2] + bj[1] + (str(bj[2]) if bj[1] == 'P' else '')
            if j > 1 and key in OPT.get('quiet', ()): cap = 0
            if OPT.get('wolate', 1) and q['p']['name'][:2] == 's2' and bj[0][:2] == 's1':
                cap = 99 if bj[1] in 'FG' else 0
                cap = OPT.get('wcap', {}).get(bj[0] + bj[1] + str(bj[2]), cap)
            if len(iss) >= cap and chunks[nxt]['pub'] > j + 1: break
            iss.append((q['p']['name'], q['c'] == 0))
            issued.append((nxt, len(q['p']['pieces']) * q['p']['uk']))
            nxt += 1
        for (bar, mat) in OPT.get('sl', ()):
            if bars[j] == bar:
                iss.append(('S' + mat, True))
                issued.append((-1, 1))
        if OPT.get('lt') and bars[j] == OPT['lt']:
            iss.append(('LT', True))
            issued.append((-1, 3))
        for (tph, t0, t1, mat) in OPT.get('ft', ()):
            bj = bars[j]
            if bj[0] == tph and bj[1] == 'P' and t0 <= bj[2] < t1:
                iss.append((f'F{mat}{t1-t0}', bj[2] == t0))
                issued.append((-1, 1))
        for tk, (tkey, tn) in OPT.get('l2t', {}).items():
            bj = bars[j]
            if tkey == bj[0][:2] + bj[1] + (str(bj[2]) if bj[1] == 'P' else '') and not (tk[0] == 'q' and bj[0][3] == '1') and bj[0][3] in OPT.get('l2tl', '01'):
                iss.append(('T' + tk, True))
                issued.append((-1, tn))
        w = None
        for k, (ci, n) in enumerate(issued):
            if ci >= 0 and chunks[ci]['pub'] == j:
                w = min(63, sum(x[1] for x in issued[k+1:]))
        if any(q['pub'] == j for q in chunks): assert w is not None, ('chunk not issued in time', j, bars[j])
        steps.append((tuple(iss), w, bars[j]))
    byname = {p.name: p for p in phases}
    bystream = {st['name']: st for st in streams}
    for tk, (tkey, tn) in OPT.get('l2t', {}).items(): bystream['T' + tk] = (tk, tn)

    for (tph, t0, t1, mat) in OPT.get('ft', ()): bystream[f'F{mat}{t1-t0}'] = [mat, t1 - t0]

    def ftouch(mat, n, first):
        tot = {'q': 512 * 3072, 'd': 1376 * 1024, 'o': 512 * 1024, 'g': 512 * 2752, 'u': 512 * 2752}[mat]
        sb = {'q': SB_QKV, 'd': SB_WD, 'o': SB_WO, 'g': SRD_A, 'u': SRD_B}[mat]
        sr = {'q': 56, 'd': 57, 'o': 56, 'g': 56, 'u': 57}[mat]
        lanes = -(-tot // (128 * 64 * n))
        assert lanes <= 64
        if first:
            a(f's_and_b32 s{sr}, s{S_VID}, 31')
            a(f's_mul_i32 s{sr}, s{sr}, {2*n*lanes*128}')
            a(f's_mul_i32 s54, s4, {lanes*128}')
            a(f's_add_u32 s{sr}, s{sr}, s54')
            a('v_lshlrev_b32 v32, 7, v1')
        m = (1 << lanes) - 1
        a(f's_mov_b32 exec_lo, {hex(m & 0xffffffff)}')
        a(f's_mov_b32 exec_hi, {hex(m >> 32)}')
        a(f'buffer_load_dword v31, v32, {S4(sb)}, s{sr} offen')
        a.vm = []
        a('s_mov_b64 exec, -1')
        a(f's_add_u32 s{sr}, s{sr}, {2*lanes*128}')

    bystream['LT'] = 'LT'
    for m_ in 'qdoOT': bystream['S' + m_] = 'S' + m_

    def stouch1(mat):
        if mat == 'T':
            srd(a, SRD_M, S_PTR + 14, 2048 * 1024)
            a(f's_cmp_eq_u32 s{S_MEM}, 15')
            a(f's_cselect_b32 s{SRD_M+2}, s{SRD_M+2}, 0')
            a('v_lshlrev_b32 v32, 16, v1')
            a('s_mov_b32 exec_hi, 0')
            a(f'buffer_load_dword v31, v32, {S4(SRD_M)}, 0 offen offset:4092')
            a.vm = []
            a('s_mov_b64 exec, -1')
            return
        if mat == 'O':
            a(f's_lshl_b32 s53, s{S_VID}, 1')
            a('s_add_u32 s53, s53, s4')
            a('s_lshl_b32 s53, s53, 10')
            a('v_lshlrev_b32 v32, 7, v1')
            a('s_mov_b64 exec, 0xff')
            a(f'buffer_load_dword v31, v32, {S4(SB_WO)}, s53 offen')
            a.vm = []
            a('s_mov_b64 exec, -1')
            return
        n = {'q': 24, 'd': 22, 'o': 8}[mat]
        a(f's_and_b32 s53, s{S_VID}, 31')
        a('s_lshl_b32 s53, s53, 1')
        a('s_add_u32 s53, s53, s4')
        a(f's_mul_i32 s53, s53, {n*KB}')
        a('v_lshlrev_b32 v32, 10, v1')
        a(f's_mov_b64 exec, {hex((1 << n) - 1)}')
        a(f'buffer_load_dword v31, v32, {S4({"q": SB_QKV, "d": SB_WD, "o": SB_WO}[mat])}, s53 offen offset:384')
        a.vm = []
        a('s_mov_b64 exec, -1')

    def ltouch():
        a('v_lshlrev_b32 v32, 8, v1')
        a('s_lshl_b32 s55, s4, 7')
        a('s_mul_i32 s53, s2, 5504')
        a('s_add_u32 s53, s53, s55')
        a('s_mov_b64 exec, 0x3fffff')
        for sb in (SRD_A, SRD_B, SB_WD):
            a(f'buffer_load_dword v31, v32, {S4(sb)}, s53 offen')
            a.vm = []
        a('s_mov_b64 exec, -1')

    def l2touch(tk, tn):
        if tk[0] == 'g':
            f0 = int(tk[1:])
            a(f's_mul_i32 s53, s{S_MEM}, 192')
            a('s_mul_i32 s54, s4, 188')
            a('s_add_u32 s53, s53, s54')
            a(f's_and_b32 s54, s{S_TEAM}, 1')
            a('s_lshl_b32 s54, s54, 2')
            a(f's_add_u32 s54, s54, s{S_MEM}')
            a('s_lshl_b32 s54, s54, 5')
            a('v_mov_b32 v33, 2752')
            for i in range(f0, f0 + tn):
                if i % 2 == 0 or i == f0:
                    a(f's_add_u32 s55, s54, {256 + 64*(i//2)}')
                    a('v_add_u32 v32, s55, v1')
                    a('v_and_b32 v32, 511, v32')
                    a('v_mul_u32_u24 v32, v32, v33')
                a(f'buffer_load_dword v31, v32, {S4(SB_WU if i % 2 else SB_WG)}, s53 offen')
                a.vm = []
        else:
            f0 = int(tk[1:])
            per = {'d': 44032, 'q': 49152}[tk[0]]
            a(f's_and_b32 s53, s{S_VID}, 31')
            a(f's_mul_i32 s53, s53, {per}')
            a('s_lshl_b32 s54, s4, 13')
            a('s_add_u32 s53, s53, s54')
            a('v_lshlrev_b32 v32, 7, v1')
            for i in range(f0, f0 + tn):
                a(f's_add_u32 s55, s53, {i*16384}')
                a(f'buffer_load_dword v31, v32, {S4(SB_WD if tk[0] == "d" else SB_QKV)}, s55 offen')
                a.vm = []

    byname['TOUCH'] = None

    def btouch():
        a('s_lshr_b32 s53, s2, 3')
        a('s_and_b32 s53, s53, 31')
        a('s_mul_i32 s53, s53, 6144')
        a('s_mul_i32 s54, s4, 3072')
        a('s_add_u32 s53, s53, s54')
        a('v_and_b32 v30, 7, v1')
        a('v_lshrrev_b32 v31, 3, v1')
        a('v_lshlrev_b32 v31, 10, v31')
        a('v_lshl_add_u32 v31, v30, 7, v31')
        a('v_and_b32 v30, 3, v30')
        a('v_lshlrev_b32 v30, 1, v30')
        a(f'v_mov_b32 v33, {64*3072}')
        a('s_mov_b64 exec, 0xffffff')
        for tau in range(OPT.get('ntau', 3), 8):
            a(f'v_add_u32 v32, {tau}, v30')
            a('v_and_b32 v32, 7, v32')
            a('v_mad_u32_u24 v32, v32, v33, v31')
            a(f'buffer_load_dword v31, v32, {S4(SB_QKV)}, s53 offen')
            a.vm = []
        a('s_mov_b64 exec, -1')
        a('v_lshlrev_b32 v30, 8, v1')
        a('s_lshl_b32 s55, s4, 7')
        a('s_mul_i32 s53, s2, 5504')
        a('s_add_u32 s53, s53, s55')
        a('s_lshl_b32 s54, s2, 11')
        a('s_add_u32 s54, s54, s55')
        a('s_mov_b64 exec, 0xff')
        a(f'buffer_load_dword v31, v30, {S4(SB_WO)}, s54 offen')
        a.vm = []
        a('s_mov_b64 exec, 0x3fffff')
        for sb in (SRD_A, SRD_B, SB_WD):
            a(f'buffer_load_dword v31, v30, {S4(sb)}, s53 offen')
            a.vm = []
        a('s_mov_b64 exec, -1')

    PACE = [0]

    def issue(st, first):
        if st == 'LT': return ltouch()
        if isinstance(st, str): return stouch1(st[1])
        if isinstance(st, tuple): return l2touch(*st)
        if isinstance(st, list): return ftouch(st[0], st[1], first)
        p = st['p']
        if first:
            phase_map(a, p)
            a(f's_mul_i32 s7, s14, {p.strideB}')
            a(f's_add_u32 s5, s11, {st["b0"]}')
        for kk in range(st['uk']):
            for i, (vr, sb) in enumerate(st['pieces']):
                a(f's_add_u32 m0, s5, {kk*st["sB"] + 2*i*KB}')
                nt = st['name'] in OPT.get('bnt', ()) or (sb == SB_WU and 'wu' in OPT.get('bnt', ()))
                a(f'buffer_load_dwordx4 v{vr}, {S4(sb)}, s7 offen {OPT.get("bntm", "nt") if nt else ""} lds')
                if PACE[0]: a(f's_sleep {PACE[0]}')
            a(f's_add_u32 s7, s7, {p.strideB}')
            a(f's_cmp_eq_u32 s7, {2*p.NC*p.strideB}')
            a('s_cselect_b32 s7, 0, s7')
        a(f's_add_u32 s5, s5, {st["uk"]*st["sB"]}')
        a(f's_cmp_ge_u32 s5, {RB_SZ}')
        a('s_cselect_b32 s5, s11, s5')

    def emit_iss(iss, tag):
        k = 0
        while k < len(iss):
            m = k
            while m < len(iss) and iss[m] == iss[k]: m += 1
            n = m - k
            if n >= 3 and not iss[k][1]:
                a(f's_mov_b32 s8, {n}')
                a.flush_hazards()
                a.loop_begin(f'L_bi_{tag}_{k}')
                issue(bystream[iss[k][0]], False)
                a('s_sub_u32 s8, s8, 1')
                a('s_cmp_lg_u32 s8, 0')
                a(f's_cbranch_scc1 L_bi_{tag}_{k}')
                a.loop_end_check()
            else:
                for x in iss[k:m]: issue(bystream[x[0]], x[1])
            k = m

    i = 0
    while i < len(steps):
        m = i
        while m < len(steps) and steps[m][:2] == steps[i][:2] and not (TS['on'] and m > i and steps[m][2][1] != 'P'): m += 1
        n = m - i
        iss, w, bar = steps[i]
        if TS['on'] and bar[1] != 'P': n = 1; m = i + 1
        if n >= 2 and len(iss) <= 2:
            a(f's_mov_b32 s9, {n}')
            a.flush_hazards()
            a.loop_begin(f'L_bs_{i}')
            for x in iss: issue(bystream[x[0]], x[1])
            if w is not None: a(f's_waitcnt vmcnt({w})')
            tsl(a, byname[bar[0]], 'pre')
            a('s_barrier')
            a('s_sub_u32 s9, s9, 1')
            a('s_cmp_lg_u32 s9, 0')
            a(f's_cbranch_scc1 L_bs_{i}')
            a.loop_end_check()
            i = m
        else:
            PACE[0] = OPT.get('pace', {}).get(bar[0] + bar[1] + str(bar[2]), 0)
            pre = OPT.get('presl', {}).get(bar[0] + bar[1] + str(bar[2]), 0)
            if pre: a(f's_sleep {pre}')
            emit_iss(iss, i)
            PACE[0] = 0
            if w is not None: a(f's_waitcnt vmcnt({w})')
            if bar[1] != 'P' or bar[2] == 0: ts(a, f'{bar[0]}.pre{bar[1]}')
            else: tsl(a, byname[bar[0]], 'pre')
            a('s_barrier')
            i += 1
        a.vm = []
    ts_flush(a)
    a('s_endpgm')
    a.fresh()
    return steps


def aloader(a, phases):
    TS['role'] = 'A'
    a.label('L_aload')
    a('s_and_b32 s4, s3, 1')
    a('v_mov_b32 v40, 1')
    a(f's_lshl_b32 s5, s{S_MEM}, 2')
    a('v_mov_b32 v41, s5')
    a('v_lshlrev_b32 v42, 2, v1')
    a(f's_and_b32 s5, s{S_VID}, 31')
    a('s_lshl_b32 s5, s5, 2')
    a('v_mov_b32 v43, s5')
    a(f's_lshr_b32 s5, s{S_VID}, 5')
    a('s_lshl_b32 s5, s5, 2')
    nrep = OPT.get('nrep', 0)
    rsh = {0: 7, 8: 9, 16: 8, 32: 7, 64: 6}[nrep]
    a(f'v_lshl_add_u32 v48, v1, {rsh}, s5')
    a(f'v_lshl_add_u32 v47, v1, 8, s{S_VID}')
    a('v_lshlrev_b32 v16, 4, v1')
    a('v_lshrrev_b32 v4, 3, v1')
    a('v_and_b32 v5, 7, v1')
    a(f'v_mul_u32_u24 v4, {43*KB}, v4')
    a('v_lshl_add_u32 v49, v5, 7, v4')
    a('v_lshlrev_b32 v50, 7, v1')
    a('v_and_b32 v4, 3, v1')
    a('v_lshlrev_b32 v4, 6, v4')
    a('v_and_b32 v5, 60, v1')
    a('v_add_u32 v55, v4, v5')
    ksync = 0
    for pi, p in enumerate(phases):
        nA = p.RT // 2
        per2 = 2 * nA
        NC, DC = p.NC, p.DC
        assert p.NCH >= DC + p.lag and (DC - 1) * per2 <= 63
        phase_map(a, p)
        if p.ph == 1:
            a('s_lshl_b32 s8, s12, 17')
            if p.L: a(f's_add_u32 s8, s8, {WS_X2}')
        elif p.ph == 3:
            a('s_lshl_b32 s8, s12, 17')
            a(f's_add_u32 s8, s8, {WS_X1[p.L]}')
        else:
            a(f's_mul_i32 s8, s12, {4*p.KSA*KB}')
            a(f's_add_u32 s8, s8, {WS_PQ[p.L] if p.ph == 2 else WS_H[p.L]}')
        if p.amode == 'F':
            a(f's_mul_i32 s10, s4, {p.KSA*KB}')
            a('s_add_u32 s10, s10, s8')
            a('v_lshl_add_u32 v8, v1, 4, s10')
            astep = 2 * p.KSA * KB
        else:
            a('v_lshrrev_b32 v4, 2, v1')
            a('v_and_b32 v5, 3, v1')
            a('v_sub_u32 v6, 4, v2')
            a('v_and_b32 v6, 3, v6')
            a('v_xor_b32 v5, v5, v6')
            a('v_lshlrev_b32 v4, 10, v4')
            a('v_lshl_add_u32 v8, v5, 4, v4')
            a('s_lshl_b32 s10, s4, 14')
            a('s_add_u32 s10, s10, s8')
            a('v_add_u32 v8, s10, v8')
            astep = 2 * 16 * KB
        for i in range(1, nA):
            a(f'v_add_u32 v{8+i}, {i*astep}, v8')
        a(f's_mul_i32 s6, s14, {p.strideA}')
        a('s_lshl_b32 s10, s4, 10')
        a(f's_add_u32 s10, s10, {RA0}')
        a('s_mov_b32 s5, s10')
        a(f's_add_u32 s11, s10, {p.NCH*p.cA}')
        a('s_mov_b32 s9, 0')
        spec = stouch_setup(a, p, 4, 2)
        if pi == 1: srd(a, SRD_A, S_WS, WS_BYTES)
        if p.ph == 3:
            a(f's_cmp_eq_u32 s{S_MEM}, 15')
            a(f's_cselect_b32 s{SRD_A+2}, 0, s{SRD_A+2}')
        if p.ph == 4:
            a(f's_mov_b32 s{SRD_A+2}, {WS_BYTES}')
        if p.stats:
            a('s_lshl_b32 s7, s12, 1')
            a('s_add_u32 s7, s7, s4')
            a('s_lshl_b32 s7, s7, 12')
            a(f's_add_u32 s7, s7, {WS_ST1[p.L] if p.ph == 3 else WS_ST2}')
        if pi > 0:
            prev = phases[pi - 1]
            kinds = ['t']
            if prev.ph == 1: kinds = ['g', 't'] if OPT.get('qlate', 1) else ['g']
            for kind in kinds:
                glob = (kind == 'g')
                tag = p.name + kind
                if glob:
                    a(f's_lshr_b32 s15, s{S_VID}, 5')
                    a('s_lshl_b32 s15, s15, 7')
                    a(f's_add_u32 s15, s15, {WS_SYNC + 14336 + prev.L*2048}')
                    a(f's_add_u32 s97, s15, 1024')
                    if nrep:
                        a(f's_lshr_b32 s97, s{S_VID}, {rsh - 4}')
                        a(f's_lshl_b32 s97, s97, {rsh}')
                        a(f's_add_u32 s97, s97, {WS_SYNC + 18432 + prev.L*4096}')
                else:
                    a(f's_lshl_b32 s15, s{S_TEAM}, 7')
                    a(f's_add_u32 s15, s15, {WS_SYNC + ksync*2048}')
                    ksync += 1
                gb = OPT.get('gb', 0) if glob else 0
                if gb:
                    a(f's_mov_b32 s15, {WS_SYNC + 14336 + prev.L*2048}')
                    a(f's_lshr_b32 s97, s{S_VID}, 5')
                    a('s_lshl_b32 s97, s97, 8')
                    a('s_add_u32 s97, s97, s15')
                ts(a, prev.name + '.preE' + kind)
                a('s_barrier')
                ts(a, prev.name + '.E' + kind)
                if gb:
                    a('s_cmp_eq_u32 s3, 4')
                    a(f's_cbranch_scc0 L_ns_{tag}')
                    a.begin_opt()
                    a('s_mov_b64 exec, 0xff')
                    a(f's_cmp_eq_u32 s{S_HET}, 0')
                    a(f's_cbranch_scc1 L_hom_{tag}')
                    a.raw('    buffer_wbl2 sc1')
                    a('s_waitcnt vmcnt(0)')
                    a.label(f'L_hom_{tag}')
                    a(f'buffer_store_byte v40, v47, {S4(SRD_W)}, s15 offen sc1')
                    a('s_mov_b64 exec, -1')
                    if gb == 1: poll(a, tag, 44, 1, 42, f'{S4(SRD_W)}, s97', -1, full=True)
                    a.end_opt()
                    a.label(f'L_ns_{tag}')
                    a.vm = []
                    if gb == 2: poll(a, tag, 44, 1, 42, f'{S4(SRD_W)}, s97', -1, full=True)
                    ts(a, p.name + '.flag' + kind)
                    a('s_barrier')
                    continue
                a('s_cmp_eq_u32 s3, 4')
                a(f's_cbranch_scc0 L_ns_{tag}')
                a.begin_opt()
                a('s_mov_b64 exec, 1')
                a(f's_cmp_eq_u32 s{S_HET}, 0')
                a(f's_cbranch_scc1 L_hom_{tag}')
                a.raw('    buffer_wbl2 sc1')
                a('s_waitcnt vmcnt(0)')
                vo = 43 if glob else 41
                a(f'buffer_store_dword v40, v{vo}, {S4(SRD_W)}, s15 offen sc1')
                a(f's_branch L_sg_{tag}')
                a.label(f'L_hom_{tag}')
                a(f'buffer_store_dword v40, v{vo}, {S4(SRD_W)}, s15 offen')
                a.label(f'L_sg_{tag}')
                a('s_mov_b64 exec, -1')
                if glob:
                    a(f's_and_b32 s85, s{S_VID}, 31')
                    a('s_cmp_eq_u32 s85, 0')
                    a(f's_cbranch_scc0 L_nl_{tag}')
                    vp = lambda: poll(a, 'g' + tag, 44, 1, 42, f'{S4(SRD_W)}, s15', 0xffffffff)
                    if OPT.get('spoll', 0) & 2: spoll(a, 'g' + tag, 's15', 2, vp)
                    else: vp()
                    a(f's_mov_b32 s85, {WS_SYNC + 18432 + prev.L*4096 if nrep else WS_SYNC + 14336 + prev.L*2048 + 1024}')
                    if nrep == 32: a('s_mov_b32 exec_hi, 0')
                    elif nrep != 64: a(f's_mov_b64 exec, {hex((1 << (nrep or 8)) - 1)}')
                    a(f'buffer_store_dword v40, v48, {S4(SRD_W)}, s85 offen sc1')
                    a('s_mov_b64 exec, -1')
                    if OPT.get('gsl', 0):
                        a(f's_branch L_nl2_{tag}')
                        a.label(f'L_nl_{tag}')
                        a(f's_sleep {OPT["gsl"]}')
                        a.label(f'L_nl2_{tag}')
                    else: a.label(f'L_nl_{tag}')
                    if OPT.get('gp', 0): poll(a, tag, 44, 1, 42, f'{S4(SRD_W)}, s97', 0xff)
                a.end_opt()
                a.label(f'L_ns_{tag}')
                a.vm = []
                if glob and OPT.get('gp', 0): pass
                elif glob: poll(a, tag, 44, 1, 42, f'{S4(SRD_W)}, s97', 0xff)
                elif OPT.get('spoll', 0) & 1:
                    spoll(a, tag, 's15', 1, lambda: poll(a, tag, 44, 1, 42, f'{S4(SRD_W)}, s15', 0xffff))
                else: poll(a, tag, 44, 1, 42, f'{S4(SRD_W)}, s15', 0xffff)
                ts(a, p.name + '.flag' + kind)
                if glob: a('s_barrier')
        if p.stats:
            for t in range(4):
                a(f'buffer_load_dwordx4 {R(20+4*t)}, v16, {S4(SRD_W)}, s7 offen offset:{t*KB} sc1')
            if p.st2:
                a(f's_add_u32 s7, s7, {128*KB}')
                for t in range(4):
                    a(f'buffer_load_dwordx4 {R(56+4*t)}, v16, {S4(SRD_W)}, s7 offen offset:{t*KB} sc1')
            if OPT.get('dbg1') and OPT.get('tsp') == p.name:
                tsl(a, p, 'iss')
                a('s_waitcnt vmcnt(0)')
                tsl(a, p, 'stl')
                a(f's_add_u32 m0, s5, 0')
                a(f'buffer_load_dwordx4 v8, {S4(SRD_A)}, s6 offen lds')
                a('s_waitcnt vmcnt(0)')
                tsl(a, p, 'a1')
                a(f'buffer_load_dwordx4 v9, {S4(SRD_A)}, s6 offen lds')
                a('s_waitcnt vmcnt(0)')
                tsl(a, p, 'a2')
        a.flush_hazards()
        a.loop_begin(f'L_li_{p.name}')
        if p.amode == 'R' and OPT.get('evenrot', 1):
            for i in range(nA):
                for kk in range(2):
                    a(f's_add_u32 m0, s5, {kk*p.sA + i*2*KB - kk*64}')
                    a(f'buffer_load_dwordx4 v{8+i}, {S4(SRD_A)}, s6 offen offset:{kk*64} lds')
            a(f's_add_u32 s6, s6, {2*p.strideA}')
            a(f's_cmp_eq_u32 s6, {2*NC*p.strideA}')
            a('s_cselect_b32 s6, 0, s6')
        for kk in range(0 if (p.amode == 'R' and OPT.get('evenrot', 1)) else 2):
            sa = 's6'
            if p.padk:
                a(f's_cmp_eq_u32 s6, {p.NKreal*p.strideA}')
                a(f's_cselect_b32 s8, 0x10000000, s6')
                sa = 's8'
            for i in range(nA):
                a(f's_add_u32 m0, s5, {kk*p.sA + i*2*KB}')
                a(f'buffer_load_dwordx4 v{8+i}, {S4(SRD_A)}, {sa} offen {OPT.get("amod", "")} lds')
            a(f's_add_u32 s6, s6, {p.strideA}')
            a(f's_cmp_eq_u32 s6, {2*NC*p.strideA}')
            a('s_cselect_b32 s6, 0, s6')
        a(f's_add_u32 s5, s5, {p.cA}')
        a('s_cmp_eq_u32 s5, s11')
        a('s_cselect_b32 s5, s10, s5')
        a('s_add_u32 s9, s9, 1')
        apro = p.lag if OPT.get('apro', 0) & (1 << pi) else 0
        assert (DC + apro - 1) * per2 <= 63
        a(f's_cmp_lt_u32 s9, {DC + apro}')
        a(f's_cbranch_scc1 L_li_{p.name}')
        if apro:
            a(f's_cmp_eq_u32 s9, {DC+apro}')
            a(f's_cbranch_scc0 L_lp_{p.name}')
            for x in range(apro):
                a(f's_waitcnt vmcnt({(DC+apro-1-x)*per2})')
                tsl(a, p, 'pre')
                a('s_barrier')
            a.label(f'L_lp_{p.name}')
        stouch(a, spec, 9)
        a(f's_waitcnt vmcnt({(DC-1)*per2})')
        tsl(a, p, 'pre')
        a('s_barrier')
        a(f's_cmp_lt_u32 s9, {NC}')
        a(f's_cbranch_scc1 L_li_{p.name}')
        a.loop_end_check()
        a.vm = []
        nt = 0
        vt = OPT.get('vtouch', 7)
        if p.name == 's1l0' and vt & 1:
            a(f's_mul_i32 s53, s12, {8*43*KB}')
            a('s_lshl_b32 s54, s13, 10')
            a('s_add_u32 s53, s53, s54')
            a(f's_add_u32 s53, s53, {WS_PQ[0]}')
            a(f's_lshl_b32 s54, s{S_VID}, 13')
            a(f's_add_u32 s54, s54, {WS_X1[0]}')
            a('s_cmp_eq_u32 s4, 0')
            a('s_cselect_b32 s53, s53, s54')
            a('s_cselect_b64 vcc, -1, 0')
            a('v_cndmask_b32 v51, v50, v49, vcc')
            a(f'buffer_load_dword v52, v51, {S4(SRD_W)}, s53 offen sc1')
            a(f's_lshl_b32 s54, s{S_VID}, 9')
            a(f's_add_u32 s54, s54, {WS_ST1[0]}')
            a('s_lshl_b32 s53, s4, 17')
            a('s_add_u32 s54, s54, s53')
            a('s_mov_b64 exec, 15')
            a(f'buffer_load_dword v53, v50, {S4(SRD_W)}, s54 offen sc1')
            a('s_mov_b64 exec, -1')
            nt = 2
        if pi == 0:
            a(f'buffer_load_dword v54, v42, {S4(SRD_M)}, 0 offen sc1')
            nt += 1
        if p.name == 's1l0' and OPT.get('pretouch', 65) & 8:
            a('s_cmp_eq_u32 s4, 0')
            a('s_cselect_b32 s%d, s%d, 0' % (SB_WO + 2, SB_WO + 2))
            a('s_cselect_b32 s%d, s%d, 0' % (SB_WG + 2, SB_WG + 2))
            a('s_cselect_b32 s%d, 0, s%d' % (SB_WU + 2, SB_WU + 2))
            a('s_cselect_b32 s%d, 0, s%d' % (SB_WD + 2, SB_WD + 2))
            late_touch(a, 50)
            nt += 4
        if p.ph == 3 and vt & (2 << p.L):
            a(f's_mul_i32 s53, s12, {8*43*KB}')
            a(f's_mul_i32 s54, s13, {3*KB}')
            a('s_add_u32 s53, s53, s54')
            a(f's_add_u32 s53, s53, {WS_H[p.L]}')
            a('s_lshl_b32 s54, s4, 10')
            a('s_add_u32 s54, s54, s53')
            a(f'buffer_load_dword v52, v49, {S4(SRD_W)}, s54 offen sc1')
            a('s_cmp_eq_u32 s4, 0')
            a('s_cselect_b32 exec_lo, -1, 0')
            a('s_cselect_b32 exec_hi, 0, -1')
            a(f'buffer_load_dword v53, v49, {S4(SRD_W)}, s53 offen offset:2048 sc1')
            a('s_mov_b64 exec, -1')
            nt = 2
        a.vm = []
        if p.stats:
            if p.st2:
                for t in range(8):
                    a(pk('v_pk_add_f32', 20 + 2 * t, 20 + 2 * t, 56 + 2 * t))
            for t in range(4):
                a(pk('v_pk_add_f32', 20 + 4 * t, 20 + 4 * t, 22 + 4 * t))
            a('v_and_b32 v17, 1, v1')
            a('v_cmp_eq_u32 vcc, 1, v17')
            for t in range(4):
                for e in range(2):
                    r = 20 + 4 * t + e
                    a(f'v_add_f32_dpp v{r}, v{r}, v{r} quad_perm:[1,0,3,2] row_mask:0xf bank_mask:0xf')
            for h in range(2):
                for e in range(2):
                    a(f'v_cndmask_b32 v{20+8*h+e}, v{20+8*h+e}, v{24+8*h+e}, vcc')

            def stats2():
                a('v_and_b32 v17, 2, v1')
                a('v_cmp_eq_u32 vcc, 2, v17')
                for h in range(2):
                    for e in range(2):
                        r = 20 + 8 * h + e
                        a(f'v_add_f32_dpp v{r}, v{r}, v{r} quad_perm:[2,3,0,1] row_mask:0xf bank_mask:0xf')
                for e in range(2):
                    a(f'v_cndmask_b32 v{20+e}, v{20+e}, v{28+e}, vcc')
                stats_finish(a, 20, 21, 22, 23, 17)
                a('s_lshl_b32 s8, s4, 8')
                a(f's_add_u32 s8, s8, {p.STB}')
                a('v_add_u32 v18, s8, v55')
                a(f'ds_write_b32 v18, v22')
                a(f'ds_write_b32 v18, v23 offset:512')
                a('s_waitcnt lgkmcnt(0)')
        for r in range(1, DC):
            if spec and max(x[1] for x in spec) + 1 >= NC - DC + 1 + r:
                a('s_add_u32 s9, s9, 1')
                stouch(a, spec, 9)
            a(f's_waitcnt vmcnt({(DC-1-r)*per2 + nt})')
            tsl(a, p, 'pre')
            a('s_barrier')
        a.vm = []
        if p.final: break
        if p.stats: stats2()
        a('s_barrier')
        if pi == 0:
            a(f's_mov_b32 s84, {SPIN}')
            a('s_mov_b32 s52, 0x06060606')
            a('s_mov_b32 s53, 0x06060606')
            a(f's_lshr_b32 s94, s{S_TEAM}, 1')
            a('s_lshl_b32 s94, s94, 3')
            a('s_waitcnt vmcnt(0)')
            a('s_branch L_het1')
            a.label('L_het')
            a('s_sleep 2')
            a(f'buffer_load_dword v54, v42, {S4(SRD_M)}, 0 offen sc1')
            a('s_waitcnt vmcnt(0)')
            a.label('L_het1')
            a('s_sub_u32 s84, s84, 1')
            a(f's_mov_b32 s{S_HET}, 1')
            a('s_cbranch_scc1 L_het_done')
            a('v_cmp_eq_u32 vcc, 0, v54')
            a('v_readlane_b32 s95, v54, s94')
            a('s_nop 0')
            a('s_and_b64 s[54:55], vcc, s[52:53]')
            a('s_cbranch_scc1 L_het')
            if not OPT.get('fakexcc', 0):
                a(f's_mov_b32 s{S_HET}, 0')
                a('s_cmp_ge_u32 s95, 32')
                a('s_cbranch_scc1 L_het_done')
                a(f's_mov_b32 s{S_HET}, 1')
                for i in range(8):
                    a(f'v_readlane_b32 s{86+i}, v54, {8*i}')
                a('s_add_u32 s85, s86, s87')
                for i in range(2, 8):
                    a(f's_add_u32 s85, s85, s{86+i}')
                a('s_cmp_ge_u32 s85, 256')
                a('s_cbranch_scc0 L_het')
            a.label('L_het_done')
            a.vm = []
        for _ in range(p.nX): a('s_barrier')
    ts_flush(a)
    a('s_endpgm')
    a.fresh()


def comp_s1(a, p):
    name = p.name; L = p.L
    STB = p.STB
    ZB = SCR + 8 * KB
    first = (L == 0)
    KVB = WS_KV + L * 65536
    ACQ, ACK, ACV = 64, 80, 96
    SS, SG, CS = 112, 120, 128
    FR = 152
    ONES = 216
    fixed = [8, 9, 10]; cur = [11, 12, 13]
    vX, vW0, vW1 = cur
    vKVa, vZa, vT, vDb = 17, 18, 20, 21
    phase_map(a, p)
    a('s_lshl_b32 s4, s3, 11')
    a(f's_add_u32 s4, s4, {RA0}')
    xbase(a, 8, 4, p.amode)
    wpat(a, 9, 10)
    a('s_lshl_b32 s5, s13, 11')
    a('s_lshl_b32 s6, s3, 9')
    a('s_add_u32 s5, s5, s6')
    a(f's_add_u32 s5, s5, {KVB}')
    a(f'v_lshl_add_u32 v{vKVa}, v1, 2, s5')
    a('s_lshl_b32 s5, s13, 7')
    a(f's_add_u32 s5, s5, {KVB + 32768}')
    a(f'v_lshl_add_u32 v{vZa}, v1, 2, s5')
    a('v_lshlrev_b32 v14, 4, v2')
    a(f'v_add_u32 v14, {CS1L}, v14')
    a('v_lshlrev_b32 v15, 2, v3')
    a(f'v_add_u32 v15, {CS1L}, v15')
    if first:
        a('v_lshrrev_b32 v4, 1, v1')
        a('v_and_b32 v5, 1, v1')
        a('v_lshlrev_b32 v4, 5, v4')
        a('v_lshl_add_u32 v4, v5, 2, v4')
        a(f'v_add_u32 v{vDb}, 4, v4')
    a('s_lshl_b32 s7, s12, 3')
    a('s_lshl_b32 s5, s3, 1')
    a('s_add_u32 s7, s7, s5')
    a('s_mul_i32 s7, s7, 43')
    a('s_add_u32 s7, s7, s13')
    a('s_lshl_b32 s7, s7, 10')
    a(f's_add_u32 s7, s7, {WS_PQ[L]}')
    if OPT.get('otouch', 0):
        a('v_lshrrev_b32 v4, 3, v1')
        a('v_and_b32 v5, 7, v1')
        a(f'v_mul_u32_u24 v4, {43*KB}, v4')
        a('v_lshl_add_u32 v252, v5, 7, v4')
        p.touch = ['s_mov_b64 exec, 0xffff', f'buffer_load_dword v254, v252, {S4(SRD_W)}, s7 offen sc1', 's_mov_b64 exec, -1']
    for i in range(4): a(f'v_mov_b32 v{ONES+i}, 0x3f803f80')
    for r in range(64, 152 if first else 112): a(f'v_mov_b32 v{r}, 0')
    if first and OPT.get('lateinit', 1):
        a('s_cmp_eq_u32 s3, 1')
        a('s_cbranch_scc0 L_noif')
        a('s_cmp_lt_u32 s2, 16')
        a('s_cbranch_scc0 L_noif')
        a.begin_opt()
        init_flag(a)
        a.end_opt()
        a.label('L_noif')
        a.vm = []
    if first and OPT.get('pretouch', 65) & 16:
        a('v_lshlrev_b32 v22, 7, v1')
        p.touch = ['LATE']

    def fx(s, t): return FR + 32 * s + 4 * t
    def fw(s, q, u): return FR + 32 * s + 8 + 4 * (2 * q + u)

    def reads(s, kk):
        l = [rd128(fx(s, 0), vX, kk * p.sA), rd128(fx(s, 1), vX, kk * p.sA + KB)]
        for q in range(3):
            for u in range(2):
                for h in range(2):
                    l.append(rdtr(fw(s, q, u) + 2 * h, vW1 if u else vW0, kk * p.sB + (2 * q + h) * KB))
        return l

    def mfmas(s):
        l = []
        if first:
            for t in range(2):
                l.append(f'{MF} {R(SS+4*t)}, {R(ONES)}, {R(fx(s,t))}, {R(SS+4*t)}')
                l.append(f'{MF} {R(SG+4*t)}, {R(fx(s,t))}, {R(fx(s,t))}, {R(SG+4*t)}')
        for u in range(2):
            for t in range(2):
                d = ACQ + 8 * t + 4 * u
                l.append(f'{MF} {R(d)}, {R(fw(s,0,u))}, {R(fx(s,t))}, {R(d)}')
            if first:
                l.append(f'{MF} {R(CS+4*u)}, {R(fw(s,0,u))}, {R(ONES)}, {R(CS+4*u)}')
        for q, AC in ((1, ACK), (2, ACV)):
            for u in range(2):
                for t in range(2):
                    d = AC + 8 * u + 4 * t
                    l.append(f'{MF} {R(d)}, {R(fx(s,t))}, {R(fw(s,q,u))}, {R(d)}')
                if first:
                    l.append(f'{MF} {R(CS+8*q+4*u)}, {R(ONES)}, {R(fw(s,q,u))}, {R(CS+8*q+4*u)}')
        return l

    loop_big(a, p, fixed, cur, reads, mfmas, per=1 if first else 2)
    MEAN, RSTD = 32, 34
    MT, RT_, RTL = 36, 44, 52
    a('s_lshl_b32 s4, s3, 7')
    a(f's_add_u32 s4, s4, {STB}')
    a(f'v_lshl_add_u32 v6, v3, 2, s4')
    a(f'v_lshl_add_u32 v7, v2, 4, s4')
    if first:
        a('v_and_b32 v4, 3, v3')
        a('v_cmp_eq_u32 s[52:53], 1, v4')
        a('v_cmp_eq_u32 s[54:55], 2, v4')
        a('v_cmp_eq_u32 s[56:57], 3, v4')
        a('v_lshrrev_b32 v4, 2, v3')
        a('v_cmp_eq_u32 vcc, v4, v2')
        for t in range(2):
            a(f'v_cndmask_b32 v{SG+4*t}, v{SG+4*t}, v{SG+4*t+1}, s[52:53]')
            a(f'v_cndmask_b32 v{SG+4*t}, v{SG+4*t}, v{SG+4*t+2}, s[54:55]')
            a(f'v_cndmask_b32 v{SG+4*t}, v{SG+4*t}, v{SG+4*t+3}, s[56:57]')
        for t in range(2):
            stats_finish(a, SS + 4 * t, SG + 4 * t, MEAN + t, RSTD + t, 4 + t)
        a('s_mov_b64 exec, vcc')
        for t in range(2):
            a(f'ds_write_b32 v6, v{MEAN+t} offset:{64*t}')
            a(f'ds_write_b32 v6, v{RSTD+t} offset:{512+64*t}')
        a('s_mov_b64 exec, -1')
        for u in range(2):
            a(f'ds_write_b128 v14, {R(CS+4*u)} offset:{64*u}')
            a(f'ds_write_b32 v15, v{CS+8+4*u} offset:{128+64*u}')
            a(f'ds_write_b32 v15, v{CS+16+4*u} offset:{256+64*u}')
        a('s_waitcnt lgkmcnt(0)')
    else:
        for u in range(2):
            a(f'ds_read_b32 v{CS+8+4*u}, v15 offset:{128+64*u}')
            a(f'ds_read_b32 v{CS+16+4*u}, v15 offset:{256+64*u}')
    for t in range(2):
        a(f'ds_read_b128 {R(MT+4*t)}, v7 offset:{64*t}')
        a(f'ds_read_b128 {R(RT_+4*t)}, v7 offset:{512+64*t}')
    for t in range(2):
        a(f'ds_read_b32 v{MEAN+t}, v6 offset:{64*t}')
        a(f'ds_read_b32 v{RSTD+t}, v6 offset:{512+64*t}')
    if not first:
        for u in range(2):
            a(f'ds_read_b128 {R(CS+4*u)}, v14 offset:{64*u}')
    CONE, CEPS, CL2E = 60, 61, 62
    a(f'v_mov_b32 v{CONE}, 1.0')
    a(f'v_mov_b32 v{CEPS}, {hex(f2u(1e-6))}')
    a(f'v_mov_b32 v{CL2E}, {hex(f2u(LOG2E))}')
    RFL = 24
    for i in range(0, 8, 2):
        a(pk('v_pk_mul_f32', RTL + i, RT_ + i, CL2E, b1=0))
    T = FR

    def phi_pairs(items):
        for i, (ac, m, cs, r, rl, dst) in enumerate(items):
            a(pk('v_pk_fma_f32', ac, m[0], cs[0], ac, b0=m[1], b1=cs[1], neg0=True))
        for i, (ac, m, cs, r, rl, dst) in enumerate(items):
            a(pk('v_pk_mul_f32', T + 2 * i, ac, rl[0], b1=rl[1]))
        for i, (ac, m, cs, r, rl, dst) in enumerate(items):
            a(f'v_exp_f32 v{T+2*i}, v{T+2*i} clamp')
            a(f'v_exp_f32 v{T+2*i+1}, v{T+2*i+1} clamp')
            a(pk('v_pk_fma_f32', ac, ac, r[0], CONE, b1=r[1], b2=0))
        for i, (ac, m, cs, r, rl, dst) in enumerate(items):
            a(f'v_max_f32 v{ac}, v{ac}, v{T+2*i}')
            a(f'v_max_f32 v{ac+1}, v{ac+1}, v{T+2*i+1}')
        for i, (ac, m, cs, r, rl, dst) in enumerate(items):
            a(pk('v_pk_add_f32', ac, ac, CEPS, b1=0))
        for i, (ac, m, cs, r, rl, dst) in enumerate(items):
            a(f'v_cvt_pk_bf16_f32 v{dst}, v{ac}, v{ac+1}')

    PK_, PV, PQ = FR + 16, FR + 24, FR + 32
    items = []
    for u in range(2):
        for t in range(2):
            for hh in range(2):
                items.append((ACK + 8 * u + 4 * t + 2 * hh, (MT + 4 * t + 2 * hh, None), (CS + 8 + 4 * u, 0),
                              (RT_ + 4 * t + 2 * hh, None), (RTL + 4 * t + 2 * hh, None), PK_ + 4 * u + 2 * t + hh))
    phi_pairs(items)
    vi = [(u, t, hh) for u in range(2) for t in range(2) for hh in range(2)]
    for u, t, hh in vi:
        ac = ACV + 8 * u + 4 * t + 2 * hh
        a(pk('v_pk_fma_f32', ac, MT + 4 * t + 2 * hh, CS + 16 + 4 * u, ac, b1=0, neg0=True))
    for u, t, hh in vi:
        ac = ACV + 8 * u + 4 * t + 2 * hh
        a(pk('v_pk_mul_f32', ac, ac, RT_ + 4 * t + 2 * hh))
    for u, t, hh in vi:
        ac = ACV + 8 * u + 4 * t + 2 * hh
        a(f'v_cvt_pk_bf16_f32 v{PV+4*u+2*t+hh}, v{ac}, v{ac+1}')
    KD, ZD = FR + 40, FR + 48
    for u in range(2):
        a(f'{MF} {R(KD+4*u)}, {R(PK_+4*u)}, {R(PV+4*u)}, 0')
        a(f'{MF} {R(ZD+4*u)}, {R(PK_+4*u)}, {R(ONES)}, 0')
    for t in range(2):
        a(f'v_mul_f32 v{RFL+t}, v{CL2E}, v{RSTD+t}')
    a('s_lshl_b32 s4, s3, 11')
    a(f's_add_u32 s4, s4, {SCR}')
    a(f'v_lshl_add_u32 v6, v1, 4, s4')
    a('s_lshl_b32 s4, s3, 7')
    a(f's_add_u32 s4, s4, {ZB}')
    a(f'v_lshl_add_u32 v7, v2, 4, s4')
    for u in range(2):
        a(f'ds_write_b128 v6, {R(KD+4*u)} offset:{u*KB}')
    a('s_mov_b32 exec_lo, 0x00010001')
    a('s_mov_b32 exec_hi, 0x00010001')
    for u in range(2):
        a(f'ds_write_b128 v7, {R(ZD+4*u)} offset:{u*64}')
    a('s_mov_b64 exec, -1')
    a('s_lshl_b32 s4, s3, 9')
    a(f's_add_u32 s4, s4, {SCR}')
    a(f'v_lshl_add_u32 v6, v1, 2, s4')
    a(f'v_and_b32 v7, 31, v1')
    a(f'v_lshlrev_b32 v7, 2, v7')
    a(f'v_add_u32 v7, {ZB}, v7')
    if first:
        a('s_cmp_eq_u32 s3, 0')
        a(f's_cbranch_scc0 L_go_{name}')
        sv = list(a.lds)
        poll(a, 'init', vT, 1, vDb, f'{S4(SRD_M)}, 0', 0xffff)
        a.label(f'L_go_{name}')
    a('s_waitcnt lgkmcnt(0)')
    a('s_barrier')
    RD = FR + 40
    for i in range(2):
        for w in range(4):
            a(f'ds_read_b32 v{RD+4*i+w}, v6 offset:{w*2048+i*256}')
    for w in range(4):
        a(f'ds_read_b32 v{RD+8+w}, v7 offset:{w*128}')
    items = []
    for t in range(2):
        for u in range(2):
            for hh in range(2):
                items.append((ACQ + 8 * t + 4 * u + 2 * hh, (MEAN + t, 0), (CS + 4 * u + 2 * hh, None),
                              (RSTD + t, 0), (RFL + t, 0), PQ + 4 * t + 2 * u + hh))
    for i in range(3):
        a(f'v_add_f32 v{RD+4*i}, v{RD+4*i}, v{RD+4*i+1}')
        a(f'v_add_f32 v{RD+4*i+2}, v{RD+4*i+2}, v{RD+4*i+3}')
    for i in range(3):
        a(f'v_add_f32 v{RD+4*i}, v{RD+4*i}, v{RD+4*i+2}')
    for i in range(2):
        a(f'buffer_atomic_add_f32 v{RD+4*i}, v{vKVa}, {S4(SRD_W)}, 0 offen offset:{i*256}')
    a('s_cmp_eq_u32 s3, 0')
    a(f's_cbranch_scc0 L_nz_{name}')
    a.begin_opt()
    a('s_mov_b32 exec_hi, 0')
    a(f'buffer_atomic_add_f32 v{RD+8}, v{vZa}, {S4(SRD_W)}, 0 offen')
    a('s_mov_b64 exec, -1')
    a.end_opt()
    a.label(f'L_nz_{name}')
    a.vm = []
    phi_pairs(items[:4])
    a(f's_add_u32 s5, s7, {43*KB}')
    a('v_lshlrev_b32 v6, 4, v1')
    a(f'buffer_store_dwordx4 {R(PQ)}, v6, {S4(SRD_W)}, s7 offen {stmod()}')
    phi_pairs(items[4:])
    a(f'buffer_store_dwordx4 {R(PQ+4)}, v6, {S4(SRD_W)}, s5 offen {stmod()}')
    end_phase(a, p)


def comp_s1q(a, p):
    name = p.name; L = p.L
    STB = p.STB
    ZB = SCR + 8 * KB
    CSX = RA0
    first = (L == 0)
    KVB = WS_KV + L * 65536
    ONES = 24
    MEAN, RSTD = 28, 26 + 64 + 4
    ACK, ACV, BF = 32, 48, 64
    SS, SG, CS = 96, 104, 112
    AF = 128
    vKVa, vZa, vT, vDb = 17, 18, 20, 21
    phase_map(a, p)
    a('s_lshl_b32 s4, s3, 11')
    a(f's_add_u32 s4, s4, {RA0}')
    xbase(a, 8, 4, p.amode)
    wpat(a, 9, 10)
    a(f'v_add_u32 v11, {48*KB}, v9')
    a(f'v_add_u32 v12, {48*KB}, v10')
    a('s_lshl_b32 s10, s13, 11')
    a(f's_add_u32 s10, s10, {KVB}')
    a('s_lshl_b32 s6, s3, 9')
    a('s_add_u32 s5, s10, s6')
    a(f'v_lshl_add_u32 v{vKVa}, v1, 2, s5')
    a('s_lshl_b32 s11, s13, 7')
    a(f's_add_u32 s11, s11, {KVB + 32768}')
    a(f'v_lshl_add_u32 v{vZa}, v1, 2, s11')
    a('v_lshlrev_b32 v14, 4, v2')
    a(f'v_add_u32 v14, {CS1L}, v14')
    a('v_lshlrev_b32 v15, 2, v3')
    a(f'v_add_u32 v15, {CS1L}, v15')
    if first:
        a('v_lshrrev_b32 v4, 1, v1')
        a('v_and_b32 v5, 1, v1')
        a('v_lshlrev_b32 v4, 5, v4')
        a('v_lshl_add_u32 v4, v5, 2, v4')
        a(f'v_add_u32 v{vDb}, 4, v4')
    a('s_lshl_b32 s7, s12, 3')
    a('s_lshl_b32 s5, s3, 1')
    a('s_add_u32 s7, s7, s5')
    a('s_mul_i32 s7, s7, 43')
    a('s_add_u32 s7, s7, s13')
    a('s_lshl_b32 s7, s7, 10')
    a(f's_add_u32 s7, s7, {WS_PQ[L]}')
    for i in range(4): a(f'v_mov_b32 v{ONES+i}, 0x3f803f80')
    if first:
        for r in range(CS, CS + 16): a(f'v_mov_b32 v{r}, 0')
        a('s_cmp_eq_u32 s3, 1')
        a('s_cbranch_scc0 L_noif')
        a('s_cmp_lt_u32 s2, 16')
        a('s_cbranch_scc0 L_noif')
        a.begin_opt()
        init_flag(a)
        a.end_opt()
        a.label('L_noif')
        a.vm = []

    def af(ks, t): return AF + 8 * ks + 4 * t
    def fw(ks, q, u): return BF + 16 * (ks & 1) + 8 * q + 4 * u
    def wr(dst, u, pos):
        pos %= RB_SZ
        return rdtr(dst, (9 + u) if pos < 48 * KB else (11 + u), pos if pos < 48 * KB else pos - 48 * KB)

    def reads(ks):
        oa = ((ks >> 1) % 3) * p.cA + (ks & 1) * p.sA
        l = [rd128(af(ks, 0), 8, oa)]
        for q in range(2):
            for u in range(2):
                for h in range(2):
                    l.append(wr(fw(ks, q, u) + 2 * h, u, p.b0 + ks * 4 * KB + (2 * q + h) * KB))
                if q == 0 and u == 0: l.append(rd128(af(ks, 1), 8, oa + KB))
        return l

    def mfmas(ks):
        l = []
        def c(d): return R(d) if ks else '0'
        for q, AC in ((0, ACK), (1, ACV)):
            for u in range(2):
                for t in range(2):
                    d = AC + 8 * u + 4 * t
                    l.append(f'{MF} {R(d)}, {R(af(ks,t))}, {R(fw(ks,q,u))}, {c(d)}')
            if first:
                t = q
                l.append(f'{MF} {R(SS+4*t)}, {R(ONES)}, {R(af(ks,t))}, {c(SS+4*t)}')
                l.append(f'{MF} {R(SG+4*t)}, {R(af(ks,t))}, {R(af(ks,t))}, {c(SG+4*t)}')
        if first:
            def csblk():
                lab = f'L_cs{ks}_{name}'
                a(f's_cmp_eq_u32 s3, {ks & 3}')
                a(f's_cbranch_scc0 {lab}')
                a.begin_opt()
                for q in range(2):
                    for u in range(2):
                        d = CS + 8 * q + 4 * u
                        a(f'{MF} {R(d)}, {R(ONES)}, {R(fw(ks,q,u))}, {R(d)}')
                a.end_opt()
                a.label(lab)
            if OPT.get('cs1full', 0):
                for q in range(2):
                    for u in range(2):
                        d = CS + 8 * q + 4 * u
                        l.append(f'{MF} {R(d)}, {R(ONES)}, {R(fw(ks,q,u))}, {R(d)}')
            else: l.append(csblk)
        return l

    ts(a, name + '.preP0')
    a('s_barrier')
    ts(a, name + '.P0')
    for t in reads(0): a(t)
    per = 1 if first else 2
    for c in range(8):
        interleave(a, mfmas(2 * c), reads(2 * c + 1), per=per)
        a.wait_lds_all()
        tsl(a, p, 'pre')
        a('s_barrier')
        tsl(a, p, 'post')
        interleave(a, mfmas(2 * c + 1), reads(2 * c + 2) if c < 7 else [], per=per)
    ts(a, name + '.loopend')
    MT, RT_, RTL = 64, 72, 80
    CONE, CEPS, CL2E = 88, 89, 90
    RFL = 92
    T = 96
    CK = [CS, CS + 4]; CV = [CS + 8, CS + 12]
    a('s_lshl_b32 s4, s3, 7')
    a(f's_add_u32 s4, s4, {STB}')
    a(f'v_lshl_add_u32 v6, v3, 2, s4')
    a(f'v_lshl_add_u32 v7, v2, 4, s4')
    if first:
        a('s_lshl_b32 s5, s3, 2')
        a(f's_add_u32 s5, s5, {CSX}')
        a('v_lshl_add_u32 v13, v3, 4, s5')
        a('v_and_b32 v4, 3, v3')
        a('v_cmp_eq_u32 s[52:53], 1, v4')
        a('v_cmp_eq_u32 s[54:55], 2, v4')
        a('v_cmp_eq_u32 s[56:57], 3, v4')
        a('v_lshrrev_b32 v4, 2, v3')
        a('v_cmp_eq_u32 vcc, v4, v2')
        for i in range(0 if OPT.get('cs1full', 0) else 4):
            a(f'ds_write_b32 v13, v{CS+4*i} offset:{256*i}')
        for t in range(2):
            a(f'v_cndmask_b32 v{SG+4*t}, v{SG+4*t}, v{SG+4*t+1}, s[52:53]')
            a(f'v_cndmask_b32 v{SG+4*t}, v{SG+4*t}, v{SG+4*t+2}, s[54:55]')
            a(f'v_cndmask_b32 v{SG+4*t}, v{SG+4*t}, v{SG+4*t+3}, s[56:57]')
        for t in range(2):
            stats_finish(a, SS + 4 * t, SG + 4 * t, MEAN + t, RSTD + t, 4 + t)
        a('s_mov_b64 exec, vcc')
        for t in range(2):
            a(f'ds_write_b32 v6, v{MEAN+t} offset:{64*t}')
            a(f'ds_write_b32 v6, v{RSTD+t} offset:{512+64*t}')
        a('s_mov_b64 exec, -1')
        a('v_lshlrev_b32 v13, 4, v3')
        a(f'v_add_u32 v13, {CSX}, v13')
        a('s_waitcnt lgkmcnt(0)')
        if not OPT.get('cs1full', 0):
            a('s_barrier')
            for i in range(4):
                a(f'ds_read_b128 {R(CS+4*i)}, v13 offset:{256*i}')
    else:
        for u in range(2):
            a(f'ds_read_b32 v{CK[u]}, v15 offset:{128+64*u}')
            a(f'ds_read_b32 v{CV[u]}, v15 offset:{256+64*u}')
    for t in range(2):
        a(f'ds_read_b128 {R(MT+4*t)}, v7 offset:{64*t}')
        a(f'ds_read_b128 {R(RT_+4*t)}, v7 offset:{512+64*t}')
    for t in range(2):
        a(f'ds_read_b32 v{MEAN+t}, v6 offset:{64*t}')
        a(f'ds_read_b32 v{RSTD+t}, v6 offset:{512+64*t}')
    a(f'v_mov_b32 v{CONE}, 1.0')
    a(f'v_mov_b32 v{CEPS}, {hex(f2u(1e-6))}')
    a(f'v_mov_b32 v{CL2E}, {hex(f2u(LOG2E))}')
    if first:
        for i in range(0 if OPT.get('cs1full', 0) else 4):
            a(pk('v_pk_add_f32', CS + 4 * i, CS + 4 * i, CS + 4 * i + 2))
        for i in range(0 if OPT.get('cs1full', 0) else 4):
            a(f'v_add_f32 v{CS+4*i}, v{CS+4*i}, v{CS+4*i+1}')
        for u in range(2):
            a(f'ds_write_b32 v15, v{CK[u]} offset:{128+64*u}')
            a(f'ds_write_b32 v15, v{CV[u]} offset:{256+64*u}')
    for i in range(0, 8, 2):
        a(pk('v_pk_mul_f32', RTL + i, RT_ + i, CL2E, b1=0))

    def phi_pairs(items, T):
        for i, (ac, m, cs, r, rl, dst) in enumerate(items):
            a(pk('v_pk_fma_f32', ac, m[0], cs[0], ac, b0=m[1], b1=cs[1], neg0=True))
        for i, (ac, m, cs, r, rl, dst) in enumerate(items):
            a(pk('v_pk_mul_f32', T + 2 * i, ac, rl[0], b1=rl[1]))
        for i, (ac, m, cs, r, rl, dst) in enumerate(items):
            a(f'v_exp_f32 v{T+2*i}, v{T+2*i} clamp')
            a(f'v_exp_f32 v{T+2*i+1}, v{T+2*i+1} clamp')
            a(pk('v_pk_fma_f32', ac, ac, r[0], CONE, b1=r[1], b2=0))
        for i, (ac, m, cs, r, rl, dst) in enumerate(items):
            a(f'v_max_f32 v{ac}, v{ac}, v{T+2*i}')
            a(f'v_max_f32 v{ac+1}, v{ac+1}, v{T+2*i+1}')
        for i, (ac, m, cs, r, rl, dst) in enumerate(items):
            a(pk('v_pk_add_f32', ac, ac, CEPS, b1=0))
        for i, (ac, m, cs, r, rl, dst) in enumerate(items):
            a(f'v_cvt_pk_bf16_f32 v{dst}, v{ac}, v{ac+1}')

    PK_, PV = ACK, ACV
    vi = [(u, t, hh) for u in range(2) for t in range(2) for hh in range(2)]
    phi_pairs([(ACK + 8 * u + 4 * t + 2 * hh, (MT + 4 * t + 2 * hh, None), (CK[u], 0), (RT_ + 4 * t + 2 * hh, None),
                (RTL + 4 * t + 2 * hh, None), PK_ + 4 * u + 2 * t + hh) for u, t, hh in vi], T)
    for u, t, hh in vi:
        ac = ACV + 8 * u + 4 * t + 2 * hh
        a(pk('v_pk_fma_f32', ac, MT + 4 * t + 2 * hh, CV[u], ac, b1=0, neg0=True))
    for u, t, hh in vi:
        ac = ACV + 8 * u + 4 * t + 2 * hh
        a(pk('v_pk_mul_f32', ac, ac, RT_ + 4 * t + 2 * hh))
    for u, t, hh in vi:
        ac = ACV + 8 * u + 4 * t + 2 * hh
        a(f'v_cvt_pk_bf16_f32 v{PV+4*u+2*t+hh}, v{ac}, v{ac+1}')
    KD, ZD = T, T + 8
    for u in range(2):
        a(f'{MF} {R(KD+4*u)}, {R(PK_+4*u)}, {R(PV+4*u)}, 0')
        a(f'{MF} {R(ZD+4*u)}, {R(PK_+4*u)}, {R(ONES)}, 0')
    for t in range(2):
        a(f'v_mul_f32 v{RFL+t}, v{CL2E}, v{RSTD+t}')
    a('s_lshl_b32 s4, s3, 11')
    a(f's_add_u32 s4, s4, {SCR}')
    a(f'v_lshl_add_u32 v6, v1, 4, s4')
    a('s_lshl_b32 s4, s3, 7')
    a(f's_add_u32 s4, s4, {ZB}')
    a(f'v_lshl_add_u32 v7, v2, 4, s4')
    for u in range(2):
        a(f'ds_write_b128 v6, {R(KD+4*u)} offset:{u*KB}')
    a('s_mov_b32 exec_lo, 0x00010001')
    a('s_mov_b32 exec_hi, 0x00010001')
    for u in range(2):
        a(f'ds_write_b128 v7, {R(ZD+4*u)} offset:{u*64}')
    a('s_mov_b64 exec, -1')
    a('s_lshl_b32 s4, s3, 9')
    a(f's_add_u32 s4, s4, {SCR}')
    a(f'v_lshl_add_u32 v6, v1, 2, s4')
    a(f'v_and_b32 v7, 31, v1')
    a(f'v_lshlrev_b32 v7, 2, v7')
    a(f'v_add_u32 v7, {ZB}, v7')
    a('s_waitcnt lgkmcnt(0)')
    a('s_barrier')
    RD = 112
    for i in range(2):
        for w in range(4):
            a(f'ds_read_b32 v{RD+4*i+w}, v6 offset:{w*2048+i*256}')
    for w in range(4):
        a(f'ds_read_b32 v{RD+8+w}, v7 offset:{w*128}')
    for i in range(3):
        a(f'v_add_f32 v{RD+4*i}, v{RD+4*i}, v{RD+4*i+1}')
        a(f'v_add_f32 v{RD+4*i+2}, v{RD+4*i+2}, v{RD+4*i+3}')
    for i in range(3):
        a(f'v_add_f32 v{RD+4*i}, v{RD+4*i}, v{RD+4*i+2}')
    for i in range(2):
        a(f'buffer_atomic_add_f32 v{RD+4*i}, v{vKVa}, {S4(SRD_W)}, 0 offen offset:{i*256}')
    a('s_cmp_eq_u32 s3, 0')
    a(f's_cbranch_scc0 L_nz_{name}')
    a.begin_opt()
    a('s_mov_b32 exec_hi, 0')
    a(f'buffer_atomic_add_f32 v{RD+8}, v{vZa}, {S4(SRD_W)}, 0 offen')
    a('s_mov_b64 exec, -1')
    a.end_opt()
    a.label(f'L_nz_{name}')
    end_phase(a, p)
    ACQ, CQ = 32, 96
    def fq(ks, u): return BF + 8 * (ks & 1) + 4 * u
    def qreads(ks):
        return [wr(fq(ks, u) + 2 * h, u, p.b0q + ks * 2 * KB + h * KB) for u in range(2) for h in range(2)]
    def qm(ks):
        l = []
        def c(d): return R(d) if ks else '0'
        for u in range(2):
            for t in range(2):
                d = ACQ + 8 * t + 4 * u
                l.append(f'{MF} {R(d)}, {R(fq(ks,u))}, {R(af(ks,t))}, {c(d)}')
            if first: l.append(f'{MF} {R(CQ+4*u)}, {R(fq(ks,u))}, {R(ONES)}, {c(CQ+4*u)}')
        return l
    for t in qreads(0): a(t)
    if not first:
        for u in range(2):
            a(f'ds_read_b128 {R(CQ+4*u)}, v14 offset:{64*u}')
    for ks in range(16):
        interleave(a, qm(ks), qreads(ks + 1) if ks < 15 else [], per=1)
    if first:
        for u in range(2):
            a(f'ds_write_b128 v14, {R(CQ+4*u)} offset:{64*u}')
    PQ = ACQ
    phi_pairs([(ACQ + 8 * t + 4 * u + 2 * hh, (MEAN + t, 0), (CQ + 4 * u + 2 * hh, None), (RSTD + t, 0), (RFL + t, 0),
                PQ + 4 * t + 2 * u + hh) for t in range(2) for u in range(2) for hh in range(2)], 64)
    KVF, ZF, EPS4, N, OF = 128, 136, 140, 144, 176
    a('v_lshlrev_b32 v6, 4, v1')
    a('v_and_b32 v4, 1, v1')
    a('v_cmp_eq_u32 vcc, 1, v4')
    a('v_lshlrev_b32 v4, 6, v4')
    a('v_lshl_add_u32 v7, v2, 4, v4')
    for i in range(4): a(f'v_mov_b32 v{EPS4+i}, {hex(f2u(1e-6))}')
    a(f's_add_u32 s5, s7, {43*KB}')
    a.wait_lds_all()
    ts(a, name + '.preF')
    a('s_barrier')
    ts(a, name + '.F')
    a(f'buffer_load_dwordx4 {R(ZF)}, v7, {S4(SRD_W)}, s11 offen')
    for u in range(2):
        a(f'buffer_load_dwordx4 {R(KVF+4*u)}, v6, {S4(SRD_W)}, s10 offen offset:{u*KB}')
    a(f'v_cvt_pk_bf16_f32 v4, v{ZF}, v{ZF+1}')
    a(f'v_cvt_pk_bf16_f32 v5, v{ZF+2}, v{ZF+3}')
    a(f'v_cndmask_b32 v{ZF}, v4, 0, vcc')
    a(f'v_cndmask_b32 v{ZF+1}, v5, 0, vcc')
    a(f'v_cndmask_b32 v{ZF+2}, 0, v4, vcc')
    a(f'v_cndmask_b32 v{ZF+3}, 0, v5, vcc')
    for t in range(2):
        a(f'{MF} {R(N+12*t+8)}, {R(ZF)}, {R(PQ+4*t)}, {R(EPS4)}')
    for i in range(4):
        a(f'v_cvt_pk_bf16_f32 v{KVF+i}, v{KVF+2*i}, v{KVF+2*i+1}')
    for t in range(2):
        for u in range(2):
            a(f'{MF16} {R(N+12*t+4*u)}, {R(KVF+2*u,2)}, {R(PQ+4*t+2*u,2)}, 0')
    for t in range(2):
        dn = N + 12 * t + 8
        a(f'v_rcp_f32 v{dn}, v{dn}')
        a(f'v_rcp_f32 v{dn+1}, v{dn+1}')
    for t in range(2):
        n = N + 12 * t; o = OF + 4 * t; dn = n + 8
        for i in range(4): a(pk('v_pk_mul_f32', n + 2 * i, n + 2 * i, dn + (i >> 1), b1=0))
        for i in range(4): a(f'v_cvt_pk_bf16_f32 v{o+i}, v{n+2*i}, v{n+2*i+1}')
        a(f'buffer_store_dwordx4 {R(o)}, v6, {S4(SRD_W)}, s{5 if t else 7} offen {stmod()}')
    ts(a, name + '.o')
    a('s_waitcnt vmcnt(0)')
    ts(a, name + '.ovm')
    a('s_barrier')
    a.vm = []


def comp_s24(a, p):
    name = p.name; L = p.L
    att = (p.ph == 2)
    KVL, ZL, OUTL = 136 * KB, 152 * KB, SCR
    final = p.final
    res_rowmajor = (att and L == 0)
    res_off = (WS_X2 if att else WS_X1[L])
    out_off = (WS_X1[L] if att else WS_X2)
    st_off = WS_ST1[L] if att else WS_ST2
    ACC = 32
    FR = 48
    SETSZ = 56
    N = 160
    OF = 184
    EPS4, ONES = 192, 196
    RES = 24
    KVT = 200
    fixed = [8, 9, 10]; cur = [11, 12, 13]
    vX, vW0, vW1 = cur
    vKV, vZ = 14, 15
    phase_map(a, p)
    a('s_lshl_b32 s15, s12, 2')
    a('s_add_u32 s15, s15, s3')
    a('v_lshlrev_b32 v16, 4, v1')
    a('s_lshl_b32 s6, s15, 4')
    a('s_lshl_b32 s5, s13, 1')
    a('s_add_u32 s6, s6, s5')
    a('s_lshl_b32 s6, s6, 10')
    a(f's_add_u32 s7, s6, {res_off}')
    a(f's_add_u32 s6, s6, {out_off}')
    a('s_lshl_b32 s8, s15, 14')
    a('s_lshl_b32 s5, s13, 7')
    a('s_add_u32 s8, s8, s5')
    if final: srd(a, SRD_M, S_PTR + 14, 2048 * 1024)
    if res_rowmajor:
        a('v_lshlrev_b32 v4, 10, v3')
        a('v_lshl_add_u32 v17, v2, 3, v4')
        for T in range(4):
            a(f'buffer_load_dwordx2 {R(RES+2*T,2)}, v17, {S4(SRD_A)}, s8 offen offset:{32*T}')
    else:
        for i in range(2):
            a(f'buffer_load_dwordx4 {R(RES+4*i)}, v16, {S4(SRD_W)}, s7 offen offset:{i*KB}')
    if OPT.get('otouch', 0) and not final:
        a('v_lshlrev_b32 v252, 7, v1')
        p.touch = ['s_lshl_b32 s4, s15, 10', f's_add_u32 s4, s4, {st_off}', 's_mov_b64 exec, 0xffff',
                   f'buffer_load_dword v254, v252, {S4(SRD_W)}, s6 offen sc1', 's_mov_b64 exec, 0xff',
                   f'buffer_load_dword v253, v252, {S4(SRD_W)}, s4 offen sc1', 's_mov_b64 exec, -1']
    a('s_lshl_b32 s4, s3, 10')
    a(f's_add_u32 s4, s4, {RA0}')
    xbase(a, 8, 4, 'F')
    wpat(a, 9, 10)
    for i in range(4): a(f'v_mov_b32 v{ONES+i}, 0x3f803f80')
    if att:
        KVB = WS_KV + L * 65536
        a('v_and_b32 v18, 31, v1')
        a('s_lshl_b32 s11, s3, 9')
        a(f's_add_u32 s11, s11, {KVB + 32768}')
        a('v_lshlrev_b32 v18, 4, v18')
        for i in range(4): a(f'v_mov_b32 v{EPS4+i}, {hex(f2u(1e-6))}')
        a(f'v_add_u32 v{vKV}, {KVL}, v16')
        a(f'v_and_b32 v4, 1, v1')
        a(f'v_lshl_add_u32 v4, v2, 1, v4')
        a(f'v_lshlrev_b32 v4, 4, v4')
        a(f'v_add_u32 v{vZ}, {ZL}, v4')
        a('v_bfe_u32 v5, v1, 2, 1')
        a('v_cmp_eq_u32 vcc, 1, v5')
        a('v_bfe_u32 v6, v1, 3, 2')
        a('s_lshl_b32 s10, s3, 2')
        a('s_add_u32 s10, s10, 16')
        a('s_sub_u32 s10, s10, s14')
        a('v_add_u32 v6, s10, v6')
        a('v_and_b32 v6, 15, v6')
        a('v_lshlrev_b32 v6, 7, v6')
        a('v_and_b32 v7, 3, v1')
        a('v_lshl_add_u32 v7, v7, 1, v5')
        a('v_lshl_add_u32 v6, v7, 4, v6')
        a(f'v_add_u32 v6, {ZL}, v6')
        a('s_lshl_b32 s4, s3, 13')
        a(f's_add_u32 s4, s4, {KVB}')
        a(f's_add_u32 s5, s4, 4096')
    for T in range(4):
        for hh in range(2):
            a(f'v_lshlrev_b32 v{ACC+4*T+2*hh}, 16, v{RES+2*T+hh}')
            a(f'v_and_b32 v{ACC+4*T+2*hh+1}, 0xffff0000, v{RES+2*T+hh}')
    if att:
        ts(a, name + '.preF')
        a('s_barrier')
        ts(a, name + '.F')
        for i in range(8):
            a(f'buffer_load_dwordx4 {R(KVT+4*i)}, v16, {S4(SRD_W)}, s{4+i//4} offen offset:{(i%4)*KB}')
        a(f'buffer_load_dwordx4 {R(N)}, v18, {S4(SRD_W)}, s11 offen')
        for i in range(4):
            for hh in range(2):
                src = KVT + 8 * i + 4 * hh
                a(f'v_cvt_pk_bf16_f32 v{KVT+8*i+2*hh}, v{src}, v{src+1}')
                a(f'v_cvt_pk_bf16_f32 v{KVT+8*i+2*hh+1}, v{src+2}, v{src+3}')
            a(f's_add_u32 s5, s10, {i}')
            a('s_and_b32 s5, s5, 15')
            a('s_lshl_b32 s5, s5, 10')
            a(f'v_add_u32 v4, s5, v{vKV}')
            a(f'ds_write_b128 v4, {R(KVT+8*i)}')
        a(f'v_cvt_pk_bf16_f32 v{N+4}, v{N}, v{N+1}')
        a(f'v_cvt_pk_bf16_f32 v{N+5}, v{N+2}, v{N+3}')
        a(f'v_cndmask_b32 v{N+8}, v{N+4}, 0, vcc')
        a(f'v_cndmask_b32 v{N+9}, v{N+5}, 0, vcc')
        a(f'v_cndmask_b32 v{N+10}, 0, v{N+4}, vcc')
        a(f'v_cndmask_b32 v{N+11}, 0, v{N+5}, vcc')
        a(f'ds_write_b128 v6, {R(N+8)}')

    def fx(s, kk): return FR + SETSZ * s + 4 * kk
    def fkv(s, kk): return FR + SETSZ * s + 8 + 4 * kk
    def fz(s, kk): return FR + SETSZ * s + 16 + 4 * kk
    def fw(s, kk, T): return FR + SETSZ * s + 24 + 16 * kk + 4 * T

    def reads(s):
        l = []
        for kk in range(2):
            l.append(rd128(fx(s, kk), vX, kk * p.sA))
            if att:
                l.append(rd128(fz(s, kk), vZ, kk * 128))
                l.append(rd128(fkv(s, kk), vKV, kk * KB))
        for kk in range(2):
            for T in range(4):
                q, u = T >> 1, T & 1
                for h in range(2):
                    l.append(rdtr(fw(s, kk, T) + 2 * h, vW1 if u else vW0, kk * p.sB + (2 * q + h) * KB))
        return l

    def adv():
        advance(a, p, fixed, cur)
        if att:
            a(f'v_add_u32 v{vKV}, {2*KB}, v{vKV}')
            a(f'v_add_u32 v{vZ}, 256, v{vZ}')

    def mainm(s, kk, xf):
        return [f'{MF} {R(ACC+4*T)}, {R(fw(s,kk,T))}, {R(xf)}, {R(ACC+4*T)}' for T in range(4)]

    def amf(s, kk):
        x, kv, z = fx(s, kk), fkv(s, kk), fz(s, kk)
        n = N + 12 * kk
        return [f'{MF} {R(n+8)}, {R(z)}, {R(x)}, {R(EPS4)}',
                f'{MF16} {R(n)}, {R(kv,2)}, {R(x,2)}, 0',
                f'{MF16} {R(n+4)}, {R(kv+2,2)}, {R(x+2,2)}, 0']

    def avalu(kk):
        n = N + 12 * kk; o = OF + 4 * kk; dn = n + 8
        return [f'v_rcp_f32 v{dn}, v{dn}', f'v_rcp_f32 v{dn+1}, v{dn+1}',
                pk('v_pk_mul_f32', n, n, dn, b1=0), pk('v_pk_mul_f32', n + 2, n + 2, dn, b1=0),
                pk('v_pk_mul_f32', n + 4, n + 4, dn + 1, b1=0), pk('v_pk_mul_f32', n + 6, n + 6, dn + 1, b1=0),
                f'v_cvt_pk_bf16_f32 v{o}, v{n}, v{n+1}', f'v_cvt_pk_bf16_f32 v{o+1}, v{n+2}, v{n+3}',
                f'v_cvt_pk_bf16_f32 v{o+2}, v{n+4}, v{n+5}', f'v_cvt_pk_bf16_f32 v{o+3}, v{n+6}, v{n+7}']

    def period(s):
        if p.lag == 1: a.wait_lds_all()
        tsl(a, p, 'pre')
        a('s_barrier')
        tsl(a, p, 'post')
        rd = reads(1 - s)
        if not att:
            interleave(a, mainm(s, 0, fx(s, 0)) + mainm(s, 1, fx(s, 1)), rd, per=3)
        elif OPT.get('s2sched', 1) == 0:
            interleave(a, amf(s, 0) + amf(s, 1), rd[:14], per=3)
            for t in avalu(0): a(t)
            interleave(a, mainm(s, 0, OF), avalu(1), per=3)
            interleave(a, mainm(s, 1, OF + 4), rd[14:], per=2)
        else:
            ops = amf(s, 0) + amf(s, 1) + avalu(0)
            m0 = mainm(s, 0, OF); v1_ = avalu(1)
            for i in range(4):
                ops.append(m0[i]); ops += v1_[3*i:3*i+3]
            ops += mainm(s, 1, OF + 4)
            def cost(t): return 16 if t.startswith(MF) else 8 if ('mfma' in t or 'rcp' in t) else 4
            tot = sum(cost(t) for t in ops)
            rc = [16 if 'b128' in r else 11 for r in rd]
            rtot = sum(rc)
            acc = 0; racc = 0; ri = 0
            for t in ops:
                a(t); acc += cost(t)
                while ri < len(rd) and racc * tot <= acc * rtot * OPT.get('s2f', 1.0):
                    a(rd[ri]); racc += rc[ri]; ri += 1
            while ri < len(rd):
                a(rd[ri]); ri += 1
        adv()

    ring_init(a, p, fixed, cur)
    a.wait_lds_all()
    ts(a, name + '.preP0')
    a('s_barrier')
    ts(a, name + '.P0')
    for t in reads(0): a(t)
    for t in p.touch: a(t)
    adv()
    a.loop_begin(f'L_ml_{name}')
    period(0)
    period(1)
    a('s_add_u32 s9, s9, 1')
    a(f's_cmp_lt_u32 s9, {p.NC//2}')
    a(f's_cbranch_scc1 L_ml_{name}')
    a.loop_end_check()
    a.wait_lds_all()
    ts(a, name + '.loopend')
    OUT = 24
    for T in range(4):
        for hh in range(2):
            a(f'v_cvt_pk_bf16_f32 v{OUT+2*T+hh}, v{ACC+4*T+2*hh}, v{ACC+4*T+2*hh+1}')
    if not final:
        SS, SG = N, N + 4
        a(f'{MF} {R(SS)}, {R(ONES)}, {R(OUT)}, 0')
        a(f'{MF} {R(SG)}, {R(OUT)}, {R(OUT)}, 0')
        a(f'{MF} {R(SS)}, {R(ONES)}, {R(OUT+4)}, {R(SS)}')
        a(f'{MF} {R(SG)}, {R(OUT+4)}, {R(OUT+4)}, {R(SG)}')
        for i in range(2):
            a(f'buffer_store_dwordx4 {R(OUT+4*i)}, v16, {S4(SRD_W)}, s6 offen offset:{i*KB} {stmod()}')
        a('s_lshl_b32 s4, s15, 10')
        a('s_lshl_b32 s5, s13, 3')
        a('s_add_u32 s4, s4, s5')
        a(f's_add_u32 s4, s4, {st_off}')
        a('v_lshlrev_b32 v5, 6, v3')
        a('v_and_b32 v6, 3, v3')
        a('v_cmp_eq_u32 s[52:53], 1, v6')
        a('v_cmp_eq_u32 s[54:55], 2, v6')
        a('v_cmp_eq_u32 s[56:57], 3, v6')
        a('v_lshrrev_b32 v6, 2, v3')
        a('v_cmp_eq_u32 vcc, v6, v2')
        a(f'v_cndmask_b32 v{SS+1}, v{SG}, v{SG+1}, s[52:53]')
        a(f'v_cndmask_b32 v{SS+1}, v{SS+1}, v{SG+2}, s[54:55]')
        a(f'v_cndmask_b32 v{SS+1}, v{SS+1}, v{SG+3}, s[56:57]')
        a('s_mov_b64 exec, vcc')
        a(f'buffer_store_dwordx2 {R(SS,2)}, v5, {S4(SRD_W)}, s4 offen {stmod()}')
        a('s_mov_b64 exec, -1')
        end_phase(a, p)
    else:
        a(f's_mul_i32 s4, s3, {16*144}')
        a(f's_add_u32 s4, s4, {OUTL}')
        a(f'v_mul_u32_u24 v4, 144, v3')
        a('v_lshl_add_u32 v4, v2, 3, v4')
        a('v_add_u32 v4, s4, v4')
        for T in range(4):
            a(f'ds_write_b64 v4, {R(OUT+2*T,2)} offset:{32*T}')
        a('v_lshrrev_b32 v5, 3, v1')
        a('v_and_b32 v6, 7, v1')
        a('v_mul_u32_u24 v7, 144, v5')
        a('v_lshl_add_u32 v7, v6, 4, v7')
        a('v_add_u32 v7, s4, v7')
        a('s_waitcnt lgkmcnt(0)')
        for i in range(2):
            a(f'ds_read_b128 {R(ACC+4*i)}, v7 offset:{i*8*144}')
        a('v_lshlrev_b32 v5, 10, v5')
        a('v_lshl_add_u32 v5, v6, 4, v5')
        a(f's_add_u32 s9, s8, {8*KB}')
        for i in range(2):
            a(f'buffer_store_dwordx4 {R(ACC+4*i)}, v5, {S4(SRD_M)}, s{8+i} offen {OPT.get("outmod", "")}')


def comp_g(a, p):
    name = p.name; L = p.L
    s2 = (p.ph == 2)
    final = p.final
    res_rowmajor = (s2 and L == 0)
    res_off = (WS_X2 if s2 else WS_X1[L])
    out_off = (WS_X1[L] if s2 else WS_X2)
    st_off = WS_ST1[L] if s2 else WS_ST2
    ACC, FR, SETSZ, N, ONES, RES = 32, 48, 32, 112, 128, 24
    fixed = [8, 9, 10]; cur = [11, 12, 13]
    vX, vW0, vW1 = cur
    assert p.b0 % (2 * p.cB) == 0 and p.NCH % 2 == 0
    phase_map(a, p)
    a('s_lshr_b32 s10, s3, 1')
    a('s_and_b32 s11, s3, 1')
    a('s_lshl_b32 s15, s12, 2')
    a('s_lshl_b32 s5, s10, 1')
    a('s_add_u32 s15, s15, s5')
    a('v_lshlrev_b32 v16, 4, v1')
    a('s_lshl_b32 s6, s15, 4')
    a('s_lshl_b32 s5, s13, 1')
    a('s_add_u32 s6, s6, s5')
    a('s_add_u32 s6, s6, s11')
    a('s_lshl_b32 s6, s6, 10')
    a(f's_add_u32 s7, s6, {res_off}')
    a(f's_add_u32 s6, s6, {out_off}')
    a('s_lshl_b32 s8, s15, 14')
    a('s_lshl_b32 s5, s13, 7')
    a('s_add_u32 s8, s8, s5')
    a('s_lshl_b32 s5, s11, 6')
    a('s_add_u32 s8, s8, s5')
    if final: srd(a, SRD_M, S_PTR + 14, 2048 * 1024)
    if res_rowmajor:
        a('v_lshlrev_b32 v4, 10, v3')
        a('v_lshl_add_u32 v17, v2, 3, v4')
        a(f's_add_u32 s5, s8, {16*KB}')
        for t in range(2):
            for u in range(2):
                a(f'buffer_load_dwordx2 {R(RES+4*t+2*u,2)}, v17, {S4(SRD_A)}, s{5 if t else 8} offen offset:{32*u}')
    else:
        a(f's_add_u32 s5, s7, {16*KB}')
        for t in range(2):
            a(f'buffer_load_dwordx4 {R(RES+4*t)}, v16, {S4(SRD_W)}, s{5 if t else 7} offen')
    a('s_lshl_b32 s4, s10, 11')
    a(f's_add_u32 s4, s4, {RA0}')
    xbase(a, 8, 4, 'F')
    wpat(a, 9, 10)
    a('s_lshl_b32 s4, s11, 11')
    a('v_add_u32 v9, s4, v9')
    a('v_add_u32 v10, s4, v10')
    if not final:
        for i in range(4): a(f'v_mov_b32 v{ONES+i}, 0x3f803f80')
    for i in range(8):
        a(f'v_lshlrev_b32 v{ACC+2*i}, 16, v{RES+i}')
        a(f'v_and_b32 v{ACC+2*i+1}, 0xffff0000, v{RES+i}')

    def fx(s, kk, t): return FR + SETSZ * s + 8 * kk + 4 * t
    def fw(s, kk, u): return FR + SETSZ * s + 16 + 8 * kk + 4 * u

    def reads(s, odd):
        l = []
        for kk in range(2):
            oa = odd * p.cA + kk * p.sA; ob = odd * p.cB + kk * p.sB
            l.append(rd128(fx(s, kk, 0), vX, oa))
            l += [rdtr(fw(s, kk, 0) + 2 * h, vW0, ob + h * KB) for h in range(2)]
            l.append(rd128(fx(s, kk, 1), vX, oa + KB))
            l += [rdtr(fw(s, kk, 1) + 2 * h, vW1, ob + h * KB) for h in range(2)]
        return l

    def mainm(s):
        return [f'{MF} {R(ACC+8*t+4*u)}, {R(fw(s,kk,u))}, {R(fx(s,kk,t))}, {R(ACC+8*t+4*u)}'
                for kk in range(2) for u in range(2) for t in range(2)]

    sadv = [f's_add_u32 s{S_RA}, s{S_RA}, {2*p.cA}', f's_cmp_eq_u32 s{S_RA}, {p.NCH*p.cA}', f's_cselect_b32 s{S_RA}, 0, s{S_RA}',
            f's_add_u32 s{S_RB}, s{S_RB}, {2*p.cB}', f's_cmp_eq_u32 s{S_RB}, {RB_SZ}', f's_cselect_b32 s{S_RB}, 0, s{S_RB}']
    vadv = [f'v_add_u32 v{cur[0]}, s{S_RA}, v{fixed[0]}'] + [f'v_add_u32 v{c}, s{S_RB}, v{f}' for f, c in zip(fixed[1:], cur[1:])]

    def period(s):
        if p.lag == 1: a.wait_lds_all()
        tsl(a, p, 'pre')
        a('s_barrier')
        tsl(a, p, 'post')
        rd = reads(1 - s, 1 - s)
        if s == 0: rd = rd + sadv + vadv
        else: rd = rd + ['s_add_u32 s9, s9, 1', f's_cmp_lt_u32 s9, {p.NC//2}']
        m = mainm(s)
        per = [2, 2, 2, 2, 2, 2, 5, 4] if s == 0 else [2, 2, 2, 2, 2, 2, 1, 1]
        ri = 0
        for mm, n in zip(m, per):
            a(mm)
            for t in rd[ri:ri+n]: a(t)
            ri += n
        assert ri == len(rd)

    ring_init(a, p, fixed, cur)
    a.wait_lds_all()
    ts(a, name + '.preP0')
    a('s_barrier')
    ts(a, name + '.P0')
    for t in reads(0, 0): a(t)
    a.loop_begin(f'L_ml_{name}')
    period(0)
    period(1)
    a(f's_cbranch_scc1 L_ml_{name}')
    a.loop_end_check()
    a.wait_lds_all()
    ts(a, name + '.loopend')
    OUT = 24
    for i in range(8):
        a(f'v_cvt_pk_bf16_f32 v{OUT+i}, v{ACC+2*i}, v{ACC+2*i+1}')
    if not final:
        for t in range(2):
            a(f'{MF} {R(N+8*t)}, {R(ONES)}, {R(OUT+4*t)}, 0')
            a(f'{MF} {R(N+8*t+4)}, {R(OUT+4*t)}, {R(OUT+4*t)}, 0')
        a(f's_add_u32 s5, s6, {16*KB}')
        for t in range(2):
            a(f'buffer_store_dwordx4 {R(OUT+4*t)}, v16, {S4(SRD_W)}, s{5 if t else 6} offen {stmod()}')
        a('s_lshl_b32 s4, s15, 10')
        a('s_lshl_b32 s5, s13, 3')
        a('s_add_u32 s4, s4, s5')
        a('s_lshl_b32 s5, s11, 17')
        a('s_add_u32 s4, s4, s5')
        a(f's_add_u32 s4, s4, {st_off}')
        a('v_lshlrev_b32 v5, 6, v3')
        a('v_and_b32 v6, 3, v3')
        a('v_cmp_eq_u32 s[52:53], 1, v6')
        a('v_cmp_eq_u32 s[54:55], 2, v6')
        a('v_cmp_eq_u32 s[56:57], 3, v6')
        a('v_lshrrev_b32 v6, 2, v3')
        a('v_cmp_eq_u32 vcc, v6, v2')
        for t in range(2):
            SS, SG = N + 8 * t, N + 8 * t + 4
            a(f'v_cndmask_b32 v{SS+1}, v{SG}, v{SG+1}, s[52:53]')
            a(f'v_cndmask_b32 v{SS+1}, v{SS+1}, v{SG+2}, s[54:55]')
            a(f'v_cndmask_b32 v{SS+1}, v{SS+1}, v{SG+3}, s[56:57]')
        a('s_mov_b64 exec, vcc')
        for t in range(2):
            a(f'buffer_store_dwordx2 {R(N+8*t,2)}, v5, {S4(SRD_W)}, s4 offen offset:{t*KB} {stmod()}')
        a('s_mov_b64 exec, -1')
        end_phase(a, p)
    else:
        a(f's_mul_i32 s4, s3, {32*80}')
        a(f's_add_u32 s4, s4, {SCR}')
        a(f'v_mul_u32_u24 v4, 80, v3')
        a('v_lshl_add_u32 v4, v2, 3, v4')
        a('v_add_u32 v4, s4, v4')
        for t in range(2):
            for u in range(2):
                a(f'ds_write_b64 v4, {R(OUT+4*t+2*u,2)} offset:{t*16*80 + 32*u}')
        a('v_lshrrev_b32 v5, 2, v1')
        a('v_and_b32 v6, 3, v1')
        a('v_mul_u32_u24 v7, 80, v5')
        a('v_lshl_add_u32 v7, v6, 4, v7')
        a('v_add_u32 v7, s4, v7')
        a('s_waitcnt lgkmcnt(0)')
        for t in range(2):
            a(f'ds_read_b128 {R(ACC+4*t)}, v7 offset:{t*16*80}')
        a('v_lshlrev_b32 v5, 10, v5')
        a('v_lshl_add_u32 v5, v6, 4, v5')
        a(f's_add_u32 s9, s8, {16*KB}')
        for t in range(2):
            a(f'buffer_store_dwordx4 {R(ACC+4*t)}, v5, {S4(SRD_M)}, s{8+t} offen {OPT.get("outmod", "")}')


def comp_s3(a, p):
    name = p.name; L = p.L
    STB = p.STB
    CSX = SCR + KB
    first = (L == 0)
    ACG, ACU = 40, 88
    CS = 136
    FR = 160
    ONES = 240
    fixed = [8, 9, 10, 11]; cur = [12, 13, 14, 15]
    vX = 12; vW = 13
    MEAN, RSTD, R2 = 24, 28, 32
    phase_map(a, p)
    a('s_lshr_b32 s6, s3, 1')
    a('s_and_b32 s11, s3, 1')
    a('s_lshl_b32 s15, s12, 3')
    a('s_lshl_b32 s5, s6, 2')
    a('s_add_u32 s15, s15, s5')
    a('s_lshl_b32 s4, s6, 12')
    a(f's_add_u32 s4, s4, {RA0}')
    xbase(a, 8, 4, 'F')
    wpat(a, 9, 10)
    a('s_lshl_b32 s4, s11, 5')
    a('v_xor_b32 v11, s4, v9')
    a('v_add_u32 v11, 4096, v11')
    a('s_lshl_b32 s4, s11, 13')
    a('v_add_u32 v9, s4, v9')
    a('v_add_u32 v10, s4, v10')
    a(f's_mul_i32 s4, s15, 43')
    a(f's_mul_i32 s5, s13, 3')
    a('s_add_u32 s4, s4, s5')
    a('s_lshl_b32 s4, s4, 10')
    a(f's_add_u32 s4, s4, {WS_H[L]}')
    a('s_lshl_b32 s7, s11, 11')
    a('s_add_u32 s7, s7, s4')
    a('s_lshl_b32 s8, s11, 3')
    a('s_add_u32 s8, s8, s4')
    a('s_add_u32 s8, s8, 1024')
    a('s_cmp_ge_u32 s13, 14')
    a(f's_cselect_b32 s8, {WS_DUMP}, s8')
    a('s_cselect_b32 s5, s11, 0')
    a('s_cmp_eq_u32 s13, 15')
    a('s_cselect_b32 s5, 1, s5')
    a('s_cmp_lg_u32 s5, 0')
    a(f's_cselect_b32 s7, {WS_DUMP}, s7')
    if OPT.get('otouch', 0):
        a('v_lshrrev_b32 v4, 3, v1')
        a('v_and_b32 v5, 7, v1')
        a(f'v_mul_u32_u24 v4, {43*KB}, v4')
        a('v_lshl_add_u32 v252, v5, 7, v4')
        p.touch = ['s_mov_b32 exec_hi, 0', f'buffer_load_dword v254, v252, {S4(SRD_W)}, s7 offen sc1',
                   f'buffer_load_dword v253, v252, {S4(SRD_W)}, s8 offen sc1', 's_mov_b64 exec, -1']
    a('s_mul_i32 s4, s11, 384')
    a(f's_add_u32 s4, s4, {CS3L}')
    a('v_lshl_add_u32 v16, v2, 4, s4')
    for i in range(4): a(f'v_mov_b32 v{ONES+i}, 0x3f803f80')
    for r in range(40, 160 if first else 136): a(f'v_mov_b32 v{r}, 0')

    def fx(s, t): return FR + 40 * s + 4 * t
    def fw(s, gs, i): return FR + 40 * s + 16 + 4 * (2 * i + gs)

    def reads(s, kk):
        wl = []
        for i in range(3):
            for gs in range(2):
                for h in range(2):
                    wl.append(rdtr(fw(s, gs, i) + 2 * h, vW + i, kk * p.sB + (2 * gs + h) * KB))
        xl = [rd128(fx(s, t), vX, kk * p.sA + t * KB) for t in range(4)]
        return wl[:2] + xl + wl[2:]

    cnt = [0]

    def mfmas(s):
        l = []
        for i in range(3):
            for gs, AC in ((0, ACG), (1, ACU)):
                for t in range(4):
                    d = AC + 12 * t + 4 * i
                    l.append(f'{MF} {R(d)}, {R(fw(s,gs,i))}, {R(fx(s,t))}, {R(d)}')
        if first:
            def csblk():
                cnt[0] += 1
                lab = f'L_cs{cnt[0]}_{name}'
                a(f's_cmp_eq_u32 s6, {s}')
                a(f's_cbranch_scc0 {lab}')
                a.begin_opt()
                for i in range(3):
                    for gs in range(2):
                        d = CS + 12 * gs + 4 * i
                        a(f'{MF} {R(d)}, {R(fw(s,gs,i))}, {R(ONES)}, {R(d)}')
                a.end_opt()
                a.label(lab)
            if OPT.get('cs3full', 0):
                for i in range(3):
                    for gs in range(2):
                        d = CS + 12 * gs + 4 * i
                        l.append(f'{MF} {R(d)}, {R(fw(s,gs,i))}, {R(ONES)}, {R(d)}')
            else: l.append(csblk)
        return l

    peel = OPT.get('peel3', 0) and OPT.get('cs3full', 0)
    if peel:
        a('s_lshl_b32 s4, s6, 8')
        a(f's_add_u32 s4, s4, {STB}')
        a(f'v_lshl_add_u32 v6, v3, 2, s4')
        a('v_lshlrev_b32 v4, 4, v1')
        if not first:
            for i in range(6):
                a(f'ds_read_b128 {R(CS+4*i)}, v16 offset:{64*i}')
            a.wait_lds_all()
    loop_big(a, p, fixed, cur, reads, mfmas, per=1, peel=peel)
    if peel:
        OUT = FR
        idx = [(i, hh) for i in range(3) for hh in range(2)]

        def mt(t):
            return [f'{MF} {R(AC+12*t+4*i)}, {R(fw(1,gs,i))}, {R(fx(1,t))}, {R(AC+12*t+4*i)}'
                    for i in range(3) for gs, AC in ((0, ACG), (1, ACU))]

        def ep(t):
            l = []
            for i, hh in idx:
                g = ACG + 12 * t + 4 * i + 2 * hh; u = ACU + 12 * t + 4 * i + 2 * hh
                l.append(pk('v_pk_fma_f32', g, MEAN + t, CS + 4 * i + 2 * hh, g, b0=0, neg0=True))
                l.append(pk('v_pk_fma_f32', u, MEAN + t, CS + 12 + 4 * i + 2 * hh, u, b0=0, neg0=True))
            for i, hh in idx:
                g = ACG + 12 * t + 4 * i + 2 * hh; u = ACU + 12 * t + 4 * i + 2 * hh
                l += [f'v_max_f32 v{g}, 0, v{g}', f'v_max_f32 v{g+1}, 0, v{g+1}', pk('v_pk_mul_f32', u, u, R2 + t, b1=0)]
            for i, hh in idx:
                g = ACG + 12 * t + 4 * i + 2 * hh; u = ACU + 12 * t + 4 * i + 2 * hh
                l.append(pk('v_pk_mul_f32', g, g, u))
            for i, hh in idx:
                g = ACG + 12 * t + 4 * i + 2 * hh
                l.append(f'v_cvt_pk_bf16_f32 v{OUT+8*t+2*i+hh}, v{g}, v{g+1}')
            l.append(f'buffer_store_dwordx4 {R(OUT+8*t)}, v4, {S4(SRD_W)}, s7 offen {stmod()}')
            l.append(f'buffer_store_dwordx2 {R(OUT+8*t+4,2)}, v4, {S4(SRD_W)}, s8 offen {stmod()}')
            if t < 3: l += [f's_add_u32 s7, s7, {43*KB}', f's_add_u32 s8, s8, {43*KB}']
            return l
        rd = []
        for t in range(4):
            rd += [f'ds_read_b32 v{MEAN+t}, v6 offset:{64*t}', f'ds_read_b32 v{RSTD+t}, v6 offset:{512+64*t}']
        m0 = (mfmas(1)[24:] if first else []) + mt(0) + mt(1)[:3]
        interleave(a, m0, rd, per=2)
        for t in range(4):
            a(f'v_mul_f32 v{R2+t}, v{RSTD+t}, v{RSTD+t}')
        pv = OPT.get('peelv', 5)
        interleave(a, mt(1)[3:] + mt(2)[:3], ep(0), per=pv)
        interleave(a, mt(2)[3:] + mt(3), ep(1), per=pv)
        for x in ep(2) + ep(3): a(x)
        if first:
            a('s_mov_b32 exec_lo, 0x00010001')
            a('s_mov_b32 exec_hi, 0x00010001')
            for i in range(6):
                a(f'ds_write_b128 v16, {R(CS+4*i)} offset:{64*i}')
            a('s_mov_b64 exec, -1')
        a.wait_lds_all()
        end_phase(a, p)
        return
    a('s_lshl_b32 s4, s6, 8')
    a(f's_add_u32 s4, s4, {STB}')
    a(f'v_lshl_add_u32 v6, v3, 2, s4')
    for t in range(4):
        a(f'ds_read_b32 v{MEAN+t}, v6 offset:{64*t}')
        a(f'ds_read_b32 v{RSTD+t}, v6 offset:{512+64*t}')
    if first and OPT.get('cs3full', 0):
        a('s_mov_b32 exec_lo, 0x00010001')
        a('s_mov_b32 exec_hi, 0x00010001')
        for i in range(6):
            a(f'ds_write_b128 v16, {R(CS+4*i)} offset:{64*i}')
        a('s_mov_b64 exec, -1')
    elif first:
        a(f's_mul_i32 s4, s3, 384')
        a(f's_add_u32 s4, s4, {CSX}')
        a('v_lshl_add_u32 v4, v2, 4, s4')
        a('s_xor_b32 s5, s3, 2')
        a(f's_mul_i32 s5, s5, 384')
        a(f's_add_u32 s5, s5, {CSX}')
        a('v_lshl_add_u32 v5, v2, 4, s5')
        a('s_mov_b32 exec_lo, 0x00010001')
        a('s_mov_b32 exec_hi, 0x00010001')
        for i in range(6):
            a(f'ds_write_b128 v4, {R(CS+4*i)} offset:{64*i}')
        a('s_mov_b64 exec, -1')
        a('s_waitcnt lgkmcnt(0)')
        a('s_barrier')
        for i in range(6):
            a(f'ds_read_b128 {R(FR+4*i)}, v5 offset:{64*i}')
        for i in range(12):
            a(pk('v_pk_add_f32', CS + 2 * i, CS + 2 * i, FR + 2 * i))
        a('s_mov_b32 exec_lo, 0x00010001')
        a('s_mov_b32 exec_hi, 0x00010001')
        for i in range(6):
            a(f'ds_write_b128 v16, {R(CS+4*i)} offset:{64*i}')
        a('s_mov_b64 exec, -1')
    else:
        for i in range(6):
            a(f'ds_read_b128 {R(CS+4*i)}, v16 offset:{64*i}')
    for t in range(4):
        a(f'v_mul_f32 v{R2+t}, v{RSTD+t}, v{RSTD+t}')
    a('v_lshlrev_b32 v4, 4, v1')
    a('s_mov_b32 s5, s7')
    a('s_mov_b32 s6, s8')
    OUT = FR
    for t in range(4):
        idx = [(i, hh) for i in range(3) for hh in range(2)]
        for i, hh in idx:
            g = ACG + 12 * t + 4 * i + 2 * hh; u = ACU + 12 * t + 4 * i + 2 * hh
            a(pk('v_pk_fma_f32', g, MEAN + t, CS + 4 * i + 2 * hh, g, b0=0, neg0=True))
            a(pk('v_pk_fma_f32', u, MEAN + t, CS + 12 + 4 * i + 2 * hh, u, b0=0, neg0=True))
        for i, hh in idx:
            g = ACG + 12 * t + 4 * i + 2 * hh; u = ACU + 12 * t + 4 * i + 2 * hh
            a(f'v_max_f32 v{g}, 0, v{g}')
            a(f'v_max_f32 v{g+1}, 0, v{g+1}')
            a(pk('v_pk_mul_f32', u, u, R2 + t, b1=0))
        for i, hh in idx:
            g = ACG + 12 * t + 4 * i + 2 * hh; u = ACU + 12 * t + 4 * i + 2 * hh
            a(pk('v_pk_mul_f32', g, g, u))
        for i, hh in idx:
            g = ACG + 12 * t + 4 * i + 2 * hh
            a(f'v_cvt_pk_bf16_f32 v{OUT+8*t+2*i+hh}, v{g}, v{g+1}')
        a(f'buffer_store_dwordx4 {R(OUT+8*t)}, v4, {S4(SRD_W)}, s5 offen {stmod()}')
        a(f'buffer_store_dwordx2 {R(OUT+8*t+4,2)}, v4, {S4(SRD_W)}, s6 offen {stmod()}')
        if t < 3:
            a(f's_add_u32 s5, s5, {43*KB}')
            a(f's_add_u32 s6, s6, {43*KB}')
    a.wait_lds_all()
    end_phase(a, p)


def build(opt=None, fn=None):
    global WS_X2, WS_ST2
    o = dict(opt or {})
    o.setdefault("sl", ((("s4l0","P",4),"q"),(("s3l0","P",2),"d"),(("s3l1","P",2),"d"),(("s1l0","E",0),"o"),(("s1l1","E",0),"o"),(("s1l0","P",4),"O")))
    o.setdefault('pretouch', 192)
    o.setdefault('gp', 1)
    o.setdefault('peel3', 1)
    o.setdefault('wcap', {'s1l0P8': 2, 's1l0X0': 2})
    o.setdefault('cs1full', 1)
    o.setdefault('cs3full', 1)
    o.setdefault('nrep', 16)
    o.setdefault('gsl', 16)
    o.setdefault('lt', ("s1l0","F",0))
    OPT.clear(); OPT.update(o)
    OPT.setdefault('amod', 'sc1')
    if o.get('reuse', 1):
        WS_PQ[0] = WS_PQ[1] = WS_H[0] = WS_H[1] = 8 * MB
        WS_X1[0] = WS_X1[1] = WS_X2 = 4 * MB
        WS_ST1[0] = WS_ST1[1] = WS_ST2
    else:
        WS_PQ[0], WS_PQ[1] = 26 * MB, 32 * MB
    TS['on'] = o.get('ts', False); TS['names'] = {}
    phases = [Ph(ph, L, o) for L in range(2) for ph in (1, 2, 3, 4)]
    bars = ['T']
    for p in phases:
        ql = o.get('qlate', 1)
        if p.ph == 2 and not ql: bars.append((p.name, 'F', 0))
        for c in range(p.NC + 1): bars.append((p.name, 'P', c))
        for x in range(p.nX): bars.append((p.name, 'X', x))
        if not p.final: bars.append((p.name, 'E', 0))
        if p.ph == 1 and ql: bars += [(p.name, 'F', 0), (p.name, 'G', 0)]
    a = Asm()
    entry(a)
    hist = list(a.hist)
    steps = bloader(a, phases, bars)
    a.hist = list(hist)
    aloader(a, phases)
    a.hist = list(hist)
    TS['role'] = 'C'
    a.label('L_comp')
    for p in phases:
        {1: comp_s1q if OPT.get('qlate', 1) else comp_s1, 2: comp_g if OPT.get('qlate', 1) else comp_s24, 3: comp_s3,
         4: comp_g if OPT.get('g4', 1) else comp_s24}[p.ph](a, p)
    ts_flush(a)
    a.label('L_end')
    a('s_endpgm')
    name = 'interleave_layers__linear_attn_block__glu_gated_reglu__prompt_kernel'
    s = '; interleaved linear-attention / ReGLU layers: one persistent kernel (generated)\n'
    s += f'; @launch grid=(256,1,1) block=(512,1,1) lds={LDS_BYTES}\n'
    s += '.amdgcn_target "amdgcn-amd-amdhsa--gfx950"\n'
    s += kernel_text(name, a.text(), 256)
    if fn:
        open(fn, 'w').write(s)
        if TS['on']: json.dump(TS['names'], open(fn + '.ts.json', 'w'))
    if o.get('verbose'):
        for st in steps: print(st)
    return s


if __name__ == '__main__':
    fn = sys.argv[1]
    opt = {}
    for kv in sys.argv[2:]:
        k, v = kv.split('=', 1)
        opt[k] = eval(v)
    s = build(opt, fn=fn)
    print('bytes', len(s), 'lines', s.count('\n'))
```

```python
import sys, struct, json
from asmlib import Asm, kernel_text

KB = 1024
MB = 1 << 20
WS_PQ = [0, 2 * MB]
WS_X1 = [4 * MB, 6 * MB]
WS_H = [8 * MB, 14 * MB]
WS_X2 = 20 * MB
WS_KV = 22 * MB
WS_SYNC = 22 * MB + 128 * KB
WS_ST1 = [21 * MB + 0 * KB + 38 * MB, 21 * MB + 256 * KB + 38 * MB]
WS_ST2 = 22 * MB + 512 * KB
WS_DUMP = 23 * MB
WS_TS = 24 * MB
WS_BYTES = 268435456
S_PTR, S_DBG, S_WS = 16, 32, 34
SRD_A, SRD_B, SRD_W, SRD_M = 36, 40, 44, 48
S_RA, S_RB = 58, 59
S_TEAM, S_MEM, S_XCC, S_HET, S_VID = 60, 61, 62, 63, 96
SB_QKV, SB_WO, SB_WG, SB_WU, SB_WD = 64, 68, 72, 76, 80
LOG2E = 1.4426950408889634
MF = 'v_mfma_f32_16x16x32_bf16'
MF16 = 'v_mfma_f32_16x16x16_bf16'
OPT = {}
RB_SZ = 96 * KB
RA0 = 96 * KB
SCR = 144 * KB
CS1L = 154 * KB
CS3L = 155 * KB
VIDL = 156 * KB
LDS_BYTES = 157 * KB
SPIN = 1 << 17


def f2u(x): return struct.unpack('<I', struct.pack('<f', x))[0]
def R(b, n=4): return f'v[{b}:{b+n-1}]' if n > 1 else f'v{b}'
def S4(b): return f's[{b}:{b+3}]'
def stmod(): return OPT.get('stmod', '')


def srd(a, dst, ptr, size):
    a(f's_mov_b32 s{dst}, s{ptr}')
    a(f's_mov_b32 s{dst+1}, s{ptr+1}')
    a(f's_mov_b32 s{dst+2}, {size}')
    a(f's_mov_b32 s{dst+3}, 0x00020000')


TS = {'on': False, 'role': None, 'names': {}}


def tsl(a, p, name):
    if TS['on'] and OPT.get('tsp') == p.name: ts(a, name, True)


def ts(a, name, force=False):
    if not TS['on']: return
    if OPT.get('tsp') and not force and not name.startswith(OPT['tsp']) and name not in ('start', 'end'): return
    TS['names'].setdefault(TS['role'], []).append(name)
    a('s_waitcnt lgkmcnt(0)')
    a('s_memtime s[100:101]')
    a('s_waitcnt lgkmcnt(0)')
    a('s_mov_b32 s98, m0')
    a('s_mov_b32 m0, s99')
    a('s_nop 0')
    a('v_writelane_b32 v0, s100, m0')
    a('s_mov_b32 m0, s98')
    a('s_add_u32 s99, s99, 1')
    a('s_min_u32 s99, s99, 63')


def ts_flush(a):
    if not TS['on']: return
    ts(a, 'end')
    a('s_mov_b64 exec, -1')
    a(f's_lshl_b32 s4, s{S_VID}, 3')
    a('s_add_u32 s4, s4, s3')
    a('s_lshl_b32 s4, s4, 8')
    a(f's_add_u32 s4, s4, {WS_TS}')
    a('v_lshlrev_b32 v5, 2, v1')
    a(f'buffer_store_dword v0, v5, {S4(SRD_W)}, s4 offen')


def pk(op, d, s0, s1, s2=None, b0=None, b1=None, b2=None, neg0=False, neg1=False):
    def opnd(s, b):
        if b is None:
            assert s % 2 == 0, s
            return f'v[{s}:{s+1}]', 0, 1
        base = s & ~1; h = s & 1
        return f'v[{base}:{base+1}]', h, h
    srcs = [opnd(s0, b0), opnd(s1, b1)]
    if s2 is not None: srcs.append(opnd(s2, b2))
    assert d % 2 == 0
    t = f'{op} v[{d}:{d+1}], ' + ', '.join(s[0] for s in srcs)
    t += ' op_sel:[' + ','.join(str(s[1]) for s in srcs) + ']'
    t += ' op_sel_hi:[' + ','.join(str(s[2]) for s in srcs) + ']'
    if neg0 or neg1:
        n = [1 if neg0 else 0, 1 if neg1 else 0] + ([0] if s2 is not None else [])
        t += ' neg_lo:[' + ','.join(map(str, n)) + '] neg_hi:[' + ','.join(map(str, n)) + ']'
    return t


class Ph:
    def __init__(self, ph, L, opt):
        self.ph, self.L = ph, L
        self.name = f's{ph}l{L}'
        self.final = (ph == 4 and L == 1)
        self.padk = (ph == 4)
        self.NC = 22 if ph == 4 else 8
        self.NKreal = 43 if ph == 4 else 16
        self.RT = 8 if ph in (1, 3) else 4
        self.PB = {1: 6, 2: 4, 3: 12, 4: 4}[ph]
        self.sA = self.RT * KB; self.sB = self.PB * KB
        self.cA = 2 * self.sA; self.cB = 2 * self.sB
        ql = opt.get('qlate', 1)
        self.NCH = {1: 3, 2: 6 if ql else 5, 3: 3, 4: 6}[ph]
        self.lag = 2 if (ph in (2, 4) and opt.get('relax', 1)) else 1
        self.DC = opt.get(f's{ph}_dc', self.NCH - self.lag)
        self.KSA = 16 if ph in (1, 3) else 43
        self.amode = 'R' if (ph == 1 and L == 0) else 'F'
        self.bmap = 'S' if (ph == 1 and L == 0) else 'F'
        self.strideA = 64 if self.amode == 'R' else KB
        self.rowB = {1: 3072, 2: 1024, 3: 2752, 4: 1024}[ph]
        self.strideB = 32 * self.rowB
        self.nX = 1 if (ph == 1 or (ph == 3 and L == 0)) else 0
        if ql and ph == 1 and L == 0: self.nX = 1 if opt.get('cs1full', 0) else 2
        if ph == 3 and opt.get('cs3full', 0): self.nX = 0
        self.stats = (ph == 3) or (ph == 1 and L == 1)
        self.st2 = (ph == 1 and opt.get('g4', 1)) or ql
        self.STB = SCR + 9 * KB if ph == 1 else SCR
        self.vB = {(1, 0): 12, (1, 1): 15, (2, 0): 18, (2, 1): 18, (4, 0): 18, (4, 1): 18, (3, 0): 20, (3, 1): 20}[(ph, L)]
        self.b0 = None
        self.touch = []


def phase_map(a, p):
    if p.ph in (1, 3):
        a(f's_mov_b32 s12, s{S_TEAM}')
        a(f's_mov_b32 s13, s{S_MEM}')
        rx = OPT.get('rotx', 0)
        if rx:
            a(f's_lshr_b32 s14, s{S_TEAM}, 1')
            a(f's_mul_i32 s14, s14, {rx}')
            a(f's_add_u32 s14, s14, s{S_MEM}')
            a('s_and_b32 s14, s14, 15')
        elif p.amode == 'R' and OPT.get('evenrot', 1):
            a(f's_lshl_b32 s14, s{S_MEM}, 1')
            a('s_and_b32 s14, s14, 15')
        else:
            a(f's_mov_b32 s14, s{S_MEM}')
    else:
        a(f's_lshr_b32 s13, s{S_MEM}, 3')
        a(f's_lshl_b32 s12, s{S_TEAM}, 1')
        a('s_add_u32 s12, s12, s13')
        a(f's_and_b32 s13, s{S_MEM}, 7')
        if p.ph == 2: a('s_lshl_b32 s14, s13, 1')
        else: a('s_mul_i32 s14, s13, 5')


def stats_finish(a, vsum, vsq, vmean, vrstd, tmp):
    a(f'v_mul_f32 v{vmean}, {hex(f2u(1/512))}, v{vsum}')
    a(f'v_mul_f32 v{tmp}, {hex(f2u(1/512))}, v{vsq}')
    a(f'v_fma_f32 v{tmp}, -v{vmean}, v{vmean}, v{tmp}')
    a(f'v_max_f32 v{tmp}, 0, v{tmp}')
    a(f'v_add_f32 v{tmp}, {hex(f2u(1e-5))}, v{tmp}')
    a(f'v_rsq_f32 v{vrstd}, v{tmp}')


def xbase(a, vX, xoff_sgpr, amode):
    if amode == 'F':
        a(f'v_lshl_add_u32 v{vX}, v1, 4, s{xoff_sgpr}')
    else:
        a('v_lshrrev_b32 v4, 2, v3')
        a('v_sub_u32 v4, 4, v4')
        a('v_and_b32 v4, 3, v4')
        a('v_xor_b32 v4, v4, v2')
        a('v_lshlrev_b32 v4, 4, v4')
        a(f'v_lshl_add_u32 v{vX}, v3, 6, v4')
        a(f'v_add_u32 v{vX}, s{xoff_sgpr}, v{vX}')


def wpat(a, d0, d1):
    a('v_and_b32 v4, 1, v2')
    a('v_lshlrev_b32 v4, 5, v4')
    a('v_lshl_add_u32 v4, v2, 8, v4')
    a('v_bfe_u32 v5, v1, 2, 2')
    a('v_lshl_add_u32 v4, v5, 6, v4')
    a('v_and_b32 v5, 3, v1')
    a(f'v_lshl_add_u32 v{d0}, v5, 3, v4')
    a(f'v_xor_b32 v{d1}, 32, v{d0}')


def rd128(dst, base, off): return f'ds_read_b128 {R(dst)}, v{base} offset:{off}'
def rdtr(dst, base, off): return f'ds_read_b64_tr_b16 {R(dst,2)}, v{base} offset:{off}'


def interleave(a, mf, rd, per=1, first=0):
    ri = 0
    for i, m in enumerate(mf):
        if callable(m): m()
        else: a(m)
        if i >= first:
            for _ in range(per):
                if ri < len(rd):
                    a(rd[ri]); ri += 1
    while ri < len(rd):
        a(rd[ri]); ri += 1


def ring_init(a, p, fixed, cur):
    a(f's_mov_b32 s{S_RA}, 0')
    a(f's_mov_b32 s{S_RB}, {p.b0}')
    a('s_mov_b32 s9, 0')
    a(f'v_mov_b32 v{cur[0]}, v{fixed[0]}')
    for f, c in zip(fixed[1:], cur[1:]): a(f'v_add_u32 v{c}, s{S_RB}, v{f}')


def advance(a, p, fixed, cur):
    a(f's_add_u32 s{S_RA}, s{S_RA}, {p.cA}')
    a(f's_cmp_eq_u32 s{S_RA}, {p.NCH*p.cA}')
    a(f's_cselect_b32 s{S_RA}, 0, s{S_RA}')
    a(f's_add_u32 s{S_RB}, s{S_RB}, {p.cB}')
    a(f's_cmp_eq_u32 s{S_RB}, {RB_SZ}')
    a(f's_cselect_b32 s{S_RB}, 0, s{S_RB}')
    a(f'v_add_u32 v{cur[0]}, s{S_RA}, v{fixed[0]}')
    for f, c in zip(fixed[1:], cur[1:]):
        a(f'v_add_u32 v{c}, s{S_RB}, v{f}')


def loop_big(a, p, fixed, cur, reads, mfmas, per=1, peel=False):
    ring_init(a, p, fixed, cur)
    ts(a, p.name + '.preP0')
    a('s_barrier')
    ts(a, p.name + '.P0')
    for t in reads(0, 0): a(t)
    for t in p.touch:
        if t == 'LATE':
            a('s_cmp_eq_u32 s3, 3')
            a('s_cbranch_scc0 L_nolt')
            a.begin_opt()
            late_touch(a, 22)
            a.end_opt()
            a.label('L_nolt')
            a.vm = []
        else: a(t)
    a.loop_begin(f'L_ml_{p.name}')
    if p.ph == 3 and OPT.get('s3adv', 1):
        class Rec(list):
            def __call__(self, t): self.append(t)
        rec = Rec(); advance(rec, p, fixed, cur); rec('s_add_u32 s9, s9, 1')
        m = mfmas(0); rd = reads(1, 1)
        interleave(a, m[:len(rd)], rd, per=1)
        interleave(a, m[len(rd):], rec, per=2)
    else:
        interleave(a, mfmas(0), reads(1, 1), per=per)
        advance(a, p, fixed, cur)
        a('s_add_u32 s9, s9, 1')
    a.wait_lds_all()
    tsl(a, p, 'pre')
    a('s_barrier')
    tsl(a, p, 'post')
    if peel:
        a(f's_cmp_lt_u32 s9, {p.NC}')
        a(f's_cbranch_scc0 L_mx_{p.name}')
        st = (list(a.hist), list(a.lds), list(a.vm))
        interleave(a, mfmas(1), reads(0, 0), per=per)
        a(f's_branch L_ml_{p.name}')
        a.loop_end_check()
        a.label(f'L_mx_{p.name}')
        a.hist, a.lds, a.vm = st
        ts(a, p.name + '.loopend')
        return
    interleave(a, mfmas(1), reads(0, 0), per=per)
    a(f's_cmp_lt_u32 s9, {p.NC}')
    a(f's_cbranch_scc1 L_ml_{p.name}')
    a.loop_end_check()
    a.wait_lds_all()
    ts(a, p.name + '.loopend')


def end_phase(a, p):
    ts(a, p.name + '.epi')
    a('s_waitcnt vmcnt(0)')
    ts(a, p.name + '.vm0')
    a('s_barrier')
    a.vm = []


def poll(a, name, vdst, n, voff, soff, execmask, full=False):
    a(f's_mov_b32 s84, {SPIN}')
    if execmask == 0xffffffff: a('s_mov_b32 exec_hi, 0')
    elif execmask != -1: a(f's_mov_b64 exec, {execmask}')
    a.flush_hazards()
    a.label(f'L_poll_{name}')
    op = {1: 'buffer_load_dword', 4: 'buffer_load_dwordx4'}[n]
    a(f'{op} {R(vdst, n)}, v{voff}, {soff} offen sc1')
    a('s_waitcnt vmcnt(0)')
    if n == 4:
        a(f'v_min_u32 v{vdst}, v{vdst}, v{vdst+1}')
        a(f'v_min_u32 v{vdst+2}, v{vdst+2}, v{vdst+3}')
        a(f'v_min_u32 v{vdst}, v{vdst}, v{vdst+2}')
    if full: a(f'v_cmp_ne_u32 vcc, 0x01010101, v{vdst}')
    else: a(f'v_cmp_eq_u32 vcc, 0, v{vdst}')
    a('s_nop 1')
    a(f's_cbranch_vccz L_pok_{name}')
    a('s_sub_u32 s84, s84, 1')
    a(f's_cbranch_scc1 L_pok_{name}')
    a(f's_sleep {OPT.get("sleep", 1)}')
    a(f's_branch L_poll_{name}')
    a.label(f'L_pok_{name}')
    if execmask != -1: a('s_mov_b64 exec, -1')
    a.vm = []


def spoll(a, name, soff, n, vpoll):
    a(f's_cmp_eq_u32 s{S_HET}, 0')
    a(f's_cbranch_scc0 L_svp_{name}')
    a(f's_mov_b32 s84, {SPIN}')
    if n == 2: a(f's_add_u32 s85, {soff}, 64')
    a('s_waitcnt lgkmcnt(0)')
    a.flush_hazards()
    a.label(f'L_sp_{name}')
    a.raw(f'    s_buffer_load_dwordx16 s[64:79], {S4(SRD_W)}, {soff} glc')
    if n == 2: a.raw(f'    s_buffer_load_dwordx16 s[16:31], {S4(SRD_W)}, s85 glc')
    a.raw('    s_waitcnt lgkmcnt(0)')
    regs = list(range(64, 80, 2)) + (list(range(16, 32, 2)) if n == 2 else [])
    for r in regs[1:]:
        a.raw(f'    s_and_b64 s[64:65], s[64:65], s[{r}:{r+1}]')
    a.raw('    s_and_b32 s64, s64, s65')
    a.raw(f'    s_cbranch_scc1 L_sok_{name}')
    a.raw('    s_sub_u32 s84, s84, 1')
    a.raw(f'    s_cbranch_scc1 L_sok_{name}')
    if OPT.get('ssleep', 1): a.raw(f'    s_sleep {OPT.get("ssleep", 1)}')
    a.raw(f'    s_branch L_sp_{name}')
    a.label(f'L_svp_{name}')
    vpoll()
    a.label(f'L_sok_{name}')
    a.flush_hazards()
    a.vm = []


def load_counters(a, name, until_sum):
    a('v_lshlrev_b32 v4, 5, v1')
    a('s_mov_b64 exec, 0xff')
    a(f'buffer_load_dword v5, v4, {S4(SRD_M)}, 0 offen sc1')
    a('s_waitcnt vmcnt(0)')
    a('s_mov_b64 exec, -1')
    for i in range(8):
        a(f'v_readlane_b32 s{86+i}, v5, {i}')
    a('s_add_u32 s85, s86, s87')
    for i in range(2, 8):
        a(f's_add_u32 s85, s85, s{86+i}')


def stouch_setup(a, p, w, nw):
    if not OPT.get('stouch', 0): return []
    reuse = OPT.get('reuse', 1)
    out = []
    if p.ph == 1 and (p.L == 0 or not reuse):
        a('s_lshl_b32 s53, s12, 3')
        a('s_mul_i32 s53, s53, 43')
        a('s_add_u32 s53, s53, s13')
        a('s_lshl_b32 s53, s53, 10')
        a(f's_mul_i32 s54, s{w}, {KB//nw}')
        a('s_add_u32 s53, s53, s54')
        a(f's_add_u32 s53, s53, {WS_PQ[p.L]}')
        out.append((53, 7, 43 * KB, 8 // nw))
    if p.ph in (2, 4) and not p.final and ((p.ph == 2 and p.L == 0) or not reuse):
        a('s_lshl_b32 s53, s12, 16')
        a('s_lshl_b32 s54, s13, 11')
        a('s_add_u32 s53, s53, s54')
        a(f's_mul_i32 s54, s{w}, {2*KB//nw}')
        a('s_add_u32 s53, s53, s54')
        a(f's_add_u32 s53, s53, {WS_X1[p.L] if p.ph == 2 else WS_X2}')
        out.append((53, 3, 16 * KB, 16 // nw))
        a('s_lshl_b32 s55, s12, 12')
        a(f's_mul_i32 s54, s{w}, {KB//nw}')
        a('s_add_u32 s55, s55, s54')
        a(f's_add_u32 s55, s55, {WS_ST1[p.L] if p.ph == 2 else WS_ST2}')
        out.append((55, 3, KB, 8 // nw))
    if p.ph == 3:
        a('s_lshl_b32 s53, s12, 3')
        a('s_mul_i32 s53, s53, 43')
        a('s_mul_i32 s54, s13, 3')
        a('s_add_u32 s53, s53, s54')
        a('s_lshl_b32 s53, s53, 10')
        a(f's_mul_i32 s54, s{w}, {3*KB//nw}')
        a('s_add_u32 s53, s53, s54')
        a(f's_add_u32 s53, s53, {WS_H[p.L]}')
        out.append((53, 7, 43 * KB, 24 // nw))
    return out


def stouch(a, spec, it):
    for sb, mask, stride, n in spec:
        a(f's_and_b32 s56, s{it}, {mask}')
        a(f's_mul_i32 s56, s56, {stride}')
        a(f's_add_u32 s56, s56, s{sb}')
        for i in range(n):
            a.raw(f'    s_buffer_load_dword s52, {S4(SRD_W)}, s56 offset:{i*128}')


def init_flag(a):
    a('s_mov_b64 exec, 1')
    a('s_lshr_b32 s4, s2, 1')
    a('s_lshl_b32 s4, s4, 5')
    a('s_and_b32 s5, s2, 1')
    a('s_lshl_b32 s5, s5, 2')
    a('s_add_u32 s4, s4, s5')
    a('s_add_u32 s4, s4, 4')
    a('v_mov_b32 v22, s4')
    a('v_mov_b32 v23, 1')
    a('s_waitcnt vmcnt(0)')
    a(f'buffer_store_dword v23, v22, {S4(SRD_M)}, 0 offen sc1')
    a('s_mov_b64 exec, -1')


def late_touch(a, vl):
    a('s_mul_i32 s53, s2, 5504')
    a('s_lshl_b32 s54, s2, 11')
    a('s_mov_b64 exec, 0xffff')
    a(f'buffer_load_dword v31, v{vl}, {S4(SB_WO)}, s54 offen')
    a.vm = []
    a('s_mov_b32 exec_lo, -1')
    a('s_mov_b32 exec_hi, 0x7ff')
    for sb in (SB_WG, SB_WU, SB_WD):
        a(f'buffer_load_dword v31, v{vl}, {S4(sb)}, s53 offen')
        a.vm = []
    a('s_mov_b64 exec, -1')


def entry(a):
    TS['role'] = 'all'
    a('s_cmp_ge_u32 s2, 256')
    a('s_cbranch_scc1 L_end')
    a('v_and_b32 v1, 63, v0')
    a('v_lshrrev_b32 v2, 6, v0')
    if TS['on']:
        a('v_mov_b32 v0, 0')
        a('s_mov_b32 s99, 0')
        a('s_mov_b32 m0, 0')
        ts(a, 'start')
    a(f's_load_dwordx16 s[16:31], s[0:1], 0')
    a(f's_load_dwordx4 s[32:35], s[0:1], 64')
    fx = OPT.get('fakexcc', 0)
    if fx == 0:
        a(f's_getreg_b32 s{S_XCC}, hwreg(HW_REG_XCC_ID, 0, 4)')
        a(f's_and_b32 s{S_XCC}, s{S_XCC}, 7')
    elif fx == 1:
        a(f's_lshr_b32 s{S_XCC}, s2, 5')
    else:
        a(f's_and_b32 s{S_XCC}, s2, 7')
        a(f's_cmp_ge_u32 s{S_XCC}, 6')
        a(f's_cselect_b32 s{S_XCC}, 1, s{S_XCC}')
    a('v_readfirstlane_b32 s3, v2')
    a('v_lshrrev_b32 v2, 4, v1')
    a('v_and_b32 v3, 15, v1')
    a(f's_mov_b32 s{S_HET}, 0')
    et = OPT.get('etk', 0)
    if et:
        a(f's_lshl_b32 s4, s{S_XCC}, 5')
        a('v_mov_b32 v4, s4')
        a('v_mov_b32 v5, 1')
    a('s_waitcnt lgkmcnt(0)')
    ts(a, 'karg')
    srd(a, SRD_M, S_DBG, 256)
    if et:
        a('s_cmp_eq_u32 s3, 0')
        a('s_cbranch_scc0 L_e0')
        a.begin_opt()
        a('s_mov_b64 exec, 1')
        a(f'buffer_atomic_add v5, v4, {S4(SRD_M)}, 0 offen sc0')
        a('s_mov_b64 exec, -1')
        a.end_opt()
        a.label('L_e0')
    srd(a, SRD_W, S_WS, WS_BYTES)
    srd(a, SB_QKV, S_PTR + 2, 512 * 3072)
    srd(a, SB_WO, S_PTR + 4, 512 * 1024)
    srd(a, SB_WG, S_PTR + 8, 512 * 2752)
    srd(a, SB_WU, S_PTR + 10, 512 * 2752)
    srd(a, SB_WD, S_PTR + 12, 1376 * 1024)
    srd(a, SRD_A, S_PTR + 0, 2048 * 1024)
    a('s_cmp_eq_u32 s3, 0')
    a('s_cbranch_scc0 L_e1')
    if not et:
        a(f's_lshl_b32 s4, s{S_XCC}, 5')
        a('v_mov_b32 v4, s4')
        a('v_mov_b32 v5, 1')
        a('s_mov_b64 exec, 1')
        a(f'buffer_atomic_add v5, v4, {S4(SRD_M)}, 0 offen sc0')
    a('s_mov_b64 exec, -1')
    pt = OPT.get('pretouch', 65)
    npt = 0
    a('v_lshlrev_b32 v6, 7, v1')
    if pt & 2:
        a('s_lshr_b32 s7, s2, 3')
        a('s_and_b32 s7, s7, 31')
        a(f's_lshl_b32 s5, s{S_XCC}, 18')
        a('s_lshl_b32 s6, s7, 13')
        a('s_add_u32 s5, s5, s6')
        a(f'buffer_load_dword v31, v6, {S4(SRD_A)}, s5 offen')
        a.vm = []
        a('s_mul_i32 s7, s7, 49152')
        for i in range(6):
            a(f'buffer_load_dword v31, v6, {S4(SB_QKV)}, s7 offen')
            a.vm = []
            if i < 5: a('s_add_u32 s7, s7, 8192')
        npt += 7
    if pt & 32:
        a('s_lshr_b32 s7, s2, 3')
        a('s_and_b32 s7, s7, 31')
        a(f's_lshl_b32 s5, s{S_XCC}, 18')
        a('s_lshl_b32 s6, s7, 13')
        a('s_add_u32 s5, s5, s6')
        a(f'buffer_load_dword v31, v6, {S4(SRD_A)}, s5 offen')
        a.vm = []
        a('v_and_b32 v7, 7, v1')
        a('v_bfe_u32 v8, v1, 3, 1')
        a('v_mul_u32_u24 v8, 3072, v8')
        a('v_lshl_add_u32 v8, v2, 10, v8')
        a('v_lshl_add_u32 v8, v7, 7, v8')
        a('v_and_b32 v7, 3, v7')
        a('v_lshlrev_b32 v7, 1, v7')
        a('s_mul_i32 s7, s7, 6144')
        a('s_mov_b32 exec_lo, -1')
        a('s_mov_b32 exec_hi, 0xffff')
        for tau in range(OPT.get('ntau', 3)):
            a(f'v_add_u32 v9, {tau}, v7')
            a('v_and_b32 v9, 7, v9')
            a(f'v_mov_b32 v10, {64*3072}')
            a('v_mad_u32_u24 v9, v9, v10, v8')
            a(f'buffer_load_dword v31, v9, {S4(SB_QKV)}, s7 offen')
            a.vm = []
        a('s_mov_b64 exec, -1')
        npt += 1 + OPT.get('ntau', 3)
    if pt & 128:
        a('s_lshr_b32 s7, s2, 3')
        a('s_and_b32 s7, s7, 31')
        a('s_mul_i32 s7, s7, 49152')
        a('v_lshlrev_b32 v7, 10, v1')
        a('s_mov_b32 exec_hi, 0xffff')
        a(f'buffer_load_dword v31, v7, {S4(SB_QKV)}, s7 offen offset:384')
        a.vm = []
        a('s_mov_b64 exec, -1')
        npt += 1
    if pt & 64:
        a('s_lshr_b32 s7, s2, 3')
        a('s_and_b32 s7, s7, 31')
        a(f's_lshl_b32 s5, s{S_XCC}, 18')
        a('s_lshl_b32 s6, s7, 13')
        a('s_add_u32 s5, s5, s6')
        a(f'buffer_load_dword v31, v6, {S4(SRD_A)}, s5 offen')
        a.vm = []
        a('s_mul_i32 s7, s2, 6144')
        a('s_mov_b32 exec_hi, 0xffff')
        a(f'buffer_load_dword v31, v6, {S4(SB_QKV)}, s7 offen')
        a.vm = []
        a('s_mov_b64 exec, -1')
        npt += 2
    if pt & 1:
        late_touch(a, 6)
        npt += 4
    if pt & 4:
        a('s_mov_b64 exec, 1')
        a('s_lshl_b32 s7, s2, 11')
        for sb in (SB_WO, SB_WG, SB_WU, SB_WD):
            a(f'buffer_load_dword v31, v6, {S4(sb)}, s7 offen')
            a.vm = []
        a('s_mov_b64 exec, -1')
        npt += 4
    a(f's_waitcnt vmcnt({npt})')
    if OPT.get('dbg2'):
        TS['role'] = 'W0'
        for k in range(npt, -1, -1):
            a(f's_waitcnt vmcnt({k})')
            ts(a, f'w{k}', True)
        TS['role'] = 'all'
    a('v_readfirstlane_b32 s5, v5')
    a(f's_add_u32 s{S_VID}, s4, s5')
    a('s_cmp_lt_u32 s5, 32')
    a('s_cbranch_scc1 L_tk_ok')
    a(f's_mov_b32 s84, {SPIN}')
    a.flush_hazards()
    a.label('L_tk_wait')
    load_counters(a, 'tk', True)
    a('s_cmp_ge_u32 s85, 256')
    a('s_cbranch_scc1 L_tk_all')
    a('s_sub_u32 s84, s84, 1')
    a('s_cbranch_scc1 L_tk_all')
    a('s_sleep 2')
    a('s_branch L_tk_wait')
    a.label('L_tk_all')
    a('s_sub_u32 s5, s5, 32')
    for i in range(7):
        a(f's_max_u32 s6, s{86+i}, 32')
        a('s_sub_u32 s6, s6, 32')
        a(f's_cmp_gt_u32 s{S_XCC}, {i}')
        a('s_cselect_b32 s6, s6, 0')
        a('s_add_u32 s5, s5, s6')
    a(f's_mov_b32 s{S_VID}, 0')
    a('s_mov_b32 s7, 0')
    for i in range(8):
        a(f's_min_u32 s6, s{86+i}, 32')
        a('s_sub_u32 s8, 32, s6')
        a(f's_add_u32 s6, s6, {32*i}')
        a('s_add_u32 s6, s6, s5')
        a('s_cmp_lt_u32 s5, s8')
        a('s_cselect_b32 s10, 1, 0')
        a('s_andn2_b32 s10, s10, s7')
        a('s_or_b32 s7, s7, s10')
        a('s_cmp_lg_u32 s10, 0')
        a(f's_cselect_b32 s{S_VID}, s6, s{S_VID}')
        a('s_sub_u32 s5, s5, s8')
    a.label('L_tk_ok')
    a(f'v_mov_b32 v4, {VIDL}')
    a(f'v_mov_b32 v5, s{S_VID}')
    a('ds_write_b32 v4, v5')
    a('s_waitcnt lgkmcnt(0)')
    a('s_branch L_eT')
    a.fresh()
    a.label('L_e1')
    a('s_cmp_eq_u32 s3, 1')
    a('s_cbranch_scc0 L_eT')
    a('s_cmp_lt_u32 s2, 16')
    a('s_cbranch_scc0 L_eT')
    for i in range(4): a(f'v_mov_b32 v{4+i}, 0')
    a('v_lshlrev_b32 v8, 4, v1')
    a('s_lshl_b32 s4, s2, 11')
    for L in range(2):
        a(f's_add_u32 s5, s4, {WS_KV + L*65536}')
        for i in range(2):
            a(f'buffer_store_dwordx4 v[4:7], v8, {S4(SRD_W)}, s5 offen offset:{i*KB} sc1')
    a('s_lshl_b32 s4, s2, 7')
    a('s_mov_b64 exec, 0xff')
    for L in range(2):
        a(f's_add_u32 s5, s4, {WS_KV + L*65536 + 32768}')
        a(f'buffer_store_dwordx4 v[4:7], v8, {S4(SRD_W)}, s5 offen sc1')
    if OPT.get('nrep', 0): a('s_mov_b64 exec, -1')
    a(f's_mul_i32 s4, s2, {2048 if OPT.get("nrep", 0) else 1152}')
    a(f's_add_u32 s4, s4, {WS_SYNC}')
    a(f'buffer_store_dwordx4 v[4:7], v8, {S4(SRD_W)}, s4 offen offset:1024 sc1')
    a('s_mov_b64 exec, -1')
    a(f'buffer_store_dwordx4 v[4:7], v8, {S4(SRD_W)}, s4 offen sc1')
    if not OPT.get('lateinit', 1): init_flag(a)
    a('s_mov_b64 exec, -1')
    a.label('L_eT')
    a.fresh()
    a('s_nop 4')
    a('s_barrier')
    a(f'v_mov_b32 v4, {VIDL}')
    a('ds_read_b32 v5, v4')
    a('s_waitcnt lgkmcnt(0)')
    a(f'v_readfirstlane_b32 s{S_VID}, v5')
    a(f's_lshr_b32 s{S_TEAM}, s{S_VID}, 4')
    a(f's_and_b32 s{S_MEM}, s{S_VID}, 15')
    ts(a, 'T')
    pr = OPT.get('prio', (0, 0, 0))
    if pr[0]: a.raw(f'    s_setprio {pr[0]}')
    a('s_cmp_lt_u32 s3, 4')
    a('s_cbranch_scc1 L_comp')
    if pr[1] != pr[0]: a.raw(f'    s_setprio {pr[1]}')
    a('s_cmp_lt_u32 s3, 6')
    a('s_cbranch_scc1 L_aload')
    if pr[2] != pr[1]: a.raw(f'    s_setprio {pr[2]}')


def bloader(a, phases, bars):
    TS['role'] = 'B'
    a('s_and_b32 s4, s3, 1')
    if OPT.get('ft', 0) or OPT.get('lt'):
        srd(a, SRD_A, S_PTR + 8, 512 * 2752)
        srd(a, SRD_B, S_PTR + 10, 512 * 2752)
    a(f's_cmp_eq_u32 s{S_MEM}, 15')
    a(f's_cselect_b32 s{SB_WG+2}, 0, s{SB_WG+2}')
    a(f's_cselect_b32 s{SB_WU+2}, 0, s{SB_WU+2}')
    a('v_bfe_u32 v4, v1, 2, 2')
    a('v_bfe_u32 v5, v1, 1, 1')
    a('v_and_b32 v6, 1, v2')
    a('v_xor_b32 v5, v5, v6')
    a('v_and_b32 v6, 1, v1')
    a('v_lshlrev_b32 v5, 5, v5')
    a('v_lshl_add_u32 v5, v6, 4, v5')
    a('v_lshl_add_u32 v6, v2, 3, v4')
    a('v_lshl_add_u32 v7, v2, 2, v4')
    done = set()
    for p in phases:
        if p.vB in done: continue
        done.add(p.vB)
        hstep = 16 if p.bmap == 'F' else 4
        if p.ph == 1: a(f's_lshl_b32 s9, s{S_MEM}, 6'); n, step = 3, 1024
        elif p.ph == 3: a(f's_mul_i32 s9, s{S_MEM}, 192'); n, step = 3, 64
        else:
            a(f's_and_b32 s9, s{S_MEM}, 7'); a('s_lshl_b32 s9, s9, 7'); n, step = 2, 64
        a(f's_mul_i32 s10, s4, {hstep*p.rowB}')
        a('s_add_u32 s10, s10, s9')
        a(f'v_mul_u32_u24 v8, {p.rowB}, v{7 if p.bmap == "F" else 6}')
        a(f'v_add3_u32 v{p.vB}, v8, v5, s10')
        for i in range(1, n):
            a(f'v_add_u32 v{p.vB+i}, {i*step}, v{p.vB}')
        if p is phases[0]:
            pass
    a('s_lshl_b32 s11, s4, 10')
    chunks = []
    pos = 0
    streams = []
    for p in phases:
        if p.ph == 1 and OPT.get('qlate', 1):
            streams.append(dict(name=p.name, p=p, pieces=[(p.vB + 1, SB_QKV), (p.vB + 2, SB_QKV)], uk=2, n=8, sB=4 * KB, al=8 * KB,
                                pub=lambda c, p=p: bars.index((p.name, 'P', c)), fr=lambda c, p=p: bars.index((p.name, 'P', c)) + 1))
            streams.append(dict(name=p.name + 'q', p=p, pieces=[(p.vB, SB_QKV)], uk=4, n=4, sB=2 * KB, al=8 * KB,
                                pub=lambda c, p=p: bars.index((p.name, 'E', 0)), fr=lambda c, p=p: bars.index((p.name, 'F', 0))))
            continue
        uk = 1 if (p.ph == 4 and OPT.get('half4', 1)) else 2
        if p.ph == 3: pcs = [(p.vB + i, sb) for i in range(3) for sb in (SB_WG, SB_WU)]
        else: pcs = [(p.vB + i, {1: SB_QKV, 2: SB_WO, 4: SB_WD}[p.ph]) for i in range(p.PB // 2)]
        streams.append(dict(name=p.name, p=p, pieces=pcs, uk=uk, n=p.NC * 2 // uk, sB=p.sB,
                            al=2 * p.cB if (p.ph == 4 or (p.ph == 2 and OPT.get('qlate', 1))) else p.cB,
                            pub=lambda c, p=p, uk=uk: bars.index((p.name, 'P', c * uk // 2)),
                            fr=lambda c, p=p, uk=uk: bars.index((p.name, 'P', c * uk // 2)) + p.lag))
    for st in streams:
        al = st['al']
        pos = (pos + al - 1) // al * al
        if pos >= RB_SZ: pos = 0
        if st['name'] == 's2l1' and not OPT.get('qlate', 1): pos = 72 * KB
        pos = OPT.get('posmap', {}).get(st['name'], pos // KB) * KB
        st['b0'] = pos
        if OPT.get('verbose'): print('b0', st['name'], pos // KB)
        if st['name'].endswith('q'): st['p'].b0q = pos
        else: st['p'].b0 = pos
        for c in range(st['n']):
            chunks.append(dict(p=st, c=c, off=pos, sz=st['uk'] * st['sB'], pub=st['pub'](c), fr=st['fr'](c)))
            pos += st['uk'] * st['sB']
            if pos >= RB_SZ: pos = 0
    for i, q in enumerate(chunks):
        e = 0
        for q2 in chunks[:i]:
            if q2['off'] < q['off'] + q['sz'] and q['off'] < q2['off'] + q2['sz']:
                e = max(e, q2['fr'])
        q['e'] = e
    maxahead = OPT.get('bahead', RB_SZ)
    steps = []
    nxt = 0
    issued = []
    last = max(q['pub'] for q in chunks)
    for j in range(1, last + 1):
        iss = []
        while nxt < len(chunks) and chunks[nxt]['e'] <= j - 1:
            ahead = sum(chunks[k]['sz'] for k, _ in issued if k >= 0 and chunks[k]['pub'] >= j)
            if ahead + chunks[nxt]['sz'] > maxahead and chunks[nxt]['pub'] > j: break
            cap = OPT.get('b0n', 3) if j == 1 else OPT.get('bcap', 2)
            q = chunks[nxt]
            if q['p']['uk'] == 1:
                cap *= 2
                if bars[j][0] == q['p']['name'] and bars[j][1] == 'P' and bars[j][2] >= 2 and q['pub'] > j + OPT.get('h4m', 3) and (bars[j][0][3] == '1' or bars[j][2] < OPT.get('p4end', 99)): cap = 1
            if q['p']['name'][:4] == 's1l1' and bars[j][0] == 's4l0' and bars[j][1] == 'P': cap = OPT.get('c1cap', cap)
            bj = bars[j]
            if OPT.get('qhold') and q['p']['name'] == 's1l1q': cap = 1 if (bj[0] == 's1l1' and bj[2] >= OPT['qhold']) else 0
            key = bj[0][:2] + bj[1] + (str(bj[2]) if bj[1] == 'P' else '')
            if j > 1 and key in OPT.get('quiet', ()): cap = 0
            if OPT.get('wolate', 1) and q['p']['name'][:2] == 's2' and bj[0][:2] == 's1':
                cap = 99 if bj[1] in 'FG' else 0
                cap = OPT.get('wcap', {}).get(bj[0] + bj[1] + str(bj[2]), cap)
            if len(iss) >= cap and chunks[nxt]['pub'] > j + 1: break
            iss.append((q['p']['name'], q['c'] == 0))
            issued.append((nxt, len(q['p']['pieces']) * q['p']['uk']))
            nxt += 1
        for (bar, mat) in OPT.get('sl', ()):
            if bars[j] == bar:
                iss.append(('S' + mat, True))
                issued.append((-1, 1))
        if OPT.get('lt') and bars[j] == OPT['lt']:
            iss.append(('LT', True))
            issued.append((-1, 3))
        for (tph, t0, t1, mat) in OPT.get('ft', ()):
            bj = bars[j]
            if bj[0] == tph and bj[1] == 'P' and t0 <= bj[2] < t1:
                iss.append((f'F{mat}{t1-t0}', bj[2] == t0))
                issued.append((-1, 1))
        for tk, (tkey, tn) in OPT.get('l2t', {}).items():
            bj = bars[j]
            if tkey == bj[0][:2] + bj[1] + (str(bj[2]) if bj[1] == 'P' else '') and not (tk[0] == 'q' and bj[0][3] == '1') and bj[0][3] in OPT.get('l2tl', '01'):
                iss.append(('T' + tk, True))
                issued.append((-1, tn))
        w = None
        for k, (ci, n) in enumerate(issued):
            if ci >= 0 and chunks[ci]['pub'] == j:
                w = min(63, sum(x[1] for x in issued[k+1:]))
        if any(q['pub'] == j for q in chunks): assert w is not None, ('chunk not issued in time', j, bars[j])
        steps.append((tuple(iss), w, bars[j]))
    byname = {p.name: p for p in phases}
    bystream = {st['name']: st for st in streams}
    for tk, (tkey, tn) in OPT.get('l2t', {}).items(): bystream['T' + tk] = (tk, tn)

    for (tph, t0, t1, mat) in OPT.get('ft', ()): bystream[f'F{mat}{t1-t0}'] = [mat, t1 - t0]

    def ftouch(mat, n, first):
        tot = {'q': 512 * 3072, 'd': 1376 * 1024, 'o': 512 * 1024, 'g': 512 * 2752, 'u': 512 * 2752}[mat]
        sb = {'q': SB_QKV, 'd': SB_WD, 'o': SB_WO, 'g': SRD_A, 'u': SRD_B}[mat]
        sr = {'q': 56, 'd': 57, 'o': 56, 'g': 56, 'u': 57}[mat]
        lanes = -(-tot // (128 * 64 * n))
        assert lanes <= 64
        if first:
            a(f's_and_b32 s{sr}, s{S_VID}, 31')
            a(f's_mul_i32 s{sr}, s{sr}, {2*n*lanes*128}')
            a(f's_mul_i32 s54, s4, {lanes*128}')
            a(f's_add_u32 s{sr}, s{sr}, s54')
            a('v_lshlrev_b32 v32, 7, v1')
        m = (1 << lanes) - 1
        a(f's_mov_b32 exec_lo, {hex(m & 0xffffffff)}')
        a(f's_mov_b32 exec_hi, {hex(m >> 32)}')
        a(f'buffer_load_dword v31, v32, {S4(sb)}, s{sr} offen')
        a.vm = []
        a('s_mov_b64 exec, -1')
        a(f's_add_u32 s{sr}, s{sr}, {2*lanes*128}')

    bystream['LT'] = 'LT'
    for m_ in 'qdoOT': bystream['S' + m_] = 'S' + m_

    def stouch1(mat):
        if mat == 'T':
            srd(a, SRD_M, S_PTR + 14, 2048 * 1024)
            a(f's_cmp_eq_u32 s{S_MEM}, 15')
            a(f's_cselect_b32 s{SRD_M+2}, s{SRD_M+2}, 0')
            a('v_lshlrev_b32 v32, 16, v1')
            a('s_mov_b32 exec_hi, 0')
            a(f'buffer_load_dword v31, v32, {S4(SRD_M)}, 0 offen offset:4092')
            a.vm = []
            a('s_mov_b64 exec, -1')
            return
        if mat == 'O':
            a(f's_lshl_b32 s53, s{S_VID}, 1')
            a('s_add_u32 s53, s53, s4')
            a('s_lshl_b32 s53, s53, 10')
            a('v_lshlrev_b32 v32, 7, v1')
            a('s_mov_b64 exec, 0xff')
            a(f'buffer_load_dword v31, v32, {S4(SB_WO)}, s53 offen')
            a.vm = []
            a('s_mov_b64 exec, -1')
            return
        n = {'q': 24, 'd': 22, 'o': 8}[mat]
        a(f's_and_b32 s53, s{S_VID}, 31')
        a('s_lshl_b32 s53, s53, 1')
        a('s_add_u32 s53, s53, s4')
        a(f's_mul_i32 s53, s53, {n*KB}')
        a('v_lshlrev_b32 v32, 10, v1')
        a(f's_mov_b64 exec, {hex((1 << n) - 1)}')
        a(f'buffer_load_dword v31, v32, {S4({"q": SB_QKV, "d": SB_WD, "o": SB_WO}[mat])}, s53 offen offset:384')
        a.vm = []
        a('s_mov_b64 exec, -1')

    def ltouch():
        a('v_lshlrev_b32 v32, 8, v1')
        a('s_lshl_b32 s55, s4, 7')
        a('s_mul_i32 s53, s2, 5504')
        a('s_add_u32 s53, s53, s55')
        a('s_mov_b64 exec, 0x3fffff')
        for sb in (SRD_A, SRD_B, SB_WD):
            a(f'buffer_load_dword v31, v32, {S4(sb)}, s53 offen')
            a.vm = []
        a('s_mov_b64 exec, -1')

    def l2touch(tk, tn):
        if tk[0] == 'g':
            f0 = int(tk[1:])
            a(f's_mul_i32 s53, s{S_MEM}, 192')
            a('s_mul_i32 s54, s4, 188')
            a('s_add_u32 s53, s53, s54')
            a(f's_and_b32 s54, s{S_TEAM}, 1')
            a('s_lshl_b32 s54, s54, 2')
            a(f's_add_u32 s54, s54, s{S_MEM}')
            a('s_lshl_b32 s54, s54, 5')
            a('v_mov_b32 v33, 2752')
            for i in range(f0, f0 + tn):
                if i % 2 == 0 or i == f0:
                    a(f's_add_u32 s55, s54, {256 + 64*(i//2)}')
                    a('v_add_u32 v32, s55, v1')
                    a('v_and_b32 v32, 511, v32')
                    a('v_mul_u32_u24 v32, v32, v33')
                a(f'buffer_load_dword v31, v32, {S4(SB_WU if i % 2 else SB_WG)}, s53 offen')
                a.vm = []
        else:
            f0 = int(tk[1:])
            per = {'d': 44032, 'q': 49152}[tk[0]]
            a(f's_and_b32 s53, s{S_VID}, 31')
            a(f's_mul_i32 s53, s53, {per}')
            a('s_lshl_b32 s54, s4, 13')
            a('s_add_u32 s53, s53, s54')
            a('v_lshlrev_b32 v32, 7, v1')
            for i in range(f0, f0 + tn):
                a(f's_add_u32 s55, s53, {i*16384}')
                a(f'buffer_load_dword v31, v32, {S4(SB_WD if tk[0] == "d" else SB_QKV)}, s55 offen')
                a.vm = []

    byname['TOUCH'] = None

    def btouch():
        a('s_lshr_b32 s53, s2, 3')
        a('s_and_b32 s53, s53, 31')
        a('s_mul_i32 s53, s53, 6144')
        a('s_mul_i32 s54, s4, 3072')
        a('s_add_u32 s53, s53, s54')
        a('v_and_b32 v30, 7, v1')
        a('v_lshrrev_b32 v31, 3, v1')
        a('v_lshlrev_b32 v31, 10, v31')
        a('v_lshl_add_u32 v31, v30, 7, v31')
        a('v_and_b32 v30, 3, v30')
        a('v_lshlrev_b32 v30, 1, v30')
        a(f'v_mov_b32 v33, {64*3072}')
        a('s_mov_b64 exec, 0xffffff')
        for tau in range(OPT.get('ntau', 3), 8):
            a(f'v_add_u32 v32, {tau}, v30')
            a('v_and_b32 v32, 7, v32')
            a('v_mad_u32_u24 v32, v32, v33, v31')
            a(f'buffer_load_dword v31, v32, {S4(SB_QKV)}, s53 offen')
            a.vm = []
        a('s_mov_b64 exec, -1')
        a('v_lshlrev_b32 v30, 8, v1')
        a('s_lshl_b32 s55, s4, 7')
        a('s_mul_i32 s53, s2, 5504')
        a('s_add_u32 s53, s53, s55')
        a('s_lshl_b32 s54, s2, 11')
        a('s_add_u32 s54, s54, s55')
        a('s_mov_b64 exec, 0xff')
        a(f'buffer_load_dword v31, v30, {S4(SB_WO)}, s54 offen')
        a.vm = []
        a('s_mov_b64 exec, 0x3fffff')
        for sb in (SRD_A, SRD_B, SB_WD):
            a(f'buffer_load_dword v31, v30, {S4(sb)}, s53 offen')
            a.vm = []
        a('s_mov_b64 exec, -1')

    PACE = [0]

    def issue(st, first):
        if st == 'LT': return ltouch()
        if isinstance(st, str): return stouch1(st[1])
        if isinstance(st, tuple): return l2touch(*st)
        if isinstance(st, list): return ftouch(st[0], st[1], first)
        p = st['p']
        if first:
            phase_map(a, p)
            a(f's_mul_i32 s7, s14, {p.strideB}')
            a(f's_add_u32 s5, s11, {st["b0"]}')
        for kk in range(st['uk']):
            for i, (vr, sb) in enumerate(st['pieces']):
                a(f's_add_u32 m0, s5, {kk*st["sB"] + 2*i*KB}')
                nt = st['name'] in OPT.get('bnt', ()) or (sb == SB_WU and 'wu' in OPT.get('bnt', ()))
                a(f'buffer_load_dwordx4 v{vr}, {S4(sb)}, s7 offen {OPT.get("bntm", "nt") if nt else ""} lds')
                if PACE[0]: a(f's_sleep {PACE[0]}')
            a(f's_add_u32 s7, s7, {p.strideB}')
            a(f's_cmp_eq_u32 s7, {2*p.NC*p.strideB}')
            a('s_cselect_b32 s7, 0, s7')
        a(f's_add_u32 s5, s5, {st["uk"]*st["sB"]}')
        a(f's_cmp_ge_u32 s5, {RB_SZ}')
        a('s_cselect_b32 s5, s11, s5')

    def emit_iss(iss, tag):
        k = 0
        while k < len(iss):
            m = k
            while m < len(iss) and iss[m] == iss[k]: m += 1
            n = m - k
            if n >= 3 and not iss[k][1]:
                a(f's_mov_b32 s8, {n}')
                a.flush_hazards()
                a.loop_begin(f'L_bi_{tag}_{k}')
                issue(bystream[iss[k][0]], False)
                a('s_sub_u32 s8, s8, 1')
                a('s_cmp_lg_u32 s8, 0')
                a(f's_cbranch_scc1 L_bi_{tag}_{k}')
                a.loop_end_check()
            else:
                for x in iss[k:m]: issue(bystream[x[0]], x[1])
            k = m

    i = 0
    while i < len(steps):
        m = i
        while m < len(steps) and steps[m][:2] == steps[i][:2] and not (TS['on'] and m > i and steps[m][2][1] != 'P'): m += 1
        n = m - i
        iss, w, bar = steps[i]
        if TS['on'] and bar[1] != 'P': n = 1; m = i + 1
        if n >= 2 and len(iss) <= 2:
            a(f's_mov_b32 s9, {n}')
            a.flush_hazards()
            a.loop_begin(f'L_bs_{i}')
            for x in iss: issue(bystream[x[0]], x[1])
            if w is not None: a(f's_waitcnt vmcnt({w})')
            tsl(a, byname[bar[0]], 'pre')
            a('s_barrier')
            a('s_sub_u32 s9, s9, 1')
            a('s_cmp_lg_u32 s9, 0')
            a(f's_cbranch_scc1 L_bs_{i}')
            a.loop_end_check()
            i = m
        else:
            PACE[0] = OPT.get('pace', {}).get(bar[0] + bar[1] + str(bar[2]), 0)
            bp = OPT.get('bprio', {}).get(bar[0][:2] + bar[1] + str(bar[2]))
            if bp is not None: a.raw(f'    s_setprio {bp}')
            pre = OPT.get('presl', {}).get(bar[0] + bar[1] + str(bar[2]), 0)
            if pre: a(f's_sleep {pre}')
            emit_iss(iss, i)
            PACE[0] = 0
            if w is not None: a(f's_waitcnt vmcnt({w})')
            if bar[1] != 'P' or bar[2] == 0: ts(a, f'{bar[0]}.pre{bar[1]}')
            else: tsl(a, byname[bar[0]], 'pre')
            a('s_barrier')
            i += 1
        a.vm = []
    ts_flush(a)
    a('s_endpgm')
    a.fresh()
    return steps


def aloader(a, phases):
    TS['role'] = 'A'
    a.label('L_aload')
    a('s_and_b32 s4, s3, 1')
    a('v_mov_b32 v40, 1')
    a(f's_lshl_b32 s5, s{S_MEM}, 2')
    a('v_mov_b32 v41, s5')
    a('v_lshlrev_b32 v42, 2, v1')
    a(f's_and_b32 s5, s{S_VID}, 31')
    a('s_lshl_b32 s5, s5, 2')
    a('v_mov_b32 v43, s5')
    a(f's_lshr_b32 s5, s{S_VID}, 5')
    a('s_lshl_b32 s5, s5, 2')
    nrep = OPT.get('nrep', 0)
    rsh = {0: 7, 8: 9, 16: 8, 32: 7, 64: 6}[nrep]
    a(f'v_lshl_add_u32 v48, v1, {rsh}, s5')
    a(f'v_lshl_add_u32 v47, v1, 8, s{S_VID}')
    a('v_lshlrev_b32 v16, 4, v1')
    a('v_lshrrev_b32 v4, 3, v1')
    a('v_and_b32 v5, 7, v1')
    a(f'v_mul_u32_u24 v4, {43*KB}, v4')
    a('v_lshl_add_u32 v49, v5, 7, v4')
    a('v_lshlrev_b32 v50, 7, v1')
    a('v_and_b32 v4, 3, v1')
    a('v_lshlrev_b32 v4, 6, v4')
    a('v_and_b32 v5, 60, v1')
    a('v_add_u32 v55, v4, v5')
    ksync = 0
    for pi, p in enumerate(phases):
        nA = p.RT // 2
        per2 = 2 * nA
        NC, DC = p.NC, p.DC
        assert p.NCH >= DC + p.lag and (DC - 1) * per2 <= 63
        phase_map(a, p)
        if p.ph == 1:
            a('s_lshl_b32 s8, s12, 17')
            if p.L: a(f's_add_u32 s8, s8, {WS_X2}')
        elif p.ph == 3:
            a('s_lshl_b32 s8, s12, 17')
            a(f's_add_u32 s8, s8, {WS_X1[p.L]}')
        else:
            a(f's_mul_i32 s8, s12, {4*p.KSA*KB}')
            a(f's_add_u32 s8, s8, {WS_PQ[p.L] if p.ph == 2 else WS_H[p.L]}')
        if p.amode == 'F':
            a(f's_mul_i32 s10, s4, {p.KSA*KB}')
            a('s_add_u32 s10, s10, s8')
            a('v_lshl_add_u32 v8, v1, 4, s10')
            astep = 2 * p.KSA * KB
        else:
            a('v_lshrrev_b32 v4, 2, v1')
            a('v_and_b32 v5, 3, v1')
            a('v_sub_u32 v6, 4, v2')
            a('v_and_b32 v6, 3, v6')
            a('v_xor_b32 v5, v5, v6')
            a('v_lshlrev_b32 v4, 10, v4')
            a('v_lshl_add_u32 v8, v5, 4, v4')
            a('s_lshl_b32 s10, s4, 14')
            a('s_add_u32 s10, s10, s8')
            a('v_add_u32 v8, s10, v8')
            astep = 2 * 16 * KB
        for i in range(1, nA):
            a(f'v_add_u32 v{8+i}, {i*astep}, v8')
        a(f's_mul_i32 s6, s14, {p.strideA}')
        a('s_lshl_b32 s10, s4, 10')
        a(f's_add_u32 s10, s10, {RA0}')
        a('s_mov_b32 s5, s10')
        a(f's_add_u32 s11, s10, {p.NCH*p.cA}')
        a('s_mov_b32 s9, 0')
        spec = stouch_setup(a, p, 4, 2)
        if pi == 1: srd(a, SRD_A, S_WS, WS_BYTES)
        if p.ph == 3:
            a(f's_cmp_eq_u32 s{S_MEM}, 15')
            a(f's_cselect_b32 s{SRD_A+2}, 0, s{SRD_A+2}')
        if p.ph == 4:
            a(f's_mov_b32 s{SRD_A+2}, {WS_BYTES}')
        if p.stats:
            a('s_lshl_b32 s7, s12, 1')
            a('s_add_u32 s7, s7, s4')
            a('s_lshl_b32 s7, s7, 12')
            a(f's_add_u32 s7, s7, {WS_ST1[p.L] if p.ph == 3 else WS_ST2}')
        if pi > 0:
            prev = phases[pi - 1]
            kinds = ['t']
            if prev.ph == 1: kinds = ['g', 't'] if OPT.get('qlate', 1) else ['g']
            for kind in kinds:
                glob = (kind == 'g')
                tag = p.name + kind
                if glob:
                    a(f's_lshr_b32 s15, s{S_VID}, 5')
                    a('s_lshl_b32 s15, s15, 7')
                    a(f's_add_u32 s15, s15, {WS_SYNC + 14336 + prev.L*2048}')
                    a(f's_add_u32 s97, s15, 1024')
                    if nrep:
                        a(f's_lshr_b32 s97, s{S_VID}, {rsh - 4}')
                        a(f's_lshl_b32 s97, s97, {rsh}')
                        a(f's_add_u32 s97, s97, {WS_SYNC + 18432 + prev.L*4096}')
                else:
                    a(f's_lshl_b32 s15, s{S_TEAM}, 7')
                    a(f's_add_u32 s15, s15, {WS_SYNC + ksync*2048}')
                    ksync += 1
                gb = OPT.get('gb', 0) if glob else 0
                if gb:
                    a(f's_mov_b32 s15, {WS_SYNC + 14336 + prev.L*2048}')
                    a(f's_lshr_b32 s97, s{S_VID}, 5')
                    a('s_lshl_b32 s97, s97, 8')
                    a('s_add_u32 s97, s97, s15')
                ts(a, prev.name + '.preE' + kind)
                a('s_barrier')
                ts(a, prev.name + '.E' + kind)
                if gb:
                    a('s_cmp_eq_u32 s3, 4')
                    a(f's_cbranch_scc0 L_ns_{tag}')
                    a.begin_opt()
                    a('s_mov_b64 exec, 0xff')
                    a(f's_cmp_eq_u32 s{S_HET}, 0')
                    a(f's_cbranch_scc1 L_hom_{tag}')
                    a.raw('    buffer_wbl2 sc1')
                    a('s_waitcnt vmcnt(0)')
                    a.label(f'L_hom_{tag}')
                    a(f'buffer_store_byte v40, v47, {S4(SRD_W)}, s15 offen sc1')
                    a('s_mov_b64 exec, -1')
                    if gb == 1: poll(a, tag, 44, 1, 42, f'{S4(SRD_W)}, s97', -1, full=True)
                    a.end_opt()
                    a.label(f'L_ns_{tag}')
                    a.vm = []
                    if gb == 2: poll(a, tag, 44, 1, 42, f'{S4(SRD_W)}, s97', -1, full=True)
                    ts(a, p.name + '.flag' + kind)
                    a('s_barrier')
                    continue
                a('s_cmp_eq_u32 s3, 4')
                a(f's_cbranch_scc0 L_ns_{tag}')
                a.begin_opt()
                a('s_mov_b64 exec, 1')
                a(f's_cmp_eq_u32 s{S_HET}, 0')
                a(f's_cbranch_scc1 L_hom_{tag}')
                a.raw('    buffer_wbl2 sc1')
                a('s_waitcnt vmcnt(0)')
                vo = 43 if glob else 41
                a(f'buffer_store_dword v40, v{vo}, {S4(SRD_W)}, s15 offen sc1')
                a(f's_branch L_sg_{tag}')
                a.label(f'L_hom_{tag}')
                a(f'buffer_store_dword v40, v{vo}, {S4(SRD_W)}, s15 offen')
                a.label(f'L_sg_{tag}')
                a('s_mov_b64 exec, -1')
                if glob:
                    a(f's_and_b32 s85, s{S_VID}, 31')
                    a('s_cmp_eq_u32 s85, 0')
                    a(f's_cbranch_scc0 L_nl_{tag}')
                    vp = lambda: poll(a, 'g' + tag, 44, 1, 42, f'{S4(SRD_W)}, s15', 0xffffffff)
                    if OPT.get('spoll', 0) & 2: spoll(a, 'g' + tag, 's15', 2, vp)
                    else: vp()
                    a(f's_mov_b32 s85, {WS_SYNC + 18432 + prev.L*4096 if nrep else WS_SYNC + 14336 + prev.L*2048 + 1024}')
                    if nrep == 32: a('s_mov_b32 exec_hi, 0')
                    elif nrep != 64: a(f's_mov_b64 exec, {hex((1 << (nrep or 8)) - 1)}')
                    a(f'buffer_store_dword v40, v48, {S4(SRD_W)}, s85 offen sc1')
                    a('s_mov_b64 exec, -1')
                    if OPT.get('gsl', 0):
                        a(f's_branch L_nl2_{tag}')
                        a.label(f'L_nl_{tag}')
                        a(f's_sleep {OPT["gsl"]}')
                        a.label(f'L_nl2_{tag}')
                    else: a.label(f'L_nl_{tag}')
                    if OPT.get('gp', 0): poll(a, tag, 44, 1, 42, f'{S4(SRD_W)}, s97', 0xff)
                a.end_opt()
                a.label(f'L_ns_{tag}')
                a.vm = []
                if glob and OPT.get('gp', 0): pass
                elif glob: poll(a, tag, 44, 1, 42, f'{S4(SRD_W)}, s97', 0xff)
                elif OPT.get('spoll', 0) & 1:
                    spoll(a, tag, 's15', 1, lambda: poll(a, tag, 44, 1, 42, f'{S4(SRD_W)}, s15', 0xffff))
                else: poll(a, tag, 44, 1, 42, f'{S4(SRD_W)}, s15', 0xffff)
                ts(a, p.name + '.flag' + kind)
                if glob: a('s_barrier')
        if p.stats:
            for t in range(4):
                a(f'buffer_load_dwordx4 {R(20+4*t)}, v16, {S4(SRD_W)}, s7 offen offset:{t*KB} sc1')
            if p.st2:
                a(f's_add_u32 s7, s7, {128*KB}')
                for t in range(4):
                    a(f'buffer_load_dwordx4 {R(56+4*t)}, v16, {S4(SRD_W)}, s7 offen offset:{t*KB} sc1')
            if OPT.get('dbg1') and OPT.get('tsp') == p.name:
                tsl(a, p, 'iss')
                a('s_waitcnt vmcnt(0)')
                tsl(a, p, 'stl')
                a(f's_add_u32 m0, s5, 0')
                a(f'buffer_load_dwordx4 v8, {S4(SRD_A)}, s6 offen lds')
                a('s_waitcnt vmcnt(0)')
                tsl(a, p, 'a1')
                a(f'buffer_load_dwordx4 v9, {S4(SRD_A)}, s6 offen lds')
                a('s_waitcnt vmcnt(0)')
                tsl(a, p, 'a2')
        a.flush_hazards()
        a.loop_begin(f'L_li_{p.name}')
        if p.amode == 'R' and OPT.get('evenrot', 1):
            for i in range(nA):
                for kk in range(2):
                    a(f's_add_u32 m0, s5, {kk*p.sA + i*2*KB - kk*64}')
                    a(f'buffer_load_dwordx4 v{8+i}, {S4(SRD_A)}, s6 offen offset:{kk*64} lds')
            a(f's_add_u32 s6, s6, {2*p.strideA}')
            a(f's_cmp_eq_u32 s6, {2*NC*p.strideA}')
            a('s_cselect_b32 s6, 0, s6')
        for kk in range(0 if (p.amode == 'R' and OPT.get('evenrot', 1)) else 2):
            sa = 's6'
            if p.padk:
                a(f's_cmp_eq_u32 s6, {p.NKreal*p.strideA}')
                a(f's_cselect_b32 s8, 0x10000000, s6')
                sa = 's8'
            for i in range(nA):
                a(f's_add_u32 m0, s5, {kk*p.sA + i*2*KB}')
                a(f'buffer_load_dwordx4 v{8+i}, {S4(SRD_A)}, {sa} offen {OPT.get("amod", "")} lds')
            a(f's_add_u32 s6, s6, {p.strideA}')
            a(f's_cmp_eq_u32 s6, {2*NC*p.strideA}')
            a('s_cselect_b32 s6, 0, s6')
        a(f's_add_u32 s5, s5, {p.cA}')
        a('s_cmp_eq_u32 s5, s11')
        a('s_cselect_b32 s5, s10, s5')
        a('s_add_u32 s9, s9, 1')
        apro = p.lag if OPT.get('apro', 0) & (1 << pi) else 0
        assert (DC + apro - 1) * per2 <= 63
        a(f's_cmp_lt_u32 s9, {DC + apro}')
        a(f's_cbranch_scc1 L_li_{p.name}')
        if apro:
            a(f's_cmp_eq_u32 s9, {DC+apro}')
            a(f's_cbranch_scc0 L_lp_{p.name}')
            for x in range(apro):
                a(f's_waitcnt vmcnt({(DC+apro-1-x)*per2})')
                tsl(a, p, 'pre')
                a('s_barrier')
            a.label(f'L_lp_{p.name}')
        stouch(a, spec, 9)
        a(f's_waitcnt vmcnt({(DC-1)*per2})')
        tsl(a, p, 'pre')
        a('s_barrier')
        a(f's_cmp_lt_u32 s9, {NC}')
        a(f's_cbranch_scc1 L_li_{p.name}')
        a.loop_end_check()
        a.vm = []
        nt = 0
        vt = OPT.get('vtouch', 7)
        if p.name == 's1l0' and vt & 1:
            a(f's_mul_i32 s53, s12, {8*43*KB}')
            a('s_lshl_b32 s54, s13, 10')
            a('s_add_u32 s53, s53, s54')
            a(f's_add_u32 s53, s53, {WS_PQ[0]}')
            a(f's_lshl_b32 s54, s{S_VID}, 13')
            a(f's_add_u32 s54, s54, {WS_X1[0]}')
            a('s_cmp_eq_u32 s4, 0')
            a('s_cselect_b32 s53, s53, s54')
            a('s_cselect_b64 vcc, -1, 0')
            a('v_cndmask_b32 v51, v50, v49, vcc')
            a(f'buffer_load_dword v52, v51, {S4(SRD_W)}, s53 offen sc1')
            a(f's_lshl_b32 s54, s{S_VID}, 9')
            a(f's_add_u32 s54, s54, {WS_ST1[0]}')
            a('s_lshl_b32 s53, s4, 17')
            a('s_add_u32 s54, s54, s53')
            a('s_mov_b64 exec, 15')
            a(f'buffer_load_dword v53, v50, {S4(SRD_W)}, s54 offen sc1')
            a('s_mov_b64 exec, -1')
            nt = 2
        if pi == 0:
            a(f'buffer_load_dword v54, v42, {S4(SRD_M)}, 0 offen sc1')
            nt += 1
        if p.name == 's1l0' and OPT.get('pretouch', 65) & 8:
            a('s_cmp_eq_u32 s4, 0')
            a('s_cselect_b32 s%d, s%d, 0' % (SB_WO + 2, SB_WO + 2))
            a('s_cselect_b32 s%d, s%d, 0' % (SB_WG + 2, SB_WG + 2))
            a('s_cselect_b32 s%d, 0, s%d' % (SB_WU + 2, SB_WU + 2))
            a('s_cselect_b32 s%d, 0, s%d' % (SB_WD + 2, SB_WD + 2))
            late_touch(a, 50)
            nt += 4
        if p.ph == 3 and vt & (2 << p.L):
            a(f's_mul_i32 s53, s12, {8*43*KB}')
            a(f's_mul_i32 s54, s13, {3*KB}')
            a('s_add_u32 s53, s53, s54')
            a(f's_add_u32 s53, s53, {WS_H[p.L]}')
            a('s_lshl_b32 s54, s4, 10')
            a('s_add_u32 s54, s54, s53')
            a(f'buffer_load_dword v52, v49, {S4(SRD_W)}, s54 offen sc1')
            a('s_cmp_eq_u32 s4, 0')
            a('s_cselect_b32 exec_lo, -1, 0')
            a('s_cselect_b32 exec_hi, 0, -1')
            a(f'buffer_load_dword v53, v49, {S4(SRD_W)}, s53 offen offset:2048 sc1')
            a('s_mov_b64 exec, -1')
            nt = 2
        a.vm = []
        if p.stats:
            if p.st2:
                for t in range(8):
                    a(pk('v_pk_add_f32', 20 + 2 * t, 20 + 2 * t, 56 + 2 * t))
            for t in range(4):
                a(pk('v_pk_add_f32', 20 + 4 * t, 20 + 4 * t, 22 + 4 * t))
            a('v_and_b32 v17, 1, v1')
            a('v_cmp_eq_u32 vcc, 1, v17')
            for t in range(4):
                for e in range(2):
                    r = 20 + 4 * t + e
                    a(f'v_add_f32_dpp v{r}, v{r}, v{r} quad_perm:[1,0,3,2] row_mask:0xf bank_mask:0xf')
            for h in range(2):
                for e in range(2):
                    a(f'v_cndmask_b32 v{20+8*h+e}, v{20+8*h+e}, v{24+8*h+e}, vcc')

            def stats2():
                a('v_and_b32 v17, 2, v1')
                a('v_cmp_eq_u32 vcc, 2, v17')
                for h in range(2):
                    for e in range(2):
                        r = 20 + 8 * h + e
                        a(f'v_add_f32_dpp v{r}, v{r}, v{r} quad_perm:[2,3,0,1] row_mask:0xf bank_mask:0xf')
                for e in range(2):
                    a(f'v_cndmask_b32 v{20+e}, v{20+e}, v{28+e}, vcc')
                stats_finish(a, 20, 21, 22, 23, 17)
                a('s_lshl_b32 s8, s4, 8')
                a(f's_add_u32 s8, s8, {p.STB}')
                a('v_add_u32 v18, s8, v55')
                a(f'ds_write_b32 v18, v22')
                a(f'ds_write_b32 v18, v23 offset:512')
                a('s_waitcnt lgkmcnt(0)')
        for r in range(1, DC):
            if spec and max(x[1] for x in spec) + 1 >= NC - DC + 1 + r:
                a('s_add_u32 s9, s9, 1')
                stouch(a, spec, 9)
            a(f's_waitcnt vmcnt({(DC-1-r)*per2 + nt})')
            tsl(a, p, 'pre')
            a('s_barrier')
        a.vm = []
        if p.final: break
        if p.stats: stats2()
        a('s_barrier')
        if pi == 0:
            a(f's_mov_b32 s84, {SPIN}')
            a('s_mov_b32 s52, 0x06060606')
            a('s_mov_b32 s53, 0x06060606')
            a(f's_lshr_b32 s94, s{S_TEAM}, 1')
            a('s_lshl_b32 s94, s94, 3')
            a('s_waitcnt vmcnt(0)')
            a('s_branch L_het1')
            a.label('L_het')
            a('s_sleep 2')
            a(f'buffer_load_dword v54, v42, {S4(SRD_M)}, 0 offen sc1')
            a('s_waitcnt vmcnt(0)')
            a.label('L_het1')
            a('s_sub_u32 s84, s84, 1')
            a(f's_mov_b32 s{S_HET}, 1')
            a('s_cbranch_scc1 L_het_done')
            a('v_cmp_eq_u32 vcc, 0, v54')
            a('v_readlane_b32 s95, v54, s94')
            a('s_nop 0')
            a('s_and_b64 s[54:55], vcc, s[52:53]')
            a('s_cbranch_scc1 L_het')
            if not OPT.get('fakexcc', 0):
                a(f's_mov_b32 s{S_HET}, 0')
                a('s_cmp_ge_u32 s95, 32')
                a('s_cbranch_scc1 L_het_done')
                a(f's_mov_b32 s{S_HET}, 1')
                for i in range(8):
                    a(f'v_readlane_b32 s{86+i}, v54, {8*i}')
                a('s_add_u32 s85, s86, s87')
                for i in range(2, 8):
                    a(f's_add_u32 s85, s85, s{86+i}')
                a('s_cmp_ge_u32 s85, 256')
                a('s_cbranch_scc0 L_het')
            a.label('L_het_done')
            a.vm = []
        for _ in range(p.nX): a('s_barrier')
    ts_flush(a)
    a('s_endpgm')
    a.fresh()


def comp_s1(a, p):
    name = p.name; L = p.L
    STB = p.STB
    ZB = SCR + 8 * KB
    first = (L == 0)
    KVB = WS_KV + L * 65536
    ACQ, ACK, ACV = 64, 80, 96
    SS, SG, CS = 112, 120, 128
    FR = 152
    ONES = 216
    fixed = [8, 9, 10]; cur = [11, 12, 13]
    vX, vW0, vW1 = cur
    vKVa, vZa, vT, vDb = 17, 18, 20, 21
    phase_map(a, p)
    a('s_lshl_b32 s4, s3, 11')
    a(f's_add_u32 s4, s4, {RA0}')
    xbase(a, 8, 4, p.amode)
    wpat(a, 9, 10)
    a('s_lshl_b32 s5, s13, 11')
    a('s_lshl_b32 s6, s3, 9')
    a('s_add_u32 s5, s5, s6')
    a(f's_add_u32 s5, s5, {KVB}')
    a(f'v_lshl_add_u32 v{vKVa}, v1, 2, s5')
    a('s_lshl_b32 s5, s13, 7')
    a(f's_add_u32 s5, s5, {KVB + 32768}')
    a(f'v_lshl_add_u32 v{vZa}, v1, 2, s5')
    a('v_lshlrev_b32 v14, 4, v2')
    a(f'v_add_u32 v14, {CS1L}, v14')
    a('v_lshlrev_b32 v15, 2, v3')
    a(f'v_add_u32 v15, {CS1L}, v15')
    if first:
        a('v_lshrrev_b32 v4, 1, v1')
        a('v_and_b32 v5, 1, v1')
        a('v_lshlrev_b32 v4, 5, v4')
        a('v_lshl_add_u32 v4, v5, 2, v4')
        a(f'v_add_u32 v{vDb}, 4, v4')
    a('s_lshl_b32 s7, s12, 3')
    a('s_lshl_b32 s5, s3, 1')
    a('s_add_u32 s7, s7, s5')
    a('s_mul_i32 s7, s7, 43')
    a('s_add_u32 s7, s7, s13')
    a('s_lshl_b32 s7, s7, 10')
    a(f's_add_u32 s7, s7, {WS_PQ[L]}')
    if OPT.get('otouch', 0):
        a('v_lshrrev_b32 v4, 3, v1')
        a('v_and_b32 v5, 7, v1')
        a(f'v_mul_u32_u24 v4, {43*KB}, v4')
        a('v_lshl_add_u32 v252, v5, 7, v4')
        p.touch = ['s_mov_b64 exec, 0xffff', f'buffer_load_dword v254, v252, {S4(SRD_W)}, s7 offen sc1', 's_mov_b64 exec, -1']
    for i in range(4): a(f'v_mov_b32 v{ONES+i}, 0x3f803f80')
    for r in range(64, 152 if first else 112): a(f'v_mov_b32 v{r}, 0')
    if first and OPT.get('lateinit', 1):
        a('s_cmp_eq_u32 s3, 1')
        a('s_cbranch_scc0 L_noif')
        a('s_cmp_lt_u32 s2, 16')
        a('s_cbranch_scc0 L_noif')
        a.begin_opt()
        init_flag(a)
        a.end_opt()
        a.label('L_noif')
        a.vm = []
    if first and OPT.get('pretouch', 65) & 16:
        a('v_lshlrev_b32 v22, 7, v1')
        p.touch = ['LATE']

    def fx(s, t): return FR + 32 * s + 4 * t
    def fw(s, q, u): return FR + 32 * s + 8 + 4 * (2 * q + u)

    def reads(s, kk):
        l = [rd128(fx(s, 0), vX, kk * p.sA), rd128(fx(s, 1), vX, kk * p.sA + KB)]
        for q in range(3):
            for u in range(2):
                for h in range(2):
                    l.append(rdtr(fw(s, q, u) + 2 * h, vW1 if u else vW0, kk * p.sB + (2 * q + h) * KB))
        return l

    def mfmas(s):
        l = []
        if first:
            for t in range(2):
                l.append(f'{MF} {R(SS+4*t)}, {R(ONES)}, {R(fx(s,t))}, {R(SS+4*t)}')
                l.append(f'{MF} {R(SG+4*t)}, {R(fx(s,t))}, {R(fx(s,t))}, {R(SG+4*t)}')
        for u in range(2):
            for t in range(2):
                d = ACQ + 8 * t + 4 * u
                l.append(f'{MF} {R(d)}, {R(fw(s,0,u))}, {R(fx(s,t))}, {R(d)}')
            if first:
                l.append(f'{MF} {R(CS+4*u)}, {R(fw(s,0,u))}, {R(ONES)}, {R(CS+4*u)}')
        for q, AC in ((1, ACK), (2, ACV)):
            for u in range(2):
                for t in range(2):
                    d = AC + 8 * u + 4 * t
                    l.append(f'{MF} {R(d)}, {R(fx(s,t))}, {R(fw(s,q,u))}, {R(d)}')
                if first:
                    l.append(f'{MF} {R(CS+8*q+4*u)}, {R(ONES)}, {R(fw(s,q,u))}, {R(CS+8*q+4*u)}')
        return l

    loop_big(a, p, fixed, cur, reads, mfmas, per=1 if first else 2)
    MEAN, RSTD = 32, 34
    MT, RT_, RTL = 36, 44, 52
    a('s_lshl_b32 s4, s3, 7')
    a(f's_add_u32 s4, s4, {STB}')
    a(f'v_lshl_add_u32 v6, v3, 2, s4')
    a(f'v_lshl_add_u32 v7, v2, 4, s4')
    if first:
        a('v_and_b32 v4, 3, v3')
        a('v_cmp_eq_u32 s[52:53], 1, v4')
        a('v_cmp_eq_u32 s[54:55], 2, v4')
        a('v_cmp_eq_u32 s[56:57], 3, v4')
        a('v_lshrrev_b32 v4, 2, v3')
        a('v_cmp_eq_u32 vcc, v4, v2')
        for t in range(2):
            a(f'v_cndmask_b32 v{SG+4*t}, v{SG+4*t}, v{SG+4*t+1}, s[52:53]')
            a(f'v_cndmask_b32 v{SG+4*t}, v{SG+4*t}, v{SG+4*t+2}, s[54:55]')
            a(f'v_cndmask_b32 v{SG+4*t}, v{SG+4*t}, v{SG+4*t+3}, s[56:57]')
        for t in range(2):
            stats_finish(a, SS + 4 * t, SG + 4 * t, MEAN + t, RSTD + t, 4 + t)
        a('s_mov_b64 exec, vcc')
        for t in range(2):
            a(f'ds_write_b32 v6, v{MEAN+t} offset:{64*t}')
            a(f'ds_write_b32 v6, v{RSTD+t} offset:{512+64*t}')
        a('s_mov_b64 exec, -1')
        for u in range(2):
            a(f'ds_write_b128 v14, {R(CS+4*u)} offset:{64*u}')
            a(f'ds_write_b32 v15, v{CS+8+4*u} offset:{128+64*u}')
            a(f'ds_write_b32 v15, v{CS+16+4*u} offset:{256+64*u}')
        a('s_waitcnt lgkmcnt(0)')
    else:
        for u in range(2):
            a(f'ds_read_b32 v{CS+8+4*u}, v15 offset:{128+64*u}')
            a(f'ds_read_b32 v{CS+16+4*u}, v15 offset:{256+64*u}')
    for t in range(2):
        a(f'ds_read_b128 {R(MT+4*t)}, v7 offset:{64*t}')
        a(f'ds_read_b128 {R(RT_+4*t)}, v7 offset:{512+64*t}')
    for t in range(2):
        a(f'ds_read_b32 v{MEAN+t}, v6 offset:{64*t}')
        a(f'ds_read_b32 v{RSTD+t}, v6 offset:{512+64*t}')
    if not first:
        for u in range(2):
            a(f'ds_read_b128 {R(CS+4*u)}, v14 offset:{64*u}')
    CONE, CEPS, CL2E = 60, 61, 62
    a(f'v_mov_b32 v{CONE}, 1.0')
    a(f'v_mov_b32 v{CEPS}, {hex(f2u(1e-6))}')
    a(f'v_mov_b32 v{CL2E}, {hex(f2u(LOG2E))}')
    RFL = 24
    for i in range(0, 8, 2):
        a(pk('v_pk_mul_f32', RTL + i, RT_ + i, CL2E, b1=0))
    T = FR

    def phi_pairs(items):
        for i, (ac, m, cs, r, rl, dst) in enumerate(items):
            a(pk('v_pk_fma_f32', ac, m[0], cs[0], ac, b0=m[1], b1=cs[1], neg0=True))
        for i, (ac, m, cs, r, rl, dst) in enumerate(items):
            a(pk('v_pk_mul_f32', T + 2 * i, ac, rl[0], b1=rl[1]))
        for i, (ac, m, cs, r, rl, dst) in enumerate(items):
            a(f'v_exp_f32 v{T+2*i}, v{T+2*i} clamp')
            a(f'v_exp_f32 v{T+2*i+1}, v{T+2*i+1} clamp')
            a(pk('v_pk_fma_f32', ac, ac, r[0], CONE, b1=r[1], b2=0))
        for i, (ac, m, cs, r, rl, dst) in enumerate(items):
            a(f'v_max_f32 v{ac}, v{ac}, v{T+2*i}')
            a(f'v_max_f32 v{ac+1}, v{ac+1}, v{T+2*i+1}')
        for i, (ac, m, cs, r, rl, dst) in enumerate(items):
            a(pk('v_pk_add_f32', ac, ac, CEPS, b1=0))
        for i, (ac, m, cs, r, rl, dst) in enumerate(items):
            a(f'v_cvt_pk_bf16_f32 v{dst}, v{ac}, v{ac+1}')

    PK_, PV, PQ = FR + 16, FR + 24, FR + 32
    items = []
    for u in range(2):
        for t in range(2):
            for hh in range(2):
                items.append((ACK + 8 * u + 4 * t + 2 * hh, (MT + 4 * t + 2 * hh, None), (CS + 8 + 4 * u, 0),
                              (RT_ + 4 * t + 2 * hh, None), (RTL + 4 * t + 2 * hh, None), PK_ + 4 * u + 2 * t + hh))
    phi_pairs(items)
    vi = [(u, t, hh) for u in range(2) for t in range(2) for hh in range(2)]
    for u, t, hh in vi:
        ac = ACV + 8 * u + 4 * t + 2 * hh
        a(pk('v_pk_fma_f32', ac, MT + 4 * t + 2 * hh, CS + 16 + 4 * u, ac, b1=0, neg0=True))
    for u, t, hh in vi:
        ac = ACV + 8 * u + 4 * t + 2 * hh
        a(pk('v_pk_mul_f32', ac, ac, RT_ + 4 * t + 2 * hh))
    for u, t, hh in vi:
        ac = ACV + 8 * u + 4 * t + 2 * hh
        a(f'v_cvt_pk_bf16_f32 v{PV+4*u+2*t+hh}, v{ac}, v{ac+1}')
    KD, ZD = FR + 40, FR + 48
    for u in range(2):
        a(f'{MF} {R(KD+4*u)}, {R(PK_+4*u)}, {R(PV+4*u)}, 0')
        a(f'{MF} {R(ZD+4*u)}, {R(PK_+4*u)}, {R(ONES)}, 0')
    for t in range(2):
        a(f'v_mul_f32 v{RFL+t}, v{CL2E}, v{RSTD+t}')
    a('s_lshl_b32 s4, s3, 11')
    a(f's_add_u32 s4, s4, {SCR}')
    a(f'v_lshl_add_u32 v6, v1, 4, s4')
    a('s_lshl_b32 s4, s3, 7')
    a(f's_add_u32 s4, s4, {ZB}')
    a(f'v_lshl_add_u32 v7, v2, 4, s4')
    for u in range(2):
        a(f'ds_write_b128 v6, {R(KD+4*u)} offset:{u*KB}')
    a('s_mov_b32 exec_lo, 0x00010001')
    a('s_mov_b32 exec_hi, 0x00010001')
    for u in range(2):
        a(f'ds_write_b128 v7, {R(ZD+4*u)} offset:{u*64}')
    a('s_mov_b64 exec, -1')
    a('s_lshl_b32 s4, s3, 9')
    a(f's_add_u32 s4, s4, {SCR}')
    a(f'v_lshl_add_u32 v6, v1, 2, s4')
    a(f'v_and_b32 v7, 31, v1')
    a(f'v_lshlrev_b32 v7, 2, v7')
    a(f'v_add_u32 v7, {ZB}, v7')
    if first:
        a('s_cmp_eq_u32 s3, 0')
        a(f's_cbranch_scc0 L_go_{name}')
        sv = list(a.lds)
        poll(a, 'init', vT, 1, vDb, f'{S4(SRD_M)}, 0', 0xffff)
        a.label(f'L_go_{name}')
    a('s_waitcnt lgkmcnt(0)')
    a('s_barrier')
    RD = FR + 40
    for i in range(2):
        for w in range(4):
            a(f'ds_read_b32 v{RD+4*i+w}, v6 offset:{w*2048+i*256}')
    for w in range(4):
        a(f'ds_read_b32 v{RD+8+w}, v7 offset:{w*128}')
    items = []
    for t in range(2):
        for u in range(2):
            for hh in range(2):
                items.append((ACQ + 8 * t + 4 * u + 2 * hh, (MEAN + t, 0), (CS + 4 * u + 2 * hh, None),
                              (RSTD + t, 0), (RFL + t, 0), PQ + 4 * t + 2 * u + hh))
    for i in range(3):
        a(f'v_add_f32 v{RD+4*i}, v{RD+4*i}, v{RD+4*i+1}')
        a(f'v_add_f32 v{RD+4*i+2}, v{RD+4*i+2}, v{RD+4*i+3}')
    for i in range(3):
        a(f'v_add_f32 v{RD+4*i}, v{RD+4*i}, v{RD+4*i+2}')
    for i in range(2):
        a(f'buffer_atomic_add_f32 v{RD+4*i}, v{vKVa}, {S4(SRD_W)}, 0 offen offset:{i*256}')
    a('s_cmp_eq_u32 s3, 0')
    a(f's_cbranch_scc0 L_nz_{name}')
    a.begin_opt()
    a('s_mov_b32 exec_hi, 0')
    a(f'buffer_atomic_add_f32 v{RD+8}, v{vZa}, {S4(SRD_W)}, 0 offen')
    a('s_mov_b64 exec, -1')
    a.end_opt()
    a.label(f'L_nz_{name}')
    a.vm = []
    phi_pairs(items[:4])
    a(f's_add_u32 s5, s7, {43*KB}')
    a('v_lshlrev_b32 v6, 4, v1')
    a(f'buffer_store_dwordx4 {R(PQ)}, v6, {S4(SRD_W)}, s7 offen {stmod()}')
    phi_pairs(items[4:])
    a(f'buffer_store_dwordx4 {R(PQ+4)}, v6, {S4(SRD_W)}, s5 offen {stmod()}')
    end_phase(a, p)


def comp_s1q(a, p):
    name = p.name; L = p.L
    STB = p.STB
    ZB = SCR + 8 * KB
    CSX = RA0
    first = (L == 0)
    KVB = WS_KV + L * 65536
    ONES = 24
    MEAN, RSTD = 28, 26 + 64 + 4
    ACK, ACV, BF = 32, 48, 64
    SS, SG, CS = 96, 104, 112
    AF = 128
    vKVa, vZa, vT, vDb = 17, 18, 20, 21
    phase_map(a, p)
    a('s_lshl_b32 s4, s3, 11')
    a(f's_add_u32 s4, s4, {RA0}')
    xbase(a, 8, 4, p.amode)
    wpat(a, 9, 10)
    a(f'v_add_u32 v11, {48*KB}, v9')
    a(f'v_add_u32 v12, {48*KB}, v10')
    a('s_lshl_b32 s10, s13, 11')
    a(f's_add_u32 s10, s10, {KVB}')
    a('s_lshl_b32 s6, s3, 9')
    a('s_add_u32 s5, s10, s6')
    a(f'v_lshl_add_u32 v{vKVa}, v1, 2, s5')
    a('s_lshl_b32 s11, s13, 7')
    a(f's_add_u32 s11, s11, {KVB + 32768}')
    a(f'v_lshl_add_u32 v{vZa}, v1, 2, s11')
    a('v_lshlrev_b32 v14, 4, v2')
    a(f'v_add_u32 v14, {CS1L}, v14')
    a('v_lshlrev_b32 v15, 2, v3')
    a(f'v_add_u32 v15, {CS1L}, v15')
    if first:
        a('v_lshrrev_b32 v4, 1, v1')
        a('v_and_b32 v5, 1, v1')
        a('v_lshlrev_b32 v4, 5, v4')
        a('v_lshl_add_u32 v4, v5, 2, v4')
        a(f'v_add_u32 v{vDb}, 4, v4')
    a('s_lshl_b32 s7, s12, 3')
    a('s_lshl_b32 s5, s3, 1')
    a('s_add_u32 s7, s7, s5')
    a('s_mul_i32 s7, s7, 43')
    a('s_add_u32 s7, s7, s13')
    a('s_lshl_b32 s7, s7, 10')
    a(f's_add_u32 s7, s7, {WS_PQ[L]}')
    for i in range(4): a(f'v_mov_b32 v{ONES+i}, 0x3f803f80')
    if first:
        for r in range(CS, CS + 16): a(f'v_mov_b32 v{r}, 0')
        a('s_cmp_eq_u32 s3, 1')
        a('s_cbranch_scc0 L_noif')
        a('s_cmp_lt_u32 s2, 16')
        a('s_cbranch_scc0 L_noif')
        a.begin_opt()
        init_flag(a)
        a.end_opt()
        a.label('L_noif')
        a.vm = []

    def af(ks, t): return AF + 8 * ks + 4 * t
    def fw(ks, q, u): return BF + 16 * (ks & 1) + 8 * q + 4 * u
    def wr(dst, u, pos):
        pos %= RB_SZ
        return rdtr(dst, (9 + u) if pos < 48 * KB else (11 + u), pos if pos < 48 * KB else pos - 48 * KB)

    def reads(ks):
        oa = ((ks >> 1) % 3) * p.cA + (ks & 1) * p.sA
        l = [rd128(af(ks, 0), 8, oa)]
        for q in range(2):
            for u in range(2):
                for h in range(2):
                    l.append(wr(fw(ks, q, u) + 2 * h, u, p.b0 + ks * 4 * KB + (2 * q + h) * KB))
                if q == 0 and u == 0: l.append(rd128(af(ks, 1), 8, oa + KB))
        return l

    def mfmas(ks):
        l = []
        def c(d): return R(d) if ks else '0'
        for q, AC in ((0, ACK), (1, ACV)):
            for u in range(2):
                for t in range(2):
                    d = AC + 8 * u + 4 * t
                    l.append(f'{MF} {R(d)}, {R(af(ks,t))}, {R(fw(ks,q,u))}, {c(d)}')
            if first:
                t = q
                l.append(f'{MF} {R(SS+4*t)}, {R(ONES)}, {R(af(ks,t))}, {c(SS+4*t)}')
                l.append(f'{MF} {R(SG+4*t)}, {R(af(ks,t))}, {R(af(ks,t))}, {c(SG+4*t)}')
        if first:
            def csblk():
                lab = f'L_cs{ks}_{name}'
                a(f's_cmp_eq_u32 s3, {ks & 3}')
                a(f's_cbranch_scc0 {lab}')
                a.begin_opt()
                for q in range(2):
                    for u in range(2):
                        d = CS + 8 * q + 4 * u
                        a(f'{MF} {R(d)}, {R(ONES)}, {R(fw(ks,q,u))}, {R(d)}')
                a.end_opt()
                a.label(lab)
            if OPT.get('cs1full', 0):
                for q in range(2):
                    for u in range(2):
                        d = CS + 8 * q + 4 * u
                        l.append(f'{MF} {R(d)}, {R(ONES)}, {R(fw(ks,q,u))}, {R(d)}')
            else: l.append(csblk)
        return l

    ts(a, name + '.preP0')
    a('s_barrier')
    ts(a, name + '.P0')
    for t in reads(0): a(t)
    per = 1 if first else 2
    for c in range(8):
        interleave(a, mfmas(2 * c), reads(2 * c + 1), per=per)
        a.wait_lds_all()
        tsl(a, p, 'pre')
        a('s_barrier')
        tsl(a, p, 'post')
        interleave(a, mfmas(2 * c + 1), reads(2 * c + 2) if c < 7 else [], per=per)
    ts(a, name + '.loopend')
    MT, RT_, RTL = 64, 72, 80
    CONE, CEPS, CL2E = 88, 89, 90
    RFL = 92
    T = 96
    CK = [CS, CS + 4]; CV = [CS + 8, CS + 12]
    a('s_lshl_b32 s4, s3, 7')
    a(f's_add_u32 s4, s4, {STB}')
    a(f'v_lshl_add_u32 v6, v3, 2, s4')
    a(f'v_lshl_add_u32 v7, v2, 4, s4')
    if first:
        a('s_lshl_b32 s5, s3, 2')
        a(f's_add_u32 s5, s5, {CSX}')
        a('v_lshl_add_u32 v13, v3, 4, s5')
        a('v_and_b32 v4, 3, v3')
        a('v_cmp_eq_u32 s[52:53], 1, v4')
        a('v_cmp_eq_u32 s[54:55], 2, v4')
        a('v_cmp_eq_u32 s[56:57], 3, v4')
        a('v_lshrrev_b32 v4, 2, v3')
        a('v_cmp_eq_u32 vcc, v4, v2')
        for i in range(0 if OPT.get('cs1full', 0) else 4):
            a(f'ds_write_b32 v13, v{CS+4*i} offset:{256*i}')
        for t in range(2):
            a(f'v_cndmask_b32 v{SG+4*t}, v{SG+4*t}, v{SG+4*t+1}, s[52:53]')
            a(f'v_cndmask_b32 v{SG+4*t}, v{SG+4*t}, v{SG+4*t+2}, s[54:55]')
            a(f'v_cndmask_b32 v{SG+4*t}, v{SG+4*t}, v{SG+4*t+3}, s[56:57]')
        for t in range(2):
            stats_finish(a, SS + 4 * t, SG + 4 * t, MEAN + t, RSTD + t, 4 + t)
        a('s_mov_b64 exec, vcc')
        for t in range(2):
            a(f'ds_write_b32 v6, v{MEAN+t} offset:{64*t}')
            a(f'ds_write_b32 v6, v{RSTD+t} offset:{512+64*t}')
        a('s_mov_b64 exec, -1')
        a('v_lshlrev_b32 v13, 4, v3')
        a(f'v_add_u32 v13, {CSX}, v13')
        a('s_waitcnt lgkmcnt(0)')
        if not OPT.get('cs1full', 0):
            a('s_barrier')
            for i in range(4):
                a(f'ds_read_b128 {R(CS+4*i)}, v13 offset:{256*i}')
    else:
        for u in range(2):
            a(f'ds_read_b32 v{CK[u]}, v15 offset:{128+64*u}')
            a(f'ds_read_b32 v{CV[u]}, v15 offset:{256+64*u}')
    for t in range(2):
        a(f'ds_read_b128 {R(MT+4*t)}, v7 offset:{64*t}')
        a(f'ds_read_b128 {R(RT_+4*t)}, v7 offset:{512+64*t}')
    for t in range(2):
        a(f'ds_read_b32 v{MEAN+t}, v6 offset:{64*t}')
        a(f'ds_read_b32 v{RSTD+t}, v6 offset:{512+64*t}')
    a(f'v_mov_b32 v{CONE}, 1.0')
    a(f'v_mov_b32 v{CEPS}, {hex(f2u(1e-6))}')
    a(f'v_mov_b32 v{CL2E}, {hex(f2u(LOG2E))}')
    if first:
        for i in range(0 if OPT.get('cs1full', 0) else 4):
            a(pk('v_pk_add_f32', CS + 4 * i, CS + 4 * i, CS + 4 * i + 2))
        for i in range(0 if OPT.get('cs1full', 0) else 4):
            a(f'v_add_f32 v{CS+4*i}, v{CS+4*i}, v{CS+4*i+1}')
        for u in range(2):
            a(f'ds_write_b32 v15, v{CK[u]} offset:{128+64*u}')
            a(f'ds_write_b32 v15, v{CV[u]} offset:{256+64*u}')
    for i in range(0, 8, 2):
        a(pk('v_pk_mul_f32', RTL + i, RT_ + i, CL2E, b1=0))

    def phi_pairs(items, T):
        for i, (ac, m, cs, r, rl, dst) in enumerate(items):
            a(pk('v_pk_fma_f32', ac, m[0], cs[0], ac, b0=m[1], b1=cs[1], neg0=True))
        for i, (ac, m, cs, r, rl, dst) in enumerate(items):
            a(pk('v_pk_mul_f32', T + 2 * i, ac, rl[0], b1=rl[1]))
        for i, (ac, m, cs, r, rl, dst) in enumerate(items):
            a(f'v_exp_f32 v{T+2*i}, v{T+2*i} clamp')
            a(f'v_exp_f32 v{T+2*i+1}, v{T+2*i+1} clamp')
            a(pk('v_pk_fma_f32', ac, ac, r[0], CONE, b1=r[1], b2=0))
        for i, (ac, m, cs, r, rl, dst) in enumerate(items):
            a(f'v_max_f32 v{ac}, v{ac}, v{T+2*i}')
            a(f'v_max_f32 v{ac+1}, v{ac+1}, v{T+2*i+1}')
        for i, (ac, m, cs, r, rl, dst) in enumerate(items):
            a(pk('v_pk_add_f32', ac, ac, CEPS, b1=0))
        for i, (ac, m, cs, r, rl, dst) in enumerate(items):
            a(f'v_cvt_pk_bf16_f32 v{dst}, v{ac}, v{ac+1}')

    PK_, PV = ACK, ACV
    vi = [(u, t, hh) for u in range(2) for t in range(2) for hh in range(2)]
    phi_pairs([(ACK + 8 * u + 4 * t + 2 * hh, (MT + 4 * t + 2 * hh, None), (CK[u], 0), (RT_ + 4 * t + 2 * hh, None),
                (RTL + 4 * t + 2 * hh, None), PK_ + 4 * u + 2 * t + hh) for u, t, hh in vi], T)
    for u, t, hh in vi:
        ac = ACV + 8 * u + 4 * t + 2 * hh
        a(pk('v_pk_fma_f32', ac, MT + 4 * t + 2 * hh, CV[u], ac, b1=0, neg0=True))
    for u, t, hh in vi:
        ac = ACV + 8 * u + 4 * t + 2 * hh
        a(pk('v_pk_mul_f32', ac, ac, RT_ + 4 * t + 2 * hh))
    for u, t, hh in vi:
        ac = ACV + 8 * u + 4 * t + 2 * hh
        a(f'v_cvt_pk_bf16_f32 v{PV+4*u+2*t+hh}, v{ac}, v{ac+1}')
    KD, ZD = T, T + 8
    for u in range(2):
        a(f'{MF} {R(KD+4*u)}, {R(PK_+4*u)}, {R(PV+4*u)}, 0')
        a(f'{MF} {R(ZD+4*u)}, {R(PK_+4*u)}, {R(ONES)}, 0')
    for t in range(2):
        a(f'v_mul_f32 v{RFL+t}, v{CL2E}, v{RSTD+t}')
    a('s_lshl_b32 s4, s3, 11')
    a(f's_add_u32 s4, s4, {SCR}')
    a(f'v_lshl_add_u32 v6, v1, 4, s4')
    a('s_lshl_b32 s4, s3, 7')
    a(f's_add_u32 s4, s4, {ZB}')
    a(f'v_lshl_add_u32 v7, v2, 4, s4')
    for u in range(2):
        a(f'ds_write_b128 v6, {R(KD+4*u)} offset:{u*KB}')
    a('s_mov_b32 exec_lo, 0x00010001')
    a('s_mov_b32 exec_hi, 0x00010001')
    for u in range(2):
        a(f'ds_write_b128 v7, {R(ZD+4*u)} offset:{u*64}')
    a('s_mov_b64 exec, -1')
    a('s_lshl_b32 s4, s3, 9')
    a(f's_add_u32 s4, s4, {SCR}')
    a(f'v_lshl_add_u32 v6, v1, 2, s4')
    a(f'v_and_b32 v7, 31, v1')
    a(f'v_lshlrev_b32 v7, 2, v7')
    a(f'v_add_u32 v7, {ZB}, v7')
    a('s_waitcnt lgkmcnt(0)')
    a('s_barrier')
    RD = 112
    for i in range(2):
        for w in range(4):
            a(f'ds_read_b32 v{RD+4*i+w}, v6 offset:{w*2048+i*256}')
    for w in range(4):
        a(f'ds_read_b32 v{RD+8+w}, v7 offset:{w*128}')
    for i in range(3):
        a(f'v_add_f32 v{RD+4*i}, v{RD+4*i}, v{RD+4*i+1}')
        a(f'v_add_f32 v{RD+4*i+2}, v{RD+4*i+2}, v{RD+4*i+3}')
    for i in range(3):
        a(f'v_add_f32 v{RD+4*i}, v{RD+4*i}, v{RD+4*i+2}')
    for i in range(2):
        a(f'buffer_atomic_add_f32 v{RD+4*i}, v{vKVa}, {S4(SRD_W)}, 0 offen offset:{i*256}')
    a('s_cmp_eq_u32 s3, 0')
    a(f's_cbranch_scc0 L_nz_{name}')
    a.begin_opt()
    a('s_mov_b32 exec_hi, 0')
    a(f'buffer_atomic_add_f32 v{RD+8}, v{vZa}, {S4(SRD_W)}, 0 offen')
    a('s_mov_b64 exec, -1')
    a.end_opt()
    a.label(f'L_nz_{name}')
    end_phase(a, p)
    ACQ, CQ = 32, 96
    def fq(ks, u): return BF + 8 * (ks & 1) + 4 * u
    def qreads(ks):
        return [wr(fq(ks, u) + 2 * h, u, p.b0q + ks * 2 * KB + h * KB) for u in range(2) for h in range(2)]
    def qm(ks):
        l = []
        def c(d): return R(d) if ks else '0'
        for u in range(2):
            for t in range(2):
                d = ACQ + 8 * t + 4 * u
                l.append(f'{MF} {R(d)}, {R(fq(ks,u))}, {R(af(ks,t))}, {c(d)}')
            if first: l.append(f'{MF} {R(CQ+4*u)}, {R(fq(ks,u))}, {R(ONES)}, {c(CQ+4*u)}')
        return l
    for t in qreads(0): a(t)
    if not first:
        for u in range(2):
            a(f'ds_read_b128 {R(CQ+4*u)}, v14 offset:{64*u}')
    for ks in range(16):
        interleave(a, qm(ks), qreads(ks + 1) if ks < 15 else [], per=1)
    if first:
        for u in range(2):
            a(f'ds_write_b128 v14, {R(CQ+4*u)} offset:{64*u}')
    PQ = ACQ
    phi_pairs([(ACQ + 8 * t + 4 * u + 2 * hh, (MEAN + t, 0), (CQ + 4 * u + 2 * hh, None), (RSTD + t, 0), (RFL + t, 0),
                PQ + 4 * t + 2 * u + hh) for t in range(2) for u in range(2) for hh in range(2)], 64)
    KVF, ZF, EPS4, N, OF = 128, 136, 140, 144, 176
    a('v_lshlrev_b32 v6, 4, v1')
    a('v_and_b32 v4, 1, v1')
    a('v_cmp_eq_u32 vcc, 1, v4')
    a('v_lshlrev_b32 v4, 6, v4')
    a('v_lshl_add_u32 v7, v2, 4, v4')
    for i in range(4): a(f'v_mov_b32 v{EPS4+i}, {hex(f2u(1e-6))}')
    a(f's_add_u32 s5, s7, {43*KB}')
    a.wait_lds_all()
    ts(a, name + '.preF')
    a('s_barrier')
    ts(a, name + '.F')
    a(f'buffer_load_dwordx4 {R(ZF)}, v7, {S4(SRD_W)}, s11 offen')
    for u in range(2):
        a(f'buffer_load_dwordx4 {R(KVF+4*u)}, v6, {S4(SRD_W)}, s10 offen offset:{u*KB}')
    a(f'v_cvt_pk_bf16_f32 v4, v{ZF}, v{ZF+1}')
    a(f'v_cvt_pk_bf16_f32 v5, v{ZF+2}, v{ZF+3}')
    a(f'v_cndmask_b32 v{ZF}, v4, 0, vcc')
    a(f'v_cndmask_b32 v{ZF+1}, v5, 0, vcc')
    a(f'v_cndmask_b32 v{ZF+2}, 0, v4, vcc')
    a(f'v_cndmask_b32 v{ZF+3}, 0, v5, vcc')
    for t in range(2):
        a(f'{MF} {R(N+12*t+8)}, {R(ZF)}, {R(PQ+4*t)}, {R(EPS4)}')
    for i in range(4):
        a(f'v_cvt_pk_bf16_f32 v{KVF+i}, v{KVF+2*i}, v{KVF+2*i+1}')
    for t in range(2):
        for u in range(2):
            a(f'{MF16} {R(N+12*t+4*u)}, {R(KVF+2*u,2)}, {R(PQ+4*t+2*u,2)}, 0')
    for t in range(2):
        dn = N + 12 * t + 8
        a(f'v_rcp_f32 v{dn}, v{dn}')
        a(f'v_rcp_f32 v{dn+1}, v{dn+1}')
    for t in range(2):
        n = N + 12 * t; o = OF + 4 * t; dn = n + 8
        for i in range(4): a(pk('v_pk_mul_f32', n + 2 * i, n + 2 * i, dn + (i >> 1), b1=0))
        for i in range(4): a(f'v_cvt_pk_bf16_f32 v{o+i}, v{n+2*i}, v{n+2*i+1}')
        a(f'buffer_store_dwordx4 {R(o)}, v6, {S4(SRD_W)}, s{5 if t else 7} offen {stmod()}')
    ts(a, name + '.o')
    a('s_waitcnt vmcnt(0)')
    ts(a, name + '.ovm')
    a('s_barrier')
    a.vm = []


def comp_s24(a, p):
    name = p.name; L = p.L
    att = (p.ph == 2)
    KVL, ZL, OUTL = 136 * KB, 152 * KB, SCR
    final = p.final
    res_rowmajor = (att and L == 0)
    res_off = (WS_X2 if att else WS_X1[L])
    out_off = (WS_X1[L] if att else WS_X2)
    st_off = WS_ST1[L] if att else WS_ST2
    ACC = 32
    FR = 48
    SETSZ = 56
    N = 160
    OF = 184
    EPS4, ONES = 192, 196
    RES = 24
    KVT = 200
    fixed = [8, 9, 10]; cur = [11, 12, 13]
    vX, vW0, vW1 = cur
    vKV, vZ = 14, 15
    phase_map(a, p)
    a('s_lshl_b32 s15, s12, 2')
    a('s_add_u32 s15, s15, s3')
    a('v_lshlrev_b32 v16, 4, v1')
    a('s_lshl_b32 s6, s15, 4')
    a('s_lshl_b32 s5, s13, 1')
    a('s_add_u32 s6, s6, s5')
    a('s_lshl_b32 s6, s6, 10')
    a(f's_add_u32 s7, s6, {res_off}')
    a(f's_add_u32 s6, s6, {out_off}')
    a('s_lshl_b32 s8, s15, 14')
    a('s_lshl_b32 s5, s13, 7')
    a('s_add_u32 s8, s8, s5')
    if final: srd(a, SRD_M, S_PTR + 14, 2048 * 1024)
    if res_rowmajor:
        a('v_lshlrev_b32 v4, 10, v3')
        a('v_lshl_add_u32 v17, v2, 3, v4')
        for T in range(4):
            a(f'buffer_load_dwordx2 {R(RES+2*T,2)}, v17, {S4(SRD_A)}, s8 offen offset:{32*T}')
    else:
        for i in range(2):
            a(f'buffer_load_dwordx4 {R(RES+4*i)}, v16, {S4(SRD_W)}, s7 offen offset:{i*KB}')
    if OPT.get('otouch', 0) and not final:
        a('v_lshlrev_b32 v252, 7, v1')
        p.touch = ['s_lshl_b32 s4, s15, 10', f's_add_u32 s4, s4, {st_off}', 's_mov_b64 exec, 0xffff',
                   f'buffer_load_dword v254, v252, {S4(SRD_W)}, s6 offen sc1', 's_mov_b64 exec, 0xff',
                   f'buffer_load_dword v253, v252, {S4(SRD_W)}, s4 offen sc1', 's_mov_b64 exec, -1']
    a('s_lshl_b32 s4, s3, 10')
    a(f's_add_u32 s4, s4, {RA0}')
    xbase(a, 8, 4, 'F')
    wpat(a, 9, 10)
    for i in range(4): a(f'v_mov_b32 v{ONES+i}, 0x3f803f80')
    if att:
        KVB = WS_KV + L * 65536
        a('v_and_b32 v18, 31, v1')
        a('s_lshl_b32 s11, s3, 9')
        a(f's_add_u32 s11, s11, {KVB + 32768}')
        a('v_lshlrev_b32 v18, 4, v18')
        for i in range(4): a(f'v_mov_b32 v{EPS4+i}, {hex(f2u(1e-6))}')
        a(f'v_add_u32 v{vKV}, {KVL}, v16')
        a(f'v_and_b32 v4, 1, v1')
        a(f'v_lshl_add_u32 v4, v2, 1, v4')
        a(f'v_lshlrev_b32 v4, 4, v4')
        a(f'v_add_u32 v{vZ}, {ZL}, v4')
        a('v_bfe_u32 v5, v1, 2, 1')
        a('v_cmp_eq_u32 vcc, 1, v5')
        a('v_bfe_u32 v6, v1, 3, 2')
        a('s_lshl_b32 s10, s3, 2')
        a('s_add_u32 s10, s10, 16')
        a('s_sub_u32 s10, s10, s14')
        a('v_add_u32 v6, s10, v6')
        a('v_and_b32 v6, 15, v6')
        a('v_lshlrev_b32 v6, 7, v6')
        a('v_and_b32 v7, 3, v1')
        a('v_lshl_add_u32 v7, v7, 1, v5')
        a('v_lshl_add_u32 v6, v7, 4, v6')
        a(f'v_add_u32 v6, {ZL}, v6')
        a('s_lshl_b32 s4, s3, 13')
        a(f's_add_u32 s4, s4, {KVB}')
        a(f's_add_u32 s5, s4, 4096')
    for T in range(4):
        for hh in range(2):
            a(f'v_lshlrev_b32 v{ACC+4*T+2*hh}, 16, v{RES+2*T+hh}')
            a(f'v_and_b32 v{ACC+4*T+2*hh+1}, 0xffff0000, v{RES+2*T+hh}')
    if att:
        ts(a, name + '.preF')
        a('s_barrier')
        ts(a, name + '.F')
        for i in range(8):
            a(f'buffer_load_dwordx4 {R(KVT+4*i)}, v16, {S4(SRD_W)}, s{4+i//4} offen offset:{(i%4)*KB}')
        a(f'buffer_load_dwordx4 {R(N)}, v18, {S4(SRD_W)}, s11 offen')
        for i in range(4):
            for hh in range(2):
                src = KVT + 8 * i + 4 * hh
                a(f'v_cvt_pk_bf16_f32 v{KVT+8*i+2*hh}, v{src}, v{src+1}')
                a(f'v_cvt_pk_bf16_f32 v{KVT+8*i+2*hh+1}, v{src+2}, v{src+3}')
            a(f's_add_u32 s5, s10, {i}')
            a('s_and_b32 s5, s5, 15')
            a('s_lshl_b32 s5, s5, 10')
            a(f'v_add_u32 v4, s5, v{vKV}')
            a(f'ds_write_b128 v4, {R(KVT+8*i)}')
        a(f'v_cvt_pk_bf16_f32 v{N+4}, v{N}, v{N+1}')
        a(f'v_cvt_pk_bf16_f32 v{N+5}, v{N+2}, v{N+3}')
        a(f'v_cndmask_b32 v{N+8}, v{N+4}, 0, vcc')
        a(f'v_cndmask_b32 v{N+9}, v{N+5}, 0, vcc')
        a(f'v_cndmask_b32 v{N+10}, 0, v{N+4}, vcc')
        a(f'v_cndmask_b32 v{N+11}, 0, v{N+5}, vcc')
        a(f'ds_write_b128 v6, {R(N+8)}')

    def fx(s, kk): return FR + SETSZ * s + 4 * kk
    def fkv(s, kk): return FR + SETSZ * s + 8 + 4 * kk
    def fz(s, kk): return FR + SETSZ * s + 16 + 4 * kk
    def fw(s, kk, T): return FR + SETSZ * s + 24 + 16 * kk + 4 * T

    def reads(s):
        l = []
        for kk in range(2):
            l.append(rd128(fx(s, kk), vX, kk * p.sA))
            if att:
                l.append(rd128(fz(s, kk), vZ, kk * 128))
                l.append(rd128(fkv(s, kk), vKV, kk * KB))
        for kk in range(2):
            for T in range(4):
                q, u = T >> 1, T & 1
                for h in range(2):
                    l.append(rdtr(fw(s, kk, T) + 2 * h, vW1 if u else vW0, kk * p.sB + (2 * q + h) * KB))
        return l

    def adv():
        advance(a, p, fixed, cur)
        if att:
            a(f'v_add_u32 v{vKV}, {2*KB}, v{vKV}')
            a(f'v_add_u32 v{vZ}, 256, v{vZ}')

    def mainm(s, kk, xf):
        return [f'{MF} {R(ACC+4*T)}, {R(fw(s,kk,T))}, {R(xf)}, {R(ACC+4*T)}' for T in range(4)]

    def amf(s, kk):
        x, kv, z = fx(s, kk), fkv(s, kk), fz(s, kk)
        n = N + 12 * kk
        return [f'{MF} {R(n+8)}, {R(z)}, {R(x)}, {R(EPS4)}',
                f'{MF16} {R(n)}, {R(kv,2)}, {R(x,2)}, 0',
                f'{MF16} {R(n+4)}, {R(kv+2,2)}, {R(x+2,2)}, 0']

    def avalu(kk):
        n = N + 12 * kk; o = OF + 4 * kk; dn = n + 8
        return [f'v_rcp_f32 v{dn}, v{dn}', f'v_rcp_f32 v{dn+1}, v{dn+1}',
                pk('v_pk_mul_f32', n, n, dn, b1=0), pk('v_pk_mul_f32', n + 2, n + 2, dn, b1=0),
                pk('v_pk_mul_f32', n + 4, n + 4, dn + 1, b1=0), pk('v_pk_mul_f32', n + 6, n + 6, dn + 1, b1=0),
                f'v_cvt_pk_bf16_f32 v{o}, v{n}, v{n+1}', f'v_cvt_pk_bf16_f32 v{o+1}, v{n+2}, v{n+3}',
                f'v_cvt_pk_bf16_f32 v{o+2}, v{n+4}, v{n+5}', f'v_cvt_pk_bf16_f32 v{o+3}, v{n+6}, v{n+7}']

    def period(s):
        if p.lag == 1: a.wait_lds_all()
        tsl(a, p, 'pre')
        a('s_barrier')
        tsl(a, p, 'post')
        rd = reads(1 - s)
        if not att:
            interleave(a, mainm(s, 0, fx(s, 0)) + mainm(s, 1, fx(s, 1)), rd, per=3)
        elif OPT.get('s2sched', 1) == 0:
            interleave(a, amf(s, 0) + amf(s, 1), rd[:14], per=3)
            for t in avalu(0): a(t)
            interleave(a, mainm(s, 0, OF), avalu(1), per=3)
            interleave(a, mainm(s, 1, OF + 4), rd[14:], per=2)
        else:
            ops = amf(s, 0) + amf(s, 1) + avalu(0)
            m0 = mainm(s, 0, OF); v1_ = avalu(1)
            for i in range(4):
                ops.append(m0[i]); ops += v1_[3*i:3*i+3]
            ops += mainm(s, 1, OF + 4)
            def cost(t): return 16 if t.startswith(MF) else 8 if ('mfma' in t or 'rcp' in t) else 4
            tot = sum(cost(t) for t in ops)
            rc = [16 if 'b128' in r else 11 for r in rd]
            rtot = sum(rc)
            acc = 0; racc = 0; ri = 0
            for t in ops:
                a(t); acc += cost(t)
                while ri < len(rd) and racc * tot <= acc * rtot * OPT.get('s2f', 1.0):
                    a(rd[ri]); racc += rc[ri]; ri += 1
            while ri < len(rd):
                a(rd[ri]); ri += 1
        adv()

    ring_init(a, p, fixed, cur)
    a.wait_lds_all()
    ts(a, name + '.preP0')
    a('s_barrier')
    ts(a, name + '.P0')
    for t in reads(0): a(t)
    for t in p.touch: a(t)
    adv()
    a.loop_begin(f'L_ml_{name}')
    period(0)
    period(1)
    a('s_add_u32 s9, s9, 1')
    a(f's_cmp_lt_u32 s9, {p.NC//2}')
    a(f's_cbranch_scc1 L_ml_{name}')
    a.loop_end_check()
    a.wait_lds_all()
    ts(a, name + '.loopend')
    OUT = 24
    for T in range(4):
        for hh in range(2):
            a(f'v_cvt_pk_bf16_f32 v{OUT+2*T+hh}, v{ACC+4*T+2*hh}, v{ACC+4*T+2*hh+1}')
    if not final:
        SS, SG = N, N + 4
        a(f'{MF} {R(SS)}, {R(ONES)}, {R(OUT)}, 0')
        a(f'{MF} {R(SG)}, {R(OUT)}, {R(OUT)}, 0')
        a(f'{MF} {R(SS)}, {R(ONES)}, {R(OUT+4)}, {R(SS)}')
        a(f'{MF} {R(SG)}, {R(OUT+4)}, {R(OUT+4)}, {R(SG)}')
        for i in range(2):
            a(f'buffer_store_dwordx4 {R(OUT+4*i)}, v16, {S4(SRD_W)}, s6 offen offset:{i*KB} {stmod()}')
        a('s_lshl_b32 s4, s15, 10')
        a('s_lshl_b32 s5, s13, 3')
        a('s_add_u32 s4, s4, s5')
        a(f's_add_u32 s4, s4, {st_off}')
        a('v_lshlrev_b32 v5, 6, v3')
        a('v_and_b32 v6, 3, v3')
        a('v_cmp_eq_u32 s[52:53], 1, v6')
        a('v_cmp_eq_u32 s[54:55], 2, v6')
        a('v_cmp_eq_u32 s[56:57], 3, v6')
        a('v_lshrrev_b32 v6, 2, v3')
        a('v_cmp_eq_u32 vcc, v6, v2')
        a(f'v_cndmask_b32 v{SS+1}, v{SG}, v{SG+1}, s[52:53]')
        a(f'v_cndmask_b32 v{SS+1}, v{SS+1}, v{SG+2}, s[54:55]')
        a(f'v_cndmask_b32 v{SS+1}, v{SS+1}, v{SG+3}, s[56:57]')
        a('s_mov_b64 exec, vcc')
        a(f'buffer_store_dwordx2 {R(SS,2)}, v5, {S4(SRD_W)}, s4 offen {stmod()}')
        a('s_mov_b64 exec, -1')
        end_phase(a, p)
    else:
        a(f's_mul_i32 s4, s3, {16*144}')
        a(f's_add_u32 s4, s4, {OUTL}')
        a(f'v_mul_u32_u24 v4, 144, v3')
        a('v_lshl_add_u32 v4, v2, 3, v4')
        a('v_add_u32 v4, s4, v4')
        for T in range(4):
            a(f'ds_write_b64 v4, {R(OUT+2*T,2)} offset:{32*T}')
        a('v_lshrrev_b32 v5, 3, v1')
        a('v_and_b32 v6, 7, v1')
        a('v_mul_u32_u24 v7, 144, v5')
        a('v_lshl_add_u32 v7, v6, 4, v7')
        a('v_add_u32 v7, s4, v7')
        a('s_waitcnt lgkmcnt(0)')
        for i in range(2):
            a(f'ds_read_b128 {R(ACC+4*i)}, v7 offset:{i*8*144}')
        a('v_lshlrev_b32 v5, 10, v5')
        a('v_lshl_add_u32 v5, v6, 4, v5')
        a(f's_add_u32 s9, s8, {8*KB}')
        for i in range(2):
            a(f'buffer_store_dwordx4 {R(ACC+4*i)}, v5, {S4(SRD_M)}, s{8+i} offen {OPT.get("outmod", "")}')


def comp_g(a, p):
    name = p.name; L = p.L
    s2 = (p.ph == 2)
    final = p.final
    res_rowmajor = (s2 and L == 0)
    res_off = (WS_X2 if s2 else WS_X1[L])
    out_off = (WS_X1[L] if s2 else WS_X2)
    st_off = WS_ST1[L] if s2 else WS_ST2
    ACC, FR, SETSZ, N, ONES, RES = 32, 48, 32, 112, 128, 24
    fixed = [8, 9, 10]; cur = [11, 12, 13]
    vX, vW0, vW1 = cur
    assert p.b0 % (2 * p.cB) == 0 and p.NCH % 2 == 0
    phase_map(a, p)
    a('s_lshr_b32 s10, s3, 1')
    a('s_and_b32 s11, s3, 1')
    a('s_lshl_b32 s15, s12, 2')
    a('s_lshl_b32 s5, s10, 1')
    a('s_add_u32 s15, s15, s5')
    a('v_lshlrev_b32 v16, 4, v1')
    a('s_lshl_b32 s6, s15, 4')
    a('s_lshl_b32 s5, s13, 1')
    a('s_add_u32 s6, s6, s5')
    a('s_add_u32 s6, s6, s11')
    a('s_lshl_b32 s6, s6, 10')
    a(f's_add_u32 s7, s6, {res_off}')
    a(f's_add_u32 s6, s6, {out_off}')
    a('s_lshl_b32 s8, s15, 14')
    a('s_lshl_b32 s5, s13, 7')
    a('s_add_u32 s8, s8, s5')
    a('s_lshl_b32 s5, s11, 6')
    a('s_add_u32 s8, s8, s5')
    if final: srd(a, SRD_M, S_PTR + 14, 2048 * 1024)
    if res_rowmajor:
        a('v_lshlrev_b32 v4, 10, v3')
        a('v_lshl_add_u32 v17, v2, 3, v4')
        a(f's_add_u32 s5, s8, {16*KB}')
        for t in range(2):
            for u in range(2):
                a(f'buffer_load_dwordx2 {R(RES+4*t+2*u,2)}, v17, {S4(SRD_A)}, s{5 if t else 8} offen offset:{32*u}')
    else:
        a(f's_add_u32 s5, s7, {16*KB}')
        for t in range(2):
            a(f'buffer_load_dwordx4 {R(RES+4*t)}, v16, {S4(SRD_W)}, s{5 if t else 7} offen')
    a('s_lshl_b32 s4, s10, 11')
    a(f's_add_u32 s4, s4, {RA0}')
    xbase(a, 8, 4, 'F')
    wpat(a, 9, 10)
    a('s_lshl_b32 s4, s11, 11')
    a('v_add_u32 v9, s4, v9')
    a('v_add_u32 v10, s4, v10')
    if not final:
        for i in range(4): a(f'v_mov_b32 v{ONES+i}, 0x3f803f80')
    for i in range(8):
        a(f'v_lshlrev_b32 v{ACC+2*i}, 16, v{RES+i}')
        a(f'v_and_b32 v{ACC+2*i+1}, 0xffff0000, v{RES+i}')

    def fx(s, kk, t): return FR + SETSZ * s + 8 * kk + 4 * t
    def fw(s, kk, u): return FR + SETSZ * s + 16 + 8 * kk + 4 * u

    def reads(s, odd):
        l = []
        for kk in range(2):
            oa = odd * p.cA + kk * p.sA; ob = odd * p.cB + kk * p.sB
            l.append(rd128(fx(s, kk, 0), vX, oa))
            l += [rdtr(fw(s, kk, 0) + 2 * h, vW0, ob + h * KB) for h in range(2)]
            l.append(rd128(fx(s, kk, 1), vX, oa + KB))
            l += [rdtr(fw(s, kk, 1) + 2 * h, vW1, ob + h * KB) for h in range(2)]
        return l

    def mainm(s):
        return [f'{MF} {R(ACC+8*t+4*u)}, {R(fw(s,kk,u))}, {R(fx(s,kk,t))}, {R(ACC+8*t+4*u)}'
                for kk in range(2) for u in range(2) for t in range(2)]

    sadv = [f's_add_u32 s{S_RA}, s{S_RA}, {2*p.cA}', f's_cmp_eq_u32 s{S_RA}, {p.NCH*p.cA}', f's_cselect_b32 s{S_RA}, 0, s{S_RA}',
            f's_add_u32 s{S_RB}, s{S_RB}, {2*p.cB}', f's_cmp_eq_u32 s{S_RB}, {RB_SZ}', f's_cselect_b32 s{S_RB}, 0, s{S_RB}']
    vadv = [f'v_add_u32 v{cur[0]}, s{S_RA}, v{fixed[0]}'] + [f'v_add_u32 v{c}, s{S_RB}, v{f}' for f, c in zip(fixed[1:], cur[1:])]

    def period(s):
        if p.lag == 1: a.wait_lds_all()
        tsl(a, p, 'pre')
        a('s_barrier')
        tsl(a, p, 'post')
        rd = reads(1 - s, 1 - s)
        if s == 0: rd = rd + sadv + vadv
        else: rd = rd + ['s_add_u32 s9, s9, 1', f's_cmp_lt_u32 s9, {p.NC//2}']
        m = mainm(s)
        per = [2, 2, 2, 2, 2, 2, 5, 4] if s == 0 else [2, 2, 2, 2, 2, 2, 1, 1]
        ri = 0
        for mm, n in zip(m, per):
            a(mm)
            for t in rd[ri:ri+n]: a(t)
            ri += n
        assert ri == len(rd)

    ring_init(a, p, fixed, cur)
    a.wait_lds_all()
    ts(a, name + '.preP0')
    a('s_barrier')
    ts(a, name + '.P0')
    for t in reads(0, 0): a(t)
    a.loop_begin(f'L_ml_{name}')
    period(0)
    period(1)
    a(f's_cbranch_scc1 L_ml_{name}')
    a.loop_end_check()
    a.wait_lds_all()
    ts(a, name + '.loopend')
    OUT = 24
    for i in range(8):
        a(f'v_cvt_pk_bf16_f32 v{OUT+i}, v{ACC+2*i}, v{ACC+2*i+1}')
    if not final:
        for t in range(2):
            a(f'{MF} {R(N+8*t)}, {R(ONES)}, {R(OUT+4*t)}, 0')
            a(f'{MF} {R(N+8*t+4)}, {R(OUT+4*t)}, {R(OUT+4*t)}, 0')
        a(f's_add_u32 s5, s6, {16*KB}')
        for t in range(2):
            a(f'buffer_store_dwordx4 {R(OUT+4*t)}, v16, {S4(SRD_W)}, s{5 if t else 6} offen {stmod()}')
        a('s_lshl_b32 s4, s15, 10')
        a('s_lshl_b32 s5, s13, 3')
        a('s_add_u32 s4, s4, s5')
        a('s_lshl_b32 s5, s11, 17')
        a('s_add_u32 s4, s4, s5')
        a(f's_add_u32 s4, s4, {st_off}')
        a('v_lshlrev_b32 v5, 6, v3')
        a('v_and_b32 v6, 3, v3')
        a('v_cmp_eq_u32 s[52:53], 1, v6')
        a('v_cmp_eq_u32 s[54:55], 2, v6')
        a('v_cmp_eq_u32 s[56:57], 3, v6')
        a('v_lshrrev_b32 v6, 2, v3')
        a('v_cmp_eq_u32 vcc, v6, v2')
        for t in range(2):
            SS, SG = N + 8 * t, N + 8 * t + 4
            a(f'v_cndmask_b32 v{SS+1}, v{SG}, v{SG+1}, s[52:53]')
            a(f'v_cndmask_b32 v{SS+1}, v{SS+1}, v{SG+2}, s[54:55]')
            a(f'v_cndmask_b32 v{SS+1}, v{SS+1}, v{SG+3}, s[56:57]')
        a('s_mov_b64 exec, vcc')
        for t in range(2):
            a(f'buffer_store_dwordx2 {R(N+8*t,2)}, v5, {S4(SRD_W)}, s4 offen offset:{t*KB} {stmod()}')
        a('s_mov_b64 exec, -1')
        end_phase(a, p)
    else:
        a(f's_mul_i32 s4, s3, {32*80}')
        a(f's_add_u32 s4, s4, {SCR}')
        a(f'v_mul_u32_u24 v4, 80, v3')
        a('v_lshl_add_u32 v4, v2, 3, v4')
        a('v_add_u32 v4, s4, v4')
        for t in range(2):
            for u in range(2):
                a(f'ds_write_b64 v4, {R(OUT+4*t+2*u,2)} offset:{t*16*80 + 32*u}')
        a('v_lshrrev_b32 v5, 2, v1')
        a('v_and_b32 v6, 3, v1')
        a('v_mul_u32_u24 v7, 80, v5')
        a('v_lshl_add_u32 v7, v6, 4, v7')
        a('v_add_u32 v7, s4, v7')
        a('s_waitcnt lgkmcnt(0)')
        for t in range(2):
            a(f'ds_read_b128 {R(ACC+4*t)}, v7 offset:{t*16*80}')
        a('v_lshlrev_b32 v5, 10, v5')
        a('v_lshl_add_u32 v5, v6, 4, v5')
        a(f's_add_u32 s9, s8, {16*KB}')
        for t in range(2):
            a(f'buffer_store_dwordx4 {R(ACC+4*t)}, v5, {S4(SRD_M)}, s{8+t} offen {OPT.get("outmod", "")}')


def comp_s3(a, p):
    name = p.name; L = p.L
    STB = p.STB
    CSX = SCR + KB
    first = (L == 0)
    ACG, ACU = 40, 88
    CS = 136
    FR = 160
    ONES = 240
    fixed = [8, 9, 10, 11]; cur = [12, 13, 14, 15]
    vX = 12; vW = 13
    MEAN, RSTD, R2 = 24, 28, 32
    phase_map(a, p)
    a('s_lshr_b32 s6, s3, 1')
    a('s_and_b32 s11, s3, 1')
    a('s_lshl_b32 s15, s12, 3')
    a('s_lshl_b32 s5, s6, 2')
    a('s_add_u32 s15, s15, s5')
    a('s_lshl_b32 s4, s6, 12')
    a(f's_add_u32 s4, s4, {RA0}')
    xbase(a, 8, 4, 'F')
    wpat(a, 9, 10)
    a('s_lshl_b32 s4, s11, 5')
    a('v_xor_b32 v11, s4, v9')
    a('v_add_u32 v11, 4096, v11')
    a('s_lshl_b32 s4, s11, 13')
    a('v_add_u32 v9, s4, v9')
    a('v_add_u32 v10, s4, v10')
    a(f's_mul_i32 s4, s15, 43')
    a(f's_mul_i32 s5, s13, 3')
    a('s_add_u32 s4, s4, s5')
    a('s_lshl_b32 s4, s4, 10')
    a(f's_add_u32 s4, s4, {WS_H[L]}')
    a('s_lshl_b32 s7, s11, 11')
    a('s_add_u32 s7, s7, s4')
    a('s_lshl_b32 s8, s11, 3')
    a('s_add_u32 s8, s8, s4')
    a('s_add_u32 s8, s8, 1024')
    a('s_cmp_ge_u32 s13, 14')
    a(f's_cselect_b32 s8, {WS_DUMP}, s8')
    a('s_cselect_b32 s5, s11, 0')
    a('s_cmp_eq_u32 s13, 15')
    a('s_cselect_b32 s5, 1, s5')
    a('s_cmp_lg_u32 s5, 0')
    a(f's_cselect_b32 s7, {WS_DUMP}, s7')
    if OPT.get('otouch', 0):
        a('v_lshrrev_b32 v4, 3, v1')
        a('v_and_b32 v5, 7, v1')
        a(f'v_mul_u32_u24 v4, {43*KB}, v4')
        a('v_lshl_add_u32 v252, v5, 7, v4')
        p.touch = ['s_mov_b32 exec_hi, 0', f'buffer_load_dword v254, v252, {S4(SRD_W)}, s7 offen sc1',
                   f'buffer_load_dword v253, v252, {S4(SRD_W)}, s8 offen sc1', 's_mov_b64 exec, -1']
    a('s_mul_i32 s4, s11, 384')
    a(f's_add_u32 s4, s4, {CS3L}')
    a('v_lshl_add_u32 v16, v2, 4, s4')
    for i in range(4): a(f'v_mov_b32 v{ONES+i}, 0x3f803f80')
    for r in range(40, 160 if first else 136): a(f'v_mov_b32 v{r}, 0')

    def fx(s, t): return FR + 40 * s + 4 * t
    def fw(s, gs, i): return FR + 40 * s + 16 + 4 * (2 * i + gs)

    def reads(s, kk):
        wl = []
        for i in range(3):
            for gs in range(2):
                for h in range(2):
                    wl.append(rdtr(fw(s, gs, i) + 2 * h, vW + i, kk * p.sB + (2 * gs + h) * KB))
        xl = [rd128(fx(s, t), vX, kk * p.sA + t * KB) for t in range(4)]
        return wl[:2] + xl + wl[2:]

    cnt = [0]

    def mfmas(s):
        l = []
        for i in range(3):
            for gs, AC in ((0, ACG), (1, ACU)):
                for t in range(4):
                    d = AC + 12 * t + 4 * i
                    l.append(f'{MF} {R(d)}, {R(fw(s,gs,i))}, {R(fx(s,t))}, {R(d)}')
        if first:
            def csblk():
                cnt[0] += 1
                lab = f'L_cs{cnt[0]}_{name}'
                a(f's_cmp_eq_u32 s6, {s}')
                a(f's_cbranch_scc0 {lab}')
                a.begin_opt()
                for i in range(3):
                    for gs in range(2):
                        d = CS + 12 * gs + 4 * i
                        a(f'{MF} {R(d)}, {R(fw(s,gs,i))}, {R(ONES)}, {R(d)}')
                a.end_opt()
                a.label(lab)
            if OPT.get('cs3full', 0):
                for i in range(3):
                    for gs in range(2):
                        d = CS + 12 * gs + 4 * i
                        l.append(f'{MF} {R(d)}, {R(fw(s,gs,i))}, {R(ONES)}, {R(d)}')
            else: l.append(csblk)
        return l

    peel = OPT.get('peel3', 0) and OPT.get('cs3full', 0)
    if peel:
        a('s_lshl_b32 s4, s6, 8')
        a(f's_add_u32 s4, s4, {STB}')
        a(f'v_lshl_add_u32 v6, v3, 2, s4')
        a('v_lshlrev_b32 v4, 4, v1')
        if not first:
            for i in range(6):
                a(f'ds_read_b128 {R(CS+4*i)}, v16 offset:{64*i}')
            a.wait_lds_all()
    loop_big(a, p, fixed, cur, reads, mfmas, per=1, peel=peel)
    if peel:
        OUT = FR
        idx = [(i, hh) for i in range(3) for hh in range(2)]

        def mt(t):
            return [f'{MF} {R(AC+12*t+4*i)}, {R(fw(1,gs,i))}, {R(fx(1,t))}, {R(AC+12*t+4*i)}'
                    for i in range(3) for gs, AC in ((0, ACG), (1, ACU))]

        def ep(t):
            l = []
            for i, hh in idx:
                g = ACG + 12 * t + 4 * i + 2 * hh; u = ACU + 12 * t + 4 * i + 2 * hh
                l.append(pk('v_pk_fma_f32', g, MEAN + t, CS + 4 * i + 2 * hh, g, b0=0, neg0=True))
                l.append(pk('v_pk_fma_f32', u, MEAN + t, CS + 12 + 4 * i + 2 * hh, u, b0=0, neg0=True))
            for i, hh in idx:
                g = ACG + 12 * t + 4 * i + 2 * hh; u = ACU + 12 * t + 4 * i + 2 * hh
                l += [f'v_max_f32 v{g}, 0, v{g}', f'v_max_f32 v{g+1}, 0, v{g+1}', pk('v_pk_mul_f32', u, u, R2 + t, b1=0)]
            for i, hh in idx:
                g = ACG + 12 * t + 4 * i + 2 * hh; u = ACU + 12 * t + 4 * i + 2 * hh
                l.append(pk('v_pk_mul_f32', g, g, u))
            for i, hh in idx:
                g = ACG + 12 * t + 4 * i + 2 * hh
                l.append(f'v_cvt_pk_bf16_f32 v{OUT+8*t+2*i+hh}, v{g}, v{g+1}')
            l.append(f'buffer_store_dwordx4 {R(OUT+8*t)}, v4, {S4(SRD_W)}, s7 offen {stmod()}')
            l.append(f'buffer_store_dwordx2 {R(OUT+8*t+4,2)}, v4, {S4(SRD_W)}, s8 offen {stmod()}')
            if t < 3: l += [f's_add_u32 s7, s7, {43*KB}', f's_add_u32 s8, s8, {43*KB}']
            return l
        rd = []
        for t in range(4):
            rd += [f'ds_read_b32 v{MEAN+t}, v6 offset:{64*t}', f'ds_read_b32 v{RSTD+t}, v6 offset:{512+64*t}']
        m0 = (mfmas(1)[24:] if first else []) + mt(0) + mt(1)[:3]
        interleave(a, m0, rd, per=2)
        for t in range(4):
            a(f'v_mul_f32 v{R2+t}, v{RSTD+t}, v{RSTD+t}')
        pv = OPT.get('peelv', 5)
        interleave(a, mt(1)[3:] + mt(2)[:3], ep(0), per=pv)
        interleave(a, mt(2)[3:] + mt(3), ep(1), per=pv)
        for x in ep(2) + ep(3): a(x)
        if first:
            a('s_mov_b32 exec_lo, 0x00010001')
            a('s_mov_b32 exec_hi, 0x00010001')
            for i in range(6):
                a(f'ds_write_b128 v16, {R(CS+4*i)} offset:{64*i}')
            a('s_mov_b64 exec, -1')
        a.wait_lds_all()
        end_phase(a, p)
        return
    a('s_lshl_b32 s4, s6, 8')
    a(f's_add_u32 s4, s4, {STB}')
    a(f'v_lshl_add_u32 v6, v3, 2, s4')
    for t in range(4):
        a(f'ds_read_b32 v{MEAN+t}, v6 offset:{64*t}')
        a(f'ds_read_b32 v{RSTD+t}, v6 offset:{512+64*t}')
    if first and OPT.get('cs3full', 0):
        a('s_mov_b32 exec_lo, 0x00010001')
        a('s_mov_b32 exec_hi, 0x00010001')
        for i in range(6):
            a(f'ds_write_b128 v16, {R(CS+4*i)} offset:{64*i}')
        a('s_mov_b64 exec, -1')
    elif first:
        a(f's_mul_i32 s4, s3, 384')
        a(f's_add_u32 s4, s4, {CSX}')
        a('v_lshl_add_u32 v4, v2, 4, s4')
        a('s_xor_b32 s5, s3, 2')
        a(f's_mul_i32 s5, s5, 384')
        a(f's_add_u32 s5, s5, {CSX}')
        a('v_lshl_add_u32 v5, v2, 4, s5')
        a('s_mov_b32 exec_lo, 0x00010001')
        a('s_mov_b32 exec_hi, 0x00010001')
        for i in range(6):
            a(f'ds_write_b128 v4, {R(CS+4*i)} offset:{64*i}')
        a('s_mov_b64 exec, -1')
        a('s_waitcnt lgkmcnt(0)')
        a('s_barrier')
        for i in range(6):
            a(f'ds_read_b128 {R(FR+4*i)}, v5 offset:{64*i}')
        for i in range(12):
            a(pk('v_pk_add_f32', CS + 2 * i, CS + 2 * i, FR + 2 * i))
        a('s_mov_b32 exec_lo, 0x00010001')
        a('s_mov_b32 exec_hi, 0x00010001')
        for i in range(6):
            a(f'ds_write_b128 v16, {R(CS+4*i)} offset:{64*i}')
        a('s_mov_b64 exec, -1')
    else:
        for i in range(6):
            a(f'ds_read_b128 {R(CS+4*i)}, v16 offset:{64*i}')
    for t in range(4):
        a(f'v_mul_f32 v{R2+t}, v{RSTD+t}, v{RSTD+t}')
    a('v_lshlrev_b32 v4, 4, v1')
    a('s_mov_b32 s5, s7')
    a('s_mov_b32 s6, s8')
    OUT = FR
    for t in range(4):
        idx = [(i, hh) for i in range(3) for hh in range(2)]
        for i, hh in idx:
            g = ACG + 12 * t + 4 * i + 2 * hh; u = ACU + 12 * t + 4 * i + 2 * hh
            a(pk('v_pk_fma_f32', g, MEAN + t, CS + 4 * i + 2 * hh, g, b0=0, neg0=True))
            a(pk('v_pk_fma_f32', u, MEAN + t, CS + 12 + 4 * i + 2 * hh, u, b0=0, neg0=True))
        for i, hh in idx:
            g = ACG + 12 * t + 4 * i + 2 * hh; u = ACU + 12 * t + 4 * i + 2 * hh
            a(f'v_max_f32 v{g}, 0, v{g}')
            a(f'v_max_f32 v{g+1}, 0, v{g+1}')
            a(pk('v_pk_mul_f32', u, u, R2 + t, b1=0))
        for i, hh in idx:
            g = ACG + 12 * t + 4 * i + 2 * hh; u = ACU + 12 * t + 4 * i + 2 * hh
            a(pk('v_pk_mul_f32', g, g, u))
        for i, hh in idx:
            g = ACG + 12 * t + 4 * i + 2 * hh
            a(f'v_cvt_pk_bf16_f32 v{OUT+8*t+2*i+hh}, v{g}, v{g+1}')
        a(f'buffer_store_dwordx4 {R(OUT+8*t)}, v4, {S4(SRD_W)}, s5 offen {stmod()}')
        a(f'buffer_store_dwordx2 {R(OUT+8*t+4,2)}, v4, {S4(SRD_W)}, s6 offen {stmod()}')
        if t < 3:
            a(f's_add_u32 s5, s5, {43*KB}')
            a(f's_add_u32 s6, s6, {43*KB}')
    a.wait_lds_all()
    end_phase(a, p)


def build(opt=None, fn=None):
    global WS_X2, WS_ST2
    o = dict(opt or {})
    o.setdefault("sl", ((("s4l0","P",4),"q"),(("s3l0","P",2),"d"),(("s3l1","P",2),"d"),(("s1l0","E",0),"o"),(("s1l1","E",0),"o"),(("s1l0","P",4),"O")))
    o.setdefault('pretouch', 192)
    o.setdefault('gp', 1)
    o.setdefault('etk', 1)
    o.setdefault('prio', (2, 3, 1))
    o.setdefault('sleep', 0)
    o.setdefault('peel3', 1)
    o.setdefault('wcap', {'s1l0P8': 2, 's1l0X0': 2})
    o.setdefault('cs1full', 1)
    o.setdefault('cs3full', 1)
    o.setdefault('nrep', 16)
    o.setdefault('gsl', 16)
    o.setdefault('lt', ("s1l0","F",0))
    OPT.clear(); OPT.update(o)
    OPT.setdefault('amod', 'sc1')
    if o.get('reuse', 1):
        WS_PQ[0] = WS_PQ[1] = WS_H[0] = WS_H[1] = 8 * MB
        WS_X1[0] = WS_X1[1] = WS_X2 = 4 * MB
        WS_ST1[0] = WS_ST1[1] = WS_ST2
    else:
        WS_PQ[0], WS_PQ[1] = 26 * MB, 32 * MB
    TS['on'] = o.get('ts', False); TS['names'] = {}
    phases = [Ph(ph, L, o) for L in range(2) for ph in (1, 2, 3, 4)]
    bars = ['T']
    for p in phases:
        ql = o.get('qlate', 1)
        if p.ph == 2 and not ql: bars.append((p.name, 'F', 0))
        for c in range(p.NC + 1): bars.append((p.name, 'P', c))
        for x in range(p.nX): bars.append((p.name, 'X', x))
        if not p.final: bars.append((p.name, 'E', 0))
        if p.ph == 1 and ql: bars += [(p.name, 'F', 0), (p.name, 'G', 0)]
    a = Asm()
    entry(a)
    hist = list(a.hist)
    steps = bloader(a, phases, bars)
    a.hist = list(hist)
    aloader(a, phases)
    a.hist = list(hist)
    TS['role'] = 'C'
    a.label('L_comp')
    for p in phases:
        {1: comp_s1q if OPT.get('qlate', 1) else comp_s1, 2: comp_g if OPT.get('qlate', 1) else comp_s24, 3: comp_s3,
         4: comp_g if OPT.get('g4', 1) else comp_s24}[p.ph](a, p)
    ts_flush(a)
    a.label('L_end')
    a('s_endpgm')
    name = 'interleave_layers__linear_attn_block__glu_gated_reglu__prompt_kernel'
    s = '; interleaved linear-attention / ReGLU layers: one persistent kernel (generated)\n'
    s += f'; @launch grid=(256,1,1) block=(512,1,1) lds={LDS_BYTES}\n'
    s += '.amdgcn_target "amdgcn-amd-amdhsa--gfx950"\n'
    s += kernel_text(name, a.text(), 256)
    if fn:
        open(fn, 'w').write(s)
        if TS['on']: json.dump(TS['names'], open(fn + '.ts.json', 'w'))
    if o.get('verbose'):
        for st in steps: print(st)
    return s


if __name__ == '__main__':
    fn = sys.argv[1]
    opt = {}
    for kv in sys.argv[2:]:
        k, v = kv.split('=', 1)
        opt[k] = eval(v)
    s = build(opt, fn=fn)
    print('bytes', len(s), 'lines', s.count('\n'))
```
